```python
import torch

def _softmax(x, axis=-1):
    return torch.softmax(x, dim=axis)
def _gelu(x):
    return torch.nn.functional.gelu(x, approximate="tanh")
def _silu(x):
    return torch.nn.functional.silu(x)
def _sigmoid(x):
    return torch.sigmoid(x)
def _layernorm(x, axis=-1, eps=1e-5):
    m = x.mean(dim=axis, keepdim=True)
    v = x.var(dim=axis, keepdim=True, unbiased=False)
    return (x - m) / torch.sqrt(v + eps)
def _scatter_add(tgt, idx, src, axis=0):
    return tgt.clone().index_add_(axis, idx, src)
def _segment_sum(src, seg, n):
    out = torch.zeros((n,) + src.shape[1:], dtype=src.dtype)
    return out.index_add_(0, seg, src)
def _pad(x, pw):
    flat = tuple(v for pair in reversed(pw) for v in pair)
    return torch.nn.functional.pad(x, flat)

kernel_name = 'gated_mix__ssm_conv_s4d__ssm_conv_s5__prompt'

def setup_inputs():

    _w = (lambda a: (lambda t: t.to(torch.bfloat16) if t.is_floating_point() else t)(torch.as_tensor(a)))
    def _A_setup():
        Bsz, L, D, N = 1, 2048, 640, 128
        return {
            "u": _w((lambda *s: torch.randn(*s, dtype=torch.bfloat16) * 0.05)(Bsz, L, D)),
            "log_A_real": _w((lambda *s: torch.randn(*s, dtype=torch.bfloat16) * 3.2)(D, N) * 0.5),
            "A_imag": _w((lambda *s: torch.randn(*s, dtype=torch.bfloat16) * 0.05)(D, N) * 3.14),
            "C_real": _w((lambda *s: torch.randn(*s, dtype=torch.bfloat16) * 0.1)(D, N) / N ** 0.5),
            "C_imag": _w((lambda *s: torch.randn(*s, dtype=torch.bfloat16) * 0.1)(D, N) / N ** 0.5),
            "log_dt": _w((lambda *s: torch.randn(*s, dtype=torch.bfloat16) * 0.05)(D) * 0.5 - 4.0),
            "D_skip": _w((lambda *s: torch.randn(*s, dtype=torch.bfloat16) * 0.05)(D)),
        }
    _A_in = _A_setup()

    def _B_setup():
        B, S, D = 1, 2048, 640
        P = D
        Lambda_re = -0.5 * (lambda _x: torch.exp(torch.as_tensor(_x)))((lambda *s: torch.randn(*s, dtype=torch.bfloat16) * 0.2)(P))
        Lambda_im = (lambda *s: torch.randn(*s, dtype=torch.bfloat16) * 0.4)(P) * 1.0
        B_re = (lambda *s: torch.randn(*s, dtype=torch.bfloat16) * 0.2)(P, D) * (D ** -0.5)
        B_im = (lambda *s: torch.randn(*s, dtype=torch.bfloat16) * 0.2)(P, D) * (D ** -0.5)
        C_re = (lambda *s: torch.randn(*s, dtype=torch.bfloat16) * 0.2)(D, P) * (P ** -0.5)
        C_im = (lambda *s: torch.randn(*s, dtype=torch.bfloat16) * 0.2)(D, P) * (P ** -0.5)
        log_dt = (lambda *s: torch.randn(*s, dtype=torch.bfloat16) * 0.2)(P) * 0.3 - 2.0
        Dskip = (lambda *s: torch.randn(*s, dtype=torch.bfloat16) * 0.05)(D)
        return {
            "x": _w((lambda *s: torch.randn(*s, dtype=torch.bfloat16) * 0.05)(B, S, D)),
            "Lambda_re": _w(Lambda_re),
            "Lambda_im": _w(Lambda_im),
            "B_re": _w(B_re),
            "B_im": _w(B_im),
            "C_re": _w(C_re),
            "C_im": _w(C_im),
            "log_dt": _w(log_dt),
            "Dskip": _w(Dskip),
        }
    _B_in = _B_setup()

    return {
        "A_u": _A_in["u"],
        "A_log_A_real": _A_in["log_A_real"],
        "A_A_imag": _A_in["A_imag"],
        "A_C_real": _A_in["C_real"],
        "A_C_imag": _A_in["C_imag"],
        "A_log_dt": _A_in["log_dt"],
        "A_D_skip": _A_in["D_skip"],
        "B_x": _B_in["x"],
        "B_Lambda_re": _B_in["Lambda_re"],
        "B_Lambda_im": _B_in["Lambda_im"],
        "B_B_re": _B_in["B_re"],
        "B_B_im": _B_in["B_im"],
        "B_C_re": _B_in["C_re"],
        "B_C_im": _B_in["C_im"],
        "B_log_dt": _B_in["log_dt"],
        "B_Dskip": _B_in["Dskip"],
        "gate_w": _w((lambda *s: torch.randn(*s, dtype=torch.bfloat16) * 0.05)(640) * 16.0),
    }

def reference(A_u, A_log_A_real, A_A_imag, A_C_real, A_C_imag, A_log_dt, A_D_skip, B_x, B_Lambda_re, B_Lambda_im, B_B_re, B_B_im, B_C_re, B_C_im, B_log_dt, B_Dskip, gate_w):
    def _A_ref(u, log_A_real, A_imag, C_real, C_imag, log_dt, D_skip):
        L = u.shape[1]
        dt = torch.exp(log_dt)
        A = -torch.exp(log_A_real) + 1j * A_imag
        C = (C_real + 1j * C_imag) * dt[:, None]
        pos = (lambda x, dt: x.to(dt))(torch.arange(L), log_dt.dtype)
        P = torch.exp((A * dt[:, None])[:, :, None] * pos[None, None, :])
        K = 2.0 * torch.einsum("dn,dnl->dl", C, P).real
        L2 = 2 * L
        u_t = (lambda x, *d: x.permute(*d))(u, 0, 2, 1)
        Kf = (lambda x, *a, **k: torch.fft.rfft(x.float(), *a, **k))(K, L2)
        Uf = (lambda x, *a, **k: torch.fft.rfft(x.float(), *a, **k))(u_t, L2)
        y = (lambda x, *a, **k: torch.fft.irfft(x, *a, **k).to(torch.bfloat16))(Uf * Kf[None, :, :], L2)[:, :, :L]
        y = (lambda x, *d: x.permute(*d))(y, 0, 2, 1)
        return y + u * D_skip[None, None, :]

    def _B_ref(x, Lambda_re, Lambda_im, B_re, B_im, C_re, C_im, log_dt, Dskip):
        Bsz, L, H = x.shape
        Lam = Lambda_re + 1j * Lambda_im
        Bmat = B_re + 1j * B_im
        Cmat = C_re + 1j * C_im
        dt = torch.exp(log_dt)
        Lam_bar = torch.exp(dt * Lam)
        B_bar = ((Lam_bar - 1.0) / Lam)[:, None] * Bmat
        Bu = torch.einsum("bld,pd->blp", x + 0j, B_bar)
        h = torch.zeros_like(Bu[:, 0, :])
        hs = []
        for t in range(L):
            h = Lam_bar[None, :] * h + Bu[:, t, :]
            hs.append(h)
        hseq = torch.stack(hs, 1)
        y = 2.0 * torch.einsum("blp,dp->bld", hseq, Cmat).real + x * Dskip[None, None, :]
        return y

    x = A_u
    g = _sigmoid((x * gate_w).sum(-1, keepdims=True))
    a = _A_ref(x, A_log_A_real, A_A_imag, A_C_real, A_C_imag, A_log_dt, A_D_skip)
    b = _B_ref(x, B_Lambda_re, B_Lambda_im, B_B_re, B_B_im, B_C_re, B_C_im, B_log_dt, B_Dskip)
    return g * a + (1 - g) * b
```

```python
NAME = "gated_mix__ssm_conv_s4d__ssm_conv_s5__prompt"

class Asm:
    def __init__(self):
        self.lines = []
        self.lab = 0
    def __call__(self, s=""):
        for ln in s.split("\n"):
            ln = ln.strip()
            if ln: self.lines.append(ln if ln.endswith(":") else "    " + ln)
    def c(self, s):
        self.lines.append("    ; " + s)
    def label(self, base="L"):
        self.lab += 1
        return f"{base}_{self.lab}"
    def text(self):
        return "\n".join(self.lines) + "\n"

def vr(a, n=1):
    return f"v{a}" if n == 1 else f"v[{a}:{a+n-1}]"
def sr(a, n=1):
    return f"s{a}" if n == 1 else f"s[{a}:{a+n-1}]"

WS_E    = 0x0
WS_FLAG = 0x40000
WS_AFLG = 0x41000
WS_G    = 0x50000
WS_H    = 0x100000
WS_A    = 0x600000
WS_SIZE = 0x900000

P_X, P_LOGA, P_AIM, P_CRE, P_CIM, P_LOGDT, P_DSKA, P_BX = 36, 38, 40, 42, 44, 46, 48, 50
P_LRE, P_LIM, P_BRE, P_BIM, P_C2RE, P_C2IM, P_LOGDTB, P_DSKB = 52, 54, 56, 58, 60, 62, 64, 66
P_GW, P_OUT, P_DBG, P_WS = 68, 70, 72, 74

S_WG, S_WAVE = 2, 3
SRD_X, SRD_WS, SRD_A, SRD_B, SRD_C, SRD_DBG = 4, 8, 12, 16, 20, 24
S_NONCE = 28

LOG2E = 1.4426950408889634
import struct
def f2u(f):
    return struct.unpack("<I", struct.pack("<f", f))[0]
def fhex(f):
    return "0x%08x" % f2u(f)
LOG2E_HI = struct.unpack("<f", struct.pack("<f", LOG2E))[0]
LOG2E_LO = LOG2E - LOG2E_HI
LN2 = 0.6931471805599453
INV2PI = 0.15915494309189535

def make_srd(a, dst, ptr, nbytes):
    a(f"s_mov_b32 s{dst}, s{ptr}")
    a(f"s_and_b32 s{dst+1}, s{ptr+1}, 0xffff")
    a(f"s_mov_b32 s{dst+2}, {nbytes}")
    a(f"s_mov_b32 s{dst+3}, 0x00020000")

def exp_accurate(a, dst, x, t0, t1, t2):
    a(f"v_mul_f32 v{t0}, {fhex(LOG2E_HI)}, v{x}")
    a(f"s_mov_b32 s34, {fhex(LOG2E_HI)}")
    a(f"v_fma_f32 v{t1}, v{x}, s34, -v{t0}")
    a(f"v_fmac_f32 v{t1}, {fhex(LOG2E_LO)}, v{x}")
    a(f"v_exp_f32 v{t2}, v{t0}")
    a(f"v_mul_f32 v{t1}, {fhex(LN2)}, v{t1}")
    a(f"s_nop 0")
    a(f"v_fma_f32 v{dst}, v{t2}, v{t1}, v{t2}")

def round_bf16(a, dst, x):
    a(f"v_cvt_pk_bf16_f32 v{dst}, v{x}, v{x}")
    a(f"v_and_b32 v{dst}, 0xffff0000, v{dst}")

def poll_timeout(a, scnt, fail_label):
    a(f"s_sub_u32 s{scnt}, s{scnt}, 1")
    a(f"s_cbranch_scc1 {fail_label}")

def wrap(body, grid=256, block=512, lds=163840, vgpr=256, sgpr=102):
    accum = min(256, (vgpr + 3) // 4 * 4)
    hdr = open("cdna_kernels/" + NAME + ".s.ref").read().split("; Override launch")[0]
    return f"""{hdr}; @launch grid=({grid},1,1) block=({block},1,1) lds={lds}
.amdgcn_target "amdgcn-amd-amdhsa--gfx950"
.text
.globl {NAME}_kernel
.p2align 8
.type {NAME}_kernel,@function
{NAME}_kernel:
{body}
.section .rodata,"a"
.p2align 6
.amdhsa_kernel {NAME}_kernel
  .amdhsa_next_free_vgpr {vgpr}
  .amdhsa_next_free_sgpr {sgpr}
  .amdhsa_accum_offset {accum}
  .amdhsa_group_segment_fixed_size 0
  .amdhsa_kernarg_size 160
  .amdhsa_user_sgpr_count 2
  .amdhsa_user_sgpr_kernarg_segment_ptr 1
  .amdhsa_system_sgpr_workgroup_id_x 1
.end_amdhsa_kernel
"""

PROF = {"on": False}
WS_PROF = 0x8C0000
V_PROF = 255
def stamp(a, k):
    if not PROF["on"]: return
    a("s_memrealtime s[96:97]")
    a("s_waitcnt lgkmcnt(0)")
    a(f"v_writelane_b32 v{V_PROF}, s96, {k}")
def prof_end(a, wave_cond=0):
    if not PROF["on"]: return
    lab = a.label("PEND")
    a(f"s_cmp_lg_u32 s{S_WAVE}, {wave_cond}")
    a(f"s_cbranch_scc1 {lab}")
    a("v_and_b32 v254, 63, v0")
    a("v_lshlrev_b32 v254, 2, v254")
    a("s_lshl_b32 s96, s2, 7")
    a(f"s_add_u32 s96, s96, {WS_PROF}")
    a("s_mov_b32 exec_lo, -1")
    a("s_mov_b32 exec_hi, 0")
    a(f"buffer_store_dword v{V_PROF}, v254, s[{SRD_WS}:{SRD_WS+3}], s96 offen")
    a("s_mov_b64 exec, -1")
    a(f"{lab}:")
```

```python
from common import *
from g1 import V_LANE, S_CNT, S_EXEC, S_MISM, interleave
from gate import get_nonce

RSZ = 20480
U_OFF = 80
T_OFF = 5200
W_OFF = T_OFF
CS = 2112
R_OFF = T_OFF + 4*CS

S_IDX, S_D, S_RB = 30, 31, 32

def slot_alpha(i):
    q, g, e = i >> 3, (i >> 2) & 1, i & 3
    if q == 0: return 4*g + e
    if q == 1: return 1024 + 256*(2*g + (e >> 1)) + 8*(e & 1)
    if q == 2: return None if e == 3 else 512 + 256*g + 4*e
    if q == 3: return None if e == 3 else 256 + 4*g + 2*e
XROW = {}
for i in range(32):
    al = slot_alpha(i)
    if al is None: continue
    if i == 28: continue
    XROW[al] = i
assert slot_alpha(28) == 260 and slot_alpha(26) == 260
def yrow(b):
    return 31 + b if b <= 27 else min(19 + 4*(b-28), 28)

def pcmul(a, d, x, y):
    a(f"v_pk_mul_f32 v[{d}:{d+1}], v[{x}:{x+1}], v[{y}:{y+1}] op_sel:[0,0] op_sel_hi:[0,1]")
    a(f"v_pk_fma_f32 v[{d}:{d+1}], v[{x}:{x+1}], v[{y}:{y+1}], v[{d}:{d+1}] op_sel:[1,1,0] op_sel_hi:[1,0,1] neg_lo:[1,0,0]")

V_U = 16
V_PRM = 32
V_AW = 40
V_AA_ = 56
V_ACC_ = 64
V_AB_ = 96
V_E = 104
V_E256 = 120
V_B0, V_B1 = 122, 124
V_Y0, V_Y1 = 126, 128
V_X = 130
V_CP = 132
V_T_ = 134
V_FRK = 150
V_DT = 166
V_DSK = 167
V_PK = 168

def Ek(k): return V_E + 2*(k-1)

def cis_exp(a, d, zr2, zi, p, t):
    if p == 1:
        a(f"v_exp_f32 v{t}, v{zr2}")
        a(f"v_fract_f32 v{t+1}, v{zi}")
    else:
        a(f"v_mul_f32 v{t}, {float(p)}, v{zr2}" if p <= 64 else f"v_mul_f32 v{t}, {fhex(float(p))}, v{zr2}")
        a(f"v_mul_f32 v{t+1}, {fhex(float(p))}, v{zi}")
        a(f"v_exp_f32 v{t}, v{t}")
        a(f"v_fract_f32 v{t+1}, v{t+1}")
    a(f"v_cos_f32 v{t+2}, v{t+1}")
    a(f"v_sin_f32 v{t+3}, v{t+1}")
    a(f"s_nop 0")
    a(f"v_mul_f32 v{d}, v{t}, v{t+2}")
    a(f"v_mul_f32 v{d+1}, v{t}, v{t+3}")

class TabWriter:
    def __init__(self, a): self.a = a; self.k = 0
    def put(self, row, pair, neg):
        t = V_PK + (self.k % 4); self.k += 1
        self.a(f"v_cvt_pk_bf16_f32 v{t}, v{pair}, {'-' if neg else ''}v{pair+1}")
        self.a(f"ds_write_b32 v{V_AW + (row & 15)}, v{t} offset:{row*256}")

def kgen_pass(a, hh):
    T = V_T_
    a.c(f"K-gen pass {hh}")
    for k in range(4):
        if hh == 0: a(f"v_lshlrev_b32 v{T+k}, 16, v{V_PRM+k}")
        else:       a(f"v_and_b32 v{T+k}, 0xffff0000, v{V_PRM+k}")
    exp_accurate(a, T, T, T+4, T+5, T+6)
    round_bf16(a, T, T)
    a(f"v_mul_f32 v{T}, -v{T}, v{V_DT}")
    a(f"v_mul_f32 v{T+1}, v{T+1}, v{V_DT}")
    a(f"v_mul_f32 v{T}, {fhex(LOG2E)}, v{T}")
    a(f"v_mul_f32 v{T+1}, {fhex(INV2PI)}, v{T+1}")
    a(f"v_mul_f32 v{T+2}, v{T+2}, v{V_DT}")
    a(f"v_mul_f32 v{T+3}, v{T+3}, v{V_DT}")
    a(f"v_add_f32 v{V_B0}, v{T+2}, v{T+2}")
    a(f"v_add_f32 v{V_B0+1}, v{T+3}, v{T+3}")
    cis_exp(a, Ek(1), T, T+1, 1, T+4)
    cis_exp(a, V_E256, T, T+1, 256, T+8)
    tw = TabWriter(a)
    pcmul(a, Ek(2), Ek(1), Ek(1))
    tw.put(XROW[0], V_B0, True)
    pcmul(a, Ek(3), Ek(2), Ek(1))
    pcmul(a, Ek(4), Ek(2), Ek(2))
    pcmul(a, Ek(5), Ek(4), Ek(1))
    pcmul(a, Ek(6), Ek(4), Ek(2))
    pcmul(a, Ek(7), Ek(4), Ek(3))
    pcmul(a, Ek(8), Ek(4), Ek(4))
    xs = [V_X, V_CP]
    n = 0
    def xput(base, k, alpha):
        nonlocal n
        d = xs[n & 1]; n += 1
        pcmul(a, d, base, Ek(k))
        tw.put(XROW[alpha], d, True)
    for al in range(1, 8): xput(V_B0, al, al)
    a(f"v_mov_b32 v{V_PK}, 0x00003f80")
    a(f"ds_write_b32 v{V_AW + (yrow(0) & 15)}, v{V_PK} offset:{yrow(0)*256}")
    tw.k = 1
    tw.put(yrow(1), Ek(8), False)
    cur, nxt = Ek(8), V_Y0
    ycount = 2
    def ystep():
        nonlocal cur, nxt, ycount
        if ycount > 31: return
        pcmul(a, nxt, cur, Ek(8))
        tw.put(yrow(ycount), nxt, False)
        cur = nxt
        nxt = V_Y1 if nxt == V_Y0 else V_Y0
        ycount += 1
    bcur, bnxt = V_B0, V_B1
    for kb in range(1, 8):
        pcmul(a, bnxt, bcur, V_E256)
        bcur, bnxt = bnxt, bcur
        base_al = 256*kb
        tw.put(XROW[base_al], bcur, True)
        ystep()
        if kb == 1: ks = [2, 4, 6, 8]
        elif kb in (2, 3): ks = [4, 8]
        else: ks = [8]
        for k in ks:
            xput(bcur, k, base_al + k)
            ystep()
    while ycount <= 31: ystep()
    a(f"s_waitcnt lgkmcnt(0)")
    def rd(ks):
        st = V_FRK + 8*(ks & 1)
        return [f"ds_read_b128 v[{st}:{st+3}], v{V_AA_+ks}", f"ds_read_b128 v[{st+4}:{st+7}], v{V_AB_+ks}"]
    for ins in rd(0): a(ins)
    for ks in range(8):
        if ks + 1 < 8:
            for ins in rd(ks+1): a(ins)
            a(f"s_waitcnt lgkmcnt(2)")
        else:
            a(f"s_waitcnt lgkmcnt(0)")
        st = V_FRK + 8*(ks & 1)
        c = "0" if (hh == 0 and ks == 0) else f"v[{V_ACC_}:{V_ACC_+15}]"
        a(f"v_mfma_f32_32x32x16_bf16 v[{V_ACC_}:{V_ACC_+15}], v[{st}:{st+3}], v[{st+4}:{st+7}], {c}")

def build_W(a, off_elems, vsrc, vdst, nunits_last):
    S = 104
    for it in range(3):
        if it == 2:
            a(f"s_mov_b64 s[{S_EXEC}:{S_EXEC+1}], exec")
            a(f"s_mov_b64 exec, {(1 << nunits_last) - 1}")
        o = off_elems*2 + it*1024
        a(f"ds_read_b128 v[{S}:{S+3}], v{vsrc} offset:{o}")
        a(f"ds_read_b128 v[{S+4}:{S+7}], v{vsrc} offset:{o+16}")
        a(f"s_waitcnt lgkmcnt(0)")
        a(f"ds_write_b128 v{vdst}, v[{S}:{S+3}] offset:{it*1024}")
        for k in range(4): a(f"v_alignbyte_b32 v{112+k}, v{S+k+1}, v{S+k}, 2")
        a(f"ds_write_b128 v{vdst}, v[112:115] offset:{CS + it*1024}")
        for k in range(4): a(f"v_mov_b32 v{116+k}, v{S+k+1}")
        a(f"ds_write_b128 v{vdst}, v[116:119] offset:{2*CS + it*1024}")
        for k in range(4): a(f"v_alignbyte_b32 v{120+k}, v{S+k+2}, v{S+k+1}, 2")
        a(f"ds_write_b128 v{vdst}, v[120:123] offset:{3*CS + it*1024}")
        if it == 2:
            a(f"s_mov_b64 exec, s[{S_EXEC}:{S_EXEC+1}]")

V_CA = 40
V_CP31 = 41
V_CQ = 42
V_CZ = 43
V_CQC = 44
V_CF = 104

def conv_phase(a, phase):
    subs = [(d, h) for d in range(32) for h in range(2)]
    nrd = 4 if phase == 1 else 3
    def qreg(d): return V_CQC + (d % 3)
    def addr_ops(d):
        if d == 0:
            return [f"v_max_i32 v{qreg(0)}, v{V_CQ}, v{V_CZ}"]
        return [f"v_subrev_u32 v{V_CQ}, 80, v{V_CQ}", f"v_max_i32 v{qreg(d)}, v{V_CQ}, v{V_CZ}"]
    def reads(s):
        d, h = subs[s]
        st = V_CF + 12*(s % 3)
        o = 64*(31-d) + 32*h
        L = [f"ds_read_b64 v[{st}:{st+1}], v{V_CA} offset:{o}",
             f"ds_read_b64 v[{st+2}:{st+3}], v{V_CA} offset:{o+8}",
             f"ds_read_b128 v[{st+4}:{st+7}], v{qreg(d)} offset:{32*h}"]
        if phase == 1:
            L.append(f"ds_read_b128 v[{st+8}:{st+11}], v{V_CP31} offset:{80*(31-d) + 32*h}")
        return L
    def mf(s):
        st = V_CF + 12*(s % 3)
        a0, a1 = V_ACC_, V_ACC_+16
        if phase == 1:
            c0 = "0" if s == 0 else f"v[{a0}:{a0+15}]"
            c1 = "0" if s == 0 else f"v[{a1}:{a1+15}]"
            return [f"v_mfma_f32_32x32x16_bf16 v[{a0}:{a0+15}], v[{st}:{st+3}], v[{st+4}:{st+7}], {c0}",
                    f"v_mfma_f32_32x32x16_bf16 v[{a1}:{a1+15}], v[{st}:{st+3}], v[{st+8}:{st+11}], {c1}"]
        return [f"v_mfma_f32_32x32x16_bf16 v[{a1}:{a1+15}], v[{st}:{st+3}], v[{st+4}:{st+7}], v[{a1}:{a1+15}]"]
    for ins in addr_ops(0): a(ins)
    for ins in reads(0): a(ins)
    for ins in reads(1): a(ins)
    for ins in addr_ops(1): a(ins)
    N = len(subs)
    for s in range(N):
        if s == N-1: a("s_waitcnt lgkmcnt(0)")
        else: a(f"s_waitcnt lgkmcnt({nrd})")
        fill = []
        if s + 2 < N:
            fill += reads(s+2)
            d2, h2 = subs[s+2]
            if h2 == 1 and d2 + 1 < 32:
                fill += addr_ops(d2 + 1)
        interleave(a, mf(s), fill)

def gen_conv(a, END, opts):
    a.c("================= CONV role =================")
    a("s_mul_i32 s30, s30, 10")
    a("s_add_u32 s30, s30, s31")
    a(f"s_sub_u32 s{S_IDX}, s30, 20")
    a(f"s_lshl_b32 s{S_D}, s{S_IDX}, 3")
    a(f"s_add_u32 s{S_D}, s{S_D}, s{S_WAVE}")
    a(f"s_mul_i32 s{S_RB}, s{S_WAVE}, {RSZ}")
    T = V_T_
    a(f"v_lshlrev_b32 v2, 2, v{V_LANE}")
    a(f"s_lshl_b32 s33, s{S_D}, 8")
    for k, P in enumerate([P_LOGA, P_AIM, P_CRE, P_CIM]):
        make_srd(a, SRD_A, P, 163840)
        a(f"buffer_load_dword v{V_PRM+k}, v2, s[{SRD_A}:{SRD_A+3}], s33 offen")
    a(f"s_lshl_b32 s33, s{S_D}, 1")
    a(f"v_mov_b32 v3, 0")
    make_srd(a, SRD_A, P_LOGDT, 1280)
    a(f"buffer_load_ushort v{V_PRM+4}, v3, s[{SRD_A}:{SRD_A+3}], s33 offen")
    make_srd(a, SRD_B, P_DSKA, 1280)
    a(f"buffer_load_ushort v{V_PRM+5}, v3, s[{SRD_B}:{SRD_B+3}], s33 offen")
    a(f"v_mul_u32_u24 v4, 1280, v{V_LANE}")
    a(f"s_mul_i32 s33, s{S_WAVE}, {256*1280}")
    a(f"s_lshl_b32 s34, s{S_IDX}, 4")
    a(f"s_add_u32 s33, s33, s34")
    for i in range(4):
        a(f"s_add_u32 s34, s33, {i*64*1280}")
        a(f"buffer_load_dwordx4 v[{V_U+4*i}:{V_U+4*i+3}], v4, s[{SRD_X}:{SRD_X+3}], s34 offen")
    a(f"s_add_u32 s33, s{S_RB}, {T_OFF}")
    for m in range(16):
        a(f"v_xor_b32 v{V_AW+m}, {m << 4}, v2")
        a(f"v_add_u32 v{V_AW+m}, s33, v{V_AW+m}")
    a(f"v_and_b32 v5, 31, v{V_LANE}")
    a(f"v_lshrrev_b32 v6, 5, v{V_LANE}")
    a(f"v_mov_b32 v7, 26")
    a(f"v_cmp_eq_u32 vcc, 28, v5")
    a("s_nop 1")
    a(f"v_cndmask_b32 v7, v5, v7, vcc")
    a(f"v_and_b32 v8, 15, v7")
    a(f"v_xor_b32 v8, v8, v6")
    a(f"v_lshlrev_b32 v8, 4, v8")
    a(f"v_lshl_add_u32 v8, v7, 8, v8")
    for ks in range(8):
        a(f"v_xor_b32 v{V_AA_+ks}, {ks << 5}, v8")
        a(f"v_add_u32 v{V_AA_+ks}, s33, v{V_AA_+ks}")
    a(f"v_add_u32 v7, 31, v5")
    a(f"v_lshlrev_b32 v8, 2, v5")
    a(f"v_subrev_u32 v8, {4*28-19}, v8")
    a(f"v_min_i32 v8, 28, v8")
    a(f"v_cmp_lt_u32 vcc, 27, v5")
    a("s_nop 1")
    a(f"v_cndmask_b32 v7, v7, v8, vcc")
    a(f"v_and_b32 v8, 15, v7")
    a(f"v_xor_b32 v8, v8, v6")
    a(f"v_lshlrev_b32 v8, 4, v8")
    a(f"v_lshl_add_u32 v8, v7, 8, v8")
    for ks in range(8):
        a(f"v_xor_b32 v{V_AB_+ks}, {ks << 5}, v8")
        a(f"v_add_u32 v{V_AB_+ks}, s33, v{V_AB_+ks}")
    stamp(a, 1)
    a("s_waitcnt vmcnt(4)")
    stamp(a, 2)
    a(f"v_lshlrev_b32 v{V_DT}, 16, v{V_PRM+4}")
    exp_accurate(a, V_DT, V_DT, T, T+1, T+2)
    round_bf16(a, V_DT, V_DT)
    a(f"v_lshlrev_b32 v{V_DSK}, 16, v{V_PRM+5}")
    kgen_pass(a, 0)
    stamp(a, 3)
    a.c("U staging")
    a("s_waitcnt vmcnt(0)")
    a(f"v_lshrrev_b32 v2, 5, v{V_LANE}")
    a(f"s_lshl_b32 s33, s{S_WAVE}, 3")
    a(f"v_add_u32 v2, s33, v2")
    a(f"v_mul_u32_u24 v2, 80, v2")
    a(f"v_and_b32 v3, 31, v{V_LANE}")
    a(f"v_lshl_add_u32 v2, v3, 1, v2")
    a(f"v_add_u32 v2, {U_OFF}, v2")
    a(f"v_add_u32 v3, {3*RSZ}, v2")
    a(f"v_add_u32 v4, {6*RSZ}, v2")
    for i in range(4):
        for ch in range(8):
            base = [2, 3, 4][ch // 3]
            off = (ch % 3)*RSZ + i*160
            op = "ds_write_b16" if ch % 2 == 0 else "ds_write_b16_d16_hi"
            a(f"{op} v{base}, v{V_U + 4*i + ch//2} offset:{off}")
    a(f"v_mov_b32 v8, 0\nv_mov_b32 v9, 0\nv_mov_b32 v10, 0\nv_mov_b32 v11, 0")
    a(f"v_lshlrev_b32 v5, 4, v{V_LANE}")
    a(f"v_add_u32 v5, s{S_RB}, v5")
    a(f"s_mov_b64 s[{S_EXEC}:{S_EXEC+1}], exec")
    a(f"s_mov_b64 exec, 31")
    a(f"ds_write_b128 v5, v[8:11]")
    a(f"s_mov_b64 exec, s[{S_EXEC}:{S_EXEC+1}]")
    a("s_waitcnt lgkmcnt(0)")
    a("s_barrier")
    if opts.get("prio", True):
        lab = a.label("PRIO")
        a(f"s_cmp_ge_u32 s{S_WAVE}, 4")
        a(f"s_cbranch_scc1 {lab}")
        a("s_setprio 2")
        a(f"{lab}:")
    stamp(a, 4)
    kgen_pass(a, 1)
    stamp(a, 5)
    a.c("expand K -> R")
    a("s_nop 7\ns_nop 7")
    A = V_ACC_
    a(f"v_and_b32 v5, 31, v{V_LANE}")
    a(f"v_lshrrev_b32 v6, 5, v{V_LANE}")
    a(f"s_add_u32 s33, s{S_RB}, {R_OFF}")
    a(f"v_lshlrev_b32 v7, 4, v5")
    a(f"v_lshl_add_u32 v7, v6, 3, v7")
    a(f"v_sub_u32 v7, 3576, v7")
    a(f"v_add_u32 v7, s33, v7")
    a(f"v_cvt_pk_bf16_f32 v8, v{A+3}, v{A+2}")
    a(f"v_cvt_pk_bf16_f32 v9, v{A+1}, v{A+0}")
    a(f"ds_write_b64 v7, v[8:9] offset:512")
    a(f"v_cvt_pk_bf16_f32 v10, v{A+14}, v{A+13}")
    a(f"v_cvt_pk_bf16_f32 v11, v{A+12}, v{A+12}")
    a(f"ds_write_b64 v7, v[10:11]")
    a(f"v_lshlrev_b32 v7, 4, v5")
    a(f"v_lshl_add_u32 v7, v6, 9, v7")
    a(f"v_sub_u32 v7, 3056, v7")
    a(f"v_add_u32 v7, s33, v7")
    a(f"v_cvt_pk_bf16_f32 v12, v{A+10}, v{A+10}")
    a(f"v_cvt_pk_bf16_f32 v13, v{A+9}, v{A+9}")
    a(f"v_cvt_pk_bf16_f32 v14, v{A+9}, v{A+8}")
    a(f"v_cvt_pk_bf16_f32 v15, v{A+8}, v{A+8}")
    a(f"ds_write_b128 v7, v[12:15]")
    a(f"v_lshlrev_b32 v7, 4, v5")
    a(f"v_lshl_add_u32 v7, v6, 10, v7")
    a(f"v_sub_u32 v7, 1520, v7")
    a(f"v_add_u32 v7, s33, v7")
    a(f"v_and_b32 v8, 1, v5")
    a(f"v_cmp_eq_u32 vcc, 1, v8")
    for ap in range(2):
        V, Vp = A+4+2*ap, A+5+2*ap
        r = 16 + 4*ap
        a(f"v_cndmask_b32 v2, v{V}, v{Vp}, vcc")
        a(f"v_cvt_pk_bf16_f32 v{r}, v{Vp}, v{Vp}")
        a(f"v_cvt_pk_bf16_f32 v{r+1}, v{Vp}, v2")
        a(f"v_cvt_pk_bf16_f32 v{r+2}, v{V}, v{V}")
        a(f"v_mov_b32 v{r+3}, v{r+2}")
        a(f"ds_write_b128 v7, v[{r}:{r+3}] offset:{512*(1-ap)}")
    a(f"v_mov_b32 v8, 0\nv_mov_b32 v9, 0\nv_mov_b32 v10, 0\nv_mov_b32 v11, 0")
    a(f"v_lshlrev_b32 v5, 4, v{V_LANE}")
    a(f"v_add_u32 v5, s33, v5")
    a(f"s_mov_b64 s[{S_EXEC}:{S_EXEC+1}], exec")
    a(f"s_mov_b64 exec, 15")
    a(f"ds_write_b128 v5, v[8:11] offset:4096")
    a(f"s_mov_b64 exec, s[{S_EXEC}:{S_EXEC+1}]")
    a("s_waitcnt lgkmcnt(0)")
    a(f"v_lshlrev_b32 v6, 4, v{V_LANE}")
    a(f"s_add_u32 s34, s{S_RB}, {W_OFF}")
    a(f"v_add_u32 v6, s34, v6")
    a(f"v_and_b32 v7, 31, v{V_LANE}")
    a(f"v_lshrrev_b32 v8, 5, v{V_LANE}")
    a(f"v_sub_u32 v9, 3, v7")
    a(f"v_and_b32 v9, 3, v9")
    a(f"v_lshlrev_b32 v10, 3, v8")
    a(f"v_sub_u32 v10, v10, v7")
    a(f"v_sub_u32 v10, v10, v9")
    a(f"v_lshlrev_b32 v10, 1, v10")
    a(f"v_add_u32 v10, {2046-1984}, v10")
    a(f"v_mul_u32_u24 v9, {CS}, v9")
    a(f"v_add_u32 v10, v10, v9")
    a(f"v_add_u32 v{V_CA}, s34, v10")
    a(f"v_lshlrev_b32 v10, 4, v8")
    a(f"v_add_u32 v{V_CZ}, s{S_RB}, v10")
    a(f"v_mul_u32_u24 v9, 80, v7")
    a(f"v_add_u32 v9, v9, v{V_CZ}")
    a(f"v_add_u32 v47, 80, v9")
    a(f"v_add_u32 v{V_CP31}, 160, v9")
    stamp(a, 6)
    build_W(a, 1024, 5, 6, 4)
    a("s_waitcnt lgkmcnt(0)")
    stamp(a, 7)
    a(f"v_mov_b32 v{V_CQ}, v47")
    conv_phase(a, 1)
    stamp(a, 8)
    build_W(a, 0, 5, 6, 4)
    a("s_waitcnt lgkmcnt(0)")
    a(f"v_mov_b32 v{V_CQ}, v47")
    stamp(a, 9)
    conv_phase(a, 2)
    stamp(a, 10)
    a.c("conv epilogue")
    a(f"v_and_b32 v7, 31, v{V_LANE}")
    a(f"v_lshrrev_b32 v8, 5, v{V_LANE}")
    a(f"v_mul_u32_u24 v9, 80, v7")
    a(f"v_lshl_add_u32 v9, v8, 3, v9")
    a(f"v_add_u32 v9, s{S_RB}, v9")
    UV = 104
    for t in range(2):
        for q in range(4):
            r = UV + 2*(4*t+q)
            a(f"ds_read_b64 v[{r}:{r+1}], v9 offset:{80 + 2560*t + 16*q}")
    a(f"v_lshlrev_b32 v10, 6, v7")
    a(f"v_lshl_add_u32 v10, v8, 3, v10")
    a(f"v_add_u32 v10, s34, v10")
    a("s_waitcnt lgkmcnt(0)")
    a("s_nop 7")
    Wk = 124
    for t in range(2):
        for q in range(4):
            for h in range(2):
                uv = UV + 2*(4*t+q) + h
                y0 = V_ACC_ + 16*t + 4*q + 2*h
                o = Wk + 8 + 2*((4*t+q) & 1) + h
                a(f"v_cvt_pk_bf16_f32 v{Wk}, v{y0}, v{y0+1}")
                a(f"v_lshlrev_b32 v{Wk+1}, 16, v{uv}")
                a(f"v_and_b32 v{Wk+2}, 0xffff0000, v{uv}")
                a(f"v_mul_f32 v{Wk+1}, v{Wk+1}, v{V_DSK}")
                a(f"v_mul_f32 v{Wk+2}, v{Wk+2}, v{V_DSK}")
                a(f"v_cvt_pk_bf16_f32 v{Wk+1}, v{Wk+1}, v{Wk+2}")
                a(f"v_lshlrev_b32 v{Wk+3}, 16, v{Wk}")
                a(f"v_and_b32 v{Wk}, 0xffff0000, v{Wk}")
                a(f"v_lshlrev_b32 v{Wk+4}, 16, v{Wk+1}")
                a(f"v_and_b32 v{Wk+1}, 0xffff0000, v{Wk+1}")
                a(f"v_add_f32 v{Wk+3}, v{Wk+3}, v{Wk+4}")
                a(f"v_add_f32 v{Wk}, v{Wk}, v{Wk+1}")
                a(f"v_cvt_pk_bf16_f32 v{o}, v{Wk+3}, v{Wk}")
            o = Wk + 8 + 2*((4*t+q) & 1)
            a(f"ds_write_b64 v10, v[{o}:{o+1}] offset:{2048*t + 16*q}")
    a("s_waitcnt lgkmcnt(0)")
    for j in range(4):
        a(f"ds_read_b128 v[{104+4*j}:{107+4*j}], v6 offset:{1024*j}")
    a(f"v_lshlrev_b32 v7, 4, v{V_LANE}")
    a(f"s_lshl_b32 s33, s{S_D}, 12")
    a(f"s_add_u32 s33, s33, {WS_A}")
    for j in range(4):
        a(f"s_waitcnt lgkmcnt({3-j})")
        a(f"buffer_store_dwordx4 v[{104+4*j}:{107+4*j}], v7, s[{SRD_WS}:{SRD_WS+3}], s33 offen offset:{1024*j} sc1")
    stamp(a, 11)
    a("v_mov_b32 v5, 0")
    get_nonce(a, END, 5, 2)
    a("s_waitcnt vmcnt(0)")
    a("s_barrier")
    lab = a.label("CNF")
    a(f"s_cmp_lg_u32 s{S_WAVE}, 0")
    a(f"s_cbranch_scc1 {lab}")
    a(f"s_lshr_b32 s33, s{S_IDX}, 3")
    a(f"s_lshl_b32 s33, s33, 7")
    a(f"s_and_b32 s34, s{S_IDX}, 7")
    a(f"s_lshl_b32 s34, s34, 3")
    a(f"s_add_u32 s33, s33, s34")
    a(f"s_add_u32 s33, s33, {WS_AFLG}")
    a(f"v_mov_b32 v6, s{S_NONCE}")
    a(f"v_mov_b32 v7, s{S_NONCE+1}")
    a("s_mov_b64 exec, 1")
    a(f"buffer_store_dwordx2 v[6:7], v5, s[{SRD_WS}:{SRD_WS+3}], s33 offen sc1")
    a("s_mov_b64 exec, -1")
    a(f"{lab}:")
    stamp(a, 12)
    prof_end(a)
```

```python
from common import *

S_C, S_S, S_WM, S_WN = 30, 31, 32, 33
S_SX, S_SB, S_KC, S_T0, S_T1, S_M0X = 76, 77, 78, 79, 80, 81
S_CNT = 82
S_MISM = 84
S_T2, S_T3 = 86, 87
S_EXEC = 88
V_LANE = 1
V_VOFF = 2
V_AA = 6
V_BA = 10
V_FR = 16
V_ACC = 64
V_ACC2 = 128
V_P = 192
V_LR, V_LI = 192, 193
V_C2 = 194
V_L32 = 196
V_L128 = 198
V_ER, V_EI = 200, 201
V_HR, V_HI = 202, 203
V_NON = 204
V_T = 206
V_ZERO = 224
V_L16 = 225
V_EOFF = 226

def acc(m, pl): return V_ACC + 32*m + 16*pl
def acc2(m, pl): return V_ACC2 + 32*m + 16*pl

def cmul(a, dr, di, ar, ai, br, bi, t):
    a(f"v_mul_f32 v{t}, v{ar}, v{br}")
    a(f"v_mul_f32 v{t+1}, v{ar}, v{bi}")
    a(f"v_fma_f32 v{t}, -v{ai}, v{bi}, v{t}")
    a(f"v_fma_f32 v{di}, v{ai}, v{br}, v{t+1}")
    a(f"v_mov_b32 v{dr}, v{t}")

def cfma(a, hr, hi, lr, li, er, ei, t):
    a(f"v_fma_f32 v{t}, v{hr}, v{lr}, v{er}")
    a(f"v_fma_f32 v{t+1}, v{hi}, v{lr}, v{ei}")
    a(f"v_fma_f32 v{t}, -v{hi}, v{li}, v{t}")
    a(f"v_fma_f32 v{hi}, v{hr}, v{li}, v{t+1}")
    a(f"v_mov_b32 v{hr}, v{t}")

def g1_dma(a_list, it):
    slot = it % 4
    L = []
    L.append(f"s_lshl_b32 s{S_T0}, s{S_KC}, 7")
    L.append(f"s_add_u32 s{S_T1}, s{S_T0}, s{S_SB}")
    L.append(f"s_add_u32 s{S_T0}, s{S_T0}, s{S_SX}")
    for jj in range(4):
        L.append(f"s_add_u32 m0, s{S_M0X}, {slot*16384 + jj*1024}")
        L.append(f"s_nop 0")
        L.append(f"buffer_load_dwordx4 v{V_VOFF+jj}, s[{SRD_X}:{SRD_X+3}], s{S_T0} offen lds")
    for jj in range(4):
        L.append(f"s_add_u32 m0, s{S_M0X}, {65536 + slot*16384 + jj*1024}")
        L.append(f"s_nop 0")
        L.append(f"buffer_load_dwordx4 v{V_VOFF+jj}, s[{SRD_A}:{SRD_A+3}], s{S_T1} offen lds")
    L.append(f"s_add_u32 s{S_KC}, s{S_KC}, 1")
    L.append(f"s_cmp_eq_u32 s{S_KC}, 10")
    L.append(f"s_cselect_b32 s{S_KC}, 0, s{S_KC}")
    return L

A1OFF = {"v": 2048}
def g1_reads(it, ks):
    slot = it % 4
    st = V_FR + 16 * ((4*it + ks) % 3)
    return [
        f"ds_read_b128 v[{st}:{st+3}], v{V_AA+ks} offset:{slot*16384}",
        f"ds_read_b128 v[{st+8}:{st+11}], v{V_BA+ks} offset:{slot*16384}",
        f"ds_read_b128 v[{st+4}:{st+7}], v{V_AA+ks} offset:{slot*16384+A1OFF['v']}",
        f"ds_read_b128 v[{st+12}:{st+15}], v{V_BA+ks} offset:{slot*16384+8192}",
    ]

def g1_mfmas(it, ks):
    st = V_FR + 16 * ((4*it + ks) % 3)
    out = []
    for m in range(2):
        for pl in range(2):
            d = acc(m, pl)
            c = "0" if (it == 0 and ks == 0) else f"v[{d}:{d+15}]"
            out.append(f"v_mfma_f32_32x32x16_bf16 v[{d}:{d+15}], v[{st+4*m}:{st+4*m+3}], v[{st+8+4*pl}:{st+8+4*pl+3}], {c}")
    return out

def interleave(a, mf, fill):
    n = len(mf)
    per = (len(fill) + n - 1) // n if fill else 0
    k = 0
    for i, m in enumerate(mf):
        a(m)
        for f in fill[k:k+per]: a(f)
        k += per
    for f in fill[k:]: a(f)

def gen_g1(a, END, opts):
    a.c("================= GEMM role: G1 =================")
    a(f"s_cmp_ge_u32 s{S_WAVE}, 4")
    a(f"s_cbranch_scc1 {END}")
    a(f"s_cmp_ge_u32 s31, 10")
    a(f"s_cselect_b32 s34, 1, 0")
    a(f"s_cselect_b32 s35, 10, 0")
    a(f"s_lshl_b32 s30, s30, 1")
    a(f"s_add_u32 s{S_C}, s30, s34")
    a(f"s_sub_u32 s{S_S}, s31, s35")
    a(f"s_lshr_b32 s{S_WM}, s{S_WAVE}, 1")
    a(f"s_and_b32 s{S_WN}, s{S_WAVE}, 1")
    a(f"s_cmp_ge_u32 s{S_WAVE}, 2")
    a(f"s_cselect_b32 s{SRD_A}, s{P_BIM}, s{P_BRE}")
    a(f"s_cselect_b32 s{SRD_A+1}, s{P_BIM+1}, s{P_BRE+1}")
    a(f"s_and_b32 s{SRD_A+1}, s{SRD_A+1}, 0xffff")
    a(f"s_mov_b32 s{SRD_A+2}, 819200")
    a(f"s_mov_b32 s{SRD_A+3}, 0x00020000")
    a(f"v_and_b32 v{V_T}, 31, v{V_LANE}")
    a(f"s_lshl_b32 s34, s{S_S}, 6")
    a(f"s_lshl_b32 s35, s{S_WN}, 5")
    a(f"s_add_u32 s34, s34, s35")
    a(f"v_add_u32 v{V_T+1}, s34, v{V_T}")
    a(f"v_lshlrev_b32 v{V_EOFF}, 4, v{V_T+1}")
    a(f"v_lshlrev_b32 v{V_T+1}, 1, v{V_T+1}")
    make_srd(a, SRD_B, P_LRE, 1280)
    a(f"buffer_load_ushort v{V_T+2}, v{V_T+1}, s[{SRD_B}:{SRD_B+3}], 0 offen")
    make_srd(a, SRD_C, P_LIM, 1280)
    a(f"buffer_load_ushort v{V_T+3}, v{V_T+1}, s[{SRD_C}:{SRD_C+3}], 0 offen")
    make_srd(a, 92, P_LOGDTB, 1280)
    a(f"buffer_load_ushort v{V_T+4}, v{V_T+1}, s[92:95], 0 offen")
    a(f"v_lshrrev_b32 v{V_T+5}, 3, v{V_LANE}")
    a(f"v_mul_u32_u24 v{V_T+5}, 1280, v{V_T+5}")
    a(f"v_and_b32 v{V_T+6}, 7, v{V_LANE}")
    a(f"v_lshrrev_b32 v{V_T+7}, 4, v{V_LANE}")
    a(f"v_xor_b32 v{V_T+6}, v{V_T+6}, v{V_T+7}")
    a(f"v_lshl_add_u32 v{V_VOFF}, v{V_T+6}, 4, v{V_T+5}")
    a(f"v_xor_b32 v{V_VOFF+1}, 64, v{V_VOFF}")
    a(f"v_add_u32 v{V_VOFF+1}, 10240, v{V_VOFF+1}")
    a(f"v_add_u32 v{V_VOFF+2}, 20480, v{V_VOFF}")
    a(f"v_add_u32 v{V_VOFF+3}, 20480, v{V_VOFF+1}")
    a(f"s_lshl_b32 s34, s{S_C}, 7")
    a(f"s_lshl_b32 s35, s{S_WAVE}, 5")
    a(f"s_add_u32 s34, s34, s35")
    a(f"s_mul_i32 s{S_SX}, s34, 1280")
    a(f"s_lshl_b32 s34, s{S_S}, 6")
    a(f"s_lshl_b32 s35, s{S_WN}, 5")
    a(f"s_add_u32 s34, s34, s35")
    a(f"s_mul_i32 s{S_SB}, s34, 1280")
    a(f"s_lshl_b32 s{S_M0X}, s{S_WAVE}, 12")
    a(f"s_and_b32 s34, s{S_C}, 1")
    a(f"s_mul_i32 s34, s34, 5")
    a(f"s_add_u32 s{S_KC}, s{S_S}, s34")
    a(f"s_cmp_ge_u32 s{S_KC}, 10")
    a(f"s_cselect_b32 s34, 10, 0")
    a(f"s_sub_u32 s{S_KC}, s{S_KC}, s34")
    for it in range(3):
        for ins in g1_dma(a, it): a(ins)
    a(f"v_and_b32 v{V_T+5}, 31, v{V_LANE}")
    a(f"v_lshrrev_b32 v{V_T+6}, 5, v{V_LANE}")
    a(f"v_bfe_u32 v{V_T+7}, v{V_T+5}, 2, 1")
    a(f"v_lshlrev_b32 v{V_T+7}, 5, v{V_T+7}")
    a(f"v_lshrrev_b32 v{V_T+8}, 3, v{V_T+5}")
    a(f"v_lshl_add_u32 v{V_T+7}, v{V_T+8}, 2, v{V_T+7}")
    a(f"v_and_b32 v{V_T+8}, 3, v{V_T+5}")
    a(f"v_add_u32 v{V_T+7}, v{V_T+7}, v{V_T+8}")
    a(f"s_lshl_b32 s34, s{S_WM}, 6")
    a(f"v_add_u32 v{V_T+7}, s34, v{V_T+7}")
    a(f"v_bfe_u32 v{V_T+8}, v{V_T+7}, 1, 3")
    a(f"v_xor_b32 v{V_T+8}, v{V_T+8}, v{V_T+6}")
    a(f"v_lshlrev_b32 v{V_T+8}, 4, v{V_T+8}")
    a(f"v_lshl_add_u32 v{V_AA}, v{V_T+7}, 7, v{V_T+8}")
    for ks in range(1, 4):
        a(f"v_xor_b32 v{V_AA+ks}, {32*ks}, v{V_AA}")
    a(f"s_lshl_b32 s34, s{S_WN}, 5")
    a(f"v_add_u32 v{V_T+7}, s34, v{V_T+5}")
    a(f"v_bfe_u32 v{V_T+8}, v{V_T+7}, 1, 3")
    a(f"v_xor_b32 v{V_T+8}, v{V_T+8}, v{V_T+6}")
    a(f"v_lshlrev_b32 v{V_T+8}, 4, v{V_T+8}")
    a(f"v_lshl_add_u32 v{V_BA}, v{V_T+7}, 7, v{V_T+8}")
    a(f"v_add_u32 v{V_BA}, 0x10000, v{V_BA}")
    for ks in range(1, 4):
        a(f"v_xor_b32 v{V_BA+ks}, {32*ks}, v{V_BA}")
    a(f"v_mov_b32 v{V_ZERO}, 0")
    a(f"v_lshlrev_b32 v{V_L16}, 4, v{V_LANE}")
    stamp(a, 1)
    a.c("params: lam, 2*coef, L32, L128")
    a(f"s_waitcnt vmcnt(24)")
    T = V_T
    a(f"v_lshlrev_b32 v{T+2}, 16, v{T+2}")
    a(f"v_lshlrev_b32 v{T+3}, 16, v{T+3}")
    a(f"v_lshlrev_b32 v{T+4}, 16, v{T+4}")
    exp_accurate(a, T+4, T+4, T+5, T+6, T+7)
    round_bf16(a, T+4, T+4)
    a(f"v_mul_f32 v{T+5}, v{T+4}, v{T+2}")
    a(f"v_mul_f32 v{T+6}, v{T+4}, v{T+3}")
    exp_accurate(a, T+5, T+5, T+7, T+8, T+9)
    a(f"v_mul_f32 v{T+6}, {fhex(INV2PI)}, v{T+6}")
    a(f"v_fract_f32 v{T+6}, v{T+6}")
    a(f"v_cos_f32 v{T+7}, v{T+6}")
    a(f"v_sin_f32 v{T+8}, v{T+6}")
    a(f"s_nop 0")
    a(f"v_mul_f32 v{V_LR}, v{T+5}, v{T+7}")
    a(f"v_mul_f32 v{V_LI}, v{T+5}, v{T+8}")
    a(f"v_add_f32 v{T+5}, -1.0, v{V_LR}")
    a(f"v_mul_f32 v{T+6}, v{T+2}, v{T+2}")
    a(f"v_fma_f32 v{T+6}, v{T+3}, v{T+3}, v{T+6}")
    a(f"v_rcp_f32 v{T+7}, v{T+6}")
    a(f"v_mul_f32 v{T+8}, v{T+5}, v{T+2}")
    a(f"v_fma_f32 v{T+9}, -v{T+6}, v{T+7}, 2.0")
    a(f"v_mul_f32 v{T+7}, v{T+7}, v{T+9}")
    a(f"v_fma_f32 v{T+8}, v{V_LI}, v{T+3}, v{T+8}")
    a(f"v_mul_f32 v{T+9}, v{V_LI}, v{T+2}")
    a(f"v_fma_f32 v{T+9}, -v{T+5}, v{T+3}, v{T+9}")
    a(f"v_add_f32 v{T+7}, v{T+7}, v{T+7}")
    a(f"v_mul_f32 v{V_C2}, v{T+8}, v{T+7}")
    a(f"v_mul_f32 v{V_C2+1}, v{T+9}, v{T+7}")
    a(f"v_mov_b32 v{V_L32}, v{V_LR}")
    a(f"v_mov_b32 v{V_L32+1}, v{V_LI}")
    for i in range(5):
        cmul(a, V_L32, V_L32+1, V_L32, V_L32+1, V_L32, V_L32+1, T+5)
    cmul(a, V_L128, V_L128+1, V_L32, V_L32+1, V_L32, V_L32+1, T+5)
    cmul(a, V_L128, V_L128+1, V_L128, V_L128+1, V_L128, V_L128+1, T+5)
    a.c("G1 main loop")
    stamp(a, 2)
    a(f"s_waitcnt vmcnt(16)")
    a(f"s_barrier")
    stamp(a, 3)
    for ins in g1_reads(0, 0): a(ins)
    for ins in g1_reads(0, 1): a(ins)
    NST = 10
    for it in range(NST):
        for ks in range(4):
            gidx = 4*it + ks
            last = (gidx == 4*NST - 1)
            a(f"s_waitcnt lgkmcnt({0 if last else 4})")
            fill = []
            nx = gidx + 2
            if nx < 4*NST:
                nit, nks = nx // 4, nx % 4
                if nks == 0:
                    pre = []
                    if nit == NST - 1: vm = 0
                    else: vm = 8
                    if opts.get("nonce_mid", True):
                        if nit in (7, 8): vm = 9
                    a(f"s_waitcnt vmcnt({vm})")
                    a(f"s_barrier")
                    if opts.get("profst"): stamp(a, 16 + nit)
                    fill += g1_reads(nit, nks)
                    if nit + 2 < NST:
                        fill += g1_dma(a, nit + 2)
                    if nit == 6 and opts.get("nonce_mid", True):
                        fill.append(f"buffer_load_dwordx2 v[{V_NON}:{V_NON+1}], v{V_ZERO}, s[{SRD_DBG}:{SRD_DBG+3}], 0 offen sc1")
                else:
                    fill += g1_reads(nit, nks)
            interleave(a, g1_mfmas(it, ks), fill)
    stamp(a, 4)
    a.c("pass 1: segment end state")
    a(f"s_nop 7")
    a(f"s_nop 7")
    first = True
    prev = None
    for m in range(2):
        for r in range(16):
            br, bi = acc(m, 0) + r, acc(m, 1) + r
            if first:
                a(f"v_mov_b32 v{V_ER}, v{br}")
                a(f"v_mov_b32 v{V_EI}, v{bi}")
                first = False
            else:
                a(f"v_fma_f32 v{V_T}, v{V_LR}, v{V_ER}, v{br}")
                a(f"v_fma_f32 v{V_T+1}, v{V_LR}, v{V_EI}, v{bi}")
                a(f"v_fma_f32 v{V_T}, -v{V_LI}, v{V_EI}, v{V_T}")
                a(f"v_fma_f32 v{V_EI}, v{V_LI}, v{V_ER}, v{V_T+1}")
                a(f"v_mov_b32 v{V_ER}, v{V_T}")
    a(f"s_barrier")
    a(f"v_lshrrev_b32 v{V_T+2}, 5, v{V_LANE}")
    a(f"s_lshl_b32 s34, s{S_WM}, 1")
    a(f"v_add_u32 v{V_T+2}, s34, v{V_T+2}")
    a(f"v_and_b32 v{V_T+3}, 31, v{V_LANE}")
    a(f"s_lshl_b32 s34, s{S_WN}, 5")
    a(f"v_add_u32 v{V_T+3}, s34, v{V_T+3}")
    a(f"v_lshlrev_b32 v{V_T+3}, 3, v{V_T+3}")
    a(f"v_lshl_add_u32 v{V_T+2}, v{V_T+2}, 9, v{V_T+3}")
    a(f"ds_write_b64 v{V_T+2}, v[{V_ER}:{V_ER+1}]")
    a(f"s_waitcnt lgkmcnt(0)")
    a(f"s_barrier")
    EX = 240
    for sg in range(4):
        a(f"ds_read_b64 v[{EX+2*sg}:{EX+2*sg+1}], v{V_T+3} offset:{sg*512}")
    lab_ok = a.label("NOK"); lab_p = a.label("NPOLL")
    a(f"s_mov_b32 s{S_CNT}, 100000")
    a(f"{lab_p}:")
    a(f"v_readfirstlane_b32 s{S_NONCE}, v{V_NON}")
    a(f"v_readfirstlane_b32 s{S_NONCE+1}, v{V_NON+1}")
    a(f"s_nop 0")
    a(f"s_cmp_lg_u32 s{S_NONCE}, 0")
    a(f"s_cbranch_scc1 {lab_ok}")
    poll_timeout(a, S_CNT, END)
    a(f"buffer_load_dwordx2 v[{V_NON}:{V_NON+1}], v{V_ZERO}, s[{SRD_DBG}:{SRD_DBG+3}], 0 offen sc1")
    a(f"s_waitcnt vmcnt(0)")
    a(f"s_branch {lab_p}")
    a(f"{lab_ok}:")
    a(f"s_waitcnt lgkmcnt(0)")
    a(f"v_mov_b32 v{V_HR}, v{EX}")
    a(f"v_mov_b32 v{V_HI}, v{EX+1}")
    for sg in range(1, 4):
        cfma(a, V_HR, V_HI, V_L32, V_L32+1, EX+2*sg, EX+2*sg+1, V_T)
    lab_np = a.label("NOPUB")
    a(f"s_cmp_lg_u32 s{S_WM}, 0")
    a(f"s_cbranch_scc1 {lab_np}")
    G = 248
    a(f"v_mov_b32 v{G}, v{V_HR}")
    a(f"v_mov_b32 v{G+1}, v{V_HI}")
    a(f"v_mov_b32 v{G+2}, s{S_NONCE}")
    a(f"v_mov_b32 v{G+3}, s{S_NONCE+1}")
    a(f"s_mul_i32 s34, s{S_C}, 10240")
    a(f"s_add_u32 s34, s34, {WS_E}")
    a(f"s_mov_b64 s[{S_EXEC}:{S_EXEC+1}], exec")
    a(f"s_mov_b32 exec_lo, -1")
    a(f"s_mov_b32 exec_hi, 0")
    a(f"buffer_store_dwordx4 v[{G}:{G+3}], v{V_EOFF}, s[{SRD_WS}:{SRD_WS+3}], s34 offen sc1")
    a(f"s_mov_b64 exec, s[{S_EXEC}:{S_EXEC+1}]")
    a(f"{lab_np}:")
    stamp(a, 5)
    a.c("scale")
    for m in range(2):
        for r in range(0, 16, 2):
            pr, pi = acc(m,0)+r, acc(m,1)+r
            qr, qi = acc2(m,0)+r, acc2(m,1)+r
            a(f"v_pk_mul_f32 v[{qr}:{qr+1}], v[{pr}:{pr+1}], v[{V_C2}:{V_C2+1}] op_sel:[0,0] op_sel_hi:[1,0]")
            a(f"v_pk_mul_f32 v[{qi}:{qi+1}], v[{pi}:{pi+1}], v[{V_C2}:{V_C2+1}] op_sel:[0,0] op_sel_hi:[1,0] neg_lo:[1,0] neg_hi:[1,0]")
            a(f"v_pk_fma_f32 v[{qr}:{qr+1}], v[{pi}:{pi+1}], v[{V_C2}:{V_C2+1}], v[{qr}:{qr+1}] op_sel:[0,1,0] op_sel_hi:[1,1,1] neg_lo:[1,0,0] neg_hi:[1,0,0]")
            a(f"v_pk_fma_f32 v[{qi}:{qi+1}], v[{pr}:{pr+1}], v[{V_C2}:{V_C2+1}], v[{qi}:{qi+1}] op_sel:[0,1,0] op_sel_hi:[1,1,1] neg_lo:[1,0,0] neg_hi:[1,0,0]")
    stamp(a, 6)
    a.c("poll predecessors' E")
    def greg(cp): return (V_FR + 4*cp) if cp < 12 else (228 + 4*(cp-12))
    lab_poll = a.label("EPOLL"); lab_iss = a.label("EISS"); lab_chk = a.label("ECHK"); lab_done = a.label("EDONE")
    a(f"v_mov_b32 v{V_HR}, 0")
    a(f"v_mov_b32 v{V_HI}, 0")
    a(f"s_cmp_eq_u32 s{S_C}, 0")
    a(f"s_cbranch_scc1 {lab_done}")
    a(f"s_mov_b32 s{S_CNT}, 100000")
    a(f"{lab_poll}:")
    for cp in range(15):
        if cp > 0:
            a(f"s_cmp_le_u32 s{S_C}, {cp}")
            a(f"s_cbranch_scc1 {lab_iss}")
        a(f"s_mov_b32 s34, {WS_E + cp*10240}")
        a(f"buffer_load_dwordx4 v[{greg(cp)}:{greg(cp)+3}], v{V_EOFF}, s[{SRD_WS}:{SRD_WS+3}], s34 offen sc1")
    a(f"{lab_iss}:")
    a(f"s_waitcnt vmcnt(0)")
    a(f"s_mov_b64 s[{S_MISM}:{S_MISM+1}], 0")
    for cp in range(15):
        if cp > 0:
            a(f"s_cmp_le_u32 s{S_C}, {cp}")
            a(f"s_cbranch_scc1 {lab_chk}")
        a(f"v_cmp_ne_u32 vcc, s{S_NONCE}, v{greg(cp)+2}")
        a(f"s_or_b64 s[{S_MISM}:{S_MISM+1}], s[{S_MISM}:{S_MISM+1}], vcc")
        a(f"v_cmp_ne_u32 vcc, s{S_NONCE+1}, v{greg(cp)+3}")
        a(f"s_or_b64 s[{S_MISM}:{S_MISM+1}], s[{S_MISM}:{S_MISM+1}], vcc")
    a(f"{lab_chk}:")
    a(f"s_cmp_eq_u64 s[{S_MISM}:{S_MISM+1}], 0")
    lab_h = a.label("EHORN")
    a(f"s_cbranch_scc1 {lab_h}")
    poll_timeout(a, S_CNT, END)
    a(f"s_branch {lab_poll}")
    a(f"{lab_h}:")
    for cp in range(15):
        if cp > 0:
            a(f"s_cmp_le_u32 s{S_C}, {cp}")
            a(f"s_cbranch_scc1 {lab_done}")
        cfma(a, V_HR, V_HI, V_L128, V_L128+1, greg(cp), greg(cp)+1, V_T)
    a(f"{lab_done}:")
    SA = 252
    lab_w1 = a.label("WM1"); lab_w2 = a.label("WMD")
    a(f"s_cmp_lg_u32 s{S_WM}, 0")
    a(f"s_cbranch_scc1 {lab_w1}")
    a(f"v_mov_b32 v{SA}, v{V_HR}")
    a(f"v_mov_b32 v{SA+1}, v{V_HI}")
    cfma(a, V_HR, V_HI, V_L32, V_L32+1, EX, EX+1, V_T)
    a(f"s_branch {lab_w2}")
    a(f"{lab_w1}:")
    cfma(a, V_HR, V_HI, V_L32, V_L32+1, EX, EX+1, V_T)
    cfma(a, V_HR, V_HI, V_L32, V_L32+1, EX+2, EX+3, V_T)
    a(f"v_mov_b32 v{SA}, v{V_HR}")
    a(f"v_mov_b32 v{SA+1}, v{V_HI}")
    cfma(a, V_HR, V_HI, V_L32, V_L32+1, EX+4, EX+5, V_T)
    a(f"{lab_w2}:")
    a(f"v_cmp_gt_u32 vcc, 32, v{V_LANE}")
    a(f"s_nop 1")
    a(f"v_cndmask_b32 v{V_HR}, v{V_HR}, v{SA}, vcc")
    a(f"v_cndmask_b32 v{V_HI}, v{V_HI}, v{SA+1}, vcc")
    a(f"v_mul_f32 v{V_T}, v{V_HR}, v{V_C2}")
    a(f"v_mul_f32 v{V_T+1}, -v{V_HI}, v{V_C2}")
    a(f"v_fma_f32 v{V_T}, -v{V_HI}, v{V_C2+1}, v{V_T}")
    a(f"v_fma_f32 v{V_HI}, -v{V_HR}, v{V_C2+1}, v{V_T+1}")
    a(f"v_mov_b32 v{V_HR}, v{V_T}")
    stamp(a, 7)
    a.c("pass 2 + stores")
    a(f"s_mul_i32 s34, s{S_C}, 20")
    a(f"s_add_u32 s34, s34, s{S_S}")
    a(f"s_lshl_b32 s34, s34, 14")
    a(f"s_lshl_b32 s35, s{S_WAVE}, 12")
    a(f"s_add_u32 s34, s34, s35")
    a(f"s_add_u32 s{S_T0}, s34, {WS_H}")
    a(f"s_add_u32 s{S_T1}, s{S_T0}, {10*16384}")
    pr, pi = V_HR, V_HI
    PK = 16
    for m in range(2):
        for r in range(16):
            cr, ci = acc2(m,0)+r, acc2(m,1)+r
            a(f"v_fma_f32 v{cr}, v{V_LR}, v{pr}, v{cr}")
            a(f"v_fma_f32 v{ci}, v{V_LR}, v{pi}, v{ci}")
            a(f"v_fma_f32 v{cr}, v{V_LI}, v{pi}, v{cr}")
            a(f"v_fma_f32 v{ci}, -v{V_LI}, v{pr}, v{ci}")
            pr, pi = cr, ci
            if r % 2 == 1:
                t = 16*m + r
                j, d = t // 8, (t % 8) // 2
                a(f"v_cvt_pk_bf16_f32 v{PK + 4*j + d}, v{cr-1}, v{cr}")
                a(f"v_cvt_pk_bf16_f32 v{PK + 16 + 4*j + d}, v{ci-1}, v{ci}")
                if d == 3:
                    a(f"buffer_store_dwordx4 v[{PK+4*j}:{PK+4*j+3}], v{V_L16}, s[{SRD_WS}:{SRD_WS+3}], s{S_T0} offen offset:{j*1024} sc1")
                    a(f"buffer_store_dwordx4 v[{PK+16+4*j}:{PK+16+4*j+3}], v{V_L16}, s[{SRD_WS}:{SRD_WS+3}], s{S_T1} offen offset:{j*1024} sc1")
    stamp(a, 8)
    a(f"s_waitcnt vmcnt(0)")
    a(f"s_barrier")
    stamp(a, 9)
    lab_nf = a.label("NOHF")
    a(f"s_cmp_lg_u32 s{S_WAVE}, 0")
    a(f"s_cbranch_scc1 {lab_nf}")
    a(f"s_lshl_b32 s34, s{S_C}, 7")
    a(f"s_lshl_b32 s35, s{S_S}, 3")
    a(f"s_add_u32 s34, s34, s35")
    a(f"s_add_u32 s34, s34, {WS_FLAG}")
    a(f"v_mov_b32 v{G}, s{S_NONCE}")
    a(f"v_mov_b32 v{G+1}, s{S_NONCE+1}")
    a(f"s_mov_b64 s[{S_EXEC}:{S_EXEC+1}], exec")
    a(f"s_mov_b64 exec, 1")
    a(f"buffer_store_dwordx2 v[{G}:{G+1}], v{V_ZERO}, s[{SRD_WS}:{SRD_WS+3}], s34 offen sc1")
    a(f"s_mov_b64 exec, s[{S_EXEC}:{S_EXEC+1}]")
    a(f"{lab_nf}:")
```

```python
from common import *
from g1 import *

V_HA = 6
V_CB = 10
G2_FR = 16
G2_ACC = 64
HSLOT = 17408
CBASE = 4 * HSLOT
S_HB, S_CB, S_SP = 76, 77, 78
S_M0H, S_M0C = 81, 83

def g2_dma(it):
    slot = it % 4
    plane = it & 1
    L = []
    L.append(f"s_lshl_b32 s{S_T0}, s{S_SP}, 14")
    L.append(f"s_add_u32 s{S_T0}, s{S_T0}, s{S_HB}")
    if plane: L.append(f"s_add_u32 s{S_T0}, s{S_T0}, {10*16384}")
    L.append(f"s_lshl_b32 s{S_T1}, s{S_SP}, 7")
    L.append(f"s_add_u32 s{S_T1}, s{S_T1}, s{S_CB}")
    for jj in range(4):
        L.append(f"s_add_u32 m0, s{S_M0H}, {slot*HSLOT + jj*64}")
        L.append(f"s_nop 0")
        L.append(f"buffer_load_dwordx4 v{V_L16}, s[{SRD_WS}:{SRD_WS+3}], s{S_T0} offen offset:{jj*1024} sc1 lds")
    srd = SRD_B if plane else SRD_A
    for jj in range(2):
        L.append(f"s_add_u32 m0, s{S_M0C}, {slot*8192 + jj*1024}")
        L.append(f"s_nop 0")
        L.append(f"buffer_load_dwordx4 v{V_VOFF+jj}, s[{srd}:{srd+3}], s{S_T1} offen lds")
    if plane:
        L.append(f"s_add_u32 s{S_SP}, s{S_SP}, 1")
        L.append(f"s_cmp_eq_u32 s{S_SP}, 10")
        L.append(f"s_cselect_b32 s{S_SP}, 0, s{S_SP}")
    return L

def g2_reads(it, ks):
    slot = it % 4
    st = G2_FR + 12 * ((4*it + ks) % 3)
    base = slot*HSLOT + (ks >> 1)*4352 + (ks & 1)*256
    out = []
    for m in range(2):
        for half in range(2):
            out.append(f"ds_read_b64_tr_b16 v[{st+4*m+2*half}:{st+4*m+2*half+1}], v{V_HA} offset:{base + m*512 + half*64}")
    out.append(f"ds_read_b128 v[{st+8}:{st+11}], v{V_CB+ks} offset:{slot*8192}")
    return out

def g2_mfmas(it, ks):
    st = G2_FR + 12 * ((4*it + ks) % 3)
    out = []
    for m in range(2):
        d = G2_ACC + 16*m
        c = "0" if (it == 0 and ks == 0) else f"v[{d}:{d+15}]"
        out.append(f"v_mfma_f32_32x32x16_bf16 v[{d}:{d+15}], v[{st+4*m}:{st+4*m+3}], v[{st+8}:{st+11}], {c}")
    return out

def poll_flags(a, END, soff_sgpr, nlanes, vaddr, vdata, extra_lane_off=None):
    lp = a.label("FPOLL"); ld = a.label("FDONE")
    a(f"v_lshlrev_b32 v{vaddr}, 3, v{V_LANE}")
    a(f"v_cmp_gt_u32 vcc, {nlanes}, v{V_LANE}")
    a(f"s_and_saveexec_b64 s[{S_EXEC}:{S_EXEC+1}], vcc")
    a(f"s_mov_b32 s{S_CNT}, 100000")
    a(f"{lp}:")
    a(f"buffer_load_dwordx2 v[{vdata}:{vdata+1}], v{vaddr}, s[{SRD_WS}:{SRD_WS+3}], s{soff_sgpr} offen sc1")
    a(f"s_waitcnt vmcnt(0)")
    a(f"v_cmp_ne_u32 vcc, s{S_NONCE}, v{vdata}")
    a(f"s_mov_b64 s[{S_MISM}:{S_MISM+1}], vcc")
    a(f"v_cmp_ne_u32 vcc, s{S_NONCE+1}, v{vdata+1}")
    a(f"s_or_b64 s[{S_MISM}:{S_MISM+1}], s[{S_MISM}:{S_MISM+1}], vcc")
    a(f"s_cmp_eq_u64 s[{S_MISM}:{S_MISM+1}], 0")
    a(f"s_cbranch_scc1 {ld}")
    a(f"s_sleep 2")
    a(f"s_sub_u32 s{S_CNT}, s{S_CNT}, 1")
    a(f"s_cbranch_scc0 {lp}")
    a(f"s_mov_b32 s{S_CNT}, -1")
    a(f"{ld}:")
    a(f"s_mov_b64 exec, s[{S_EXEC}:{S_EXEC+1}]")

def gen_g2(a, END, opts):
    a.c("================= G2 =================")
    make_srd(a, SRD_A, P_C2RE, 819200)
    make_srd(a, SRD_B, P_C2IM, 819200)
    make_srd(a, SRD_C, P_OUT, 5242880)
    T = V_T
    a(f"v_lshrrev_b32 v{T}, 4, v{V_LANE}")
    a(f"v_bfe_u32 v{T+1}, v{V_LANE}, 2, 2")
    a(f"v_and_b32 v{T+2}, 3, v{V_LANE}")
    a(f"v_and_b32 v{T+3}, 1, v{T}")
    a(f"v_lshlrev_b32 v{T+3}, 1, v{T+3}")
    a(f"v_lshrrev_b32 v{T+4}, 1, v{T+2}")
    a(f"v_add_u32 v{T+3}, v{T+3}, v{T+4}")
    a(f"v_mul_u32_u24 v{T+3}, 1088, v{T+3}")
    a(f"v_lshrrev_b32 v{T+4}, 1, v{T}")
    a(f"v_lshl_add_u32 v{T+4}, v{T+4}, 3, v{T+1}")
    a(f"v_lshl_add_u32 v{T+3}, v{T+4}, 4, v{T+3}")
    a(f"v_and_b32 v{T+4}, 1, v{T+2}")
    a(f"v_lshl_add_u32 v{T+3}, v{T+4}, 3, v{T+3}")
    a(f"s_mul_i32 s34, s{S_WM}, 8704")
    a(f"v_add_u32 v{V_HA}, s34, v{T+3}")
    a(f"v_and_b32 v{T+5}, 31, v{V_LANE}")
    a(f"v_lshrrev_b32 v{T+6}, 5, v{V_LANE}")
    a(f"s_lshl_b32 s34, s{S_WN}, 5")
    a(f"v_add_u32 v{T+7}, s34, v{T+5}")
    a(f"v_bfe_u32 v{T+8}, v{T+7}, 1, 3")
    a(f"v_xor_b32 v{T+8}, v{T+8}, v{T+6}")
    a(f"v_lshlrev_b32 v{T+8}, 4, v{T+8}")
    a(f"v_lshl_add_u32 v{V_CB}, v{T+7}, 7, v{T+8}")
    a(f"v_add_u32 v{V_CB}, {CBASE}, v{V_CB}")
    for ks in range(1, 4):
        a(f"v_xor_b32 v{V_CB+ks}, {32*ks}, v{V_CB}")
    a(f"s_mul_i32 s34, s{S_C}, {20*16384}")
    a(f"s_lshl_b32 s35, s{S_WAVE}, 12")
    a(f"s_add_u32 s34, s34, s35")
    a(f"s_add_u32 s{S_HB}, s34, {WS_H}")
    a(f"s_lshl_b32 s34, s{S_S}, 6")
    a(f"s_lshl_b32 s35, s{S_WAVE}, 4")
    a(f"s_add_u32 s34, s34, s35")
    a(f"s_mul_i32 s{S_CB}, s34, 1280")
    a(f"s_mov_b32 s{S_SP}, s{S_S}")
    a(f"s_mul_i32 s{S_M0H}, s{S_WAVE}, 4352")
    a(f"s_lshl_b32 s{S_M0C}, s{S_WAVE}, 11")
    a(f"s_add_u32 s{S_M0C}, s{S_M0C}, {CBASE}")
    lab = a.label("NOPOLL")
    a(f"s_cmp_lg_u32 s{S_WAVE}, 0")
    a(f"s_cbranch_scc1 {lab}")
    a(f"s_lshl_b32 s34, s{S_C}, 7")
    a(f"s_add_u32 s34, s34, {WS_FLAG}")
    poll_flags(a, END, 34, 10, T, T+2)
    a(f"{lab}:")
    a(f"s_barrier")
    stamp(a, 10)
    for it in range(3):
        for ins in g2_dma(it): a(ins)
    a(f"s_waitcnt vmcnt(12)")
    a(f"s_barrier")
    stamp(a, 11)
    for ins in g2_reads(0, 0): a(ins)
    for ins in g2_reads(0, 1): a(ins)
    NST = 20
    for it in range(NST):
        for ks in range(4):
            gidx = 4*it + ks
            last = (gidx == 4*NST - 1)
            a(f"s_waitcnt lgkmcnt({0 if last else 5})")
            fill = []
            nx = gidx + 2
            if nx < 4*NST:
                nit, nks = nx // 4, nx % 4
                if nks == 0:
                    vm = 0 if nit == NST - 1 else 6
                    a(f"s_waitcnt vmcnt({vm})")
                    a(f"s_barrier")
                    fill += g2_reads(nit, nks)
                    if nit + 2 < NST:
                        fill += g2_dma(nit + 2)
                else:
                    fill += g2_reads(nit, nks)
            interleave(a, g2_mfmas(it, ks), fill)
    stamp(a, 12)
    a.c("G2 epilogue")
    lab = a.label("NOPOLL2")
    a(f"s_cmp_lg_u32 s{S_WAVE}, 0")
    a(f"s_cbranch_scc1 {lab}")
    if not opts.get("no_a"):
        a(f"s_lshl_b32 s34, s{S_S}, 7")
        a(f"s_add_u32 s34, s34, {WS_AFLG}")
        poll_flags(a, END, 34, 8, T, T+2)
    if not opts.get("no_g"):
        a(f"s_lshl_b32 s34, s{S_C}, 7")
        a(f"s_add_u32 s34, s34, {WS_FLAG + 80}")
        poll_flags(a, END, 34, 1, T, T+2)
    a(f"{lab}:")
    a(f"s_barrier")
    stamp(a, 13)
    a(f"v_lshrrev_b32 v{T}, 3, v{V_LANE}")
    a(f"v_mul_u32_u24 v{T}, 1280, v{T}")
    a(f"v_and_b32 v{T+1}, 7, v{V_LANE}")
    a(f"v_lshl_add_u32 v{T}, v{T+1}, 4, v{T}")
    a(f"s_lshl_b32 s34, s{S_C}, 7")
    a(f"s_lshl_b32 s35, s{S_WAVE}, 5")
    a(f"s_add_u32 s34, s34, s35")
    a(f"s_mul_i32 s34, s34, 1280")
    a(f"s_lshl_b32 s35, s{S_S}, 7")
    a(f"s_add_u32 s34, s34, s35")
    a(f"s_lshl_b32 s{S_T2}, s{S_WAVE}, 12")
    for jj in range(4):
        a(f"s_add_u32 m0, s{S_T2}, {jj*1024}")
        a(f"s_add_u32 s35, s34, {jj*10240}")
        a(f"buffer_load_dwordx4 v{T}, s[{SRD_X}:{SRD_X+3}], s35 offen lds")
    a(f"s_lshl_b32 s34, s{S_C}, 10")
    a(f"s_add_u32 s34, s34, {WS_G}")
    a(f"s_mov_b32 m0, 16384")
    a(f"s_nop 0")
    a(f"buffer_load_dwordx4 v{V_L16}, s[{SRD_WS}:{SRD_WS+3}], s34 offen sc1 lds")
    AV = 96
    a(f"v_and_b32 v{T+1}, 31, v{V_LANE}")
    a(f"s_lshl_b32 s34, s{S_S}, 6")
    a(f"s_lshl_b32 s35, s{S_WN}, 5")
    a(f"s_add_u32 s34, s34, s35")
    a(f"v_add_u32 v{T+1}, s34, v{T+1}")
    a(f"v_lshlrev_b32 v{T+2}, 12, v{T+1}")
    a(f"v_lshrrev_b32 v{T+3}, 5, v{V_LANE}")
    a(f"v_lshl_add_u32 v{T+2}, v{T+3}, 3, v{T+2}")
    a(f"s_lshl_b32 s34, s{S_C}, 8")
    a(f"s_lshl_b32 s35, s{S_WM}, 7")
    a(f"s_add_u32 s34, s34, s35")
    a(f"s_add_u32 s34, s34, {WS_A}")
    for m in range(2):
        for q in range(4):
            r = AV + 2*(4*m+q)
            a(f"buffer_load_dwordx2 v[{r}:{r+1}], v{T+2}, s[{SRD_WS}:{SRD_WS+3}], s34 offen offset:{64*m+16*q} sc1")
    DS = T+4
    make_srd(a, 92, P_DSKB, 1280)
    a(f"v_lshlrev_b32 v{T+5}, 1, v{T+1}")
    a(f"buffer_load_ushort v{DS}, v{T+5}, s[92:95], 0 offen")
    OV = T+6
    a(f"v_mul_u32_u24 v{OV}, 2560, v{T+3}")
    a(f"v_add_u32 v{OV}, v{OV}, v{T+1}")
    a(f"v_lshlrev_b32 v{OV}, 2, v{OV}")
    a(f"s_lshl_b32 s34, s{S_C}, 7")
    a(f"s_lshl_b32 s35, s{S_WM}, 6")
    a(f"s_add_u32 s34, s34, s35")
    a(f"s_mul_i32 s{S_T2}, s34, 2560")
    XA = T+7
    a(f"v_lshrrev_b32 v{T+8}, 5, v{V_LANE}")
    a(f"v_bfe_u32 v{T+9}, v{V_LANE}, 2, 2")
    a(f"v_lshl_add_u32 v{T+8}, v{T+8}, 2, v{T+9}")
    a(f"s_lshl_b32 s34, s{S_WM}, 6")
    a(f"v_add_u32 v{T+8}, s34, v{T+8}")
    a(f"v_lshlrev_b32 v{XA}, 7, v{T+8}")
    a(f"v_bfe_u32 v{T+8}, v{V_LANE}, 4, 1")
    a(f"v_lshlrev_b32 v{T+8}, 5, v{T+8}")
    a(f"v_and_b32 v{T+9}, 3, v{V_LANE}")
    a(f"v_lshl_add_u32 v{T+8}, v{T+9}, 3, v{T+8}")
    a(f"s_lshl_b32 s34, s{S_WN}, 6")
    a(f"v_add_u32 v{T+8}, s34, v{T+8}")
    a(f"v_add_u32 v{XA}, v{XA}, v{T+8}")
    GA = T+10
    a(f"s_lshl_b32 s34, s{S_WM}, 9")
    a(f"s_add_u32 s34, s34, 16384")
    a(f"v_lshlrev_b32 v{GA}, 5, v{T+3}")
    a(f"v_add_u32 v{GA}, s34, v{GA}")
    a(f"s_waitcnt vmcnt(0)")
    a(f"s_barrier")
    stamp(a, 14)
    a(f"v_lshlrev_b32 v{DS}, 16, v{DS}")
    XV = 112
    GV = 128
    for m in range(2):
        for q in range(4):
            r = XV + 2*(4*m+q)
            a(f"ds_read_b64_tr_b16 v[{r}:{r+1}], v{XA} offset:{(32*m+8*q)*128}")
    W = 144
    for m in range(2):
        for q in range(4):
            qi = 4*m+q
            gb = GV + 8*(qi & 1)
            a(f"ds_read_b128 v[{gb}:{gb+3}], v{GA} offset:{(32*m+8*q)*8}")
            a(f"ds_read_b128 v[{gb+4}:{gb+7}], v{GA} offset:{(32*m+8*q)*8+16}")
            a(f"s_waitcnt lgkmcnt(0)")
            for h in range(2):
                xv = XV + 2*qi + h; av = AV + 2*qi + h
                a0 = G2_ACC + 16*m + 4*q + 2*h
                a(f"v_lshlrev_b32 v{W}, 16, v{xv}")
                a(f"v_and_b32 v{W+1}, 0xffff0000, v{xv}")
                a(f"v_mul_f32 v{W}, v{W}, v{DS}")
                a(f"v_mul_f32 v{W+1}, v{W+1}, v{DS}")
                a(f"v_cvt_pk_bf16_f32 v{W}, v{W}, v{W+1}")
                a(f"v_and_b32 v{W+1}, 0xffff0000, v{W}")
                a(f"v_lshlrev_b32 v{W}, 16, v{W}")
                a(f"v_add_f32 v{a0}, v{a0}, v{W}")
                a(f"v_add_f32 v{a0+1}, v{a0+1}, v{W+1}")
                if opts.get("no_a"):
                    a(f"v_mov_b32 v{W+2}, 0")
                    a(f"v_mov_b32 v{W+3}, 0")
                else:
                    a(f"v_lshlrev_b32 v{W+2}, 16, v{av}")
                    a(f"v_and_b32 v{W+3}, 0xffff0000, v{av}")
                    a(f"v_mul_f32 v{W+2}, v{W+2}, v{gb+4*h}")
                    a(f"v_mul_f32 v{W+3}, v{W+3}, v{gb+4*h+2}")
                    a(f"v_cvt_pk_bf16_f32 v{W+2}, v{W+2}, v{W+3}")
                    a(f"v_and_b32 v{W+3}, 0xffff0000, v{W+2}")
                    a(f"v_lshlrev_b32 v{W+2}, 16, v{W+2}")
                if opts.get("no_g"):
                    pass
                else:
                    a(f"v_fma_f32 v{a0}, v{gb+4*h+1}, v{a0}, v{W+2}")
                    a(f"v_fma_f32 v{a0+1}, v{gb+4*h+3}, v{a0+1}, v{W+3}")
                for e in range(2):
                    row = 32*m + 8*q + 2*h + e
                    a(f"s_add_u32 s35, s{S_T2}, {row*2560}")
                    a(f"buffer_store_dword v{a0+e}, v{OV}, s[{SRD_C}:{SRD_C+3}], s35 offen")
    stamp(a, 15)
    a("s_waitcnt vmcnt(0)")
    stamp(a, 16)
    prof_end(a)
```

```python
from common import *
from g1 import V_LANE, S_CNT, S_EXEC, S_MISM
from g2 import poll_flags

def get_nonce(a, END, vz, vd):
    lp = a.label("GN"); ok = a.label("GNOK")
    a(f"s_mov_b32 s{S_CNT}, 100000")
    a(f"{lp}:")
    a(f"buffer_load_dwordx2 v[{vd}:{vd+1}], v{vz}, s[{SRD_DBG}:{SRD_DBG+3}], 0 offen sc1")
    a(f"s_waitcnt vmcnt(0)")
    a(f"v_readfirstlane_b32 s{S_NONCE}, v{vd}")
    a(f"v_readfirstlane_b32 s{S_NONCE+1}, v{vd+1}")
    a(f"s_nop 0")
    a(f"s_cmp_lg_u32 s{S_NONCE}, 0")
    a(f"s_cbranch_scc1 {ok}")
    poll_timeout(a, S_CNT, END)
    a(f"s_branch {lp}")
    a(f"{ok}:")

def gen_gate(a, END, opts):
    a.c("================= GATE role =================")
    a("s_lshl_b32 s30, s30, 1")
    a("s_sub_u32 s31, s31, 30")
    a("s_add_u32 s30, s30, s31")
    make_srd(a, SRD_A, P_GW, 1280)
    a(f"v_lshrrev_b32 v2, 4, v{V_LANE}")
    a(f"v_and_b32 v3, 15, v{V_LANE}")
    a(f"v_lshlrev_b32 v3, 4, v3")
    W = 16
    for i in range(5):
        a(f"buffer_load_dwordx4 v[{W+4*i}:{W+4*i+3}], v3, s[{SRD_A}:{SRD_A+3}], 0 offen offset:{256*i}")
    a(f"v_mul_u32_u24 v4, 1280, v2")
    a(f"v_add_u32 v4, v4, v3")
    a(f"s_lshl_b32 s32, s30, 7")
    a(f"s_lshl_b32 s33, s{S_WAVE}, 4")
    a(f"s_add_u32 s32, s32, s33")
    a(f"s_mul_i32 s33, s32, 1280")
    X = 40
    for g in range(4):
        a(f"s_add_u32 s34, s33, {g*4*1280}")
        for i in range(5):
            r = X + 20*g + 4*i
            a(f"buffer_load_dwordx4 v[{r}:{r+3}], v4, s[{SRD_X}:{SRD_X+3}], s34 offen offset:{256*i}")
    WF = 128
    a("s_waitcnt vmcnt(20)")
    for i in range(20):
        a(f"v_lshlrev_b32 v{WF+2*i}, 16, v{W+i}")
        a(f"v_and_b32 v{WF+2*i+1}, 0xffff0000, v{W+i}")
    R = 170
    for g in range(4):
        a(f"s_waitcnt vmcnt({15-5*g})")
        S = 180
        a(f"v_mov_b32 v{S}, 0")
        a(f"v_mov_b32 v{S+1}, 0")
        for i in range(20):
            xr = X + 20*g + i
            t = 184 + 2*(i & 1)
            a(f"v_lshlrev_b32 v{t}, 16, v{xr}")
            a(f"v_and_b32 v{t+1}, 0xffff0000, v{xr}")
            a(f"v_mul_f32 v{t}, v{t}, v{WF+2*i}")
            a(f"v_mul_f32 v{t+1}, v{t+1}, v{WF+2*i+1}")
            a(f"v_cvt_pk_bf16_f32 v{t}, v{t}, v{t+1}")
            a(f"v_and_b32 v{t+1}, 0xffff0000, v{t}")
            a(f"v_lshlrev_b32 v{t}, 16, v{t}")
            a(f"v_add_f32 v{S}, v{S}, v{t}")
            a(f"v_add_f32 v{S+1}, v{S+1}, v{t+1}")
        a(f"v_add_f32 v{S}, v{S}, v{S+1}")
        for rot in (8, 4, 2, 1):
            a("s_nop 1")
            a(f"v_add_f32_dpp v{S}, v{S}, v{S} row_ror:{rot} row_mask:0xf bank_mask:0xf")
        round_bf16(a, S, S)
        a(f"v_mul_f32 v{S+1}, {fhex(-LOG2E)}, v{S}")
        a(f"v_exp_f32 v{S+1}, v{S+1}")
        a("s_nop 0")
        a(f"v_add_f32 v{S+1}, 1.0, v{S+1}")
        a(f"v_rcp_f32 v{S+2}, v{S+1}")
        a("s_nop 0")
        a(f"v_fma_f32 v{S+3}, -v{S+1}, v{S+2}, 2.0")
        a(f"v_mul_f32 v{S+2}, v{S+2}, v{S+3}")
        round_bf16(a, R+2*g, S+2)
        a(f"v_sub_f32 v{S+3}, 1.0, v{R+2*g}")
        round_bf16(a, R+2*g+1, S+3)
    a("v_mov_b32 v5, 0")
    get_nonce(a, END, 5, 6)
    a(f"v_lshlrev_b32 v8, 3, v2")
    a(f"s_lshl_b32 s33, s32, 3")
    a(f"s_add_u32 s33, s33, {WS_G}")
    a(f"v_and_b32 v9, 15, v{V_LANE}")
    a(f"v_cmp_eq_u32 vcc, 0, v9")
    a(f"s_and_saveexec_b64 s[{S_EXEC}:{S_EXEC+1}], vcc")
    for g in range(4):
        a(f"buffer_store_dwordx2 v[{R+2*g}:{R+2*g+1}], v8, s[{SRD_WS}:{SRD_WS+3}], s33 offen offset:{32*g} sc1")
    a(f"s_mov_b64 exec, s[{S_EXEC}:{S_EXEC+1}]")
    a("s_waitcnt vmcnt(0)")
    a("s_barrier")
    lab = a.label("GNF")
    a(f"s_cmp_lg_u32 s{S_WAVE}, 0")
    a(f"s_cbranch_scc1 {lab}")
    a(f"s_lshl_b32 s34, s30, 7")
    a(f"s_add_u32 s34, s34, {WS_FLAG + 80}")
    a(f"v_mov_b32 v6, s{S_NONCE}")
    a(f"v_mov_b32 v7, s{S_NONCE+1}")
    a("s_mov_b64 exec, 1")
    a(f"buffer_store_dwordx2 v[6:7], v5, s[{SRD_WS}:{SRD_WS+3}], s34 offen sc1")
    a("s_mov_b64 exec, -1")
    a(f"{lab}:")
    stamp(a, 1)
    prof_end(a)
```

```python
import sys
from common import *
import g1
def build(opts):
    a = Asm()
    PROF["on"] = bool(opts.get("prof"))
    END = "L_END"
    a("s_load_dwordx16 s[36:51], s[0:1], 0")
    a("s_load_dwordx16 s[52:67], s[0:1], 64")
    a("s_load_dwordx8 s[68:75], s[0:1], 128")
    a(f"s_cmp_ge_u32 s2, 256")
    a(f"s_cbranch_scc1 {END}")
    a("v_lshrrev_b32 v1, 6, v0")
    a("s_nop 0")
    a(f"v_readfirstlane_b32 s{S_WAVE}, v1")
    a("v_and_b32 v1, 63, v0")
    a("s_and_b32 s30, s2, 7")
    a("s_lshr_b32 s31, s2, 3")
    a("s_waitcnt lgkmcnt(0)")
    make_srd(a, SRD_X, P_X, 2621440)
    make_srd(a, SRD_WS, P_WS, WS_SIZE)
    make_srd(a, SRD_DBG, P_DBG, 256)
    a(f"s_or_b32 s34, s2, s{S_WAVE}")
    a("s_cmp_lg_u32 s34, 0")
    a("s_cbranch_scc1 L_NONONCE")
    a(f"s_memrealtime s[{S_NONCE}:{S_NONCE+1}]")
    a("s_waitcnt lgkmcnt(0)")
    a(f"s_or_b32 s{S_NONCE}, s{S_NONCE}, 1")
    a(f"v_mov_b32 v2, s{S_NONCE}")
    a(f"v_mov_b32 v3, s{S_NONCE+1}")
    a("v_mov_b32 v4, 0")
    a("s_mov_b64 s[34:35], exec")
    a("s_mov_b64 exec, 1")
    a(f"buffer_store_dwordx2 v[2:3], v4, s[{SRD_DBG}:{SRD_DBG+3}], 0 offen sc1")
    a("s_mov_b64 exec, s[34:35]")
    a("L_NONONCE:")
    if PROF["on"]: a(f"v_mov_b32 v{V_PROF}, 0")
    stamp(a, 0)
    a("s_cmp_lt_u32 s31, 20")
    a("s_cbranch_scc1 L_GEMM")
    a("s_cmp_lt_u32 s31, 30")
    a("s_cbranch_scc1 L_CONV")
    a("s_branch L_GATE")
    a("L_GEMM:")
    g1.gen_g1(a, END, opts)
    if opts.get("g2"):
        import g2
        g2.gen_g2(a, END, opts)
    a(f"s_branch {END}")
    a("L_CONV:")
    if opts.get("conv"):
        import conv
        conv.gen_conv(a, END, opts)
    a(f"s_branch {END}")
    a("L_GATE:")
    if opts.get("gate"):
        import gate
        gate.gen_gate(a, END, opts)
    a(f"{END}:")
    a("s_endpgm")
    return wrap(a.text())
if __name__ == "__main__":
    out = sys.argv[1]
    opts = {k: True for k in sys.argv[2:]}
    open(out, "w").write(build(opts))
    print("wrote", out)
```

```python
NAME = "gated_mix__ssm_conv_s4d__ssm_conv_s5__prompt"

class Asm:
    def __init__(self):
        self.lines = []
        self.lab = 0
    def __call__(self, s=""):
        for ln in s.split("\n"):
            ln = ln.strip()
            if ln: self.lines.append(ln if ln.endswith(":") else "    " + ln)
    def c(self, s):
        self.lines.append("    ; " + s)
    def label(self, base="L"):
        self.lab += 1
        return f"{base}_{self.lab}"
    def text(self):
        return "\n".join(self.lines) + "\n"

def vr(a, n=1):
    return f"v{a}" if n == 1 else f"v[{a}:{a+n-1}]"
def sr(a, n=1):
    return f"s{a}" if n == 1 else f"s[{a}:{a+n-1}]"

WS_E    = 0x0
WS_FLAG = 0x40000
WS_AFLG = 0x41000
WS_KFLG = 0x44000
WS_KP   = 0x900000
WS_G    = 0x50000
WS_H    = 0x100000
WS_A    = 0x600000
WS_SIZE = 0xC00000

P_X, P_LOGA, P_AIM, P_CRE, P_CIM, P_LOGDT, P_DSKA, P_BX = 36, 38, 40, 42, 44, 46, 48, 50
P_LRE, P_LIM, P_BRE, P_BIM, P_C2RE, P_C2IM, P_LOGDTB, P_DSKB = 52, 54, 56, 58, 60, 62, 64, 66
P_GW, P_OUT, P_DBG, P_WS = 68, 70, 72, 74

S_WG, S_WAVE = 2, 3
SRD_X, SRD_WS, SRD_A, SRD_B, SRD_C, SRD_DBG = 4, 8, 12, 16, 20, 24
S_NONCE = 28

LOG2E = 1.4426950408889634
import struct
def f2u(f):
    return struct.unpack("<I", struct.pack("<f", f))[0]
def fhex(f):
    return "0x%08x" % f2u(f)
LOG2E_HI = struct.unpack("<f", struct.pack("<f", LOG2E))[0]
LOG2E_LO = LOG2E - LOG2E_HI
LN2 = 0.6931471805599453
INV2PI = 0.15915494309189535

def make_srd(a, dst, ptr, nbytes):
    a(f"s_mov_b32 s{dst}, s{ptr}")
    a(f"s_and_b32 s{dst+1}, s{ptr+1}, 0xffff")
    a(f"s_mov_b32 s{dst+2}, {nbytes}")
    a(f"s_mov_b32 s{dst+3}, 0x00020000")

def exp_accurate(a, dst, x, t0, t1, t2):
    a(f"v_mul_f32 v{t0}, {fhex(LOG2E_HI)}, v{x}")
    a(f"s_mov_b32 s34, {fhex(LOG2E_HI)}")
    a(f"v_fma_f32 v{t1}, v{x}, s34, -v{t0}")
    a(f"v_fmac_f32 v{t1}, {fhex(LOG2E_LO)}, v{x}")
    a(f"v_exp_f32 v{t2}, v{t0}")
    a(f"v_mul_f32 v{t1}, {fhex(LN2)}, v{t1}")
    a(f"s_nop 0")
    a(f"v_fma_f32 v{dst}, v{t2}, v{t1}, v{t2}")

def round_bf16(a, dst, x):
    a(f"v_cvt_pk_bf16_f32 v{dst}, v{x}, v{x}")
    a(f"v_and_b32 v{dst}, 0xffff0000, v{dst}")

def poll_timeout(a, scnt, fail_label):
    a(f"s_sub_u32 s{scnt}, s{scnt}, 1")
    a(f"s_cbranch_scc1 {fail_label}")

def wrap(body, grid=256, block=512, lds=163840, vgpr=256, sgpr=102):
    accum = min(256, (vgpr + 3) // 4 * 4)
    hdr = open("cdna_kernels/" + NAME + ".s.ref").read().split("; Override launch")[0]
    return f"""{hdr}; @launch grid=({grid},1,1) block=({block},1,1) lds={lds}
.amdgcn_target "amdgcn-amd-amdhsa--gfx950"
.text
.globl {NAME}_kernel
.p2align 8
.type {NAME}_kernel,@function
{NAME}_kernel:
{body}
.section .rodata,"a"
.p2align 6
.amdhsa_kernel {NAME}_kernel
  .amdhsa_next_free_vgpr {vgpr}
  .amdhsa_next_free_sgpr {sgpr}
  .amdhsa_accum_offset {accum}
  .amdhsa_group_segment_fixed_size 0
  .amdhsa_kernarg_size 160
  .amdhsa_user_sgpr_count 2
  .amdhsa_user_sgpr_kernarg_segment_ptr 1
  .amdhsa_system_sgpr_workgroup_id_x 1
.end_amdhsa_kernel
"""

PROF = {"on": False}
WS_PROF = 0x8C0000
V_PROF = 255
def stamp(a, k):
    if not PROF["on"]: return
    a("s_memrealtime s[96:97]")
    a("s_waitcnt lgkmcnt(0)")
    a(f"v_writelane_b32 v{V_PROF}, s96, {k}")
def prof_end(a, wave_cond=0, extra=0):
    if not PROF["on"]: return
    lab = a.label("PEND")
    a(f"s_cmp_lg_u32 s{S_WAVE}, {wave_cond}")
    a(f"s_cbranch_scc1 {lab}")
    a("v_and_b32 v254, 63, v0")
    a("v_lshlrev_b32 v254, 2, v254")
    a("s_lshl_b32 s96, s2, 7")
    a(f"s_add_u32 s96, s96, {WS_PROF + extra}")
    a("s_mov_b32 exec_lo, -1")
    a("s_mov_b32 exec_hi, 0")
    a(f"buffer_store_dword v{V_PROF}, v254, s[{SRD_WS}:{SRD_WS+3}], s96 offen")
    a("s_mov_b64 exec, -1")
    a(f"{lab}:")
```

```python
from common import *
from g1 import V_LANE, S_CNT, S_EXEC, S_MISM, interleave
from gate import get_nonce
from g2 import poll_flags

RSZ = 20480
U_OFF = 80
T_OFF = 5200
CS = 2368
W_OFF = T_OFF
R_OFF = W_OFF + 4*CS
G_OFF = R_OFF + 2240
CNT_OFF = 20416
S_IDX, S_D, S_RB = 30, 31, 32
S_T3 = 87

def slot_alpha(i):
    q, g, e = i >> 3, (i >> 2) & 1, i & 3
    if q == 0: return 4*g + e
    if q == 1:
        if e < 2: return 1024 + 256*(2*g + e)
        if e == 2 and g == 0: return 2048
        return None
    if q == 2: return None if e == 3 else 512 + 256*g + 4*e
    if q == 3: return None if e == 3 else 256 + 4*g + 2*e
XROW = {}
for i in range(32):
    al = slot_alpha(i)
    if al is None or i == 28: continue
    XROW[al] = i
HOLES = [11, 14, 15, 19, 23, 27, 28, 31]
assert all(h not in XROW.values() for h in HOLES) and len(XROW) == 24
def yrow(b): return 32 + b if b < 24 else HOLES[b - 24]

def pcmul(a, d, x, y):
    a(f"v_pk_mul_f32 v[{d}:{d+1}], v[{x}:{x+1}], v[{y}:{y+1}] op_sel:[0,0] op_sel_hi:[0,1]")
    a(f"v_pk_fma_f32 v[{d}:{d+1}], v[{x}:{x+1}], v[{y}:{y+1}], v[{d}:{d+1}] op_sel:[1,1,0] op_sel_hi:[1,0,1] neg_lo:[1,0,0]")

V_U = 16
V_PRM = 32
V_AW = 40
V_AA_ = 56
V_ACC_ = 64
V_AB_ = 96
V_E = 104
V_E256 = 120
V_B0, V_B1 = 122, 124
V_Y0, V_Y1 = 126, 128
V_X = 130
V_CP = 132
V_T_ = 134
V_E16 = 150
V_BB = 152
V_YY = 168
V_X2, V_X3 = 176, 178
V_PK = 186
V_FRK = 104
V_DT = 184
V_DSK = 185
def Ek(k): return V_E + 2*(k-1)

def cis_exp(a, d, zr2, zi, p, t):
    if p == 1:
        a(f"v_exp_f32 v{t}, v{zr2}")
        a(f"v_fract_f32 v{t+1}, v{zi}")
    else:
        a(f"v_mul_f32 v{t}, {fhex(float(p))}, v{zr2}")
        a(f"v_mul_f32 v{t+1}, {fhex(float(p))}, v{zi}")
        a(f"v_exp_f32 v{t}, v{t}")
        a(f"v_fract_f32 v{t+1}, v{t+1}")
    a(f"v_cos_f32 v{t+2}, v{t+1}")
    a(f"v_sin_f32 v{t+3}, v{t+1}")
    a(f"s_nop 0")
    a(f"v_mul_f32 v{d}, v{t}, v{t+2}")
    a(f"v_mul_f32 v{d+1}, v{t}, v{t+3}")

class TabWriter:
    NPK = 8
    def __init__(self, a): self.a = a; self.k = 0; self.q = []
    def put(self, row, pair, neg):
        t = V_PK + (self.k % self.NPK); self.k += 1
        self.a(f"v_cvt_pk_bf16_f32 v{t}, v{pair}, {'-' if neg else ''}v{pair+1}")
        self.q.append(f"ds_write_addtid_b32 v{t} offset:{row*272}")
        while len(self.q) > 2: self.a(self.q.pop(0))
    def flush(self):
        while self.q: self.a(self.q.pop(0))

def kgen_pass(a, hh, extras=None, pk=True, every=4):
    T = V_T_
    a.c(f"K-gen pass {hh}")
    if isinstance(hh, str):
        l0 = a.label("KH0"); l1 = a.label("KH1")
        a(f"s_cmp_lg_u32 {hh}, 0")
        a(f"s_cbranch_scc1 {l0}")
        for k in range(4): a(f"v_lshlrev_b32 v{T+k}, 16, v{V_PRM+k}")
        a(f"s_branch {l1}")
        a(f"{l0}:")
        for k in range(4): a(f"v_and_b32 v{T+k}, 0xffff0000, v{V_PRM+k}")
        a(f"{l1}:")
    else:
        for k in range(4):
            if hh == 0: a(f"v_lshlrev_b32 v{T+k}, 16, v{V_PRM+k}")
            else:       a(f"v_and_b32 v{T+k}, 0xffff0000, v{V_PRM+k}")
    exp_accurate(a, T, T, T+4, T+5, T+6)
    round_bf16(a, T, T)
    a(f"v_mul_f32 v{T}, -v{T}, v{V_DT}")
    a(f"v_mul_f32 v{T+1}, v{T+1}, v{V_DT}")
    a(f"v_mul_f32 v{T}, {fhex(LOG2E)}, v{T}")
    a(f"v_mul_f32 v{T+1}, {fhex(INV2PI)}, v{T+1}")
    a(f"v_mul_f32 v{T+2}, v{T+2}, v{V_DT}")
    a(f"v_mul_f32 v{T+3}, v{T+3}, v{V_DT}")
    a(f"v_add_f32 v{V_B0}, v{T+2}, v{T+2}")
    a(f"v_add_f32 v{V_B0+1}, v{T+3}, v{T+3}")
    t, u = T+4, T+8
    a(f"v_exp_f32 v{t}, v{T}")
    a(f"v_mul_f32 v{u}, {fhex(256.0)}, v{T}")
    a(f"v_fract_f32 v{t+1}, v{T+1}")
    a(f"v_mul_f32 v{u+1}, {fhex(256.0)}, v{T+1}")
    a(f"v_exp_f32 v{u}, v{u}")
    a(f"v_cos_f32 v{t+2}, v{t+1}")
    a(f"v_fract_f32 v{u+1}, v{u+1}")
    a(f"v_sin_f32 v{t+3}, v{t+1}")
    a(f"v_cos_f32 v{u+2}, v{u+1}")
    a(f"v_mul_f32 v{Ek(1)}, v{t}, v{t+2}")
    a(f"v_sin_f32 v{u+3}, v{u+1}")
    a(f"v_mul_f32 v{Ek(1)+1}, v{t}, v{t+3}")
    a(f"v_mul_f32 v{V_E256}, v{u}, v{u+2}")
    a(f"v_mul_f32 v{V_E256+1}, v{u}, v{u+3}")
    ops = []
    val = {"E1": Ek(1), "E256": V_E256, "B0": V_B0}
    def op(name, dst, x, y, row=None, neg=False):
        ops.append(dict(name=name, dst=dst, x=x, y=y, row=row, neg=neg))
    op("E2", Ek(2), "E1", "E1")
    op("E4", Ek(4), "E2", "E2")
    op("E3", Ek(3), "E2", "E1")
    op("E8", Ek(8), "E4", "E4", yrow(1))
    op("E5", Ek(5), "E4", "E1")
    op("E6", Ek(6), "E4", "E2")
    op("E7", Ek(7), "E4", "E3")
    op("E16", V_E16, "E8", "E8", yrow(2))
    for kb in range(1, 9):
        op(f"B{kb}", V_BB + 2*(kb-1), f"B{kb-1}", "E256", XROW[256*kb], True)
    def yn(b): return "E8" if b == 1 else ("E16" if b == 2 else f"Y{b}")
    for b in range(3, 32):
        op(f"Y{b}", V_YY + 2*(b % 4), yn(b-2), "E16", yrow(b), False)
    xr = [V_X, V_CP, V_X2, V_X3]
    n = 0
    xl = [(0, k) for k in range(1, 8)] + [(1, k) for k in (2, 4, 6, 8)] + [(2, 4), (2, 8), (3, 4), (3, 8)]
    for kb, k in xl:
        op(f"X{kb}_{k}", xr[n % 4], f"B{kb}", f"E{k}", XROW[256*kb + k], True); n += 1
    order = []
    done = {"E1": -9, "E256": -9, "B0": -9}
    pend = list(ops)
    slot = 0
    def ready(o):
        if not (o["x"] in done and o["y"] in done): return False
        if slot - done[o["x"]] < 2 or slot - done[o["y"]] < 2: return False
        cls = o["name"][0]
        if cls in "YX":
            for p in pend:
                if p is o: break
                if p["name"][0] == cls: return False
        return True
    rr = 0
    while pend:
        cand = [o for o in pend if ready(o)]
        if not cand:
            slot += 1; order.append(None); continue
        pri = {"E": 0, "B": 1, "Y": 2 + (rr & 1), "X": 3 - (rr & 1)}
        cand.sort(key=lambda o: pri[o["name"][0]])
        o = cand[0]
        pend.remove(o); done[o["name"]] = slot; val[o["name"]] = o["dst"]
        order.append(o); slot += 1; rr += 1
    tw = TabWriter(a)
    tw.put(XROW[0], V_B0, True)
    a(f"v_mov_b32 v180, 0x00003f80")
    a(f"ds_write_addtid_b32 v180 offset:{yrow(0)*272}")
    real = [o for o in order if o is not None]
    def mul(o):
        d, x, y = o["dst"], val[o["x"]], val[o["y"]]
        if not pk:
            a(f"v_mul_f32 v{d}, v{x}, v{y}")
            a(f"v_mul_f32 v{d+1}, v{x}, v{y+1}")
            return
        a(f"v_pk_mul_f32 v[{d}:{d+1}], v[{x}:{x+1}], v[{y}:{y+1}] op_sel:[0,0] op_sel_hi:[0,1]")
    def fma(o):
        d, x, y = o["dst"], val[o["x"]], val[o["y"]]
        if not pk:
            a(f"v_fma_f32 v{d}, -v{x+1}, v{y+1}, v{d}")
            a(f"v_fma_f32 v{d+1}, v{x+1}, v{y}, v{d+1}")
            return
        a(f"v_pk_fma_f32 v[{d}:{d+1}], v[{x}:{x+1}], v[{y}:{y+1}], v[{d}:{d+1}] op_sel:[1,1,0] op_sel_hi:[1,0,1] neg_lo:[1,0,0]")
    i = 0
    grp = 0
    lastput = None
    while i < len(real):
        o = real[i]
        o2 = real[i+1] if i + 1 < len(real) else None
        grp += 1
        if extras and grp % every == 1 and grp > 0:
            for ins in extras.pop(0): a(ins)
        if o2 is not None and o["name"] not in (o2["x"], o2["y"]) and o2["dst"] != o["dst"] and o2["dst"] not in (val[o["x"]], val[o["y"]]):
            mul(o); mul(o2)
            if lastput:
                for p in lastput: tw.put(p["row"], p["dst"], p["neg"])
            fma(o); fma(o2)
            lastput = [p for p in (o, o2) if p["row"] is not None]
            i += 2
        else:
            mul(o)
            if lastput:
                for p in lastput: tw.put(p["row"], p["dst"], p["neg"])
            fma(o)
            lastput = [o] if o["row"] is not None else []
            i += 1
    for p in lastput: tw.put(p["row"], p["dst"], p["neg"])
    tw.flush()
    assert not extras, "extras not all placed"
    a(f"s_waitcnt lgkmcnt(0)")
    def rd(ks):
        st = V_FRK + 8*ks
        return [f"ds_read_b128 v[{st}:{st+3}], v{V_AA_} offset:{32*ks}", f"ds_read_b128 v[{st+4}:{st+7}], v{V_AB_} offset:{32*ks}"]
    for ks in range(7):
        for ins in rd(ks): a(ins)
    for ks in range(8):
        if ks == 0:
            a(f"s_waitcnt lgkmcnt(12)")
        elif ks == 1:
            for ins in rd(7): a(ins)
            a(f"s_waitcnt lgkmcnt(12)")
        else:
            a(f"s_waitcnt lgkmcnt({2*(7-ks)})")
        st = V_FRK + 8*ks
        c = "0" if ((hh == 0 or isinstance(hh, str)) and ks == 0) else f"v[{V_ACC_}:{V_ACC_+15}]"
        a(f"v_mfma_f32_32x32x16_bf16 v[{V_ACC_}:{V_ACC_+15}], v[{st}:{st+3}], v[{st+4}:{st+7}], {c}")

def kgen_addr_setup(a, sbase):
    K5, K6, K7, K8, K9, K10 = 80, 81, 82, 83, 84, 85
    a(f"s_mov_b32 m0, {sbase}")
    a(f"v_and_b32 v{K5}, 31, v{V_LANE}")
    a(f"v_lshrrev_b32 v{K6}, 5, v{V_LANE}")
    a(f"v_lshlrev_b32 v{K6}, 4, v{K6}")
    a(f"v_add_u32 v{K6}, {sbase}, v{K6}")
    a(f"v_mov_b32 v{K7}, 26")
    a(f"v_cmp_eq_u32 vcc, 28, v{K5}")
    lo = HOLES[0] | HOLES[1] << 8 | HOLES[2] << 16 | HOLES[3] << 24
    hi = HOLES[4] | HOLES[5] << 8 | HOLES[6] << 16 | HOLES[7] << 24
    a(f"v_mov_b32 v{K9}, {hex(lo)}")
    a("s_nop 0")
    a(f"v_cndmask_b32 v{K7}, v{K5}, v{K7}, vcc")
    a(f"v_mov_b32 v{K10}, {hex(hi)}")
    a(f"v_mul_u32_u24 v{K7}, 272, v{K7}")
    a(f"v_add_u32 v{V_AA_}, v{K7}, v{K6}")
    a(f"v_and_b32 v{K8}, 7, v{K5}")
    a(f"v_or_b32 v{K8}, 0x0c0c0c00, v{K8}")
    a(f"v_perm_b32 v{K8}, v{K10}, v{K9}, v{K8}")
    a(f"v_add_u32 v{K7}, 32, v{K5}")
    a(f"v_cmp_lt_u32 vcc, 23, v{K5}")
    a("s_nop 1")
    a(f"v_cndmask_b32 v{K7}, v{K7}, v{K8}, vcc")
    a(f"v_mul_u32_u24 v{K7}, 272, v{K7}")
    a(f"v_add_u32 v{V_AB_}, v{K7}, v{K6}")

def build_W(a, vsrc, vdst):
    S = 104
    regs = [(104, 112), (124, 132)]
    def rd(it):
        S, Wk = regs[it & 1]
        a(f"ds_read_b128 v[{S}:{S+3}], v{vsrc} offset:{32 + it*1024}")
        a(f"ds_read_b128 v[{S+4}:{S+7}], v{vsrc} offset:{32 + it*1024 + 16}")
    rd(0); rd(1)
    for it in range(3):
        S, Wk = regs[it & 1]
        if it == 2:
            a(f"s_mov_b64 s[{S_EXEC}:{S_EXEC+1}], exec")
            a(f"s_mov_b64 exec, 0x3ff")
            rd(2)
            a(f"s_waitcnt lgkmcnt(0)")
        else:
            a(f"s_waitcnt lgkmcnt({2 if it == 0 else 4})")
        for k in range(4): a(f"v_alignbyte_b32 v{Wk+k}, v{S+k+1}, v{S+k}, 2")
        a(f"ds_write_b128 v{vdst}, v[{S}:{S+3}] offset:{it*1024}")
        for k in range(4): a(f"v_mov_b32 v{Wk+4+k}, v{S+k+1}")
        a(f"ds_write_b128 v{vdst}, v[{Wk}:{Wk+3}] offset:{CS + it*1024}")
        for k in range(4): a(f"v_alignbyte_b32 v{Wk+8+k}, v{S+k+2}, v{S+k+1}, 2")
        a(f"ds_write_b128 v{vdst}, v[{Wk+4}:{Wk+7}] offset:{2*CS + it*1024}")
        a(f"ds_write_b128 v{vdst}, v[{Wk+8}:{Wk+11}] offset:{3*CS + it*1024}")
        if it == 2:
            a(f"s_mov_b64 exec, s[{S_EXEC}:{S_EXEC+1}]")

V_CA = 40
V_CP33 = 41
V_CQ = 42
V_CZ = 43
V_CQC = 44
V_CF = 104

def conv_dense(a, extra=None):
    NSET = 4
    D = NSET - 1
    subs = [(d, h, True) for d in range(32) for h in range(2)] + [(32, 0, False), (32, 1, False), (33, 1, False)]
    def qreg(d): return V_CQC + (d % 4)
    def addr_ops(d):
        if d >= 32: return []
        if d == 0: return [f"v_max_i32 v{qreg(0)}, v{V_CQ}, v{V_CZ}"]
        return [f"v_subrev_u32 v{V_CQ}, 80, v{V_CQ}", f"v_max_i32 v{qreg(d)}, v{V_CQ}, v{V_CZ}"]
    def reads(s):
        d, h, both = subs[s]
        st = V_CF + 12*(s % NSET)
        o = 64*(33-d) + 32*h
        L = [f"ds_read_b64 v[{st}:{st+1}], v{V_CA} offset:{o}",
             f"ds_read_b64 v[{st+2}:{st+3}], v{V_CA} offset:{o+8}",
             f"ds_read_b128 v[{st+8}:{st+11}], v{V_CP33} offset:{80*(33-d) + 32*h}"]
        if both: L.append(f"ds_read_b128 v[{st+4}:{st+7}], v{qreg(d)} offset:{32*h}")
        return L
    def mf(s):
        d, h, both = subs[s]
        st = V_CF + 12*(s % NSET)
        a0, a1 = V_ACC_, V_ACC_+16
        c0 = "0" if s == 0 else f"v[{a0}:{a0+15}]"
        c1 = "0" if s == 0 else f"v[{a1}:{a1+15}]"
        L = [f"v_mfma_f32_32x32x16_bf16 v[{a1}:{a1+15}], v[{st}:{st+3}], v[{st+8}:{st+11}], {c1}"]
        if both: L.append(f"v_mfma_f32_32x32x16_bf16 v[{a0}:{a0+15}], v[{st}:{st+3}], v[{st+4}:{st+7}], {c0}")
        return L
    N = len(subs)
    done_addr = set()
    def need_addr(s):
        d = subs[s][0]
        if d not in done_addr:
            done_addr.add(d)
            return addr_ops(d)
        return []
    for s in range(D):
        for ins in need_addr(s): a(ins)
        for ins in reads(s): a(ins)
    for s in range(N):
        rem = sum(len(reads(t)) for t in range(s+1, min(s+D, N)))
        a(f"s_waitcnt lgkmcnt({rem})")
        fill = []
        if s + D < N:
            fill += need_addr(s+D)
            fill += reads(s+D)
        if extra and s in extra: fill += extra[s]
        interleave(a, mf(s), fill)

V_BD = 216
V_UA = 240

def far_setup(a):
    T = 186
    a(f"v_and_b32 v{T}, 31, v{V_LANE}")
    a(f"v_lshrrev_b32 v{T+1}, 5, v{V_LANE}")
    a(f"v_lshlrev_b32 v{T+2}, 3, v{T+1}")
    a(f"v_sub_u32 v{T+2}, v{T+2}, v{T}")
    a(f"v_subrev_u32 v{T+2}, 8, v{T+2}")
    a(f"v_lshlrev_b32 v{T+3}, 4, v{T}")
    a(f"v_lshl_add_u32 v{T+3}, v{T+1}, 3, v{T+3}")
    a(f"s_add_u32 s95, s{S_RB}, {80 - 160 + 1280}")
    a(f"v_mov_b32 v{T+6}, s{S_RB}")
    for par in range(2):
        for ks in range(3):
            c0 = (-40 if par == 0 else -32) + 16*ks
            r = V_UA + 3*par + ks
            a(f"v_add_u32 v{T+4}, {c0 + 64}, v{T+3}")
            a(f"v_lshrrev_b32 v{T+5}, 5, v{T+4}")
            a(f"v_mul_u32_u24 v{T+5}, 80, v{T+5}")
            a(f"v_and_b32 v{T+4}, 31, v{T+4}")
            a(f"v_lshl_add_u32 v{T+5}, v{T+4}, 1, v{T+5}")
            a(f"v_add_u32 v{r+6}, s95, v{T+5}")
            a(f"v_subrev_u32 v{T+5}, 1280, v{r+6}")
            a(f"v_max_i32 v{r}, v{T+5}, v{T+6}")
    a(f"v_mov_b32 v{T+7}, 0x00003f80")
    a(f"v_mov_b32 v{T+8}, 0x3f800000")
    for par in range(2):
        w = 4 - par
        for ks in range(3):
            for dw in range(4):
                r = V_BD + 12*par + 4*ks + dw
                t4, t5 = T+4 + 6*(dw & 1), T+5 + 6*(dw & 1)
                sp = 34 if (dw & 1) == 0 else 90
                a(f"v_add_u32 v{t4}, {16*ks + 2*dw + w}, v{T+2}")
                a(f"v_add_u32 v{t5}, {16*ks + 2*dw + w + 1}, v{T+2}")
                a(f"v_cmp_ge_u32 s[{sp}:{sp+1}], {2*w}, v{t4}")
                a(f"v_cmp_ge_u32 s[{sp+58 if sp == 34 else sp+2}:{sp+59 if sp == 34 else sp+3}], {2*w}, v{t5}")
                s2 = sp+58 if sp == 34 else sp+2
                a(f"s_nop 0")
                a(f"v_cndmask_b32 v{t4}, 0, v{T+7}, s[{sp}:{sp+1}]")
                a(f"v_cndmask_b32 v{t5}, 0, v{T+8}, s[{s2}:{s2+1}]")
                a(f"v_or_b32 v{r}, v{t4}, v{t5}")

def conv_far(a):
    a.c("far part")
    ZA = 144
    FR = 104
    seq = [(t, par, ks) for t in range(2) for par in range(2) for ks in range(3)]
    def rd(j):
        t, par, ks = seq[j]
        r = FR + 4*(j % 8)
        return f"ds_read_b128 v[{r}:{r+3}], v{V_UA + 6*t + 3*par + ks}"
    for j in range(8): a(rd(j))
    for j in range(12):
        t, par, ks = seq[j]
        issued = min(12, 8 + j)
        a(f"s_waitcnt lgkmcnt({issued - j - 1})")
        r = FR + 4*(j % 8)
        d = ZA + 16*(2*t + par)
        c = "0" if ks == 0 else f"v[{d}:{d+15}]"
        b = V_BD + 12*par + 4*ks
        a(f"v_mfma_f32_32x32x16_bf16 v[{d}:{d+15}], v[{r}:{r+3}], v[{b}:{b+3}], {c}")
        if j + 8 < 12: a(rd(j+8))
    ZF = 104
    GF = 144
    for q in range(4):
        for e in range(4):
            a(f"v_cvt_pk_bf16_f32 v{ZF + 4*q + e}, v{ZA + 4*q + e}, v{ZA + 16 + 4*q + e}")
    def grd(ks):
        r = GF + 4*ks
        return [f"ds_read_b64 v[{r}:{r+1}], v{V_GA} offset:{32*ks}", f"ds_read_b64 v[{r+2}:{r+3}], v{V_GA} offset:{32*ks+8}"]
    for ks in range(6):
        for ins in grd(ks): a(ins)
    for q in range(4):
        for e in range(4):
            a(f"v_cvt_pk_bf16_f32 v{ZF + 16 + 4*q + e}, v{ZA + 32 + 4*q + e}, v{ZA + 48 + 4*q + e}")
    a1 = V_ACC_ + 16
    for ks in range(8):
        if ks == 0:
            a(f"s_waitcnt lgkmcnt(10)")
        elif ks == 1:
            for k2 in (6, 7):
                for ins in grd(k2): a(ins)
            a(f"s_waitcnt lgkmcnt(12)")
        else:
            a(f"s_waitcnt lgkmcnt({2*(7-ks)})")
        r = GF + 4*ks
        a(f"v_mfma_f32_32x32x16_bf16 v[{a1}:{a1+15}], v[{ZF+4*ks}:{ZF+4*ks+3}], v[{r}:{r+3}], v[{a1}:{a1+15}]")

V_CZ2 = 48
V_GA = 51

def u_stage(a, UREG):
    a(f"s_waitcnt vmcnt(0)")
    stamp(a, 5)
    a(f"s_and_b32 s35, s{S_WAVE}, 3")
    a(f"v_lshrrev_b32 v5, 5, v{V_LANE}")
    a(f"s_lshl_b32 s33, s35, 4")
    a(f"v_add_u32 v5, s33, v5")
    a(f"v_mul_u32_u24 v5, 80, v5")
    a(f"v_and_b32 v3, 31, v{V_LANE}")
    a(f"v_lshl_add_u32 v5, v3, 1, v5")
    a(f"v_add_u32 v5, {U_OFF}, v5")
    for i in range(8):
        a(f"s_lshl_b32 s34, s{S_IDX}, 1")
        a(f"s_add_u32 s34, s34, {i}")
        a(f"s_and_b32 s34, s34, 7")
        a(f"s_mul_i32 s34, s34, 160")
        a(f"v_add_u32 v6, s34, v5")
        a(f"v_add_u32 v7, {3*RSZ}, v6")
        a(f"v_add_u32 v8, {6*RSZ}, v6")
        for ch in range(8):
            base = [6, 7, 8][ch // 3]
            off = (ch % 3)*RSZ
            op = "ds_write_b16" if ch % 2 == 0 else "ds_write_b16_d16_hi"
            a(f"{op} v{base}, v{UREG[i] + ch//2} offset:{off}")
    a(f"v_mov_b32 v8, 0\nv_mov_b32 v9, 0\nv_mov_b32 v10, 0\nv_mov_b32 v11, 0")
    a(f"s_mul_i32 s34, s35, {RSZ}")
    a(f"v_lshlrev_b32 v5, 4, v{V_LANE}")
    a(f"v_add_u32 v5, s34, v5")
    a(f"v_add_u32 v6, {4*RSZ}, v5")
    a(f"s_mov_b64 s[{S_EXEC}:{S_EXEC+1}], exec")
    a(f"s_mov_b64 exec, 31")
    a(f"ds_write_b128 v5, v[8:11]")
    a(f"ds_write_b128 v6, v[8:11]")
    a("s_waitcnt lgkmcnt(0)")
    a(f"s_mov_b64 exec, 1")
    a(f"v_mov_b32 v12, {CNT_OFF}")
    a(f"v_mov_b32 v13, 1")
    a(f"ds_add_u32 v12, v13")
    a(f"s_mov_b64 exec, s[{S_EXEC}:{S_EXEC+1}]")

SRD_T0, SRD_T1 = 12, 16
S_TOUCH = 94
MAP45 = {"v": True}
def touch_setup(a, map45):
    make_srd(a, SRD_T0, P_C2RE, 819200)
    make_srd(a, SRD_T1, P_C2IM, 819200)
    a(f"s_cmp_lt_u32 s{S_WAVE}, 4")
    a(f"s_cselect_b32 s{SRD_T0+2}, 819200, 0")
    a(f"s_cselect_b32 s{SRD_T1+2}, 819200, 0")
    a(f"v_lshrrev_b32 v14, 3, v{V_LANE}")
    a(f"v_mul_u32_u24 v14, 1280, v14")
    a(f"v_and_b32 v15, 7, v{V_LANE}")
    a(f"v_lshl_add_u32 v39, v15, 6, v14")
    a(f"s_mul_hi_u32 s35, s{S_IDX}, {(2**32 + 9)//10}")
    a(f"s_mul_i32 s34, s35, 10")
    a(f"s_sub_u32 s34, s{S_IDX}, s34")
    if MAP45["v"]:
        a(f"s_and_b32 s35, s35, 1")
        a(f"s_mul_i32 s35, s35, 40")
        a(f"s_lshl_b32 s34, s34, 2")
        a(f"s_add_u32 s35, s35, s34")
        a(f"s_and_b32 s34, s{S_WAVE}, 3")
        a(f"s_add_u32 s35, s35, s34")
        a(f"s_mul_i32 s{S_TOUCH}, s35, {8*1280}")
    else:
        a(f"s_lshl_b32 s34, s34, 2")
        a(f"s_and_b32 s35, s{S_WAVE}, 3")
        a(f"s_add_u32 s35, s35, s34")
        a(f"s_mul_i32 s{S_TOUCH}, s35, {16*1280}")
        a(f"s_add_u32 s98, s{S_TOUCH}, {8*1280}")
def touch(k):
    srd = SRD_T0 if (k & 1) == 0 else SRD_T1
    off = 512*(k >> 1)
    L = [f"buffer_load_dword v38, v39, s[{srd}:{srd+3}], s{S_TOUCH} offen offset:{off}"]
    if not MAP45["v"]:
        L.append(f"buffer_load_dword v38, v39, s[{srd}:{srd+3}], s98 offen offset:{off}")
    return L

def gen_conv(a, END, opts):
    MAP45["v"] = opts.get("map45", True)
    a.c("================= CONV role v2 =================")
    a("s_mul_i32 s30, s30, 10")
    a("s_add_u32 s30, s30, s31")
    a(f"s_sub_u32 s{S_IDX}, s30, 20")
    a(f"s_lshl_b32 s{S_D}, s{S_IDX}, 3")
    a(f"s_add_u32 s{S_D}, s{S_D}, s{S_WAVE}")
    a(f"s_mul_i32 s{S_RB}, s{S_WAVE}, {RSZ}")
    T = V_T_
    lab = a.label("CINIT")
    a(f"s_cmp_lg_u32 s{S_WAVE}, 0")
    a(f"s_cbranch_scc1 {lab}")
    a(f"v_mov_b32 v5, {CNT_OFF}")
    a(f"v_mov_b32 v3, 0")
    a(f"ds_write_b32 v5, v3")
    a(f"s_waitcnt lgkmcnt(0)")
    a(f"{lab}:")
    a("s_barrier")
    a(f"v_lshlrev_b32 v2, 2, v{V_LANE}")
    a(f"s_lshl_b32 s33, s{S_D}, 8")
    for k, P in enumerate([P_LOGA, P_AIM, P_CRE, P_CIM]):
        make_srd(a, SRD_A, P, 163840)
        a(f"buffer_load_dword v{V_PRM+k}, v2, s[{SRD_A}:{SRD_A+3}], s33 offen")
    a(f"s_lshl_b32 s33, s{S_D}, 1")
    a(f"v_mov_b32 v3, 0")
    make_srd(a, SRD_A, P_LOGDT, 1280)
    a(f"buffer_load_ushort v{V_PRM+4}, v3, s[{SRD_A}:{SRD_A+3}], s33 offen")
    make_srd(a, SRD_B, P_DSKA, 1280)
    a(f"buffer_load_ushort v{V_PRM+5}, v3, s[{SRD_B}:{SRD_B+3}], s33 offen")
    UREG = [16, 20, 24, 28, 194, 198, 202, 206]
    a(f"v_mul_u32_u24 v15, 1280, v{V_LANE}")
    a(f"s_and_b32 s35, s{S_WAVE}, 3")
    a(f"s_mul_i32 s33, s35, {512*1280}")
    a(f"s_lshl_b32 s34, s{S_IDX}, 4")
    a(f"s_add_u32 s33, s33, s34")
    uloads = []
    for i in range(8):
        a(f"s_lshl_b32 s34, s{S_IDX}, 1")
        a(f"s_add_u32 s34, s34, {i}")
        a(f"s_and_b32 s34, s34, 7")
        a(f"s_mul_i32 s34, s34, {64*1280}")
        a(f"s_add_u32 s{76+i}, s34, s33")
        uloads.append([f"buffer_load_dwordx4 v[{UREG[i]}:{UREG[i]+3}], v15, s[{SRD_X}:{SRD_X+3}], s{76+i} offen"])
    if opts.get("uimm") or opts.get("kofl"):
        lab = a.label("UIMM")
        a(f"s_cmp_lt_u32 s{S_WAVE}, 4")
        a(f"s_cbranch_scc1 {lab}")
        for l in uloads:
            for ins in l: a(ins)
        a(f"{lab}:")
    if opts.get("prio", False):
        lab = a.label("PRIO")
        a(f"s_cmp_ge_u32 s{S_WAVE}, 4")
        a(f"s_cbranch_scc1 {lab}")
        a("s_setprio 2")
        a(f"{lab}:")
    a(f"v_lshlrev_b32 v2, 2, v{V_LANE}")
    a(f"s_add_u32 s33, s{S_RB}, {T_OFF}")
    a(f"s_mov_b32 m0, s33")
    a(f"v_and_b32 v5, 31, v{V_LANE}")
    a(f"v_lshrrev_b32 v6, 5, v{V_LANE}")
    a(f"v_lshlrev_b32 v6, 4, v6")
    a(f"v_add_u32 v6, s33, v6")
    a(f"v_mov_b32 v7, 26")
    a(f"v_cmp_eq_u32 vcc, 28, v5")
    lo = HOLES[0] | HOLES[1] << 8 | HOLES[2] << 16 | HOLES[3] << 24
    hi = HOLES[4] | HOLES[5] << 8 | HOLES[6] << 16 | HOLES[7] << 24
    a(f"v_mov_b32 v9, {hex(lo)}")
    a("s_nop 0")
    a(f"v_cndmask_b32 v7, v5, v7, vcc")
    a(f"v_mov_b32 v10, {hex(hi)}")
    a(f"v_mul_u32_u24 v7, 272, v7")
    a(f"v_add_u32 v{V_AA_}, v7, v6")
    a(f"v_and_b32 v8, 7, v5")
    a(f"v_or_b32 v8, 0x0c0c0c00, v8")
    a(f"v_perm_b32 v8, v10, v9, v8")
    a(f"v_add_u32 v7, 32, v5")
    a(f"v_cmp_lt_u32 vcc, 23, v5")
    a("s_nop 1")
    a(f"v_cndmask_b32 v7, v7, v8, vcc")
    a(f"v_mul_u32_u24 v7, 272, v7")
    a(f"v_add_u32 v{V_AB_}, v7, v6")
    stamp(a, 1)
    if opts.get("uimm") or opts.get("kofl"):
        labw = a.label("PW"); labw2 = a.label("PW2")
        a(f"s_cmp_lt_u32 s{S_WAVE}, 4")
        a(f"s_cbranch_scc1 {labw}")
        a("s_waitcnt vmcnt(8)")
        a(f"s_branch {labw2}")
        a(f"{labw}:")
        a("s_waitcnt vmcnt(0)")
        a(f"{labw2}:")
    else:
        a("s_waitcnt vmcnt(0)")
    stamp(a, 2)
    a(f"v_lshlrev_b32 v{V_DT}, 16, v{V_PRM+4}")
    exp_accurate(a, V_DT, V_DT, T, T+1, T+2)
    round_bf16(a, V_DT, V_DT)
    a(f"v_lshlrev_b32 v{V_DSK}, 16, v{V_PRM+5}")
    ct = opts.get("ctouch", False)
    if ct: touch_setup(a)
    if opts.get("nou"): uloads = [[], [], [], []]
    if opts.get("uearly"):
        for l in uloads:
            for ins in l: a(ins)
        uloads = [[], [], [], []]
    lab_yk = a.label("YK"); lab_kd = a.label("KD")
    a(f"s_cmp_ge_u32 s{S_WAVE}, 4")
    a(f"s_cbranch_scc1 {lab_yk}")
    et = opts.get("etouch", False)
    if et: touch_setup(a, True)
    kgen_pass(a, 0)
    stamp(a, 3)
    kgen_pass(a, 1, [touch(0), touch(1)] if et else None, every=opts.get("etev", 14))
    a(f"s_branch {lab_kd}")
    a(f"{lab_yk}:")
    if et: touch_setup(a, True)
    if opts.get("kofl"):
        a("s_setprio 3")
        u_stage(a, UREG)
        a("s_setprio 0")
        stamp(a, 3)
        a("v_mov_b32 v5, 0")
        get_nonce(a, END, 5, 2)
        a(f"s_lshl_b32 s33, s{S_IDX}, 2")
        a(f"s_and_b32 s34, s{S_WAVE}, 3")
        a(f"s_add_u32 s33, s33, s34")
        a(f"s_lshl_b32 s34, s33, 4")
        a(f"s_add_u32 s34, s34, {WS_KFLG}")
        poll_flags(a, END, 34, 2, 6, 8)
        a(f"s_lshl_b32 s33, s33, 13")
        a(f"s_add_u32 s33, s33, {WS_KP}")
        a(f"v_lshlrev_b32 v6, 4, v{V_LANE}")
        for p in range(2):
            for j in range(4):
                r = (V_ACC_ if p == 0 else 104) + 4*j
                a(f"s_add_u32 s34, s33, {p*4096}") if j == 0 else None
                a(f"buffer_load_dwordx4 v[{r}:{r+3}], v6, s[{SRD_WS}:{SRD_WS+3}], s34 offen offset:{j*1024} sc1")
        a("s_waitcnt vmcnt(0)")
        for k in range(16):
            a(f"v_add_f32 v{V_ACC_+k}, v{V_ACC_+k}, v{104+k}")
    elif opts.get("uimm"):
        a("s_setprio 3")
        u_stage(a, UREG)
        a(f"s_setprio {opts.get('yprio0', 0)}")
        kgen_pass(a, 0, None, pk=False)
        stamp(a, 3)
    else:
        kgen_pass(a, 0, list(uloads), every=opts.get("uevy", 3))
        stamp(a, 3)
        a("s_setprio 3")
        u_stage(a, UREG)
    if not opts.get("kofl"):
        a(f"s_setprio {opts.get('yprio', 1)}")
        kgen_pass(a, 1, None, pk=False)
    a(f"{lab_kd}:")
    stamp(a, 4)
    if ct:
        for ins in touch(6) + touch(7): a(ins)
    a(f"v_mov_b32 v8, 0\nv_mov_b32 v9, 0\nv_mov_b32 v10, 0\nv_mov_b32 v11, 0")
    a(f"s_mov_b64 s[{S_EXEC}:{S_EXEC+1}], exec")
    if et:
        for ins in touch(2): a(ins)
    a.c("expand K -> R, G")
    a("s_nop 7")
    A = V_ACC_
    a(f"v_and_b32 v5, 31, v{V_LANE}")
    a(f"v_lshrrev_b32 v6, 5, v{V_LANE}")
    a(f"s_add_u32 s33, s{S_RB}, {R_OFF}")
    a(f"v_lshlrev_b32 v7, 4, v{V_LANE}")
    a(f"v_add_u32 v7, s33, v7")
    a(f"s_mov_b64 exec, 0x7f")
    a(f"ds_write_b128 v7, v[8:11]")
    a(f"s_mov_b64 exec, 15")
    a(f"ds_write_b128 v7, v[8:11] offset:2176")
    a(f"s_mov_b64 exec, 0xffff")
    a(f"ds_write_b128 v7, v[8:11] offset:{2240 + 256}")
    a(f"s_mov_b64 exec, -1")
    a(f"v_lshlrev_b32 v12, 4, v5")
    a(f"v_lshl_add_u32 v12, v6, 3, v12")
    a(f"v_sub_u32 v12, 1656, v12")
    a(f"v_add_u32 v12, s33, v12")
    a(f"v_cvt_pk_bf16_f32 v200, v{A+3}, v{A+2}")
    a(f"v_cvt_pk_bf16_f32 v201, v{A+1}, v{A+0}")
    a(f"ds_write_b64 v12, v[200:201] offset:512")
    a(f"v_cvt_pk_bf16_f32 v202, v{A+14}, v{A+13}")
    a(f"v_cvt_pk_bf16_f32 v203, v{A+12}, v{A+12}")
    a(f"ds_write_b64 v12, v[202:203]")
    a(f"v_lshlrev_b32 v12, 4, v5")
    a(f"v_lshl_add_u32 v12, v6, 9, v12")
    a(f"v_sub_u32 v12, 1136, v12")
    a(f"v_add_u32 v12, s33, v12")
    a(f"v_cvt_pk_bf16_f32 v206, v{A+10}, v{A+10}")
    a(f"v_cvt_pk_bf16_f32 v207, v{A+9}, v{A+9}")
    a(f"v_cvt_pk_bf16_f32 v208, v{A+9}, v{A+8}")
    a(f"v_cvt_pk_bf16_f32 v209, v{A+8}, v{A+8}")
    a(f"ds_write_b128 v12, v[206:209]")
    a(f"v_cvt_pk_bf16_f32 v213, v{A+4}, v{A+4}")
    a(f"v_mov_b32 v210, 0")
    a(f"v_and_b32 v211, 0xffff0000, v213")
    a(f"v_mov_b32 v212, v213")
    a(f"v_mov_b32 v13, s33")
    a(f"s_mov_b64 exec, 1")
    a(f"ds_write_b128 v13, v[210:213] offset:112")
    a(f"s_mov_b64 exec, -1")
    a(f"v_lshlrev_b32 v12, 1, v5")
    a(f"v_lshl_add_u32 v12, v6, 7, v12")
    a(f"v_sub_u32 v12, {256 - 64}, v12")
    a(f"v_add_u32 v12, s33, v12")
    a(f"v_cvt_pk_bf16_f32 v200, v{A+4}, v{A+5}")
    a(f"ds_write_b16 v12, v200 offset:{2240 + 64}")
    a(f"ds_write_b16_d16_hi v12, v200 offset:{2240}")
    a(f"v_cvt_pk_bf16_f32 v201, v{A+6}, v{A+6}")
    a(f"v_mov_b32 v202, 0")
    a(f"s_mov_b64 exec, 1")
    a(f"ds_write_b16 v13, v202 offset:{2240 + 256}")
    a(f"ds_write_b16 v13, v201 offset:{2240}")
    a(f"s_mov_b64 exec, -1")
    a("s_waitcnt lgkmcnt(0)")
    a(f"v_lshlrev_b32 v6, 4, v{V_LANE}")
    a(f"s_add_u32 s34, s{S_RB}, {W_OFF}")
    a(f"v_add_u32 v6, s34, v6")
    stamp(a, 6)
    if et:
        for ins in touch(3): a(ins)
    build_W(a, 7, 6)
    if et:
        for ins in touch(4): a(ins)
    a(f"s_add_u32 s34, s{S_RB}, {W_OFF}")
    a(f"v_and_b32 v9, 31, v{V_LANE}")
    a(f"v_lshrrev_b32 v8, 5, v{V_LANE}")
    a(f"v_sub_u32 v10, 3, v9")
    a(f"v_and_b32 v10, 3, v10")
    a(f"v_lshlrev_b32 v11, 3, v8")
    a(f"v_sub_u32 v11, v11, v9")
    a(f"v_sub_u32 v11, v11, v10")
    a(f"v_lshlrev_b32 v11, 1, v11")
    a(f"v_add_u32 v11, {2*1071 - 64*33}, v11")
    a(f"v_mul_u32_u24 v10, {CS}, v10")
    a(f"v_add_u32 v11, v11, v10")
    a(f"v_add_u32 v{V_CA}, s34, v11")
    a(f"v_lshlrev_b32 v11, 4, v8")
    a(f"v_add_u32 v{V_CZ}, s{S_RB}, v11")
    a(f"v_mul_u32_u24 v10, 80, v9")
    a(f"v_add_u32 v{V_CP33}, v10, v{V_CZ}")
    a(f"v_add_u32 v{V_CQ}, 80, v{V_CP33}")
    a(f"v_mov_b32 v{V_CZ2}, s{S_RB}")
    a(f"v_mov_b32 v54, v{V_DSK}")
    a(f"v_lshlrev_b32 v10, 3, v9")
    a(f"v_lshlrev_b32 v11, 4, v8")
    a(f"v_sub_u32 v11, v11, v10")
    a(f"v_add_u32 v11, {248 + G_OFF}, v11")
    a(f"v_add_u32 v{V_GA}, s{S_RB}, v11")
    a(f"v_mov_b32 v12, {CNT_OFF}")
    lp = a.label("USP"); ok = a.label("USOK")
    a(f"s_mov_b32 s{S_CNT}, 2000000")
    a(f"{lp}:")
    a(f"ds_read_b32 v13, v12")
    a(f"s_waitcnt lgkmcnt(0)")
    a(f"v_readfirstlane_b32 s{S_T3}, v13")
    a(f"s_nop 0")
    a(f"s_cmp_ge_u32 s{S_T3}, 4")
    a(f"s_cbranch_scc1 {ok}")
    a(f"s_sleep 2")
    a(f"s_sub_u32 s{S_CNT}, s{S_CNT}, 1")
    a(f"s_cbranch_scc0 {lp}")
    a(f"{ok}:")
    stamp(a, 7)
    a("s_setprio 0")
    tmp = Asm(); far_setup(tmp)
    fl = [l.strip() for l in tmp.lines]
    extra = {}
    per = (len(fl) + 59) // 60
    k = 0
    for sidx in range(2, 64):
        extra[sidx] = fl[k:k+per]; k += per
    assert k >= len(fl)
    if et:
        extra[1] = touch(5) + extra.get(1, [])
    if opts.get("dtouch", False) and not et:
        touch_setup(a, True)
        for kk in range(6):
            sidx = 1 + opts.get("dtstep", 6)*kk
            extra.setdefault(sidx, [])
            extra[sidx] = touch(kk) + extra[sidx]
    conv_dense(a, extra)
    stamp(a, 8)
    conv_far(a)
    stamp(a, 10)
    a.c("conv epilogue")
    a(f"v_and_b32 v7, 31, v{V_LANE}")
    a(f"v_lshrrev_b32 v8, 5, v{V_LANE}")
    a(f"v_mul_u32_u24 v9, 80, v7")
    a(f"v_lshl_add_u32 v9, v8, 3, v9")
    a(f"v_add_u32 v9, s{S_RB}, v9")
    UV = 104
    for t in range(2):
        for q in range(4):
            r = UV + 2*(4*t+q)
            a(f"ds_read_b64 v[{r}:{r+1}], v9 offset:{80 + 2560*t + 16*q}")
    a(f"s_add_u32 s34, s{S_RB}, {W_OFF}")
    a(f"v_lshlrev_b32 v10, 6, v7")
    a(f"v_lshl_add_u32 v10, v8, 3, v10")
    a(f"v_add_u32 v10, s34, v10")
    a(f"v_lshlrev_b32 v6, 4, v{V_LANE}")
    a(f"v_add_u32 v6, s34, v6")
    a("s_waitcnt lgkmcnt(0)")
    a("s_nop 7")
    Wk = 124
    for t in range(2):
        for q in range(4):
            for h in range(2):
                uv = UV + 2*(4*t+q) + h
                y0 = V_ACC_ + 16*t + 4*q + 2*h
                o = Wk + 12 + 2*((4*t+q) & 1) + h
                w = Wk + 6*h
                a(f"v_lshlrev_b32 v{w+1}, 16, v{uv}")
                a(f"v_and_b32 v{w+2}, 0xffff0000, v{uv}")
                a(f"v_cvt_pk_bf16_f32 v{w}, v{y0}, v{y0+1}")
                a(f"v_mul_f32 v{w+1}, v{w+1}, v54")
                a(f"v_mul_f32 v{w+2}, v{w+2}, v54")
                a(f"v_lshlrev_b32 v{w+3}, 16, v{w}")
                a(f"v_cvt_pk_bf16_f32 v{w+1}, v{w+1}, v{w+2}")
                a(f"v_and_b32 v{w}, 0xffff0000, v{w}")
                a(f"v_lshlrev_b32 v{w+4}, 16, v{w+1}")
                a(f"v_and_b32 v{w+1}, 0xffff0000, v{w+1}")
                a(f"v_add_f32 v{w+3}, v{w+3}, v{w+4}")
                a(f"v_add_f32 v{w}, v{w}, v{w+1}")
                a(f"v_cvt_pk_bf16_f32 v{o}, v{w+3}, v{w}")
            o = Wk + 12 + 2*((4*t+q) & 1)
            a(f"ds_write_b64 v10, v[{o}:{o+1}] offset:{2048*t + 16*q}")
    a("s_waitcnt lgkmcnt(0)")
    for j in range(4):
        a(f"ds_read_b128 v[{104+4*j}:{107+4*j}], v6 offset:{1024*j}")
    a(f"v_lshlrev_b32 v7, 4, v{V_LANE}")
    a(f"s_lshl_b32 s33, s{S_D}, 12")
    a(f"s_add_u32 s33, s33, {WS_A}")
    for j in range(4):
        a(f"s_waitcnt lgkmcnt({3-j})")
        a(f"buffer_store_dwordx4 v[{104+4*j}:{107+4*j}], v7, s[{SRD_WS}:{SRD_WS+3}], s33 offen offset:{1024*j} sc1")
    stamp(a, 11)
    a("v_mov_b32 v5, 0")
    get_nonce(a, END, 5, 2)
    a("s_waitcnt vmcnt(0)")
    a("s_setprio 0")
    a("s_barrier")
    lab = a.label("CNF")
    a(f"s_cmp_lg_u32 s{S_WAVE}, 0")
    a(f"s_cbranch_scc1 {lab}")
    a(f"s_lshr_b32 s33, s{S_IDX}, 3")
    a(f"s_lshl_b32 s33, s33, 7")
    a(f"s_and_b32 s34, s{S_IDX}, 7")
    a(f"s_lshl_b32 s34, s34, 3")
    a(f"s_add_u32 s33, s33, s34")
    a(f"s_add_u32 s33, s33, {WS_AFLG}")
    a(f"v_mov_b32 v6, s{S_NONCE}")
    a(f"v_mov_b32 v7, s{S_NONCE+1}")
    a("s_mov_b64 exec, 1")
    a(f"buffer_store_dwordx2 v[6:7], v5, s[{SRD_WS}:{SRD_WS+3}], s33 offen sc1")
    a("s_mov_b64 exec, -1")
    a(f"{lab}:")
    stamp(a, 12)
    prof_end(a, opts.get("cprofwave", 0))
```

```python
from common import *
from g1 import (S_C, S_S, S_WM, S_WN, S_SX, S_SB, S_KC, S_T0, S_T1, S_M0X, S_CNT, S_MISM, S_T2, S_T3, S_EXEC,
                V_LANE, V_VOFF, V_AA, V_BA, V_FR, V_ACC, V_ACC2, V_LR, V_LI, V_C2, V_L32, V_L128, V_ER, V_EI, V_HR, V_HI,
                V_NON, V_T, V_ZERO, V_L16, V_EOFF, acc, acc2, cmul, cfma, g1_reads, g1_mfmas, interleave)
from g2 import poll_flags

HSLOT = 17408
NHS = 6
CBASE = NHS * HSLOT
NCS = 5
NREG = 9
L_EX = CBASE + NCS*8192
L_G = L_EX + 2048
L_CNT = L_G + 1024
CNT_EX, CNT_H, CNT_X, CNT_F, CNT_E, CNT_C, CNT_R, CNT_HX0, CNT_HX1, CNT_P = [L_CNT + 4*i for i in range(10)]
L_HX = L_CNT + 64
L_CST = 0
L_XT = NREG * 8192
L_AT = 2 * HSLOT
V_CREG = 96
S_LW = 83
S_DONE = 90
S_KY, S_KB = 98, 99

def lds_spin(a, vaddr, vtmp, target, END, sleep=False):
    lp = a.label("SPIN"); ok = a.label("SPOK")
    a(f"s_mov_b32 s{S_CNT}, 2000000")
    a(f"{lp}:")
    a(f"ds_read_b32 v{vtmp}, v{vaddr}")
    a(f"s_waitcnt lgkmcnt(0)")
    a(f"v_readfirstlane_b32 s{S_T3}, v{vtmp}")
    a(f"s_nop 0")
    a(f"s_cmp_ge_u32 s{S_T3}, {target}")
    a(f"s_cbranch_scc1 {ok}")
    a(f"s_sleep 1")
    a(f"s_sub_u32 s{S_CNT}, s{S_CNT}, 1")
    a(f"s_cbranch_scc0 {lp}")
    a(f"{ok}:")

def lds_inc(a, vaddr, vone):
    a(f"s_mov_b64 s[{S_EXEC}:{S_EXEC+1}], exec")
    a(f"s_mov_b64 exec, 1")
    a(f"ds_add_u32 v{vaddr}, v{vone}")
    a(f"s_mov_b64 exec, s[{S_EXEC}:{S_EXEC+1}]")

def ld_g1_dma(a, it):
    slot = it % 4
    a(f"s_lshl_b32 s{S_T0}, s{S_KC}, 7")
    a(f"s_add_u32 s{S_T1}, s{S_T0}, s{S_SB}")
    a(f"s_add_u32 s{S_T0}, s{S_T0}, s{S_SX}")
    for jj in range(4):
        a(f"s_add_u32 m0, s{S_M0X}, {slot*16384 + jj*1024}")
        a(f"s_nop 0")
        a(f"buffer_load_dwordx4 v{V_VOFF+jj}, s[{SRD_X}:{SRD_X+3}], s{S_T0} offen lds")
        a(f"s_add_u32 m0, s{S_M0X}, {65536 + slot*16384 + jj*1024}")
        a(f"s_nop 0")
        a(f"buffer_load_dwordx4 v{V_VOFF+jj}, s[{SRD_A}:{SRD_A+3}], s{S_T1} offen lds")
    a(f"s_add_u32 s{S_KC}, s{S_KC}, 1")
    a(f"s_cmp_eq_u32 s{S_KC}, 10")
    a(f"s_cselect_b32 s{S_KC}, 0, s{S_KC}")

S_HB, S_CB, S_SP, S_SPC = 76, 77, 78, 91
S_M0H, S_M0C = 81, 92

def ld_c_chunk(a, ch):
    plane = ch & 1
    dst = L_CST + ch*8192 if ch < NREG else CBASE + ((ch - NREG) % NCS)*8192
    srd = SRD_C if plane else SRD_B
    a(f"s_lshl_b32 s{S_T1}, s{S_SPC}, 7")
    a(f"s_add_u32 s{S_T1}, s{S_T1}, s{S_CB}")
    for jj in range(2):
        a(f"s_add_u32 m0, s{S_M0C}, {dst + jj*1024}")
        a(f"s_nop 0")
        a(f"buffer_load_dwordx4 v{V_VOFF+jj}, s[{srd}:{srd+3}], s{S_T1} offen lds")
    if plane:
        a(f"s_add_u32 s{S_SPC}, s{S_SPC}, 1")
        a(f"s_cmp_eq_u32 s{S_SPC}, 10")
        a(f"s_cselect_b32 s{S_SPC}, 0, s{S_SPC}")

HSC = {"v": "sc1"}
def ld_h_stage(a, it):
    slot = it % NHS
    plane = it & 1
    a(f"s_lshl_b32 s{S_T0}, s{S_SP}, 14")
    a(f"s_add_u32 s{S_T0}, s{S_T0}, s{S_HB}")
    if plane: a(f"s_add_u32 s{S_T0}, s{S_T0}, {10*16384}")
    for jj in range(4):
        a(f"s_add_u32 m0, s{S_M0H}, {slot*HSLOT + jj*64}")
        a(f"s_nop 0")
        a(f"buffer_load_dwordx4 v{V_L16}, s[{SRD_WS}:{SRD_WS+3}], s{S_T0} offen offset:{jj*1024} {HSC['v']} lds")
    if plane:
        a(f"s_add_u32 s{S_SP}, s{S_SP}, 1")
        a(f"s_cmp_eq_u32 s{S_SP}, 10")
        a(f"s_cselect_b32 s{S_SP}, 0, s{S_SP}")

def ld_a_tile(a, T):
    a(f"v_lshrrev_b32 v{T}, 4, v{V_LANE}")
    a(f"v_and_b32 v{T+1}, 15, v{V_LANE}")
    a(f"s_lshl_b32 s34, s{S_S}, 6")
    a(f"s_lshl_b32 s35, s{S_LW}, 4")
    a(f"s_add_u32 s34, s34, s35")
    a(f"s_lshl_b32 s34, s34, 12")
    a(f"s_lshl_b32 s35, s{S_C}, 8")
    a(f"s_add_u32 s34, s34, s35")
    a(f"s_add_u32 s34, s34, {WS_A}")
    a(f"s_lshl_b32 s{S_T2}, s{S_LW}, 12")
    a(f"s_add_u32 s{S_T2}, s{S_T2}, {L_AT}")
    for jj in range(4):
        a(f"v_add_u32 v{T+2}, {4*jj}, v{T}")
        a(f"v_xor_b32 v{T+2}, v{T+2}, v{T+1}")
        a(f"v_lshlrev_b32 v{T+2}, 4, v{T+2}")
        a(f"v_lshl_add_u32 v{T+3+jj}, v{T}, 12, v{T+2}")
    for jj in range(4):
        a(f"s_add_u32 m0, s{S_T2}, {jj*1024}")
        a(f"s_add_u32 s35, s34, {jj*4*4096}")
        a(f"buffer_load_dwordx4 v{T+3+jj}, s[{SRD_WS}:{SRD_WS+3}], s35 offen sc1 lds")
    a(f"s_lshl_b32 s34, s{S_C}, 10")
    a(f"s_add_u32 s34, s34, {WS_G}")
    a(f"s_mov_b32 m0, {L_G}")
    a(f"s_nop 0")
    a(f"buffer_load_dwordx4 v{V_L16}, s[{SRD_WS}:{SRD_WS+3}], s34 offen sc1 lds")

def gen_loader(a, END, opts):
    HSC["v"] = opts.get("hsc", "sc1")
    a.c("---------- loader waves ----------")
    T = V_T
    a(f"s_sub_u32 s{S_LW}, s{S_WAVE}, 4")
    a(f"s_cmp_ge_u32 s{S_LW}, 2")
    a(f"s_cselect_b32 s{SRD_A}, s{P_BIM}, s{P_BRE}")
    a(f"s_cselect_b32 s{SRD_A+1}, s{P_BIM+1}, s{P_BRE+1}")
    a(f"s_and_b32 s{SRD_A+1}, s{SRD_A+1}, 0xffff")
    a(f"s_mov_b32 s{SRD_A+2}, 819200")
    a(f"s_mov_b32 s{SRD_A+3}, 0x00020000")
    a(f"v_lshrrev_b32 v{T+5}, 3, v{V_LANE}")
    a(f"v_mul_u32_u24 v{T+5}, 1280, v{T+5}")
    a(f"v_and_b32 v{T+6}, 7, v{V_LANE}")
    a(f"v_lshrrev_b32 v{T+7}, 4, v{V_LANE}")
    a(f"v_xor_b32 v{T+6}, v{T+6}, v{T+7}")
    a(f"v_lshl_add_u32 v{V_VOFF}, v{T+6}, 4, v{T+5}")
    a(f"v_xor_b32 v{V_VOFF+1}, 64, v{V_VOFF}")
    a(f"v_add_u32 v{V_VOFF+1}, 10240, v{V_VOFF+1}")
    a(f"v_add_u32 v{V_VOFF+2}, 20480, v{V_VOFF}")
    a(f"v_add_u32 v{V_VOFF+3}, 20480, v{V_VOFF+1}")
    a(f"s_lshl_b32 s34, s{S_C}, 7")
    a(f"s_lshl_b32 s35, s{S_LW}, 5")
    a(f"s_add_u32 s34, s34, s35")
    a(f"s_mul_i32 s{S_SX}, s34, 1280")
    a(f"s_lshl_b32 s34, s{S_S}, 6")
    a(f"s_and_b32 s35, s{S_LW}, 1")
    a(f"s_lshl_b32 s35, s35, 5")
    a(f"s_add_u32 s34, s34, s35")
    a(f"s_mul_i32 s{S_SB}, s34, 1280")
    a(f"s_lshl_b32 s{S_M0X}, s{S_LW}, 12")
    a(f"s_mov_b32 s{S_KC}, s93")
    for it in range(2): ld_g1_dma(a, it)
    stamp(a, 1)
    a(f"v_mov_b32 v{V_ZERO}, 0")
    a(f"v_lshlrev_b32 v{V_L16}, 4, v{V_LANE}")
    a(f"s_waitcnt vmcnt(8)")
    a(f"s_barrier")
    ld_g1_dma(a, 2)
    for nit in range(1, 10):
        a(f"s_waitcnt vmcnt({0 if nit == 9 else 8})")
        if opts.get("profl"): stamp(a, 9 + nit)
        a(f"s_barrier")
        if nit + 2 < 10: ld_g1_dma(a, nit + 2)
    a(f"s_barrier")
    stamp(a, 2)
    make_srd(a, SRD_B, P_C2RE, 819200)
    make_srd(a, SRD_C, P_C2IM, 819200)
    a(f"buffer_load_dwordx2 v[{V_NON}:{V_NON+1}], v{V_ZERO}, s[{SRD_DBG}:{SRD_DBG+3}], 0 offen sc1")
    if opts.get("pwait", True):
        a(f"v_mov_b32 v{T+4}, {CNT_P}")
        lds_spin(a, T+4, T+6, 4, END)
    a(f"v_lshrrev_b32 v{T}, 3, v{V_LANE}")
    a(f"v_mul_u32_u24 v{T}, 1280, v{T}")
    a(f"v_and_b32 v{T+1}, 7, v{V_LANE}")
    a(f"v_lshl_add_u32 v{T}, v{T+1}, 4, v{T}")
    a(f"s_lshl_b32 s35, s{S_S}, 7")
    a(f"s_add_u32 s34, s{S_SX}, s35")
    a(f"s_add_u32 s{S_T2}, s{S_M0X}, {L_XT}")
    for jj in range(4):
        a(f"s_add_u32 m0, s{S_T2}, {jj*1024}")
        a(f"s_add_u32 s35, s34, {jj*10240}")
        a(f"buffer_load_dwordx4 v{T}, s[{SRD_X}:{SRD_X+3}], s35 offen lds")
    a(f"s_waitcnt vmcnt(0)")
    a(f"v_mov_b32 v{T+4}, {CNT_X}")
    a(f"v_mov_b32 v{T+5}, 1")
    lds_inc(a, T+4, T+5)
    if opts.get("cwait", False):
        a(f"v_mov_b32 v{T+4}, {CNT_E}")
        lds_spin(a, T+4, T+6, 4, END, sleep=True)
    a(f"s_lshl_b32 s34, s{S_S}, 6")
    a(f"s_lshl_b32 s35, s{S_LW}, 4")
    a(f"s_add_u32 s34, s34, s35")
    a(f"s_mul_i32 s{S_CB}, s34, 1280")
    a(f"s_mov_b32 s{S_SPC}, s93")
    a(f"s_mov_b32 s94, s{S_SPC}")
    a(f"s_lshl_b32 s{S_M0C}, s{S_LW}, 11")
    thr = opts.get("cthr", 2)
    for ch in range(NREG + NCS):
        ld_c_chunk(a, ch)
        if thr: a(f"s_waitcnt vmcnt({thr})")
        if opts.get("profc"): stamp(a, 10 + ch)
    a(f"s_waitcnt vmcnt(0)")
    a(f"v_mov_b32 v{T+4}, {CNT_C}")
    a(f"v_mov_b32 v{T+5}, 1")
    lds_inc(a, T+4, T+5)
    if opts.get("touchc", True):
        a(f"v_lshrrev_b32 v{T+6}, 2, v{V_LANE}")
        a(f"v_mul_u32_u24 v{T+6}, 1280, v{T+6}")
        a(f"v_and_b32 v{T+7}, 3, v{V_LANE}")
        a(f"v_lshl_add_u32 v{T+6}, v{T+7}, 6, v{T+6}")
        a(f"s_mov_b32 s{S_T2}, s{S_SPC}")
        for k in range(2):
            for srd in (SRD_B, SRD_C):
                a(f"s_lshl_b32 s{S_T1}, s{S_T2}, 7")
                a(f"s_add_u32 s{S_T1}, s{S_T1}, s{S_CB}")
                a(f"buffer_load_dword v{T+8}, v{T+6}, s[{srd}:{srd+3}], s{S_T1} offen")
                if thr: a(f"s_waitcnt vmcnt(1)")
            a(f"s_add_u32 s{S_T2}, s{S_T2}, 2")
            a(f"s_cmp_ge_u32 s{S_T2}, 10")
            a(f"s_cselect_b32 s34, 10, 0")
            a(f"s_sub_u32 s{S_T2}, s{S_T2}, s34")
    stamp(a, 3)
    lp = a.label("LNP"); ok = a.label("LNOK")
    a(f"s_mov_b32 s{S_CNT}, 100000")
    a(f"s_waitcnt vmcnt(0)")
    a(f"{lp}:")
    a(f"v_readfirstlane_b32 s{S_NONCE}, v{V_NON}")
    a(f"v_readfirstlane_b32 s{S_NONCE+1}, v{V_NON+1}")
    a(f"s_nop 0")
    a(f"s_cmp_lg_u32 s{S_NONCE}, 0")
    a(f"s_cbranch_scc1 {ok}")
    poll_timeout(a, S_CNT, END)
    a(f"buffer_load_dwordx2 v[{V_NON}:{V_NON+1}], v{V_ZERO}, s[{SRD_DBG}:{SRD_DBG+3}], 0 offen sc1")
    a(f"s_waitcnt vmcnt(0)")
    a(f"s_branch {lp}")
    a(f"{ok}:")
    stamp(a, 4)
    a(f"s_mul_i32 s34, s{S_C}, {20*16384}")
    a(f"s_lshl_b32 s35, s{S_LW}, 12")
    a(f"s_add_u32 s34, s34, s35")
    a(f"s_add_u32 s{S_HB}, s34, {WS_H}")
    a(f"s_mov_b32 s{S_SP}, s94")
    a(f"s_mul_i32 s{S_M0H}, s{S_LW}, 4352")
    labp = a.label("HP1"); labq = a.label("HP2")
    a(f"v_mov_b32 v{T+4}, {CNT_F}")
    a(f"s_cmp_lg_u32 s{S_LW}, 0")
    a(f"s_cbranch_scc1 {labp}")
    a(f"s_lshl_b32 s34, s{S_C}, 7")
    a(f"s_add_u32 s34, s34, {WS_FLAG}")
    poll_flags(a, END, 34, 10, T, T+2)
    a(f"v_mov_b32 v{T+5}, 1")
    lds_inc(a, T+4, T+5)
    a(f"s_branch {labq}")
    a(f"{labp}:")
    lds_spin(a, T+4, T+6, 1, END)
    a(f"{labq}:")
    stamp(a, 5)
    a(f"v_mov_b32 v{T+4}, {CNT_R}")
    lds_spin(a, T+4, T+6, 4, END)
    stamp(a, 8)
    PF = NHS - 2
    for it in range(PF): ld_h_stage(a, it)
    stamp(a, 9)
    a(f"s_waitcnt vmcnt({4*(PF-1)})")
    a(f"s_barrier")
    stamp(a, 6)
    a(f"s_mov_b32 s{S_DONE}, 0")
    FL = T + 10
    q = [("h", k, 4) for k in range(1, PF)]
    ld_h_stage(a, PF); q.append(("h", PF, 4))
    for nit in range(1, 20):
        idx = max(i for i, e in enumerate(q) if (e[0] == "h" and e[1] == nit) or (e[0] == "c" and e[1] == nit))
        rem = sum(e[2] for e in q[idx+1:])
        a(f"s_waitcnt vmcnt({min(rem, 63)})")
        if opts.get("profl") and nit <= 12: stamp(a, 19 + nit)
        if opts.get("profl2") and nit >= 8: stamp(a, 2 + nit)
        q = q[idx+1:]
        a(f"s_barrier")
        ch = nit - 2 + NCS
        if ch >= NREG + NCS and ch < 20:
            ld_c_chunk(a, ch); q.append(("c", ch, 2))
        if nit + PF < 20:
            ld_h_stage(a, nit + PF); q.append(("h", nit + PF, 4))
        if nit == 12:
            a(f"v_lshlrev_b32 v{T}, 3, v{V_LANE}")
            a(f"s_lshl_b32 s34, s{S_S}, 7")
            a(f"s_add_u32 s34, s34, {WS_AFLG}")
            a(f"v_add_u32 v{T}, s34, v{T}")
            a(f"s_lshl_b32 s34, s{S_C}, 7")
            a(f"s_add_u32 s34, s34, {WS_FLAG + 80}")
            a(f"v_mov_b32 v{T+1}, s34")
            a(f"v_cmp_eq_u32 vcc, 8, v{V_LANE}")
            a(f"s_nop 1")
            a(f"v_cndmask_b32 v{T}, v{T}, v{T+1}, vcc")
            a(f"s_mov_b64 s[{S_EXEC}:{S_EXEC+1}], exec")
            a(f"s_mov_b64 exec, 0x1ff")
            a(f"buffer_load_dwordx2 v[{FL}:{FL+1}], v{T}, s[{SRD_WS}:{SRD_WS+3}], 0 offen sc1")
            a(f"s_mov_b64 exec, s[{S_EXEC}:{S_EXEC+1}]")
            q.append(("f", 0, 1))
        if nit == 17:
            if any(e[0] == "f" for e in q):
                idf = max(i for i, e in enumerate(q) if e[0] == "f")
                a(f"s_waitcnt vmcnt({sum(e[2] for e in q[idf+1:])})")
                q = q[idf+1:]
            lab = a.label("ANR")
            a(f"s_mov_b64 s[{S_EXEC}:{S_EXEC+1}], exec")
            a(f"s_mov_b64 exec, 0x1ff")
            a(f"v_cmp_ne_u64 vcc, s[{S_NONCE}:{S_NONCE+1}], v[{FL}:{FL+1}]")
            a(f"s_mov_b64 exec, s[{S_EXEC}:{S_EXEC+1}]")
            a(f"s_cmp_lg_u64 vcc, 0")
            a(f"s_cbranch_scc1 {lab}")
            ld_a_tile(a, T)
            a(f"s_mov_b32 s{S_DONE}, 1")
            lab2 = a.label("ANR2")
            a(f"s_branch {lab2}")
            a(f"{lab}:")
            for _ in range(5):
                a(f"buffer_load_dword v{T+8}, v{V_ZERO}, s[{SRD_X}:{SRD_X+3}], 0 offen")
            a(f"{lab2}:")
            q.append(("a", 0, 5))
    lab = a.label("ADONE")
    a(f"s_cmp_eq_u32 s{S_DONE}, 1")
    a(f"s_cbranch_scc1 {lab}")
    a(f"s_lshl_b32 s34, s{S_S}, 7")
    a(f"s_add_u32 s34, s34, {WS_AFLG}")
    poll_flags(a, END, 34, 8, T, T+2)
    a(f"s_lshl_b32 s34, s{S_C}, 7")
    a(f"s_add_u32 s34, s34, {WS_FLAG + 80}")
    poll_flags(a, END, 34, 1, T, T+2)
    ld_a_tile(a, T)
    a(f"{lab}:")
    a(f"s_waitcnt vmcnt(0)")
    stamp(a, 7)
    a(f"s_barrier")
    prof_end(a, 4, 32768)
    a(f"s_branch {END}")

G2_FR = 16
G2_ACC = 64
V_HA = 6
V_CB = 10
V_HA2 = 7

G2_NS = 4
def g2_reads(it, ks):
    slot = it % NHS
    st = G2_FR + 12 * ((4*it + ks) % G2_NS)
    base = slot*HSLOT + (ks >> 1)*4352 + (ks & 1)*256
    out = []
    for m in range(2):
        for half in range(2):
            off = base + m*512 + half*64
            reg = V_HA if off < 65536 else V_HA2
            if off >= 65536: off -= 3*HSLOT
            out.append(f"ds_read_b64_tr_b16 v[{st+4*m+2*half}:{st+4*m+2*half+1}], v{reg} offset:{off}")
    if it >= NREG:
        cs = (it - NREG) % NCS
        out.append(f"ds_read_b128 v[{st+8}:{st+11}], v{V_CB+ks} offset:{cs*8192}")
    return out

def g2_mfmas(it, ks):
    st = G2_FR + 12 * ((4*it + ks) % G2_NS)
    out = []
    b = (V_CREG + 16*it + 4*ks) if it < NREG else st + 8
    for m in range(2):
        d = G2_ACC + 16*m
        out.append(f"v_mfma_f32_32x32x16_bf16 v[{d}:{d+15}], v[{st+4*m}:{st+4*m+3}], v[{b}:{b+3}], v[{d}:{d+15}]")
    return out

def gen_compute(a, END, opts):
    a.c("---------- compute waves ----------")
    T = V_T
    a(f"s_lshr_b32 s{S_WM}, s{S_WAVE}, 1")
    a(f"s_and_b32 s{S_WN}, s{S_WAVE}, 1")
    lab = a.label("NOINIT")
    a(f"s_cmp_lg_u32 s{S_WAVE}, 0")
    a(f"s_cbranch_scc1 {lab}")
    a(f"v_lshlrev_b32 v{T}, 2, v{V_LANE}")
    a(f"v_add_u32 v{T}, {L_CNT}, v{T}")
    a(f"v_mov_b32 v{T+1}, 0")
    a(f"s_mov_b64 exec, 0xffff")
    a(f"ds_write_b32 v{T}, v{T+1}")
    a(f"s_mov_b64 exec, -1")
    a(f"{lab}:")
    kofl = opts.get("kofl")
    if kofl:
        import conv2
        a(f"s_mul_i32 s34, s{S_C}, 10")
        a(f"s_add_u32 s34, s34, s{S_S}")
        a(f"s_lshl_b32 s34, s34, 1")
        a(f"s_add_u32 s{S_KY}, s34, s{S_WN}")
        a(f"s_lshr_b32 s34, s{S_KY}, 2")
        a(f"s_lshl_b32 s34, s34, 3")
        a(f"s_and_b32 s35, s{S_KY}, 3")
        a(f"s_add_u32 s34, s34, s35")
        a(f"s_add_u32 s34, s34, 4")
        a(f"v_lshlrev_b32 v2, 2, v{V_LANE}")
        a(f"s_lshl_b32 s35, s34, 8")
        for k, P in enumerate([P_LOGA, P_AIM, P_CRE, P_CIM]):
            make_srd(a, SRD_A, P, 163840)
            a(f"buffer_load_dword v{conv2.V_PRM+k}, v2, s[{SRD_A}:{SRD_A+3}], s35 offen")
        a(f"s_lshl_b32 s35, s34, 1")
        a(f"v_mov_b32 v3, 0")
        make_srd(a, SRD_A, P_LOGDT, 1280)
        a(f"buffer_load_ushort v{conv2.V_PRM+4}, v3, s[{SRD_A}:{SRD_A+3}], s35 offen")
        a(f"buffer_load_dwordx2 v[{V_NON}:{V_NON+1}], v3, s[{SRD_DBG}:{SRD_DBG+3}], 0 offen sc1")
    a(f"v_and_b32 v{T}, 31, v{V_LANE}")
    a(f"s_lshl_b32 s34, s{S_S}, 6")
    a(f"s_lshl_b32 s35, s{S_WN}, 5")
    a(f"s_add_u32 s34, s34, s35")
    a(f"v_add_u32 v{T+1}, s34, v{T}")
    a(f"v_lshlrev_b32 v{V_EOFF}, 4, v{T+1}")
    a(f"v_lshlrev_b32 v{T+1}, 1, v{T+1}")
    make_srd(a, SRD_B, P_LRE, 1280)
    a(f"buffer_load_ushort v{T+2}, v{T+1}, s[{SRD_B}:{SRD_B+3}], 0 offen")
    make_srd(a, SRD_A, P_LIM, 1280)
    a(f"buffer_load_ushort v{T+3}, v{T+1}, s[{SRD_A}:{SRD_A+3}], 0 offen")
    make_srd(a, 92, P_LOGDTB, 1280)
    a(f"buffer_load_ushort v{T+4}, v{T+1}, s[92:95], 0 offen")
    V_DSB = 227
    make_srd(a, SRD_B, P_DSKB, 1280)
    a(f"buffer_load_ushort v{V_DSB}, v{T+1}, s[{SRD_B}:{SRD_B+3}], 0 offen")
    make_srd(a, SRD_C, P_OUT, 5242880)
    a(f"v_and_b32 v{T+5}, 31, v{V_LANE}")
    a(f"v_lshrrev_b32 v{T+6}, 5, v{V_LANE}")
    a(f"v_bfe_u32 v{T+7}, v{T+5}, 2, 1")
    a(f"v_lshlrev_b32 v{T+7}, 5, v{T+7}")
    a(f"v_lshrrev_b32 v{T+8}, 3, v{T+5}")
    a(f"v_lshl_add_u32 v{T+7}, v{T+8}, 2, v{T+7}")
    a(f"v_and_b32 v{T+8}, 3, v{T+5}")
    a(f"v_add_u32 v{T+7}, v{T+7}, v{T+8}")
    a(f"s_lshl_b32 s34, s{S_WM}, 6")
    a(f"v_add_u32 v{T+7}, s34, v{T+7}")
    a(f"v_bfe_u32 v{T+8}, v{T+7}, 1, 3")
    a(f"v_xor_b32 v{T+8}, v{T+8}, v{T+6}")
    a(f"v_lshlrev_b32 v{T+8}, 4, v{T+8}")
    a(f"v_lshl_add_u32 v{V_AA}, v{T+7}, 7, v{T+8}")
    for ks in range(1, 4): a(f"v_xor_b32 v{V_AA+ks}, {32*ks}, v{V_AA}")
    a(f"s_lshl_b32 s34, s{S_WN}, 5")
    a(f"v_add_u32 v{T+7}, s34, v{T+5}")
    a(f"v_bfe_u32 v{T+8}, v{T+7}, 1, 3")
    a(f"v_xor_b32 v{T+8}, v{T+8}, v{T+6}")
    a(f"v_lshlrev_b32 v{T+8}, 4, v{T+8}")
    a(f"v_lshl_add_u32 v{V_BA}, v{T+7}, 7, v{T+8}")
    a(f"v_mov_b32 v{221}, v{V_BA}")
    a(f"v_add_u32 v{V_BA}, 0x10000, v{V_BA}")
    for ks in range(1, 4): a(f"v_xor_b32 v{V_BA+ks}, {32*ks}, v{V_BA}")
    a(f"v_mov_b32 v{V_ZERO}, 0")
    a(f"v_lshlrev_b32 v{V_L16}, 4, v{V_LANE}")
    stamp(a, 1)
    if kofl:
        a(f"s_and_b32 s34, s{S_WAVE}, 1")
        a(f"s_mul_i32 s34, s34, 15232")
        a(f"s_lshr_b32 s35, s{S_WAVE}, 1")
        a(f"s_lshl_b32 s35, s35, 16")
        a(f"s_add_u32 s34, s34, s35")
        a(f"s_add_u32 s{S_KB}, s34, 32768")
        conv2.kgen_addr_setup(a, f"s{S_KB}")
        a(f"s_waitcnt vmcnt(5)")
        TK = conv2.V_T_
        a(f"v_lshlrev_b32 v{conv2.V_DT}, 16, v{conv2.V_PRM+4}")
        exp_accurate(a, conv2.V_DT, conv2.V_DT, TK, TK+1, TK+2)
        round_bf16(a, conv2.V_DT, conv2.V_DT)
        conv2.kgen_pass(a, f"s{S_WM}")
        a("s_nop 7\ns_nop 7\ns_nop 1")
        a(f"s_lshl_b32 s34, s{S_KY}, 1")
        a(f"s_add_u32 s34, s34, s{S_WM}")
        a(f"s_lshl_b32 s34, s34, 12")
        a(f"s_add_u32 s34, s34, {WS_KP}")
        for j in range(4):
            a(f"buffer_store_dwordx4 v[{64+4*j}:{67+4*j}], v{V_L16}, s[{SRD_WS}:{SRD_WS+3}], s34 offen offset:{j*1024} sc1")
        stamp(a, 14)
        a(f"s_waitcnt vmcnt(4)")
    else:
        a(f"s_waitcnt vmcnt(0)")
    a(f"v_lshlrev_b32 v{V_DSB}, 16, v{V_DSB}")
    a(f"v_lshlrev_b32 v{T+2}, 16, v{T+2}")
    a(f"v_lshlrev_b32 v{T+3}, 16, v{T+3}")
    a(f"v_lshlrev_b32 v{T+4}, 16, v{T+4}")
    exp_accurate(a, T+4, T+4, T+5, T+6, T+7)
    round_bf16(a, T+4, T+4)
    a(f"v_mul_f32 v{T+5}, v{T+4}, v{T+2}")
    a(f"v_mul_f32 v{T+6}, v{T+4}, v{T+3}")
    exp_accurate(a, T+5, T+5, T+7, T+8, T+9)
    a(f"v_mul_f32 v{T+6}, {fhex(INV2PI)}, v{T+6}")
    a(f"v_fract_f32 v{T+6}, v{T+6}")
    a(f"v_cos_f32 v{T+7}, v{T+6}")
    a(f"v_sin_f32 v{T+8}, v{T+6}")
    a(f"s_nop 0")
    a(f"v_mul_f32 v{V_LR}, v{T+5}, v{T+7}")
    a(f"v_mul_f32 v{V_LI}, v{T+5}, v{T+8}")
    a(f"v_add_f32 v{T+5}, -1.0, v{V_LR}")
    a(f"v_mul_f32 v{T+6}, v{T+2}, v{T+2}")
    a(f"v_fma_f32 v{T+6}, v{T+3}, v{T+3}, v{T+6}")
    a(f"v_rcp_f32 v{T+7}, v{T+6}")
    a(f"v_mul_f32 v{T+8}, v{T+5}, v{T+2}")
    a(f"v_fma_f32 v{T+9}, -v{T+6}, v{T+7}, 2.0")
    a(f"v_mul_f32 v{T+7}, v{T+7}, v{T+9}")
    a(f"v_fma_f32 v{T+8}, v{V_LI}, v{T+3}, v{T+8}")
    a(f"v_mul_f32 v{T+9}, v{V_LI}, v{T+2}")
    a(f"v_fma_f32 v{T+9}, -v{T+5}, v{T+3}, v{T+9}")
    a(f"v_add_f32 v{T+7}, v{T+7}, v{T+7}")
    a(f"v_mul_f32 v{V_C2}, v{T+8}, v{T+7}")
    a(f"v_mul_f32 v{V_C2+1}, v{T+9}, v{T+7}")
    a(f"v_mov_b32 v{V_L32}, v{V_LR}")
    a(f"v_mov_b32 v{V_L32+1}, v{V_LI}")
    for i in range(5): cmul(a, V_L32, V_L32+1, V_L32, V_L32+1, V_L32, V_L32+1, T+5)
    cmul(a, V_L128, V_L128+1, V_L32, V_L32+1, V_L32, V_L32+1, T+5)
    cmul(a, V_L128, V_L128+1, V_L128, V_L128+1, V_L128, V_L128+1, T+5)
    a(f"s_waitcnt lgkmcnt(0)")
    stamp(a, 2)
    a(f"s_barrier")
    stamp(a, 3)
    for ins in g1_reads(0, 0): a(ins)
    for ins in g1_reads(0, 1): a(ins)
    NST = 10
    for it in range(NST):
        for ks in range(4):
            gidx = 4*it + ks
            last = (gidx == 4*NST - 1)
            if kofl and it == opts.get("kflst", 1) and ks == 0:
                lk = a.label("KN"); lk2 = a.label("KN2")
                a(f"s_mov_b32 s{S_CNT}, 100000")
                a(f"s_waitcnt vmcnt(0)")
                a(f"{lk}:")
                a(f"v_readfirstlane_b32 s{S_NONCE}, v{V_NON}")
                a(f"v_readfirstlane_b32 s{S_NONCE+1}, v{V_NON+1}")
                a(f"s_nop 0")
                a(f"s_cmp_lg_u32 s{S_NONCE}, 0")
                a(f"s_cbranch_scc1 {lk2}")
                poll_timeout(a, S_CNT, END)
                a(f"buffer_load_dwordx2 v[{V_NON}:{V_NON+1}], v{V_ZERO}, s[{SRD_DBG}:{SRD_DBG+3}], 0 offen sc1")
                a(f"s_waitcnt vmcnt(0)")
                a(f"s_branch {lk}")
                a(f"{lk2}:")
                a(f"s_lshl_b32 s34, s{S_KY}, 1")
                a(f"s_add_u32 s34, s34, s{S_WM}")
                a(f"s_lshl_b32 s34, s34, 3")
                a(f"s_add_u32 s34, s34, {WS_KFLG}")
                a(f"v_mov_b32 v248, s{S_NONCE}")
                a(f"v_mov_b32 v249, s{S_NONCE+1}")
                a(f"s_mov_b64 s[{S_EXEC}:{S_EXEC+1}], exec")
                a(f"s_mov_b64 exec, 1")
                a(f"buffer_store_dwordx2 v[248:249], v{V_ZERO}, s[{SRD_WS}:{SRD_WS+3}], s34 offen sc1")
                a(f"s_mov_b64 exec, s[{S_EXEC}:{S_EXEC+1}]")
            a(f"s_waitcnt lgkmcnt({0 if last else 4})")
            fill = []
            nx = gidx + 2
            if nx < 4*NST:
                nit, nks = nx // 4, nx % 4
                if nks == 0:
                    a(f"s_barrier")
                    if opts.get("profst"): stamp(a, 16 + nit)
                fill += g1_reads(nit, nks)
                if nks == 0 and nit == 5 and not kofl:
                    fill.append(f"buffer_load_dwordx2 v[{V_NON}:{V_NON+1}], v{V_ZERO}, s[{SRD_DBG}:{SRD_DBG+3}], 0 offen sc1")
            if last:
                a(f"s_barrier")
            interleave(a, g1_mfmas(it, ks), fill)
    stamp(a, 4)
    a.c("pass 1")
    a(f"s_nop 7\ns_nop 7")
    first = True
    for m in range(2):
        for r in range(16):
            br, bi = acc(m, 0) + r, acc(m, 1) + r
            if first:
                a(f"v_mov_b32 v{V_ER}, v{br}")
                a(f"v_mov_b32 v{V_EI}, v{bi}")
                first = False
            else:
                src = (V_ER, V_EI) if cur == 0 else (T, T+1)
                dst = (T, T+1) if cur == 0 else (V_ER, V_EI)
                a(f"v_fma_f32 v{dst[0]}, v{V_LR}, v{src[0]}, v{br}")
                a(f"v_fma_f32 v{dst[1]}, v{V_LR}, v{src[1]}, v{bi}")
                a(f"v_fma_f32 v{dst[0]}, -v{V_LI}, v{src[1]}, v{dst[0]}")
                a(f"v_fma_f32 v{dst[1]}, v{V_LI}, v{src[0]}, v{dst[1]}")
                cur ^= 1
                continue
            cur = 0
    if cur == 1:
        a(f"v_mov_b32 v{V_ER}, v{T}")
        a(f"v_mov_b32 v{V_EI}, v{T+1}")
    EX = 240; G = 248; SA = 252
    a(f"v_lshrrev_b32 v{T+2}, 5, v{V_LANE}")
    a(f"s_lshl_b32 s34, s{S_WM}, 1")
    a(f"v_add_u32 v{T+2}, s34, v{T+2}")
    a(f"v_and_b32 v{T+3}, 31, v{V_LANE}")
    a(f"s_lshl_b32 s34, s{S_WN}, 5")
    a(f"v_add_u32 v{T+3}, s34, v{T+3}")
    a(f"v_lshlrev_b32 v{T+3}, 3, v{T+3}")
    a(f"v_add_u32 v{T+3}, {L_EX}, v{T+3}")
    a(f"v_lshl_add_u32 v{T+2}, v{T+2}, 9, v{T+3}")
    a(f"ds_write_b64 v{T+2}, v[{V_ER}:{V_ER+1}]")
    a(f"v_mov_b32 v{T+4}, {CNT_EX}")
    a(f"v_mov_b32 v{T+5}, 1")
    a(f"s_waitcnt lgkmcnt(0)")
    lds_inc(a, T+4, T+5)
    lab_ok = a.label("NOK"); lab_p = a.label("NPOLL")
    a(f"s_mov_b32 s{S_CNT}, 100000")
    a(f"s_waitcnt vmcnt(0)")
    a(f"{lab_p}:")
    a(f"v_readfirstlane_b32 s{S_NONCE}, v{V_NON}")
    a(f"v_readfirstlane_b32 s{S_NONCE+1}, v{V_NON+1}")
    a(f"s_nop 0")
    a(f"s_cmp_lg_u32 s{S_NONCE}, 0")
    a(f"s_cbranch_scc1 {lab_ok}")
    poll_timeout(a, S_CNT, END)
    a(f"buffer_load_dwordx2 v[{V_NON}:{V_NON+1}], v{V_ZERO}, s[{SRD_DBG}:{SRD_DBG+3}], 0 offen sc1")
    a(f"s_waitcnt vmcnt(0)")
    a(f"s_branch {lab_p}")
    a(f"{lab_ok}:")
    lds_spin(a, T+4, T+6, 4, END)
    for sg in range(4):
        a(f"ds_read_b64 v[{EX+2*sg}:{EX+2*sg+1}], v{T+3} offset:{sg*512}")
    a(f"s_waitcnt lgkmcnt(0)")
    a(f"v_mov_b32 v{V_HR}, v{EX}")
    a(f"v_mov_b32 v{V_HI}, v{EX+1}")
    for sg in range(1, 4): cfma(a, V_HR, V_HI, V_L32, V_L32+1, EX+2*sg, EX+2*sg+1, T)
    lab_np = a.label("NOPUB")
    a(f"s_cmp_lg_u32 s{S_WM}, 0")
    a(f"s_cbranch_scc1 {lab_np}")
    a(f"v_mov_b32 v{G}, v{V_HR}")
    a(f"v_mov_b32 v{G+1}, v{V_HI}")
    a(f"v_mov_b32 v{G+2}, s{S_NONCE}")
    a(f"v_mov_b32 v{G+3}, s{S_NONCE+1}")
    a(f"s_mul_i32 s34, s{S_C}, 10240")
    a(f"s_add_u32 s34, s34, {WS_E}")
    a(f"s_mov_b64 s[{S_EXEC}:{S_EXEC+1}], exec")
    a(f"s_mov_b32 exec_lo, -1")
    a(f"s_mov_b32 exec_hi, 0")
    a(f"buffer_store_dwordx4 v[{G}:{G+3}], v{V_EOFF}, s[{SRD_WS}:{SRD_WS+3}], s34 offen sc1")
    a(f"s_mov_b64 exec, s[{S_EXEC}:{S_EXEC+1}]")
    a(f"{lab_np}:")
    a(f"v_mov_b32 v{T+4}, {CNT_P}")
    a(f"v_mov_b32 v{T+5}, 1")
    lds_inc(a, T+4, T+5)
    stamp(a, 5)
    def greg(cp): return (V_FR + 4*cp) if cp < 12 else (228 + 4*(cp-12))
    def issue_polls(lab_iss):
        for cp in range(15):
            a(f"s_cmp_le_u32 s{S_C}, {cp}")
            a(f"s_cbranch_scc1 {lab_iss}")
            a(f"s_mov_b32 s34, {WS_E + cp*10240}")
            a(f"buffer_load_dwordx4 v[{greg(cp)}:{greg(cp)+3}], v{V_EOFF}, s[{SRD_WS}:{SRD_WS+3}], s34 offen sc1")
        a(f"{lab_iss}:")
    a.c("scale")
    for m in range(2):
        for r in range(0, 16, 2):
            pr, pi = acc(m,0)+r, acc(m,1)+r
            qr, qi = acc2(m,0)+r, acc2(m,1)+r
            a(f"v_pk_mul_f32 v[{qr}:{qr+1}], v[{pr}:{pr+1}], v[{V_C2}:{V_C2+1}] op_sel:[0,0] op_sel_hi:[1,0]")
            a(f"v_pk_mul_f32 v[{qi}:{qi+1}], v[{pi}:{pi+1}], v[{V_C2}:{V_C2+1}] op_sel:[0,0] op_sel_hi:[1,0] neg_lo:[1,0] neg_hi:[1,0]")
            a(f"v_pk_fma_f32 v[{qr}:{qr+1}], v[{pi}:{pi+1}], v[{V_C2}:{V_C2+1}], v[{qr}:{qr+1}] op_sel:[0,1,0] op_sel_hi:[1,1,1] neg_lo:[1,0,0] neg_hi:[1,0,0]")
            a(f"v_pk_fma_f32 v[{qi}:{qi+1}], v[{pr}:{pr+1}], v[{V_C2}:{V_C2+1}], v[{qi}:{qi+1}] op_sel:[0,1,0] op_sel_hi:[1,1,1] neg_lo:[1,0,0] neg_hi:[1,0,0]")
    stamp(a, 6)
    lab_w0 = a.label("EW0"); lab_wj = a.label("EWJ")
    eall = opts.get("eall", False)
    if not eall:
        a(f"s_cmp_eq_u32 s{S_WM}, 0")
        a(f"s_cbranch_scc1 {lab_w0}")
    a.c("E combine: lane (p, hf) handles d = 2j+1+hf")
    SE = 92
    a(f"s_add_u32 s{SE}, s{P_WS}, {WS_E}")
    a(f"s_addc_u32 s{SE+1}, s{P_WS+1}, 0")
    a(f"s_and_b32 s{SE+1}, s{SE+1}, 0xffff")
    a(f"s_mov_b32 s{SE+2}, {16*10240}")
    a(f"s_mov_b32 s{SE+3}, 0x00020000")
    L256 = T+8
    cmul(a, L256, L256+1, V_L128, V_L128+1, V_L128, V_L128+1, T)
    VO = 228
    a(f"v_lshrrev_b32 v{T+2}, 5, v{V_LANE}")
    a(f"s_sub_u32 s34, s{S_C}, 1")
    a(f"v_sub_u32 v{T+2}, s34, v{T+2}")
    a(f"v_mul_i32_i24 v{T+2}, 10240, v{T+2}")
    a(f"v_add_u32 v{VO}, v{T+2}, v{V_EOFF}")
    for j in range(1, 8):
        a(f"v_subrev_u32 v{VO+j}, {20480*j}, v{VO}")
    GR = V_FR
    lab_poll = a.label("EPOLL"); lab_ok = a.label("EOK")
    a(f"s_mov_b32 s{S_CNT}, 100000")
    a(f"{lab_poll}:")
    for j in range(8):
        a(f"buffer_load_dwordx4 v[{GR+4*j}:{GR+4*j+3}], v{VO+j}, s[{SE}:{SE+3}], 0 offen sc1")
    a(f"s_mov_b64 s[{S_MISM}:{S_MISM+1}], 0")
    for j in range(8):
        a(f"s_waitcnt vmcnt({7-j})")
        a(f"v_cmp_ne_u64 vcc, s[{S_NONCE}:{S_NONCE+1}], v[{GR+4*j+2}:{GR+4*j+3}]")
        a(f"v_cmp_le_i32 s[{S_T2}:{S_T2+1}], 0, v{VO+j}")
        a(f"s_and_b64 vcc, vcc, s[{S_T2}:{S_T2+1}]")
        a(f"s_or_b64 s[{S_MISM}:{S_MISM+1}], s[{S_MISM}:{S_MISM+1}], vcc")
    a(f"s_cmp_eq_u64 s[{S_MISM}:{S_MISM+1}], 0")
    a(f"s_cbranch_scc1 {lab_ok}")
    if opts.get("efull", True):
        a(f"s_sleep {opts.get('esleep', 2)}")
        a(f"s_sub_u32 s{S_CNT}, s{S_CNT}, 1")
        a(f"s_cbranch_scc0 {lab_poll}")
        a(f"s_branch {END}")
    CP = T+12
    a(f"v_readfirstlane_b32 s35, v{V_EOFF}")
    a(f"s_sub_u32 s34, s{S_C}, 1")
    a(f"v_sub_u32 v{CP}, s34, v{V_LANE}")
    a(f"v_mul_i32_i24 v{CP}, 10240, v{CP}")
    a(f"v_add_u32 v{CP}, s35, v{CP}")
    a(f"v_cmp_le_i32 s[{S_T2}:{S_T2+1}], 0, v{CP}")
    a(f"s_and_b64 s[{S_T2}:{S_T2+1}], s[{S_T2}:{S_T2+1}], 0xffff")
    lab_cp = a.label("ECH")
    a(f"{lab_cp}:")
    a(f"s_sleep {opts.get('esleep', 2)}")
    a(f"buffer_load_dwordx4 v[{GR}:{GR+3}], v{CP}, s[{SE}:{SE+3}], 0 offen sc1")
    a(f"s_waitcnt vmcnt(0)")
    a(f"v_cmp_ne_u64 vcc, s[{S_NONCE}:{S_NONCE+1}], v[{GR+2}:{GR+3}]")
    a(f"s_and_b64 vcc, vcc, s[{S_T2}:{S_T2+1}]")
    a(f"s_cmp_eq_u64 vcc, 0")
    a(f"s_cbranch_scc1 {lab_poll}")
    a(f"s_sub_u32 s{S_CNT}, s{S_CNT}, 1")
    a(f"s_cbranch_scc0 {lab_cp}")
    a(f"s_branch {END}")
    a(f"{lab_ok}:")
    a(f"v_mov_b32 v{V_HR}, v{GR+28}")
    a(f"v_mov_b32 v{V_HI}, v{GR+29}")
    cur = (V_HR, V_HI); oth = (T, T+1)
    for j in range(6, -1, -1):
        er, ei = GR+4*j, GR+4*j+1
        a(f"v_fma_f32 v{oth[0]}, v{cur[0]}, v{L256}, v{er}")
        a(f"v_fma_f32 v{oth[1]}, v{cur[1]}, v{L256}, v{ei}")
        a(f"v_fma_f32 v{oth[0]}, -v{cur[1]}, v{L256+1}, v{oth[0]}")
        a(f"v_fma_f32 v{oth[1]}, v{cur[0]}, v{L256+1}, v{oth[1]}")
        cur, oth = oth, cur
    hr, hi = cur
    a(f"v_mov_b32 v{T+2}, v{hr}")
    a(f"v_mov_b32 v{T+3}, v{hi}")
    a(f"s_nop 1")
    a(f"v_permlane32_swap_b32 v{hr}, v{T+2}")
    a(f"v_permlane32_swap_b32 v{hi}, v{T+3}")
    a(f"s_nop 1")
    a(f"v_fma_f32 v{V_HR}, v{T+2}, v{V_L128}, v{hr}")
    a(f"v_fma_f32 v{V_HI}, v{T+3}, v{V_L128}, v{hi}")
    a(f"v_fma_f32 v{V_HR}, -v{T+3}, v{V_L128+1}, v{V_HR}")
    a(f"v_fma_f32 v{V_HI}, v{T+2}, v{V_L128+1}, v{V_HI}")
    if not eall:
        a(f"v_and_b32 v{T+2}, 31, v{V_LANE}")
        a(f"v_lshlrev_b32 v{T+2}, 3, v{T+2}")
        a(f"s_lshl_b32 s34, s{S_WN}, 8")
        a(f"s_add_u32 s34, s34, {L_HX}")
        a(f"v_add_u32 v{T+2}, s34, v{T+2}")
        a(f"ds_write_b64 v{T+2}, v[{V_HR}:{V_HR+1}]")
        a(f"s_lshl_b32 s34, s{S_WN}, 2")
        a(f"s_add_u32 s34, s34, {CNT_HX0}")
        a(f"v_mov_b32 v{T+4}, s34")
        a(f"v_mov_b32 v{T+5}, 1")
        a(f"s_waitcnt lgkmcnt(0)")
        lds_inc(a, T+4, T+5)
        a(f"s_branch {lab_wj}")
        a(f"{lab_w0}:")
        a(f"s_lshl_b32 s34, s{S_WN}, 2")
        a(f"s_add_u32 s34, s34, {CNT_HX0}")
        a(f"v_mov_b32 v{T+4}, s34")
        lds_spin(a, T+4, T+6, 1, END)
        a(f"v_and_b32 v{T+2}, 31, v{V_LANE}")
        a(f"v_lshlrev_b32 v{T+2}, 3, v{T+2}")
        a(f"s_lshl_b32 s34, s{S_WN}, 8")
        a(f"s_add_u32 s34, s34, {L_HX}")
        a(f"v_add_u32 v{T+2}, s34, v{T+2}")
        a(f"ds_read_b64 v[{V_HR}:{V_HR+1}], v{T+2}")
        a(f"s_waitcnt lgkmcnt(0)")
        a(f"{lab_wj}:")
    a(f"v_mov_b32 v{T+4}, {CNT_E}")
    a(f"v_mov_b32 v{T+5}, 1")
    lds_inc(a, T+4, T+5)
    lab_w1 = a.label("WM1"); lab_w2 = a.label("WMD")
    a(f"s_cmp_lg_u32 s{S_WM}, 0")
    a(f"s_cbranch_scc1 {lab_w1}")
    a(f"v_mov_b32 v{SA}, v{V_HR}")
    a(f"v_mov_b32 v{SA+1}, v{V_HI}")
    cfma(a, V_HR, V_HI, V_L32, V_L32+1, EX, EX+1, T)
    a(f"s_branch {lab_w2}")
    a(f"{lab_w1}:")
    cfma(a, V_HR, V_HI, V_L32, V_L32+1, EX, EX+1, T)
    cfma(a, V_HR, V_HI, V_L32, V_L32+1, EX+2, EX+3, T)
    a(f"v_mov_b32 v{SA}, v{V_HR}")
    a(f"v_mov_b32 v{SA+1}, v{V_HI}")
    cfma(a, V_HR, V_HI, V_L32, V_L32+1, EX+4, EX+5, T)
    a(f"{lab_w2}:")
    a(f"v_cmp_gt_u32 vcc, 32, v{V_LANE}")
    a(f"s_nop 1")
    a(f"v_cndmask_b32 v{V_HR}, v{V_HR}, v{SA}, vcc")
    a(f"v_cndmask_b32 v{V_HI}, v{V_HI}, v{SA+1}, vcc")
    a(f"v_mul_f32 v{T}, v{V_HR}, v{V_C2}")
    a(f"v_mul_f32 v{T+1}, -v{V_HI}, v{V_C2}")
    a(f"v_fma_f32 v{T}, -v{V_HI}, v{V_C2+1}, v{T}")
    a(f"v_fma_f32 v{V_HI}, -v{V_HR}, v{V_C2+1}, v{T+1}")
    a(f"v_mov_b32 v{V_HR}, v{T}")
    stamp(a, 7)
    a.c("pass 2 + stores")
    a(f"s_mul_i32 s34, s{S_C}, 20")
    a(f"s_add_u32 s34, s34, s{S_S}")
    a(f"s_lshl_b32 s34, s34, 14")
    a(f"s_lshl_b32 s35, s{S_WAVE}, 12")
    a(f"s_add_u32 s34, s34, s35")
    a(f"s_add_u32 s{S_T0}, s34, {WS_H}")
    a(f"s_add_u32 s{S_T1}, s{S_T0}, {10*16384}")
    pr, pi = V_HR, V_HI
    PK = 16
    for m in range(2):
        for r in range(16):
            cr, ci = acc2(m,0)+r, acc2(m,1)+r
            a(f"v_fma_f32 v{cr}, v{V_LR}, v{pr}, v{cr}")
            a(f"v_fma_f32 v{ci}, v{V_LR}, v{pi}, v{ci}")
            a(f"v_fma_f32 v{cr}, v{V_LI}, v{pi}, v{cr}")
            a(f"v_fma_f32 v{ci}, -v{V_LI}, v{pr}, v{ci}")
            pr, pi = cr, ci
            if r % 2 == 1:
                t = 16*m + r
                j, d = t // 8, (t % 8) // 2
                a(f"v_cvt_pk_bf16_f32 v{PK + 4*j + d}, v{cr-1}, v{cr}")
                a(f"v_cvt_pk_bf16_f32 v{PK + 16 + 4*j + d}, v{ci-1}, v{ci}")
                if d == 3:
                    a(f"buffer_store_dwordx4 v[{PK+4*j}:{PK+4*j+3}], v{V_L16}, s[{SRD_WS}:{SRD_WS+3}], s{S_T0} offen offset:{j*1024} {opts.get('hst', 'sc1')}")
                    a(f"buffer_store_dwordx4 v[{PK+16+4*j}:{PK+16+4*j+3}], v{V_L16}, s[{SRD_WS}:{SRD_WS+3}], s{S_T1} offen offset:{j*1024} {opts.get('hst', 'sc1')}")
    stamp(a, 8)
    a.c("acc init from x tile")
    a(f"v_mov_b32 v{T+4}, {CNT_X}")
    lds_spin(a, T+4, T+6, 4, END)
    XA = T+7
    a(f"v_lshrrev_b32 v{T+8}, 5, v{V_LANE}")
    a(f"v_bfe_u32 v{T+9}, v{V_LANE}, 2, 2")
    a(f"v_lshl_add_u32 v{T+8}, v{T+8}, 2, v{T+9}")
    a(f"s_lshl_b32 s34, s{S_WM}, 6")
    a(f"v_add_u32 v{T+8}, s34, v{T+8}")
    a(f"v_lshlrev_b32 v{XA}, 7, v{T+8}")
    a(f"v_bfe_u32 v{T+8}, v{V_LANE}, 4, 1")
    a(f"v_lshlrev_b32 v{T+8}, 5, v{T+8}")
    a(f"v_and_b32 v{T+9}, 3, v{V_LANE}")
    a(f"v_lshl_add_u32 v{T+8}, v{T+9}, 3, v{T+8}")
    a(f"s_lshl_b32 s34, s{S_WN}, 6")
    a(f"s_add_u32 s34, s34, {L_XT}")
    a(f"v_add_u32 v{T+8}, s34, v{T+8}")
    a(f"v_add_u32 v{XA}, v{XA}, v{T+8}")
    XV = 96
    for m in range(2):
        for q in range(4):
            r = XV + 2*(4*m+q)
            a(f"ds_read_b64_tr_b16 v[{r}:{r+1}], v{XA} offset:{(32*m+8*q)*128}")
    a(f"s_waitcnt lgkmcnt(0)")
    for qi in range(8):
        for h in range(2):
            xv = XV + 2*qi + h
            a0 = G2_ACC + 4*qi + 2*h
            a(f"v_lshlrev_b32 v{a0}, 16, v{xv}")
            a(f"v_and_b32 v{a0+1}, 0xffff0000, v{xv}")
            a(f"v_mul_f32 v{a0}, v{a0}, v{V_DSB}")
            a(f"v_mul_f32 v{a0+1}, v{a0+1}, v{V_DSB}")
            a(f"v_cvt_pk_bf16_f32 v{a0}, v{a0}, v{a0+1}")
            a(f"v_and_b32 v{a0+1}, 0xffff0000, v{a0}")
            a(f"v_lshlrev_b32 v{a0}, 16, v{a0}")
    a(f"v_lshrrev_b32 v{T}, 4, v{V_LANE}")
    a(f"v_bfe_u32 v{T+1}, v{V_LANE}, 2, 2")
    a(f"v_and_b32 v{T+2}, 3, v{V_LANE}")
    a(f"v_and_b32 v{T+3}, 1, v{T}")
    a(f"v_lshlrev_b32 v{T+3}, 1, v{T+3}")
    a(f"v_lshrrev_b32 v{T+4}, 1, v{T+2}")
    a(f"v_add_u32 v{T+3}, v{T+3}, v{T+4}")
    a(f"v_mul_u32_u24 v{T+3}, 1088, v{T+3}")
    a(f"v_lshrrev_b32 v{T+4}, 1, v{T}")
    a(f"v_lshl_add_u32 v{T+4}, v{T+4}, 3, v{T+1}")
    a(f"v_lshl_add_u32 v{T+3}, v{T+4}, 4, v{T+3}")
    a(f"v_and_b32 v{T+4}, 1, v{T+2}")
    a(f"v_lshl_add_u32 v{T+3}, v{T+4}, 3, v{T+3}")
    a(f"s_mul_i32 s34, s{S_WM}, 8704")
    a(f"v_add_u32 v{V_HA}, s34, v{T+3}")
    a(f"v_add_u32 v{V_HA2}, {3*HSLOT}, v{V_HA}")
    for ks in range(4):
        a(f"v_xor_b32 v{2+ks}, {32*ks}, v221")
        a(f"v_add_u32 v{V_CB+ks}, {CBASE}, v{2+ks}")
    a(f"s_waitcnt vmcnt(0)")
    a(f"v_mov_b32 v{T+4}, {CNT_H}")
    a(f"v_mov_b32 v{T+5}, 1")
    a(f"s_mov_b64 s[{S_EXEC}:{S_EXEC+1}], exec")
    a(f"s_mov_b64 exec, 1")
    a(f"ds_add_rtn_u32 v{T+6}, v{T+4}, v{T+5}")
    a(f"s_waitcnt lgkmcnt(0)")
    a(f"v_readfirstlane_b32 s{S_T3}, v{T+6}")
    lab_nf = a.label("NOHF")
    a(f"s_nop 0")
    a(f"s_cmp_lg_u32 s{S_T3}, 3")
    a(f"s_cbranch_scc1 {lab_nf}")
    a(f"s_lshl_b32 s34, s{S_C}, 7")
    a(f"s_lshl_b32 s35, s{S_S}, 3")
    a(f"s_add_u32 s34, s34, s35")
    a(f"s_add_u32 s34, s34, {WS_FLAG}")
    a(f"v_mov_b32 v{G}, s{S_NONCE}")
    a(f"v_mov_b32 v{G+1}, s{S_NONCE+1}")
    a(f"buffer_store_dwordx2 v[{G}:{G+1}], v{V_ZERO}, s[{SRD_WS}:{SRD_WS+3}], s34 offen {opts.get('hst', 'sc1')}")
    a(f"{lab_nf}:")
    a(f"s_mov_b64 exec, s[{S_EXEC}:{S_EXEC+1}]")
    stamp(a, 9)
    a(f"v_mov_b32 v{T+4-T+240}, {CNT_C}")
    lds_spin(a, 244, 245, 4, END)
    n = 0
    for ch in range(NREG):
        for ks in range(4):
            r = V_CREG + 16*ch + 4*ks
            off = L_CST + ch*8192
            reg = 2 + ks
            if off >= 65536:
                a(f"v_add_u32 v246, {off}, v{reg}")
                a(f"ds_read_b128 v[{r}:{r+3}], v246")
            else:
                a(f"ds_read_b128 v[{r}:{r+3}], v{reg} offset:{off}")
            n += 1
            if n % 12 == 0: a(f"s_waitcnt lgkmcnt(4)")
    a(f"s_waitcnt lgkmcnt(0)")
    a(f"v_mov_b32 v244, {CNT_R}")
    a(f"v_mov_b32 v245, 1")
    lds_inc(a, 244, 245)
    stamp(a, 10)
    a(f"s_barrier")
    stamp(a, 11)
    D2 = G2_NS - 1
    for k0 in range(D2):
        for ins in g2_reads(0, k0): a(ins)
    NST = 20
    for it in range(NST):
        for ks in range(4):
            gidx = 4*it + ks
            rem = 0
            for g2 in range(gidx + 1, min(gidx + D2, 4*NST)):
                rem += len(g2_reads(g2 // 4, g2 % 4))
            a(f"s_waitcnt lgkmcnt({rem})")
            fill = []
            nx = gidx + D2
            if nx < 4*NST:
                nit, nks = nx // 4, nx % 4
                if nks == 0: a(f"s_barrier")
                fill += g2_reads(nit, nks)
            interleave(a, g2_mfmas(it, ks), fill)
    stamp(a, 12)
    a(f"s_barrier")
    stamp(a, 13)
    a(f"v_and_b32 v{T}, 31, v{V_LANE}")
    a(f"s_lshl_b32 s34, s{S_WN}, 5")
    a(f"v_add_u32 v{T}, s34, v{T}")
    a(f"v_lshrrev_b32 v{T+3}, 5, v{V_LANE}")
    a(f"v_and_b32 v{T+1}, 15, v{T}")
    a(f"s_lshl_b32 s34, s{S_WM}, 3")
    a(f"v_xor_b32 v{T+1}, s34, v{T+1}")
    a(f"v_lshlrev_b32 v{T+2}, 8, v{T}")
    a(f"v_lshl_add_u32 v{T+2}, v{T+3}, 3, v{T+2}")
    a(f"v_add_u32 v{T+2}, {L_AT}, v{T+2}")
    AV = 96
    for m in range(2):
        for q in range(4):
            r = AV + 2*(4*m+q)
            a(f"v_xor_b32 v{T+4}, {4*m+q}, v{T+1}")
            a(f"v_lshl_add_u32 v{T+4}, v{T+4}, 4, v{T+2}")
            a(f"ds_read_b64 v[{r}:{r+1}], v{T+4}")
    GA = T+5
    a(f"s_lshl_b32 s34, s{S_WM}, 9")
    a(f"s_add_u32 s34, s34, {L_G}")
    a(f"v_lshlrev_b32 v{GA}, 5, v{T+3}")
    a(f"v_add_u32 v{GA}, s34, v{GA}")
    GV = 112
    for m in range(2):
        for q in range(4):
            gb = GV + 8*(4*m+q)
            a(f"ds_read_b128 v[{gb}:{gb+3}], v{GA} offset:{(32*m+8*q)*8}")
            a(f"ds_read_b128 v[{gb+4}:{gb+7}], v{GA} offset:{(32*m+8*q)*8+16}")
            if (4*m+q) == 2: a("s_waitcnt lgkmcnt(6)")
            if (4*m+q) == 5: a("s_waitcnt lgkmcnt(6)")
    OV = T+6
    a(f"v_mul_u32_u24 v{OV}, 2560, v{T+3}")
    a(f"s_lshl_b32 s34, s{S_S}, 6")
    a(f"v_add_u32 v{OV}, v{OV}, v{T}")
    a(f"v_add_u32 v{OV}, s34, v{OV}")
    a(f"v_lshlrev_b32 v{OV}, 2, v{OV}")
    a(f"s_lshl_b32 s34, s{S_C}, 7")
    a(f"s_lshl_b32 s35, s{S_WM}, 6")
    a(f"s_add_u32 s34, s34, s35")
    a(f"s_mul_i32 s{S_T2}, s34, 2560")
    a(f"s_waitcnt lgkmcnt(0)")
    W = 180
    for m in range(2):
        for q in range(4):
            qi = 4*m+q
            gb = GV + 8*qi
            for h in range(2):
                av = AV + 2*qi + h
                a0 = G2_ACC + 16*m + 4*q + 2*h
                w = W + 2*h
                a(f"v_lshlrev_b32 v{w}, 16, v{av}")
                a(f"v_and_b32 v{w+1}, 0xffff0000, v{av}")
                a(f"v_mul_f32 v{w}, v{w}, v{gb+4*h}")
                a(f"v_mul_f32 v{w+1}, v{w+1}, v{gb+4*h+2}")
                a(f"v_cvt_pk_bf16_f32 v{w}, v{w}, v{w+1}")
                a(f"v_and_b32 v{w+1}, 0xffff0000, v{w}")
                a(f"v_lshlrev_b32 v{w}, 16, v{w}")
                a(f"v_fma_f32 v{a0}, v{gb+4*h+1}, v{a0}, v{w}")
                a(f"v_fma_f32 v{a0+1}, v{gb+4*h+3}, v{a0+1}, v{w+1}")
                for e in range(2):
                    row = 32*m + 8*q + 2*h + e
                    a(f"s_add_u32 s35, s{S_T2}, {row*2560}")
                    a(f"buffer_store_dword v{a0+e}, v{OV}, s[{SRD_C}:{SRD_C+3}], s35 offen")
    stamp(a, 15)
    if PROF["on"]:
        a("s_waitcnt vmcnt(0)")
        stamp(a, 16)
    prof_end(a, opts.get("profwave", 0))

def gen_gemm(a, END, opts):
    a.c("================= GEMM role v2 =================")
    if opts.get("map45", True):
        a(f"s_mul_i32 s34, s31, 52")
        a(f"s_lshr_b32 s34, s34, 8")
        a(f"s_mul_i32 s35, s34, 5")
        a(f"s_sub_u32 s35, s31, s35")
        a(f"s_lshr_b32 s93, s30, 1")
        a(f"s_and_b32 s94, s30, 1")
        a(f"s_lshl_b32 s{S_C}, s93, 2")
        a(f"s_add_u32 s{S_C}, s{S_C}, s34")
        a(f"s_mul_i32 s{S_S}, s94, 5")
        a(f"s_add_u32 s{S_S}, s{S_S}, s35")
        a(f"s_lshl_b32 s35, s35, 1")
        a(f"s_add_u32 s35, s35, s94")
        a(f"s_add_u32 s35, s35, s93")
        a(f"s_mul_i32 s34, s34, 5")
        a(f"s_lshr_b32 s34, s34, 1")
        a(f"s_add_u32 s93, s35, s34")
        a(f"s_cmp_ge_u32 s93, 10")
        a(f"s_cselect_b32 s34, 10, 0")
        a(f"s_sub_u32 s93, s93, s34")
    else:
        a(f"s_mov_b32 s93, s30")
        a(f"s_cmp_ge_u32 s31, 10")
        a(f"s_cselect_b32 s34, 1, 0")
        a(f"s_cselect_b32 s35, 10, 0")
        a(f"s_lshl_b32 s30, s30, 1")
        a(f"s_add_u32 s{S_C}, s30, s34")
        a(f"s_sub_u32 s{S_S}, s31, s35")
        a(f"s_mul_i32 s34, s34, 5")
        a(f"s_add_u32 s93, s93, s34")
        a(f"s_add_u32 s93, s93, s{S_S}")
        for _ in range(2):
            a(f"s_cmp_ge_u32 s93, 10")
            a(f"s_cselect_b32 s34, 10, 0")
            a(f"s_sub_u32 s93, s93, s34")
    a(f"s_cmp_ge_u32 s{S_WAVE}, 4")
    a(f"s_cbranch_scc1 L_LOADER")
    gen_compute(a, END, opts)
    a(f"s_branch {END}")
    a("L_LOADER:")
    gen_loader(a, END, opts)
```

```python
import sys
from common import *
import g1
def build(opts):
    a = Asm()
    PROF["on"] = bool(opts.get("prof"))
    END = "L_END"
    a("s_load_dwordx16 s[36:51], s[0:1], 0")
    a("s_load_dwordx16 s[52:67], s[0:1], 64")
    a("s_load_dwordx8 s[68:75], s[0:1], 128")
    a(f"s_cmp_ge_u32 s2, 256")
    a(f"s_cbranch_scc1 {END}")
    a("v_lshrrev_b32 v1, 6, v0")
    a("s_nop 0")
    a(f"v_readfirstlane_b32 s{S_WAVE}, v1")
    a("v_and_b32 v1, 63, v0")
    a("s_and_b32 s30, s2, 7")
    a("s_lshr_b32 s31, s2, 3")
    a("s_waitcnt lgkmcnt(0)")
    make_srd(a, SRD_X, P_X, 2621440)
    make_srd(a, SRD_WS, P_WS, WS_SIZE)
    make_srd(a, SRD_DBG, P_DBG, 256)
    a(f"s_or_b32 s34, s2, s{S_WAVE}")
    a("s_cmp_lg_u32 s34, 0")
    a("s_cbranch_scc1 L_NONONCE")
    a(f"s_memrealtime s[{S_NONCE}:{S_NONCE+1}]")
    a("s_waitcnt lgkmcnt(0)")
    a(f"s_or_b32 s{S_NONCE}, s{S_NONCE}, 1")
    a(f"v_mov_b32 v2, s{S_NONCE}")
    a(f"v_mov_b32 v3, s{S_NONCE+1}")
    a("v_mov_b32 v4, 0")
    a("s_mov_b64 s[34:35], exec")
    a("s_mov_b64 exec, 1")
    a(f"buffer_store_dwordx2 v[2:3], v4, s[{SRD_DBG}:{SRD_DBG+3}], 0 offen sc1")
    a("s_mov_b64 exec, s[34:35]")
    a("L_NONONCE:")
    if PROF["on"]: a(f"v_mov_b32 v{V_PROF}, 0")
    stamp(a, 0)
    a("s_cmp_lt_u32 s31, 20")
    a("s_cbranch_scc1 L_GEMM")
    a("s_cmp_lt_u32 s31, 30")
    a("s_cbranch_scc1 L_CONV")
    a("s_branch L_GATE")
    a("L_GEMM:")
    if opts.get("v1"):
        g1.gen_g1(a, END, opts)
        if opts.get("g2"):
            import g2
            g2.gen_g2(a, END, opts)
        else:
            prof_end(a)
    else:
        import gemm2
        gemm2.gen_gemm(a, END, opts)
    a(f"s_branch {END}")
    a("L_CONV:")
    if opts.get("conv"):
        if opts.get("conv1"):
            import conv
            conv.gen_conv(a, END, opts)
        else:
            import conv2
            conv2.gen_conv(a, END, opts)
    a(f"s_branch {END}")
    a("L_GATE:")
    if opts.get("gate"):
        import gate
        gate.gen_gate(a, END, opts)
    a(f"{END}:")
    a("s_endpgm")
    a("L_CODE_END:")
    return wrap(a.text())
if __name__ == "__main__":
    out = sys.argv[1]
    opts = {k.split("=")[0]: (True if "=" not in k else eval(k.split("=")[1])) for k in sys.argv[2:]}
    open(out, "w").write(build(opts))
    print("wrote", out)
```

```python
from common import *
from g1 import V_LANE, S_CNT, S_EXEC, S_MISM
from g2 import poll_flags

def get_nonce(a, END, vz, vd):
    lp = a.label("GN"); ok = a.label("GNOK")
    a(f"s_mov_b32 s{S_CNT}, 100000")
    a(f"{lp}:")
    a(f"buffer_load_dwordx2 v[{vd}:{vd+1}], v{vz}, s[{SRD_DBG}:{SRD_DBG+3}], 0 offen sc1")
    a(f"s_waitcnt vmcnt(0)")
    a(f"v_readfirstlane_b32 s{S_NONCE}, v{vd}")
    a(f"v_readfirstlane_b32 s{S_NONCE+1}, v{vd+1}")
    a(f"s_nop 0")
    a(f"s_cmp_lg_u32 s{S_NONCE}, 0")
    a(f"s_cbranch_scc1 {ok}")
    poll_timeout(a, S_CNT, END)
    a(f"s_branch {lp}")
    a(f"{ok}:")

def gen_gate(a, END, opts):
    a.c("================= GATE role =================")
    if opts.get("cwarm", True) and not opts.get("cwarm2"):
        a("s_getpc_b64 s[12:13]")
        a("L_PCREF:")
        a(f"s_sub_u32 s12, s12, L_PCREF-{NAME}_kernel")
        a("s_subb_u32 s13, s13, 0")
        a("s_and_b32 s13, s13, 0xffff")
        a(f"s_mov_b32 s14, L_CODE_END-{NAME}_kernel")
        a("s_mov_b32 s15, 0x00020000")
        a(f"v_lshlrev_b32 v2, 4, v{V_LANE}")
        a("s_sub_u32 s32, s31, 30")
        a("s_lshl_b32 s32, s32, 3")
        a(f"s_add_u32 s32, s32, s{S_WAVE}")
        a("s_lshl_b32 s32, s32, 12")
        for j in range(4):
            a(f"buffer_load_dwordx4 v[200:203], v2, s[12:15], s32 offen offset:{j*1024}")
    a("s_lshl_b32 s30, s30, 1")
    a("s_sub_u32 s31, s31, 30")
    a("s_add_u32 s30, s30, s31")
    make_srd(a, SRD_A, P_GW, 1280)
    a(f"v_lshrrev_b32 v2, 4, v{V_LANE}")
    a(f"v_and_b32 v3, 15, v{V_LANE}")
    a(f"v_lshlrev_b32 v3, 4, v3")
    W = 16
    for i in range(5):
        a(f"buffer_load_dwordx4 v[{W+4*i}:{W+4*i+3}], v3, s[{SRD_A}:{SRD_A+3}], 0 offen offset:{256*i}")
    a(f"v_mul_u32_u24 v4, 1280, v2")
    a(f"v_add_u32 v4, v4, v3")
    a(f"s_lshl_b32 s32, s30, 7")
    a(f"s_lshl_b32 s33, s{S_WAVE}, 4")
    a(f"s_add_u32 s32, s32, s33")
    a(f"s_mul_i32 s33, s32, 1280")
    X = 40
    for g in range(4):
        a(f"s_add_u32 s34, s33, {g*4*1280}")
        for i in range(5):
            r = X + 20*g + 4*i
            a(f"buffer_load_dwordx4 v[{r}:{r+3}], v4, s[{SRD_X}:{SRD_X+3}], s34 offen offset:{256*i}")
    WF = 128
    a("s_waitcnt vmcnt(20)")
    for i in range(20):
        a(f"v_lshlrev_b32 v{WF+2*i}, 16, v{W+i}")
        a(f"v_and_b32 v{WF+2*i+1}, 0xffff0000, v{W+i}")
    R = 170
    for g in range(4):
        a(f"s_waitcnt vmcnt({15-5*g})")
        S = 180
        a(f"v_mov_b32 v{S}, 0")
        a(f"v_mov_b32 v{S+1}, 0")
        for i in range(20):
            xr = X + 20*g + i
            t = 184 + 2*(i & 1)
            a(f"v_lshlrev_b32 v{t}, 16, v{xr}")
            a(f"v_and_b32 v{t+1}, 0xffff0000, v{xr}")
            a(f"v_mul_f32 v{t}, v{t}, v{WF+2*i}")
            a(f"v_mul_f32 v{t+1}, v{t+1}, v{WF+2*i+1}")
            a(f"v_cvt_pk_bf16_f32 v{t}, v{t}, v{t+1}")
            a(f"v_and_b32 v{t+1}, 0xffff0000, v{t}")
            a(f"v_lshlrev_b32 v{t}, 16, v{t}")
            a(f"v_add_f32 v{S}, v{S}, v{t}")
            a(f"v_add_f32 v{S+1}, v{S+1}, v{t+1}")
        a(f"v_add_f32 v{S}, v{S}, v{S+1}")
        for rot in (8, 4, 2, 1):
            a("s_nop 1")
            a(f"v_add_f32_dpp v{S}, v{S}, v{S} row_ror:{rot} row_mask:0xf bank_mask:0xf")
        round_bf16(a, S, S)
        a(f"v_mul_f32 v{S+1}, {fhex(-LOG2E)}, v{S}")
        a(f"v_exp_f32 v{S+1}, v{S+1}")
        a("s_nop 0")
        a(f"v_add_f32 v{S+1}, 1.0, v{S+1}")
        a(f"v_rcp_f32 v{S+2}, v{S+1}")
        a("s_nop 0")
        a(f"v_fma_f32 v{S+3}, -v{S+1}, v{S+2}, 2.0")
        a(f"v_mul_f32 v{S+2}, v{S+2}, v{S+3}")
        round_bf16(a, R+2*g, S+2)
        a(f"v_sub_f32 v{S+3}, 1.0, v{R+2*g}")
        round_bf16(a, R+2*g+1, S+3)
    a("v_mov_b32 v5, 0")
    get_nonce(a, END, 5, 6)
    a(f"v_lshlrev_b32 v8, 3, v2")
    a(f"s_lshl_b32 s33, s32, 3")
    a(f"s_add_u32 s33, s33, {WS_G}")
    a(f"v_and_b32 v9, 15, v{V_LANE}")
    a(f"v_cmp_eq_u32 vcc, 0, v9")
    a(f"s_and_saveexec_b64 s[{S_EXEC}:{S_EXEC+1}], vcc")
    for g in range(4):
        a(f"buffer_store_dwordx2 v[{R+2*g}:{R+2*g+1}], v8, s[{SRD_WS}:{SRD_WS+3}], s33 offen offset:{32*g} sc1")
    a(f"s_mov_b64 exec, s[{S_EXEC}:{S_EXEC+1}]")
    a("s_waitcnt vmcnt(0)")
    a("s_barrier")
    lab = a.label("GNF")
    a(f"s_cmp_lg_u32 s{S_WAVE}, 0")
    a(f"s_cbranch_scc1 {lab}")
    a(f"s_lshl_b32 s34, s30, 7")
    a(f"s_add_u32 s34, s34, {WS_FLAG + 80}")
    a(f"v_mov_b32 v6, s{S_NONCE}")
    a(f"v_mov_b32 v7, s{S_NONCE+1}")
    a("s_mov_b64 exec, 1")
    a(f"buffer_store_dwordx2 v[6:7], v5, s[{SRD_WS}:{SRD_WS+3}], s34 offen sc1")
    a("s_mov_b64 exec, -1")
    a(f"{lab}:")
    stamp(a, 1)
    prof_end(a)
```

```python
from common import *
from g1 import V_LANE, S_CNT, S_EXEC, S_MISM, interleave
from gate import get_nonce
from g2 import poll_flags

RSZ = 20480
U_OFF = 80
T_OFF = 5200
CS = 2368
W_OFF = T_OFF
R_OFF = W_OFF + 4*CS
G_OFF = R_OFF + 2240
CNT_OFF = 20416
S_IDX, S_D, S_RB = 30, 31, 32
S_T3 = 87

def slot_alpha(i):
    q, g, e = i >> 3, (i >> 2) & 1, i & 3
    if q == 0: return 4*g + e
    if q == 1:
        if e < 2: return 1024 + 256*(2*g + e)
        if e == 2 and g == 0: return 2048
        return None
    if q == 2: return None if e == 3 else 512 + 256*g + 4*e
    if q == 3: return None if e == 3 else 256 + 4*g + 2*e
XROW = {}
for i in range(32):
    al = slot_alpha(i)
    if al is None or i == 28: continue
    XROW[al] = i
HOLES = [11, 14, 15, 19, 23, 27, 28, 31]
assert all(h not in XROW.values() for h in HOLES) and len(XROW) == 24
def yrow(b): return 32 + b if b < 24 else HOLES[b - 24]

def pcmul(a, d, x, y):
    a(f"v_pk_mul_f32 v[{d}:{d+1}], v[{x}:{x+1}], v[{y}:{y+1}] op_sel:[0,0] op_sel_hi:[0,1]")
    a(f"v_pk_fma_f32 v[{d}:{d+1}], v[{x}:{x+1}], v[{y}:{y+1}], v[{d}:{d+1}] op_sel:[1,1,0] op_sel_hi:[1,0,1] neg_lo:[1,0,0]")

V_U = 16
V_PRM = 32
V_AW = 40
V_AA_ = 56
V_ACC_ = 64
V_AB_ = 96
V_E = 104
V_E256 = 120
V_B0, V_B1 = 122, 124
V_Y0, V_Y1 = 126, 128
V_X = 130
V_CP = 132
V_T_ = 134
V_E16 = 150
V_BB = 152
V_YY = 168
V_X2, V_X3 = 176, 178
V_PK = 186
V_FRK = 104
V_DT = 184
V_DSK = 185
def Ek(k): return V_E + 2*(k-1)

def cis_exp(a, d, zr2, zi, p, t):
    if p == 1:
        a(f"v_exp_f32 v{t}, v{zr2}")
        a(f"v_fract_f32 v{t+1}, v{zi}")
    else:
        a(f"v_mul_f32 v{t}, {fhex(float(p))}, v{zr2}")
        a(f"v_mul_f32 v{t+1}, {fhex(float(p))}, v{zi}")
        a(f"v_exp_f32 v{t}, v{t}")
        a(f"v_fract_f32 v{t+1}, v{t+1}")
    a(f"v_cos_f32 v{t+2}, v{t+1}")
    a(f"v_sin_f32 v{t+3}, v{t+1}")
    a(f"s_nop 0")
    a(f"v_mul_f32 v{d}, v{t}, v{t+2}")
    a(f"v_mul_f32 v{d+1}, v{t}, v{t+3}")

class TabWriter:
    NPK = 8
    def __init__(self, a): self.a = a; self.k = 0; self.q = []
    def put(self, row, pair, neg):
        t = V_PK + (self.k % self.NPK); self.k += 1
        self.a(f"v_cvt_pk_bf16_f32 v{t}, v{pair}, {'-' if neg else ''}v{pair+1}")
        self.q.append(f"ds_write_addtid_b32 v{t} offset:{row*272}")
        while len(self.q) > 2: self.a(self.q.pop(0))
    def flush(self):
        while self.q: self.a(self.q.pop(0))

def kgen_pass(a, hh, extras=None, pk=True, every=4):
    T = V_T_
    a.c(f"K-gen pass {hh}")
    fresh = (hh == 0) or isinstance(hh, str)
    if hh == "one":
        for k in range(4): a(f"v_and_b32 v{T+k}, 0xffff0000, v{V_PRM+k}")
    elif isinstance(hh, str):
        l0 = a.label("KH0"); l1 = a.label("KH1")
        a(f"s_cmp_lg_u32 {hh}, 0")
        a(f"s_cbranch_scc1 {l0}")
        for k in range(4): a(f"v_lshlrev_b32 v{T+k}, 16, v{V_PRM+k}")
        a(f"s_branch {l1}")
        a(f"{l0}:")
        for k in range(4): a(f"v_and_b32 v{T+k}, 0xffff0000, v{V_PRM+k}")
        a(f"{l1}:")
    else:
        for k in range(4):
            if hh == 0: a(f"v_lshlrev_b32 v{T+k}, 16, v{V_PRM+k}")
            else:       a(f"v_and_b32 v{T+k}, 0xffff0000, v{V_PRM+k}")
    exp_accurate(a, T, T, T+4, T+5, T+6)
    round_bf16(a, T, T)
    a(f"v_mul_f32 v{T}, -v{T}, v{V_DT}")
    a(f"v_mul_f32 v{T+1}, v{T+1}, v{V_DT}")
    a(f"v_mul_f32 v{T}, {fhex(LOG2E)}, v{T}")
    a(f"v_mul_f32 v{T+1}, {fhex(INV2PI)}, v{T+1}")
    a(f"v_mul_f32 v{T+2}, v{T+2}, v{V_DT}")
    a(f"v_mul_f32 v{T+3}, v{T+3}, v{V_DT}")
    a(f"v_add_f32 v{V_B0}, v{T+2}, v{T+2}")
    a(f"v_add_f32 v{V_B0+1}, v{T+3}, v{T+3}")
    t, u = T+4, T+8
    a(f"v_exp_f32 v{t}, v{T}")
    a(f"v_mul_f32 v{u}, {fhex(256.0)}, v{T}")
    a(f"v_fract_f32 v{t+1}, v{T+1}")
    a(f"v_mul_f32 v{u+1}, {fhex(256.0)}, v{T+1}")
    a(f"v_exp_f32 v{u}, v{u}")
    a(f"v_cos_f32 v{t+2}, v{t+1}")
    a(f"v_fract_f32 v{u+1}, v{u+1}")
    a(f"v_sin_f32 v{t+3}, v{t+1}")
    a(f"v_cos_f32 v{u+2}, v{u+1}")
    a(f"v_mul_f32 v{Ek(1)}, v{t}, v{t+2}")
    a(f"v_sin_f32 v{u+3}, v{u+1}")
    a(f"v_mul_f32 v{Ek(1)+1}, v{t}, v{t+3}")
    a(f"v_mul_f32 v{V_E256}, v{u}, v{u+2}")
    a(f"v_mul_f32 v{V_E256+1}, v{u}, v{u+3}")
    ops = []
    val = {"E1": Ek(1), "E256": V_E256, "B0": V_B0}
    def op(name, dst, x, y, row=None, neg=False):
        ops.append(dict(name=name, dst=dst, x=x, y=y, row=row, neg=neg))
    op("E2", Ek(2), "E1", "E1")
    op("E4", Ek(4), "E2", "E2")
    op("E3", Ek(3), "E2", "E1")
    op("E8", Ek(8), "E4", "E4", yrow(1))
    op("E5", Ek(5), "E4", "E1")
    op("E6", Ek(6), "E4", "E2")
    op("E7", Ek(7), "E4", "E3")
    op("E16", V_E16, "E8", "E8", yrow(2))
    for kb in range(1, 9):
        op(f"B{kb}", V_BB + 2*(kb-1), f"B{kb-1}", "E256", XROW[256*kb], True)
    def yn(b): return "E8" if b == 1 else ("E16" if b == 2 else f"Y{b}")
    for b in range(3, 32):
        op(f"Y{b}", V_YY + 2*(b % 4), yn(b-2), "E16", yrow(b), False)
    xr = [V_X, V_CP, V_X2, V_X3]
    n = 0
    xl = [(0, k) for k in range(1, 8)] + [(1, k) for k in (2, 4, 6, 8)] + [(2, 4), (2, 8), (3, 4), (3, 8)]
    for kb, k in xl:
        op(f"X{kb}_{k}", xr[n % 4], f"B{kb}", f"E{k}", XROW[256*kb + k], True); n += 1
    order = []
    done = {"E1": -9, "E256": -9, "B0": -9}
    pend = list(ops)
    slot = 0
    def ready(o):
        if not (o["x"] in done and o["y"] in done): return False
        if slot - done[o["x"]] < 2 or slot - done[o["y"]] < 2: return False
        cls = o["name"][0]
        if cls in "YX":
            for p in pend:
                if p is o: break
                if p["name"][0] == cls: return False
        return True
    rr = 0
    while pend:
        cand = [o for o in pend if ready(o)]
        if not cand:
            slot += 1; order.append(None); continue
        pri = {"E": 0, "B": 1, "Y": 2 + (rr & 1), "X": 3 - (rr & 1)}
        cand.sort(key=lambda o: pri[o["name"][0]])
        o = cand[0]
        pend.remove(o); done[o["name"]] = slot; val[o["name"]] = o["dst"]
        order.append(o); slot += 1; rr += 1
    tw = TabWriter(a)
    tw.put(XROW[0], V_B0, True)
    a(f"v_mov_b32 v180, 0x00003f80")
    a(f"ds_write_addtid_b32 v180 offset:{yrow(0)*272}")
    real = [o for o in order if o is not None]
    def mul(o):
        d, x, y = o["dst"], val[o["x"]], val[o["y"]]
        if not pk:
            a(f"v_mul_f32 v{d}, v{x}, v{y}")
            a(f"v_mul_f32 v{d+1}, v{x}, v{y+1}")
            return
        a(f"v_pk_mul_f32 v[{d}:{d+1}], v[{x}:{x+1}], v[{y}:{y+1}] op_sel:[0,0] op_sel_hi:[0,1]")
    def fma(o):
        d, x, y = o["dst"], val[o["x"]], val[o["y"]]
        if not pk:
            a(f"v_fma_f32 v{d}, -v{x+1}, v{y+1}, v{d}")
            a(f"v_fma_f32 v{d+1}, v{x+1}, v{y}, v{d+1}")
            return
        a(f"v_pk_fma_f32 v[{d}:{d+1}], v[{x}:{x+1}], v[{y}:{y+1}], v[{d}:{d+1}] op_sel:[1,1,0] op_sel_hi:[1,0,1] neg_lo:[1,0,0]")
    i = 0
    grp = 0
    lastput = None
    while i < len(real):
        o = real[i]
        o2 = real[i+1] if i + 1 < len(real) else None
        grp += 1
        if extras and grp % every == 1 and grp > 0:
            for ins in extras.pop(0): a(ins)
        if o2 is not None and o["name"] not in (o2["x"], o2["y"]) and o2["dst"] != o["dst"] and o2["dst"] not in (val[o["x"]], val[o["y"]]):
            mul(o); mul(o2)
            if lastput:
                for p in lastput: tw.put(p["row"], p["dst"], p["neg"])
            fma(o); fma(o2)
            lastput = [p for p in (o, o2) if p["row"] is not None]
            i += 2
        else:
            mul(o)
            if lastput:
                for p in lastput: tw.put(p["row"], p["dst"], p["neg"])
            fma(o)
            lastput = [o] if o["row"] is not None else []
            i += 1
    for p in lastput: tw.put(p["row"], p["dst"], p["neg"])
    tw.flush()
    assert not extras, "extras not all placed"
    a(f"s_waitcnt lgkmcnt(0)")
    def rd(ks):
        st = V_FRK + 8*ks
        return [f"ds_read_b128 v[{st}:{st+3}], v{V_AA_} offset:{32*ks}", f"ds_read_b128 v[{st+4}:{st+7}], v{V_AB_} offset:{32*ks}"]
    for ks in range(7):
        for ins in rd(ks): a(ins)
    for ks in range(8):
        if ks == 0:
            a(f"s_waitcnt lgkmcnt(12)")
        elif ks == 1:
            for ins in rd(7): a(ins)
            a(f"s_waitcnt lgkmcnt(12)")
        else:
            a(f"s_waitcnt lgkmcnt({2*(7-ks)})")
        st = V_FRK + 8*ks
        c = "0" if (fresh and ks == 0) else f"v[{V_ACC_}:{V_ACC_+15}]"
        a(f"v_mfma_f32_32x32x16_bf16 v[{V_ACC_}:{V_ACC_+15}], v[{st}:{st+3}], v[{st+4}:{st+7}], {c}")

def kgen_addr_setup(a, sbase):
    K5, K6, K7, K8, K9, K10 = 80, 81, 82, 83, 84, 85
    a(f"s_mov_b32 m0, {sbase}")
    a(f"v_and_b32 v{K5}, 31, v{V_LANE}")
    a(f"v_lshrrev_b32 v{K6}, 5, v{V_LANE}")
    a(f"v_lshlrev_b32 v{K6}, 4, v{K6}")
    a(f"v_add_u32 v{K6}, {sbase}, v{K6}")
    a(f"v_mov_b32 v{K7}, 26")
    a(f"v_cmp_eq_u32 vcc, 28, v{K5}")
    lo = HOLES[0] | HOLES[1] << 8 | HOLES[2] << 16 | HOLES[3] << 24
    hi = HOLES[4] | HOLES[5] << 8 | HOLES[6] << 16 | HOLES[7] << 24
    a(f"v_mov_b32 v{K9}, {hex(lo)}")
    a("s_nop 0")
    a(f"v_cndmask_b32 v{K7}, v{K5}, v{K7}, vcc")
    a(f"v_mov_b32 v{K10}, {hex(hi)}")
    a(f"v_mul_u32_u24 v{K7}, 272, v{K7}")
    a(f"v_add_u32 v{V_AA_}, v{K7}, v{K6}")
    a(f"v_and_b32 v{K8}, 7, v{K5}")
    a(f"v_or_b32 v{K8}, 0x0c0c0c00, v{K8}")
    a(f"v_perm_b32 v{K8}, v{K10}, v{K9}, v{K8}")
    a(f"v_add_u32 v{K7}, 32, v{K5}")
    a(f"v_cmp_lt_u32 vcc, 23, v{K5}")
    a("s_nop 1")
    a(f"v_cndmask_b32 v{K7}, v{K7}, v{K8}, vcc")
    a(f"v_mul_u32_u24 v{K7}, 272, v{K7}")
    a(f"v_add_u32 v{V_AB_}, v{K7}, v{K6}")

def build_W(a, vsrc, vdst):
    S = 104
    regs = [(104, 112), (124, 132)]
    def rd(it):
        S, Wk = regs[it & 1]
        a(f"ds_read_b128 v[{S}:{S+3}], v{vsrc} offset:{32 + it*1024}")
        a(f"ds_read_b128 v[{S+4}:{S+7}], v{vsrc} offset:{32 + it*1024 + 16}")
    rd(0); rd(1)
    for it in range(3):
        S, Wk = regs[it & 1]
        if it == 2:
            a(f"s_mov_b64 s[{S_EXEC}:{S_EXEC+1}], exec")
            a(f"s_mov_b64 exec, 0x3ff")
            rd(2)
            a(f"s_waitcnt lgkmcnt(0)")
        else:
            a(f"s_waitcnt lgkmcnt({2 if it == 0 else 4})")
        for k in range(4): a(f"v_alignbyte_b32 v{Wk+k}, v{S+k+1}, v{S+k}, 2")
        a(f"ds_write_b128 v{vdst}, v[{S}:{S+3}] offset:{it*1024}")
        for k in range(4): a(f"v_mov_b32 v{Wk+4+k}, v{S+k+1}")
        a(f"ds_write_b128 v{vdst}, v[{Wk}:{Wk+3}] offset:{CS + it*1024}")
        for k in range(4): a(f"v_alignbyte_b32 v{Wk+8+k}, v{S+k+2}, v{S+k+1}, 2")
        a(f"ds_write_b128 v{vdst}, v[{Wk+4}:{Wk+7}] offset:{2*CS + it*1024}")
        a(f"ds_write_b128 v{vdst}, v[{Wk+8}:{Wk+11}] offset:{3*CS + it*1024}")
        if it == 2:
            a(f"s_mov_b64 exec, s[{S_EXEC}:{S_EXEC+1}]")

V_CA = 40
V_CP33 = 41
V_CQ = 42
V_CZ = 43
V_CQC = 44
V_CF = 104

def conv_dense(a, extra=None):
    NSET = 4
    D = NSET - 1
    subs = [(d, h, True) for d in range(32) for h in range(2)] + [(32, 0, False), (32, 1, False), (33, 1, False)]
    def qreg(d): return V_CQC + (d % 4)
    def addr_ops(d):
        if d >= 32: return []
        if d == 0: return [f"v_max_i32 v{qreg(0)}, v{V_CQ}, v{V_CZ}"]
        return [f"v_subrev_u32 v{V_CQ}, 80, v{V_CQ}", f"v_max_i32 v{qreg(d)}, v{V_CQ}, v{V_CZ}"]
    def reads(s):
        d, h, both = subs[s]
        st = V_CF + 12*(s % NSET)
        o = 64*(33-d) + 32*h
        L = [f"ds_read_b64 v[{st}:{st+1}], v{V_CA} offset:{o}",
             f"ds_read_b64 v[{st+2}:{st+3}], v{V_CA} offset:{o+8}",
             f"ds_read_b128 v[{st+8}:{st+11}], v{V_CP33} offset:{80*(33-d) + 32*h}"]
        if both: L.append(f"ds_read_b128 v[{st+4}:{st+7}], v{qreg(d)} offset:{32*h}")
        return L
    def mf(s):
        d, h, both = subs[s]
        st = V_CF + 12*(s % NSET)
        a0, a1 = V_ACC_, V_ACC_+16
        c0 = "0" if s == 0 else f"v[{a0}:{a0+15}]"
        c1 = "0" if s == 0 else f"v[{a1}:{a1+15}]"
        L = [f"v_mfma_f32_32x32x16_bf16 v[{a1}:{a1+15}], v[{st}:{st+3}], v[{st+8}:{st+11}], {c1}"]
        if both: L.append(f"v_mfma_f32_32x32x16_bf16 v[{a0}:{a0+15}], v[{st}:{st+3}], v[{st+4}:{st+7}], {c0}")
        return L
    N = len(subs)
    done_addr = set()
    def need_addr(s):
        d = subs[s][0]
        if d not in done_addr:
            done_addr.add(d)
            return addr_ops(d)
        return []
    for s in range(D):
        for ins in need_addr(s): a(ins)
        for ins in reads(s): a(ins)
    for s in range(N):
        rem = sum(len(reads(t)) for t in range(s+1, min(s+D, N)))
        a(f"s_waitcnt lgkmcnt({rem})")
        fill = []
        if s + D < N:
            fill += need_addr(s+D)
            fill += reads(s+D)
        if extra and s in extra: fill += extra[s]
        interleave(a, mf(s), fill)

V_BD = 216
V_UA = 240

def far_setup(a):
    T = 186
    a(f"v_and_b32 v{T}, 31, v{V_LANE}")
    a(f"v_lshrrev_b32 v{T+1}, 5, v{V_LANE}")
    a(f"v_lshlrev_b32 v{T+2}, 3, v{T+1}")
    a(f"v_sub_u32 v{T+2}, v{T+2}, v{T}")
    a(f"v_subrev_u32 v{T+2}, 8, v{T+2}")
    a(f"v_lshlrev_b32 v{T+3}, 4, v{T}")
    a(f"v_lshl_add_u32 v{T+3}, v{T+1}, 3, v{T+3}")
    a(f"s_add_u32 s95, s{S_RB}, {80 - 160 + 1280}")
    a(f"v_mov_b32 v{T+6}, s{S_RB}")
    for par in range(2):
        for ks in range(3):
            c0 = (-40 if par == 0 else -32) + 16*ks
            r = V_UA + 3*par + ks
            a(f"v_add_u32 v{T+4}, {c0 + 64}, v{T+3}")
            a(f"v_lshrrev_b32 v{T+5}, 5, v{T+4}")
            a(f"v_mul_u32_u24 v{T+5}, 80, v{T+5}")
            a(f"v_and_b32 v{T+4}, 31, v{T+4}")
            a(f"v_lshl_add_u32 v{T+5}, v{T+4}, 1, v{T+5}")
            a(f"v_add_u32 v{r+6}, s95, v{T+5}")
            a(f"v_subrev_u32 v{T+5}, 1280, v{r+6}")
            a(f"v_max_i32 v{r}, v{T+5}, v{T+6}")
    a(f"v_mov_b32 v{T+7}, 0x00003f80")
    a(f"v_mov_b32 v{T+8}, 0x3f800000")
    for par in range(2):
        w = 4 - par
        for ks in range(3):
            for dw in range(4):
                r = V_BD + 12*par + 4*ks + dw
                t4, t5 = T+4 + 6*(dw & 1), T+5 + 6*(dw & 1)
                sp = 34 if (dw & 1) == 0 else 90
                a(f"v_add_u32 v{t4}, {16*ks + 2*dw + w}, v{T+2}")
                a(f"v_add_u32 v{t5}, {16*ks + 2*dw + w + 1}, v{T+2}")
                a(f"v_cmp_ge_u32 s[{sp}:{sp+1}], {2*w}, v{t4}")
                a(f"v_cmp_ge_u32 s[{sp+58 if sp == 34 else sp+2}:{sp+59 if sp == 34 else sp+3}], {2*w}, v{t5}")
                s2 = sp+58 if sp == 34 else sp+2
                a(f"s_nop 0")
                a(f"v_cndmask_b32 v{t4}, 0, v{T+7}, s[{sp}:{sp+1}]")
                a(f"v_cndmask_b32 v{t5}, 0, v{T+8}, s[{s2}:{s2+1}]")
                a(f"v_or_b32 v{r}, v{t4}, v{t5}")

def conv_far(a):
    a.c("far part")
    ZA = 144
    FR = 104
    seq = [(t, par, ks) for t in range(2) for par in range(2) for ks in range(3)]
    def rd(j):
        t, par, ks = seq[j]
        r = FR + 4*(j % 8)
        return f"ds_read_b128 v[{r}:{r+3}], v{V_UA + 6*t + 3*par + ks}"
    for j in range(8): a(rd(j))
    for j in range(12):
        t, par, ks = seq[j]
        issued = min(12, 8 + j)
        a(f"s_waitcnt lgkmcnt({issued - j - 1})")
        r = FR + 4*(j % 8)
        d = ZA + 16*(2*t + par)
        c = "0" if ks == 0 else f"v[{d}:{d+15}]"
        b = V_BD + 12*par + 4*ks
        a(f"v_mfma_f32_32x32x16_bf16 v[{d}:{d+15}], v[{r}:{r+3}], v[{b}:{b+3}], {c}")
        if j + 8 < 12: a(rd(j+8))
    ZF = 104
    GF = 144
    for q in range(4):
        for e in range(4):
            a(f"v_cvt_pk_bf16_f32 v{ZF + 4*q + e}, v{ZA + 4*q + e}, v{ZA + 16 + 4*q + e}")
    def grd(ks):
        r = GF + 4*ks
        return [f"ds_read_b64 v[{r}:{r+1}], v{V_GA} offset:{32*ks}", f"ds_read_b64 v[{r+2}:{r+3}], v{V_GA} offset:{32*ks+8}"]
    for ks in range(6):
        for ins in grd(ks): a(ins)
    for q in range(4):
        for e in range(4):
            a(f"v_cvt_pk_bf16_f32 v{ZF + 16 + 4*q + e}, v{ZA + 32 + 4*q + e}, v{ZA + 48 + 4*q + e}")
    a1 = V_ACC_ + 16
    for ks in range(8):
        if ks == 0:
            a(f"s_waitcnt lgkmcnt(10)")
        elif ks == 1:
            for k2 in (6, 7):
                for ins in grd(k2): a(ins)
            a(f"s_waitcnt lgkmcnt(12)")
        else:
            a(f"s_waitcnt lgkmcnt({2*(7-ks)})")
        r = GF + 4*ks
        a(f"v_mfma_f32_32x32x16_bf16 v[{a1}:{a1+15}], v[{ZF+4*ks}:{ZF+4*ks+3}], v[{r}:{r+3}], v[{a1}:{a1+15}]")

V_CZ2 = 48
V_GA = 51

def u_stage(a, UREG):
    a(f"s_waitcnt vmcnt(0)")
    stamp(a, 5)
    a(f"s_and_b32 s35, s{S_WAVE}, 3")
    a(f"v_lshrrev_b32 v5, 5, v{V_LANE}")
    a(f"s_lshl_b32 s33, s35, 4")
    a(f"v_add_u32 v5, s33, v5")
    a(f"v_mul_u32_u24 v5, 80, v5")
    a(f"v_and_b32 v3, 31, v{V_LANE}")
    a(f"v_lshl_add_u32 v5, v3, 1, v5")
    a(f"v_add_u32 v5, {U_OFF}, v5")
    for i in range(8):
        a(f"s_lshl_b32 s34, s{S_IDX}, 1")
        a(f"s_add_u32 s34, s34, {i}")
        a(f"s_and_b32 s34, s34, 7")
        a(f"s_mul_i32 s34, s34, 160")
        a(f"v_add_u32 v6, s34, v5")
        a(f"v_add_u32 v7, {3*RSZ}, v6")
        a(f"v_add_u32 v8, {6*RSZ}, v6")
        for ch in range(8):
            base = [6, 7, 8][ch // 3]
            off = (ch % 3)*RSZ
            op = "ds_write_b16" if ch % 2 == 0 else "ds_write_b16_d16_hi"
            a(f"{op} v{base}, v{UREG[i] + ch//2} offset:{off}")
    a(f"v_mov_b32 v8, 0\nv_mov_b32 v9, 0\nv_mov_b32 v10, 0\nv_mov_b32 v11, 0")
    a(f"s_mul_i32 s34, s35, {RSZ}")
    a(f"v_lshlrev_b32 v5, 4, v{V_LANE}")
    a(f"v_add_u32 v5, s34, v5")
    a(f"v_add_u32 v6, {4*RSZ}, v5")
    a(f"s_mov_b64 s[{S_EXEC}:{S_EXEC+1}], exec")
    a(f"s_mov_b64 exec, 31")
    a(f"ds_write_b128 v5, v[8:11]")
    a(f"ds_write_b128 v6, v[8:11]")
    a("s_waitcnt lgkmcnt(0)")
    a(f"s_mov_b64 exec, 1")
    a(f"v_mov_b32 v12, {CNT_OFF}")
    a(f"v_mov_b32 v13, 1")
    a(f"ds_add_u32 v12, v13")
    a(f"s_mov_b64 exec, s[{S_EXEC}:{S_EXEC+1}]")

SRD_T0, SRD_T1 = 12, 16
S_TOUCH = 94
MAP45 = {"v": True}
def touch_setup(a, map45):
    make_srd(a, SRD_T0, P_C2RE, 819200)
    make_srd(a, SRD_T1, P_C2IM, 819200)
    a(f"s_cmp_lt_u32 s{S_WAVE}, 4")
    a(f"s_cselect_b32 s{SRD_T0+2}, 819200, 0")
    a(f"s_cselect_b32 s{SRD_T1+2}, 819200, 0")
    a(f"v_lshrrev_b32 v14, 3, v{V_LANE}")
    a(f"v_mul_u32_u24 v14, 1280, v14")
    a(f"v_and_b32 v15, 7, v{V_LANE}")
    a(f"v_lshl_add_u32 v39, v15, 6, v14")
    a(f"s_mul_hi_u32 s35, s{S_IDX}, {(2**32 + 9)//10}")
    a(f"s_mul_i32 s34, s35, 10")
    a(f"s_sub_u32 s34, s{S_IDX}, s34")
    if MAP45["v"]:
        a(f"s_and_b32 s35, s35, 1")
        a(f"s_mul_i32 s35, s35, 40")
        a(f"s_lshl_b32 s34, s34, 2")
        a(f"s_add_u32 s35, s35, s34")
        a(f"s_and_b32 s34, s{S_WAVE}, 3")
        a(f"s_add_u32 s35, s35, s34")
        a(f"s_mul_i32 s{S_TOUCH}, s35, {8*1280}")
    else:
        a(f"s_lshl_b32 s34, s34, 2")
        a(f"s_and_b32 s35, s{S_WAVE}, 3")
        a(f"s_add_u32 s35, s35, s34")
        a(f"s_mul_i32 s{S_TOUCH}, s35, {16*1280}")
        a(f"s_add_u32 s98, s{S_TOUCH}, {8*1280}")
def touch(k):
    srd = SRD_T0 if (k & 1) == 0 else SRD_T1
    off = 512*(k >> 1)
    L = [f"buffer_load_dword v38, v39, s[{srd}:{srd+3}], s{S_TOUCH} offen offset:{off}"]
    if not MAP45["v"]:
        L.append(f"buffer_load_dword v38, v39, s[{srd}:{srd+3}], s98 offen offset:{off}")
    return L

def gen_conv(a, END, opts):
    MAP45["v"] = opts.get("map45", True)
    a.c("================= CONV role v2 =================")
    a("s_mul_i32 s30, s30, 10")
    a("s_add_u32 s30, s30, s31")
    a(f"s_sub_u32 s{S_IDX}, s30, 20")
    a(f"s_lshl_b32 s{S_D}, s{S_IDX}, 3")
    a(f"s_add_u32 s{S_D}, s{S_D}, s{S_WAVE}")
    a(f"s_mul_i32 s{S_RB}, s{S_WAVE}, {RSZ}")
    T = V_T_
    a(f"v_lshlrev_b32 v5, 2, v{V_LANE}")
    a(f"s_add_u32 s33, s{S_RB}, {CNT_OFF}")
    a(f"v_add_u32 v5, s33, v5")
    a(f"v_mov_b32 v3, 0")
    a(f"s_mov_b64 exec, 15")
    a(f"ds_write_b32 v5, v3")
    a(f"s_mov_b64 exec, -1")
    a(f"s_waitcnt lgkmcnt(0)")
    a("s_barrier")
    coop = opts.get("coop")
    V_PRMB = 40
    a(f"v_lshlrev_b32 v2, 2, v{V_LANE}")
    if coop:
        a(f"s_and_b32 s35, s{S_D}, 0xfffffffb")
    else:
        a(f"s_mov_b32 s35, s{S_D}")
    a(f"s_lshl_b32 s33, s35, 8")
    for k, P in enumerate([P_LOGA, P_AIM, P_CRE, P_CIM]):
        make_srd(a, SRD_A, P, 163840)
        a(f"buffer_load_dword v{V_PRM+k}, v2, s[{SRD_A}:{SRD_A+3}], s33 offen")
    a(f"s_lshl_b32 s33, s35, 1")
    a(f"v_mov_b32 v3, 0")
    make_srd(a, SRD_A, P_LOGDT, 1280)
    a(f"buffer_load_ushort v{V_PRM+4}, v3, s[{SRD_A}:{SRD_A+3}], s33 offen")
    a(f"s_lshl_b32 s33, s{S_D}, 1")
    make_srd(a, SRD_B, P_DSKA, 1280)
    a(f"buffer_load_ushort v{V_PRM+5}, v3, s[{SRD_B}:{SRD_B+3}], s33 offen")
    if coop:
        labb = a.label("PB")
        a(f"s_cmp_lt_u32 s{S_WAVE}, 4")
        a(f"s_cbranch_scc1 {labb}")
        a(f"buffer_load_ushort v{V_PRMB+4}, v3, s[{SRD_A}:{SRD_A+3}], s33 offen")
        a(f"s_lshl_b32 s33, s{S_D}, 8")
        for k, P in enumerate([P_LOGA, P_AIM, P_CRE, P_CIM]):
            make_srd(a, SRD_A, P, 163840)
            a(f"buffer_load_dword v{V_PRMB+k}, v2, s[{SRD_A}:{SRD_A+3}], s33 offen")
        a(f"{labb}:")
    UREG = [16, 20, 24, 28, 194, 198, 202, 206]
    a(f"v_mul_u32_u24 v15, 1280, v{V_LANE}")
    a(f"s_and_b32 s35, s{S_WAVE}, 3")
    a(f"s_mul_i32 s33, s35, {512*1280}")
    a(f"s_lshl_b32 s34, s{S_IDX}, 4")
    a(f"s_add_u32 s33, s33, s34")
    uloads = []
    for i in range(8):
        a(f"s_lshl_b32 s34, s{S_IDX}, 1")
        a(f"s_add_u32 s34, s34, {i}")
        a(f"s_and_b32 s34, s34, 7")
        a(f"s_mul_i32 s34, s34, {64*1280}")
        a(f"s_add_u32 s{76+i}, s34, s33")
        uloads.append([f"buffer_load_dwordx4 v[{UREG[i]}:{UREG[i]+3}], v15, s[{SRD_X}:{SRD_X+3}], s{76+i} offen"])
    if opts.get("uimm") or opts.get("uimm2") or opts.get("kofl") or coop:
        lab = a.label("UIMM")
        a(f"s_cmp_lt_u32 s{S_WAVE}, 4")
        a(f"s_cbranch_scc1 {lab}")
        for l in uloads:
            for ins in l: a(ins)
        a(f"{lab}:")
    if opts.get("prio", False):
        lab = a.label("PRIO")
        a(f"s_cmp_ge_u32 s{S_WAVE}, 4")
        a(f"s_cbranch_scc1 {lab}")
        a("s_setprio 2")
        a(f"{lab}:")
    a(f"v_lshlrev_b32 v2, 2, v{V_LANE}")
    a(f"s_add_u32 s33, s{S_RB}, {T_OFF}")
    a(f"s_mov_b32 m0, s33")
    a(f"v_and_b32 v5, 31, v{V_LANE}")
    a(f"v_lshrrev_b32 v6, 5, v{V_LANE}")
    a(f"v_lshlrev_b32 v6, 4, v6")
    a(f"v_add_u32 v6, s33, v6")
    a(f"v_mov_b32 v7, 26")
    a(f"v_cmp_eq_u32 vcc, 28, v5")
    lo = HOLES[0] | HOLES[1] << 8 | HOLES[2] << 16 | HOLES[3] << 24
    hi = HOLES[4] | HOLES[5] << 8 | HOLES[6] << 16 | HOLES[7] << 24
    a(f"v_mov_b32 v9, {hex(lo)}")
    a("s_nop 0")
    a(f"v_cndmask_b32 v7, v5, v7, vcc")
    a(f"v_mov_b32 v10, {hex(hi)}")
    a(f"v_mul_u32_u24 v7, 272, v7")
    a(f"v_add_u32 v{V_AA_}, v7, v6")
    a(f"v_and_b32 v8, 7, v5")
    a(f"v_or_b32 v8, 0x0c0c0c00, v8")
    a(f"v_perm_b32 v8, v10, v9, v8")
    a(f"v_add_u32 v7, 32, v5")
    a(f"v_cmp_lt_u32 vcc, 23, v5")
    a("s_nop 1")
    a(f"v_cndmask_b32 v7, v7, v8, vcc")
    a(f"v_mul_u32_u24 v7, 272, v7")
    a(f"v_add_u32 v{V_AB_}, v7, v6")
    stamp(a, 1)
    if opts.get("uimm") or opts.get("uimm2") or opts.get("kofl") or coop:
        labw = a.label("PW"); labw2 = a.label("PW2")
        a(f"s_cmp_lt_u32 s{S_WAVE}, 4")
        a(f"s_cbranch_scc1 {labw}")
        a(f"s_waitcnt vmcnt({13 if coop else 8})")
        a(f"s_branch {labw2}")
        a(f"{labw}:")
        a("s_waitcnt vmcnt(0)")
        a(f"{labw2}:")
    else:
        a("s_waitcnt vmcnt(0)")
    stamp(a, 2)
    a(f"v_lshlrev_b32 v{V_DT}, 16, v{V_PRM+4}")
    exp_accurate(a, V_DT, V_DT, T, T+1, T+2)
    round_bf16(a, V_DT, V_DT)
    a(f"v_lshlrev_b32 v{V_DSK}, 16, v{V_PRM+5}")
    ct = opts.get("ctouch", False)
    if ct: touch_setup(a)
    if opts.get("nou"): uloads = [[], [], [], []]
    if opts.get("uearly"):
        for l in uloads:
            for ins in l: a(ins)
        uloads = [[], [], [], []]
    lab_yk = a.label("YK"); lab_kd = a.label("KD")
    a(f"s_cmp_ge_u32 s{S_WAVE}, 4")
    a(f"s_cbranch_scc1 {lab_yk}")
    et = opts.get("etouch", False)
    if et: touch_setup(a, True)
    kgen_pass(a, 0)
    stamp(a, 3)
    if coop:
        if et:
            for ins in touch(0) + touch(1): a(ins)
        a(f"s_add_u32 s33, s{S_RB}, {4*RSZ}")
        a(f"s_add_u32 s34, s33, {CNT_OFF}")
        a(f"v_mov_b32 v12, s34")
        lp = a.label("PSP"); ok = a.label("PSOK")
        a(f"s_mov_b32 s{S_CNT}, 2000000")
        a(f"{lp}:")
        a(f"ds_read_b32 v13, v12")
        a(f"s_waitcnt lgkmcnt(0)")
        a(f"v_readfirstlane_b32 s{S_T3}, v13")
        a(f"s_nop 0")
        a(f"s_cmp_ge_u32 s{S_T3}, 1")
        a(f"s_cbranch_scc1 {ok}")
        a(f"s_sleep 1")
        a(f"s_sub_u32 s{S_CNT}, s{S_CNT}, 1")
        a(f"s_cbranch_scc0 {lp}")
        a(f"{ok}:")
        a(f"v_lshlrev_b32 v5, 2, v{V_LANE}")
        a(f"s_add_u32 s33, s33, {T_OFF}")
        a(f"v_add_u32 v5, s33, v5")
        for r in range(15):
            a(f"ds_read_b32 v{104+r}, v5 offset:{r*272}")
        a(f"s_waitcnt lgkmcnt(0)")
        a(f"v_mov_b32 v13, 1")
        a(f"s_mov_b64 exec, 1")
        a(f"ds_add_u32 v12, v13 offset:4")
        a(f"s_mov_b64 exec, -1")
        for r in range(15):
            a(f"v_add_f32 v{V_ACC_+r}, v{V_ACC_+r}, v{104+r}")
    else:
        kgen_pass(a, 1, [touch(0), touch(1)] if et else None, every=opts.get("etev", 14))
    a(f"s_branch {lab_kd}")
    a(f"{lab_yk}:")
    if et: touch_setup(a, True)
    if coop:
        kgen_pass(a, "one")
        stamp(a, 13)
        a("s_nop 7\ns_nop 7")
        for r in range(15):
            a(f"ds_write_addtid_b32 v{V_ACC_+r} offset:{r*272}")
        a(f"s_add_u32 s34, s{S_RB}, {CNT_OFF}")
        a(f"v_mov_b32 v12, s34")
        a(f"v_mov_b32 v13, 1")
        a(f"s_waitcnt lgkmcnt(0)")
        a(f"s_mov_b64 exec, 1")
        a(f"ds_add_u32 v12, v13")
        a(f"s_mov_b64 exec, -1")
        a("s_setprio 3")
        u_stage(a, UREG)
        a(f"s_setprio {opts.get('yprio0', 0)}")
        stamp(a, 14)
        a(f"s_add_u32 s34, s{S_RB}, {CNT_OFF + 4}")
        a(f"v_mov_b32 v12, s34")
        lp = a.label("ASP"); ok = a.label("ASOK")
        a(f"s_mov_b32 s{S_CNT}, 2000000")
        a(f"{lp}:")
        a(f"ds_read_b32 v13, v12")
        a(f"s_waitcnt lgkmcnt(0)")
        a(f"v_readfirstlane_b32 s{S_T3}, v13")
        a(f"s_nop 0")
        a(f"s_cmp_ge_u32 s{S_T3}, 1")
        a(f"s_cbranch_scc1 {ok}")
        a(f"s_sleep 1")
        a(f"s_sub_u32 s{S_CNT}, s{S_CNT}, 1")
        a(f"s_cbranch_scc0 {lp}")
        a(f"{ok}:")
        for k in range(4): a(f"v_mov_b32 v{V_PRM+k}, v{V_PRMB+k}")
        a(f"v_lshlrev_b32 v{V_DT}, 16, v{V_PRMB+4}")
        exp_accurate(a, V_DT, V_DT, T, T+1, T+2)
        round_bf16(a, V_DT, V_DT)
        kgen_pass(a, 0, None, pk=False)
        stamp(a, 3)
    elif opts.get("kofl"):
        a("s_setprio 3")
        u_stage(a, UREG)
        a("s_setprio 0")
        stamp(a, 3)
        a("v_mov_b32 v5, 0")
        get_nonce(a, END, 5, 2)
        a(f"s_lshl_b32 s33, s{S_IDX}, 2")
        a(f"s_and_b32 s34, s{S_WAVE}, 3")
        a(f"s_add_u32 s33, s33, s34")
        a(f"s_lshl_b32 s34, s33, 4")
        a(f"s_add_u32 s34, s34, {WS_KFLG}")
        poll_flags(a, END, 34, 2, 6, 8)
        a(f"s_lshl_b32 s33, s33, 13")
        a(f"s_add_u32 s33, s33, {WS_KP}")
        a(f"v_lshlrev_b32 v6, 4, v{V_LANE}")
        for p in range(2):
            for j in range(4):
                r = (V_ACC_ if p == 0 else 104) + 4*j
                a(f"s_add_u32 s34, s33, {p*4096}") if j == 0 else None
                a(f"buffer_load_dwordx4 v[{r}:{r+3}], v6, s[{SRD_WS}:{SRD_WS+3}], s34 offen offset:{j*1024} sc1")
        a("s_waitcnt vmcnt(0)")
        for k in range(16):
            a(f"v_add_f32 v{V_ACC_+k}, v{V_ACC_+k}, v{104+k}")
    elif opts.get("uimm2"):
        kgen_pass(a, 0)
        stamp(a, 3)
        a("s_setprio 3")
        u_stage(a, UREG)
    elif opts.get("uimm"):
        a("s_setprio 3")
        u_stage(a, UREG)
        a(f"s_setprio {opts.get('yprio0', 0)}")
        kgen_pass(a, 0, None, pk=False)
        stamp(a, 3)
    else:
        kgen_pass(a, 0, list(uloads), every=opts.get("uevy", 3))
        stamp(a, 3)
        a("s_setprio 3")
        u_stage(a, UREG)
    if not opts.get("kofl"):
        a(f"s_setprio {opts.get('yprio', 1)}")
        kgen_pass(a, 1, None, pk=False)
    a(f"{lab_kd}:")
    stamp(a, 4)
    if ct:
        for ins in touch(6) + touch(7): a(ins)
    a(f"v_mov_b32 v8, 0\nv_mov_b32 v9, 0\nv_mov_b32 v10, 0\nv_mov_b32 v11, 0")
    a(f"s_mov_b64 s[{S_EXEC}:{S_EXEC+1}], exec")
    if et:
        for ins in touch(2): a(ins)
    a.c("expand K -> R, G")
    a("s_nop 7")
    A = V_ACC_
    a(f"v_and_b32 v5, 31, v{V_LANE}")
    a(f"v_lshrrev_b32 v6, 5, v{V_LANE}")
    a(f"s_add_u32 s33, s{S_RB}, {R_OFF}")
    a(f"v_lshlrev_b32 v7, 4, v{V_LANE}")
    a(f"v_add_u32 v7, s33, v7")
    a(f"s_mov_b64 exec, 0x7f")
    a(f"ds_write_b128 v7, v[8:11]")
    a(f"s_mov_b64 exec, 15")
    a(f"ds_write_b128 v7, v[8:11] offset:2176")
    a(f"s_mov_b64 exec, 0xffff")
    a(f"ds_write_b128 v7, v[8:11] offset:{2240 + 256}")
    a(f"s_mov_b64 exec, -1")
    a(f"v_lshlrev_b32 v12, 4, v5")
    a(f"v_lshl_add_u32 v12, v6, 3, v12")
    a(f"v_sub_u32 v12, 1656, v12")
    a(f"v_add_u32 v12, s33, v12")
    a(f"v_cvt_pk_bf16_f32 v200, v{A+3}, v{A+2}")
    a(f"v_cvt_pk_bf16_f32 v201, v{A+1}, v{A+0}")
    a(f"ds_write_b64 v12, v[200:201] offset:512")
    a(f"v_cvt_pk_bf16_f32 v202, v{A+14}, v{A+13}")
    a(f"v_cvt_pk_bf16_f32 v203, v{A+12}, v{A+12}")
    a(f"ds_write_b64 v12, v[202:203]")
    a(f"v_lshlrev_b32 v12, 4, v5")
    a(f"v_lshl_add_u32 v12, v6, 9, v12")
    a(f"v_sub_u32 v12, 1136, v12")
    a(f"v_add_u32 v12, s33, v12")
    a(f"v_cvt_pk_bf16_f32 v206, v{A+10}, v{A+10}")
    a(f"v_cvt_pk_bf16_f32 v207, v{A+9}, v{A+9}")
    a(f"v_cvt_pk_bf16_f32 v208, v{A+9}, v{A+8}")
    a(f"v_cvt_pk_bf16_f32 v209, v{A+8}, v{A+8}")
    a(f"ds_write_b128 v12, v[206:209]")
    a(f"v_cvt_pk_bf16_f32 v213, v{A+4}, v{A+4}")
    a(f"v_mov_b32 v210, 0")
    a(f"v_and_b32 v211, 0xffff0000, v213")
    a(f"v_mov_b32 v212, v213")
    a(f"v_mov_b32 v13, s33")
    a(f"s_mov_b64 exec, 1")
    a(f"ds_write_b128 v13, v[210:213] offset:112")
    a(f"s_mov_b64 exec, -1")
    a(f"v_lshlrev_b32 v12, 1, v5")
    a(f"v_lshl_add_u32 v12, v6, 7, v12")
    a(f"v_sub_u32 v12, {256 - 64}, v12")
    a(f"v_add_u32 v12, s33, v12")
    a(f"v_cvt_pk_bf16_f32 v200, v{A+4}, v{A+5}")
    a(f"ds_write_b16 v12, v200 offset:{2240 + 64}")
    a(f"ds_write_b16_d16_hi v12, v200 offset:{2240}")
    a(f"v_cvt_pk_bf16_f32 v201, v{A+6}, v{A+6}")
    a(f"v_mov_b32 v202, 0")
    a(f"s_mov_b64 exec, 1")
    a(f"ds_write_b16 v13, v202 offset:{2240 + 256}")
    a(f"ds_write_b16 v13, v201 offset:{2240}")
    a(f"s_mov_b64 exec, -1")
    a("s_waitcnt lgkmcnt(0)")
    a(f"v_lshlrev_b32 v6, 4, v{V_LANE}")
    a(f"s_add_u32 s34, s{S_RB}, {W_OFF}")
    a(f"v_add_u32 v6, s34, v6")
    stamp(a, 6)
    if et:
        for ins in touch(3): a(ins)
    build_W(a, 7, 6)
    if et:
        for ins in touch(4): a(ins)
    a(f"s_add_u32 s34, s{S_RB}, {W_OFF}")
    a(f"v_and_b32 v9, 31, v{V_LANE}")
    a(f"v_lshrrev_b32 v8, 5, v{V_LANE}")
    a(f"v_sub_u32 v10, 3, v9")
    a(f"v_and_b32 v10, 3, v10")
    a(f"v_lshlrev_b32 v11, 3, v8")
    a(f"v_sub_u32 v11, v11, v9")
    a(f"v_sub_u32 v11, v11, v10")
    a(f"v_lshlrev_b32 v11, 1, v11")
    a(f"v_add_u32 v11, {2*1071 - 64*33}, v11")
    a(f"v_mul_u32_u24 v10, {CS}, v10")
    a(f"v_add_u32 v11, v11, v10")
    a(f"v_add_u32 v{V_CA}, s34, v11")
    a(f"v_lshlrev_b32 v11, 4, v8")
    a(f"v_add_u32 v{V_CZ}, s{S_RB}, v11")
    a(f"v_mul_u32_u24 v10, 80, v9")
    a(f"v_add_u32 v{V_CP33}, v10, v{V_CZ}")
    a(f"v_add_u32 v{V_CQ}, 80, v{V_CP33}")
    a(f"v_mov_b32 v{V_CZ2}, s{S_RB}")
    a(f"v_mov_b32 v54, v{V_DSK}")
    a(f"v_lshlrev_b32 v10, 3, v9")
    a(f"v_lshlrev_b32 v11, 4, v8")
    a(f"v_sub_u32 v11, v11, v10")
    a(f"v_add_u32 v11, {248 + G_OFF}, v11")
    a(f"v_add_u32 v{V_GA}, s{S_RB}, v11")
    a("v_mov_b32 v5, 0")
    get_nonce(a, END, 5, 2)
    a(f"v_mov_b32 v12, {CNT_OFF}")
    lp = a.label("USP"); ok = a.label("USOK")
    a(f"s_mov_b32 s{S_CNT}, 2000000")
    a(f"{lp}:")
    a(f"ds_read_b32 v13, v12")
    a(f"s_waitcnt lgkmcnt(0)")
    a(f"v_readfirstlane_b32 s{S_T3}, v13")
    a(f"s_nop 0")
    a(f"s_cmp_ge_u32 s{S_T3}, 4")
    a(f"s_cbranch_scc1 {ok}")
    a(f"s_sleep 2")
    a(f"s_sub_u32 s{S_CNT}, s{S_CNT}, 1")
    a(f"s_cbranch_scc0 {lp}")
    a(f"{ok}:")
    stamp(a, 7)
    a("s_setprio 0")
    tmp = Asm(); far_setup(tmp)
    fl = [l.strip() for l in tmp.lines]
    extra = {}
    per = (len(fl) + 59) // 60
    k = 0
    for sidx in range(2, 64):
        extra[sidx] = fl[k:k+per]; k += per
    assert k >= len(fl)
    if et:
        extra[1] = touch(5) + extra.get(1, [])
    if opts.get("dtouch", False) and not et:
        touch_setup(a, True)
        for kk in range(6):
            sidx = 1 + opts.get("dtstep", 6)*kk
            extra.setdefault(sidx, [])
            extra[sidx] = touch(kk) + extra[sidx]
    conv_dense(a, extra)
    stamp(a, 8)
    conv_far(a)
    stamp(a, 10)
    a.c("conv epilogue")
    a(f"v_and_b32 v7, 31, v{V_LANE}")
    a(f"v_lshrrev_b32 v8, 5, v{V_LANE}")
    a(f"v_mul_u32_u24 v9, 80, v7")
    a(f"v_lshl_add_u32 v9, v8, 3, v9")
    a(f"v_add_u32 v9, s{S_RB}, v9")
    UV = 104
    for t in range(2):
        for q in range(4):
            r = UV + 2*(4*t+q)
            a(f"ds_read_b64 v[{r}:{r+1}], v9 offset:{80 + 2560*t + 16*q}")
    a(f"s_add_u32 s34, s{S_RB}, {W_OFF}")
    a(f"v_lshlrev_b32 v10, 6, v7")
    a(f"v_lshl_add_u32 v10, v8, 3, v10")
    a(f"v_add_u32 v10, s34, v10")
    a(f"v_lshlrev_b32 v6, 4, v{V_LANE}")
    a(f"v_add_u32 v6, s34, v6")
    a("s_waitcnt lgkmcnt(0)")
    a("s_nop 7")
    Wk = 124
    for t in range(2):
        for q in range(4):
            for h in range(2):
                uv = UV + 2*(4*t+q) + h
                y0 = V_ACC_ + 16*t + 4*q + 2*h
                o = Wk + 12 + 2*((4*t+q) & 1) + h
                w = Wk + 6*h
                a(f"v_lshlrev_b32 v{w+1}, 16, v{uv}")
                a(f"v_and_b32 v{w+2}, 0xffff0000, v{uv}")
                a(f"v_cvt_pk_bf16_f32 v{w}, v{y0}, v{y0+1}")
                a(f"v_mul_f32 v{w+1}, v{w+1}, v54")
                a(f"v_mul_f32 v{w+2}, v{w+2}, v54")
                a(f"v_lshlrev_b32 v{w+3}, 16, v{w}")
                a(f"v_cvt_pk_bf16_f32 v{w+1}, v{w+1}, v{w+2}")
                a(f"v_and_b32 v{w}, 0xffff0000, v{w}")
                a(f"v_lshlrev_b32 v{w+4}, 16, v{w+1}")
                a(f"v_and_b32 v{w+1}, 0xffff0000, v{w+1}")
                a(f"v_add_f32 v{w+3}, v{w+3}, v{w+4}")
                a(f"v_add_f32 v{w}, v{w}, v{w+1}")
                a(f"v_cvt_pk_bf16_f32 v{o}, v{w+3}, v{w}")
            o = Wk + 12 + 2*((4*t+q) & 1)
            a(f"ds_write_b64 v10, v[{o}:{o+1}] offset:{2048*t + 16*q}")
    a("s_waitcnt lgkmcnt(0)")
    for j in range(4):
        a(f"ds_read_b128 v[{104+4*j}:{107+4*j}], v6 offset:{1024*j}")
    a(f"v_lshlrev_b32 v7, 4, v{V_LANE}")
    a(f"s_lshl_b32 s33, s{S_D}, 12")
    a(f"s_add_u32 s33, s33, {WS_A}")
    for j in range(4):
        a(f"s_waitcnt lgkmcnt({3-j})")
        a(f"buffer_store_dwordx4 v[{104+4*j}:{107+4*j}], v7, s[{SRD_WS}:{SRD_WS+3}], s33 offen offset:{1024*j} sc1")
    stamp(a, 11)
    a("v_mov_b32 v5, 0")
    a("s_waitcnt vmcnt(0)")
    a("s_setprio 0")
    a("s_barrier")
    lab = a.label("CNF")
    a(f"s_cmp_lg_u32 s{S_WAVE}, 0")
    a(f"s_cbranch_scc1 {lab}")
    a(f"s_lshr_b32 s33, s{S_IDX}, 3")
    a(f"s_lshl_b32 s33, s33, 7")
    a(f"s_and_b32 s34, s{S_IDX}, 7")
    a(f"s_lshl_b32 s34, s34, 3")
    a(f"s_add_u32 s33, s33, s34")
    a(f"s_add_u32 s33, s33, {WS_AFLG}")
    a(f"v_mov_b32 v6, s{S_NONCE}")
    a(f"v_mov_b32 v7, s{S_NONCE+1}")
    a("s_mov_b64 exec, 1")
    a(f"buffer_store_dwordx2 v[6:7], v5, s[{SRD_WS}:{SRD_WS+3}], s33 offen sc1")
    a("s_mov_b64 exec, -1")
    a(f"{lab}:")
    stamp(a, 12)
    prof_end(a, opts.get("cprofwave", 0))
```

```python
from common import *
from g1 import (S_C, S_S, S_WM, S_WN, S_SX, S_SB, S_KC, S_T0, S_T1, S_M0X, S_CNT, S_MISM, S_T2, S_T3, S_EXEC,
                V_LANE, V_VOFF, V_AA, V_BA, V_FR, V_ACC, V_ACC2, V_LR, V_LI, V_C2, V_L32, V_L128, V_ER, V_EI, V_HR, V_HI,
                V_NON, V_T, V_ZERO, V_L16, V_EOFF, acc, acc2, cmul, cfma, g1_reads, g1_mfmas, interleave)
from g2 import poll_flags

HSLOT = 17408
NHS = 6
CBASE = NHS * HSLOT
NCS = 5
NREG = 9
L_EX = CBASE + NCS*8192
L_G = L_EX + 2048
L_CNT = L_G + 1024
CNT_EX, CNT_H, CNT_X, CNT_F, CNT_E, CNT_C, CNT_R, CNT_HX0, CNT_HX1, CNT_P = [L_CNT + 4*i for i in range(10)]
L_HX = L_CNT + 64
L_CST = 0
L_XT = NREG * 8192
L_AT = 2 * HSLOT
V_CREG = 96
S_LW = 83
S_DONE = 90
S_KY, S_KB = 98, 99
S_FAST = 100
V_XC = 222

def lds_spin(a, vaddr, vtmp, target, END, sleep=False):
    lp = a.label("SPIN"); ok = a.label("SPOK")
    a(f"s_mov_b32 s{S_CNT}, 2000000")
    a(f"{lp}:")
    a(f"ds_read_b32 v{vtmp}, v{vaddr}")
    a(f"s_waitcnt lgkmcnt(0)")
    a(f"v_readfirstlane_b32 s{S_T3}, v{vtmp}")
    a(f"s_nop 0")
    a(f"s_cmp_ge_u32 s{S_T3}, {target}")
    a(f"s_cbranch_scc1 {ok}")
    a(f"s_sleep 1")
    a(f"s_sub_u32 s{S_CNT}, s{S_CNT}, 1")
    a(f"s_cbranch_scc0 {lp}")
    a(f"{ok}:")

def lds_inc(a, vaddr, vone):
    a(f"s_mov_b64 s[{S_EXEC}:{S_EXEC+1}], exec")
    a(f"s_mov_b64 exec, 1")
    a(f"ds_add_u32 v{vaddr}, v{vone}")
    a(f"s_mov_b64 exec, s[{S_EXEC}:{S_EXEC+1}]")

def ld_g1_dma(a, it):
    slot = it % 4
    a(f"s_lshl_b32 s{S_T0}, s{S_KC}, 7")
    a(f"s_add_u32 s{S_T1}, s{S_T0}, s{S_SB}")
    a(f"s_add_u32 s{S_T0}, s{S_T0}, s{S_SX}")
    for jj in range(4):
        a(f"s_add_u32 m0, s{S_M0X}, {slot*16384 + jj*1024}")
        a(f"s_nop 0")
        a(f"buffer_load_dwordx4 v{V_VOFF+jj}, s[{SRD_X}:{SRD_X+3}], s{S_T0} offen lds")
        a(f"s_add_u32 m0, s{S_M0X}, {65536 + slot*16384 + jj*1024}")
        a(f"s_nop 0")
        a(f"buffer_load_dwordx4 v{V_VOFF+jj}, s[{SRD_A}:{SRD_A+3}], s{S_T1} offen lds")
    a(f"s_add_u32 s{S_KC}, s{S_KC}, 1")
    a(f"s_cmp_eq_u32 s{S_KC}, 10")
    a(f"s_cselect_b32 s{S_KC}, 0, s{S_KC}")

S_HB, S_CB, S_SP, S_SPC = 76, 77, 78, 91
S_M0H, S_M0C = 81, 92

def ld_c_chunk(a, ch):
    plane = ch & 1
    dst = L_CST + ch*8192 if ch < NREG else CBASE + ((ch - NREG) % NCS)*8192
    srd = SRD_C if plane else SRD_B
    a(f"s_lshl_b32 s{S_T1}, s{S_SPC}, 7")
    a(f"s_add_u32 s{S_T1}, s{S_T1}, s{S_CB}")
    for jj in range(2):
        a(f"s_add_u32 m0, s{S_M0C}, {dst + jj*1024}")
        a(f"s_nop 0")
        a(f"buffer_load_dwordx4 v{V_VOFF+jj}, s[{srd}:{srd+3}], s{S_T1} offen lds")
    if plane:
        a(f"s_add_u32 s{S_SPC}, s{S_SPC}, 1")
        a(f"s_cmp_eq_u32 s{S_SPC}, 10")
        a(f"s_cselect_b32 s{S_SPC}, 0, s{S_SPC}")

HSC = {"v": "sc1"}
def ld_h_stage(a, it):
    slot = it % NHS
    plane = it & 1
    a(f"s_lshl_b32 s{S_T0}, s{S_SP}, 14")
    a(f"s_add_u32 s{S_T0}, s{S_T0}, s{S_HB}")
    if plane: a(f"s_add_u32 s{S_T0}, s{S_T0}, {10*16384}")
    for jj in range(4):
        a(f"s_add_u32 m0, s{S_M0H}, {slot*HSLOT + jj*64}")
        a(f"s_nop 0")
        a(f"buffer_load_dwordx4 v{V_L16}, s[{SRD_WS}:{SRD_WS+3}], s{S_T0} offen offset:{jj*1024} {HSC['v']} lds")
    if plane:
        a(f"s_add_u32 s{S_SP}, s{S_SP}, 1")
        a(f"s_cmp_eq_u32 s{S_SP}, 10")
        a(f"s_cselect_b32 s{S_SP}, 0, s{S_SP}")

def ld_a_tile(a, T):
    a(f"v_lshrrev_b32 v{T}, 4, v{V_LANE}")
    a(f"v_and_b32 v{T+1}, 15, v{V_LANE}")
    a(f"s_lshl_b32 s34, s{S_S}, 6")
    a(f"s_lshl_b32 s35, s{S_LW}, 4")
    a(f"s_add_u32 s34, s34, s35")
    a(f"s_lshl_b32 s34, s34, 12")
    a(f"s_lshl_b32 s35, s{S_C}, 8")
    a(f"s_add_u32 s34, s34, s35")
    a(f"s_add_u32 s34, s34, {WS_A}")
    a(f"s_lshl_b32 s{S_T2}, s{S_LW}, 12")
    a(f"s_add_u32 s{S_T2}, s{S_T2}, {L_AT}")
    for jj in range(4):
        a(f"v_add_u32 v{T+2}, {4*jj}, v{T}")
        a(f"v_xor_b32 v{T+2}, v{T+2}, v{T+1}")
        a(f"v_lshlrev_b32 v{T+2}, 4, v{T+2}")
        a(f"v_lshl_add_u32 v{T+3+jj}, v{T}, 12, v{T+2}")
    for jj in range(4):
        a(f"s_add_u32 m0, s{S_T2}, {jj*1024}")
        a(f"s_add_u32 s35, s34, {jj*4*4096}")
        a(f"buffer_load_dwordx4 v{T+3+jj}, s[{SRD_WS}:{SRD_WS+3}], s35 offen sc1 lds")
    a(f"s_lshl_b32 s34, s{S_C}, 10")
    a(f"s_add_u32 s34, s34, {WS_G}")
    a(f"s_mov_b32 m0, {L_G}")
    a(f"s_nop 0")
    a(f"buffer_load_dwordx4 v{V_L16}, s[{SRD_WS}:{SRD_WS+3}], s34 offen sc1 lds")

def gen_loader(a, END, opts):
    HSC["v"] = opts.get("hsc", "sc1")
    a.c("---------- loader waves ----------")
    T = V_T
    a(f"s_sub_u32 s{S_LW}, s{S_WAVE}, 4")
    a(f"s_cmp_ge_u32 s{S_LW}, 2")
    a(f"s_cselect_b32 s{SRD_A}, s{P_BIM}, s{P_BRE}")
    a(f"s_cselect_b32 s{SRD_A+1}, s{P_BIM+1}, s{P_BRE+1}")
    a(f"s_and_b32 s{SRD_A+1}, s{SRD_A+1}, 0xffff")
    a(f"s_mov_b32 s{SRD_A+2}, 819200")
    a(f"s_mov_b32 s{SRD_A+3}, 0x00020000")
    a(f"v_lshrrev_b32 v{T+5}, 3, v{V_LANE}")
    a(f"v_mul_u32_u24 v{T+5}, 1280, v{T+5}")
    a(f"v_and_b32 v{T+6}, 7, v{V_LANE}")
    a(f"v_lshrrev_b32 v{T+7}, 4, v{V_LANE}")
    a(f"v_xor_b32 v{T+6}, v{T+6}, v{T+7}")
    a(f"v_lshl_add_u32 v{V_VOFF}, v{T+6}, 4, v{T+5}")
    a(f"v_xor_b32 v{V_VOFF+1}, 64, v{V_VOFF}")
    a(f"v_add_u32 v{V_VOFF+1}, 10240, v{V_VOFF+1}")
    a(f"v_add_u32 v{V_VOFF+2}, 20480, v{V_VOFF}")
    a(f"v_add_u32 v{V_VOFF+3}, 20480, v{V_VOFF+1}")
    a(f"s_lshl_b32 s34, s{S_C}, 7")
    a(f"s_lshl_b32 s35, s{S_LW}, 5")
    a(f"s_add_u32 s34, s34, s35")
    a(f"s_mul_i32 s{S_SX}, s34, 1280")
    a(f"s_lshl_b32 s34, s{S_S}, 6")
    a(f"s_and_b32 s35, s{S_LW}, 1")
    a(f"s_lshl_b32 s35, s35, 5")
    a(f"s_add_u32 s34, s34, s35")
    a(f"s_mul_i32 s{S_SB}, s34, 1280")
    a(f"s_lshl_b32 s{S_M0X}, s{S_LW}, 12")
    a(f"s_mov_b32 s{S_KC}, s93")
    for it in range(2): ld_g1_dma(a, it)
    stamp(a, 1)
    a(f"v_mov_b32 v{V_ZERO}, 0")
    a(f"v_lshlrev_b32 v{V_L16}, 4, v{V_LANE}")
    a(f"s_waitcnt vmcnt(8)")
    a(f"s_barrier")
    ld_g1_dma(a, 2)
    for nit in range(1, 10):
        a(f"s_waitcnt vmcnt({0 if nit == 9 else 8})")
        if opts.get("profl"): stamp(a, 9 + nit)
        a(f"s_barrier")
        if nit + 2 < 10: ld_g1_dma(a, nit + 2)
    a(f"s_barrier")
    stamp(a, 2)
    make_srd(a, SRD_B, P_C2RE, 819200)
    make_srd(a, SRD_C, P_C2IM, 819200)
    a(f"buffer_load_dwordx2 v[{V_NON}:{V_NON+1}], v{V_ZERO}, s[{SRD_DBG}:{SRD_DBG+3}], 0 offen sc1")
    if opts.get("pwait", True):
        a(f"v_mov_b32 v{T+4}, {CNT_P}")
        lds_spin(a, T+4, T+6, 4, END)
    a(f"v_lshrrev_b32 v{T}, 3, v{V_LANE}")
    a(f"v_mul_u32_u24 v{T}, 1280, v{T}")
    a(f"v_and_b32 v{T+1}, 7, v{V_LANE}")
    a(f"v_lshl_add_u32 v{T}, v{T+1}, 4, v{T}")
    a(f"s_lshl_b32 s35, s{S_S}, 7")
    a(f"s_add_u32 s34, s{S_SX}, s35")
    a(f"s_add_u32 s{S_T2}, s{S_M0X}, {L_XT}")
    for jj in range(4):
        a(f"s_add_u32 m0, s{S_T2}, {jj*1024}")
        a(f"s_add_u32 s35, s34, {jj*10240}")
        a(f"buffer_load_dwordx4 v{T}, s[{SRD_X}:{SRD_X+3}], s35 offen lds")
    a(f"s_waitcnt vmcnt(0)")
    a(f"v_mov_b32 v{T+4}, {CNT_X}")
    a(f"v_mov_b32 v{T+5}, 1")
    lds_inc(a, T+4, T+5)
    if opts.get("cwait", False):
        a(f"v_mov_b32 v{T+4}, {CNT_E}")
        lds_spin(a, T+4, T+6, 4, END, sleep=True)
    a(f"s_lshl_b32 s34, s{S_S}, 6")
    a(f"s_lshl_b32 s35, s{S_LW}, 4")
    a(f"s_add_u32 s34, s34, s35")
    a(f"s_mul_i32 s{S_CB}, s34, 1280")
    a(f"s_mov_b32 s{S_SPC}, s93")
    a(f"s_mov_b32 s94, s{S_SPC}")
    a(f"s_lshl_b32 s{S_M0C}, s{S_LW}, 11")
    thr = opts.get("cthr", 2)
    for ch in range(NREG + NCS):
        ld_c_chunk(a, ch)
        if thr: a(f"s_waitcnt vmcnt({thr})")
        if opts.get("profc"): stamp(a, 10 + ch)
    a(f"s_waitcnt vmcnt(0)")
    a(f"v_mov_b32 v{T+4}, {CNT_C}")
    a(f"v_mov_b32 v{T+5}, 1")
    lds_inc(a, T+4, T+5)
    if opts.get("touchc", True):
        a(f"v_lshrrev_b32 v{T+6}, 2, v{V_LANE}")
        a(f"v_mul_u32_u24 v{T+6}, 1280, v{T+6}")
        a(f"v_and_b32 v{T+7}, 3, v{V_LANE}")
        a(f"v_lshl_add_u32 v{T+6}, v{T+7}, 6, v{T+6}")
        a(f"s_mov_b32 s{S_T2}, s{S_SPC}")
        for k in range(2):
            for srd in (SRD_B, SRD_C):
                a(f"s_lshl_b32 s{S_T1}, s{S_T2}, 7")
                a(f"s_add_u32 s{S_T1}, s{S_T1}, s{S_CB}")
                a(f"buffer_load_dword v{T+8}, v{T+6}, s[{srd}:{srd+3}], s{S_T1} offen")
                if thr: a(f"s_waitcnt vmcnt(1)")
            a(f"s_add_u32 s{S_T2}, s{S_T2}, 2")
            a(f"s_cmp_ge_u32 s{S_T2}, 10")
            a(f"s_cselect_b32 s34, 10, 0")
            a(f"s_sub_u32 s{S_T2}, s{S_T2}, s34")
    stamp(a, 3)
    lp = a.label("LNP"); ok = a.label("LNOK")
    a(f"s_mov_b32 s{S_CNT}, 100000")
    a(f"s_waitcnt vmcnt(0)")
    a(f"{lp}:")
    a(f"v_readfirstlane_b32 s{S_NONCE}, v{V_NON}")
    a(f"v_readfirstlane_b32 s{S_NONCE+1}, v{V_NON+1}")
    a(f"s_nop 0")
    a(f"s_cmp_lg_u32 s{S_NONCE}, 0")
    a(f"s_cbranch_scc1 {ok}")
    poll_timeout(a, S_CNT, END)
    a(f"buffer_load_dwordx2 v[{V_NON}:{V_NON+1}], v{V_ZERO}, s[{SRD_DBG}:{SRD_DBG+3}], 0 offen sc1")
    a(f"s_waitcnt vmcnt(0)")
    a(f"s_branch {lp}")
    a(f"{ok}:")
    stamp(a, 4)
    a(f"s_mul_i32 s34, s{S_C}, {20*16384}")
    a(f"s_lshl_b32 s35, s{S_LW}, 12")
    a(f"s_add_u32 s34, s34, s35")
    a(f"s_add_u32 s{S_HB}, s34, {WS_H}")
    a(f"s_mov_b32 s{S_SP}, s94")
    a(f"s_mul_i32 s{S_M0H}, s{S_LW}, 4352")
    labp = a.label("HP1"); labq = a.label("HP2")
    a(f"v_mov_b32 v{T+4}, {CNT_F}")
    a(f"s_cmp_lg_u32 s{S_LW}, 0")
    a(f"s_cbranch_scc1 {labp}")
    a(f"s_lshl_b32 s34, s{S_C}, 7")
    a(f"s_add_u32 s34, s34, {WS_FLAG}")
    poll_flags(a, END, 34, 10, T, T+2)
    a(f"v_mov_b32 v{T+5}, 1")
    lds_inc(a, T+4, T+5)
    a(f"s_branch {labq}")
    a(f"{labp}:")
    lds_spin(a, T+4, T+6, 1, END)
    a(f"{labq}:")
    stamp(a, 5)
    a(f"v_mov_b32 v{T+4}, {CNT_R}")
    lds_spin(a, T+4, T+6, 4, END)
    stamp(a, 8)
    PF = NHS - 2
    for it in range(PF): ld_h_stage(a, it)
    stamp(a, 9)
    a(f"s_waitcnt vmcnt({4*(PF-1)})")
    a(f"s_barrier")
    stamp(a, 6)
    a(f"s_mov_b32 s{S_DONE}, 0")
    FL = T + 10
    q = [("h", k, 4) for k in range(1, PF)]
    ld_h_stage(a, PF); q.append(("h", PF, 4))
    for nit in range(1, 20):
        idx = max(i for i, e in enumerate(q) if (e[0] == "h" and e[1] == nit) or (e[0] == "c" and e[1] == nit))
        rem = sum(e[2] for e in q[idx+1:])
        a(f"s_waitcnt vmcnt({min(rem, 63)})")
        if opts.get("profl") and nit <= 12: stamp(a, 19 + nit)
        if opts.get("profl2") and nit >= 8: stamp(a, 2 + nit)
        q = q[idx+1:]
        a(f"s_barrier")
        ch = nit - 2 + NCS
        if ch >= NREG + NCS and ch < 20:
            ld_c_chunk(a, ch); q.append(("c", ch, 2))
        if nit + PF < 20:
            ld_h_stage(a, nit + PF); q.append(("h", nit + PF, 4))
        if nit == 12:
            a(f"v_lshlrev_b32 v{T}, 3, v{V_LANE}")
            a(f"s_lshl_b32 s34, s{S_S}, 7")
            a(f"s_add_u32 s34, s34, {WS_AFLG}")
            a(f"v_add_u32 v{T}, s34, v{T}")
            a(f"s_lshl_b32 s34, s{S_C}, 7")
            a(f"s_add_u32 s34, s34, {WS_FLAG + 80}")
            a(f"v_mov_b32 v{T+1}, s34")
            a(f"v_cmp_eq_u32 vcc, 8, v{V_LANE}")
            a(f"s_nop 1")
            a(f"v_cndmask_b32 v{T+14}, v{T}, v{T+1}, vcc")
            a(f"s_mov_b64 s[{S_EXEC}:{S_EXEC+1}], exec")
            a(f"s_mov_b64 exec, 0x1ff")
            a(f"buffer_load_dwordx2 v[{FL}:{FL+1}], v{T+14}, s[{SRD_WS}:{SRD_WS+3}], 0 offen sc1")
            a(f"s_mov_b64 exec, s[{S_EXEC}:{S_EXEC+1}]")
            q.append(("f", 0, 1))
        if nit == 17:
            if any(e[0] == "f" for e in q):
                idf = max(i for i, e in enumerate(q) if e[0] == "f")
                a(f"s_waitcnt vmcnt({sum(e[2] for e in q[idf+1:])})")
                q = q[idf+1:]
            lab = a.label("ANR")
            a(f"s_mov_b64 s[{S_EXEC}:{S_EXEC+1}], exec")
            a(f"s_mov_b64 exec, 0x1ff")
            a(f"v_cmp_ne_u64 vcc, s[{S_NONCE}:{S_NONCE+1}], v[{FL}:{FL+1}]")
            a(f"s_mov_b64 exec, s[{S_EXEC}:{S_EXEC+1}]")
            a(f"s_cmp_lg_u64 vcc, 0")
            a(f"s_cbranch_scc1 {lab}")
            ld_a_tile(a, T)
            a(f"s_mov_b32 s{S_DONE}, 1")
            lab2 = a.label("ANR2")
            a(f"s_branch {lab2}")
            a(f"{lab}:")
            for _ in range(5):
                a(f"buffer_load_dword v{T+8}, v{V_ZERO}, s[{SRD_X}:{SRD_X+3}], 0 offen")
            a(f"{lab2}:")
            q.append(("a", 0, 5))
    lab = a.label("ADONE")
    a(f"s_cmp_eq_u32 s{S_DONE}, 1")
    a(f"s_cbranch_scc1 {lab}")
    lp = a.label("AGP"); ld = a.label("AGD")
    a(f"s_mov_b32 s{S_CNT}, 100000")
    a(f"s_mov_b64 s[{S_EXEC}:{S_EXEC+1}], exec")
    a(f"s_mov_b64 exec, 0x1ff")
    a(f"{lp}:")
    a(f"buffer_load_dwordx2 v[{FL}:{FL+1}], v{T+14}, s[{SRD_WS}:{SRD_WS+3}], 0 offen sc1")
    a(f"s_waitcnt vmcnt(0)")
    a(f"v_cmp_ne_u64 vcc, s[{S_NONCE}:{S_NONCE+1}], v[{FL}:{FL+1}]")
    a(f"s_cmp_eq_u64 vcc, 0")
    a(f"s_cbranch_scc1 {ld}")
    a(f"s_sleep 1")
    a(f"s_sub_u32 s{S_CNT}, s{S_CNT}, 1")
    a(f"s_cbranch_scc0 {lp}")
    a(f"{ld}:")
    a(f"s_mov_b64 exec, s[{S_EXEC}:{S_EXEC+1}]")
    ld_a_tile(a, T)
    a(f"{lab}:")
    a(f"s_waitcnt vmcnt(0)")
    stamp(a, 7)
    a(f"s_barrier")
    prof_end(a, 4, 32768)
    a(f"s_branch {END}")

G2_FR = 16
G2_ACC = 64
V_HA = 6
V_CB = 10
V_HA2 = 7

G2_NS = 4
def g2_reads(it, ks):
    slot = it % NHS
    st = G2_FR + 12 * ((4*it + ks) % G2_NS)
    base = slot*HSLOT + (ks >> 1)*4352 + (ks & 1)*256
    out = []
    for m in range(2):
        for half in range(2):
            off = base + m*512 + half*64
            reg = V_HA if off < 65536 else V_HA2
            if off >= 65536: off -= 3*HSLOT
            out.append(f"ds_read_b64_tr_b16 v[{st+4*m+2*half}:{st+4*m+2*half+1}], v{reg} offset:{off}")
    if it >= NREG:
        cs = (it - NREG) % NCS
        out.append(f"ds_read_b128 v[{st+8}:{st+11}], v{V_CB+ks} offset:{cs*8192}")
    return out

def g2_mfmas(it, ks):
    st = G2_FR + 12 * ((4*it + ks) % G2_NS)
    out = []
    b = (V_CREG + 16*it + 4*ks) if it < NREG else st + 8
    for m in range(2):
        d = G2_ACC + 16*m
        out.append(f"v_mfma_f32_32x32x16_bf16 v[{d}:{d+15}], v[{st+4*m}:{st+4*m+3}], v[{b}:{b+3}], v[{d}:{d+15}]")
    return out

def gen_compute(a, END, opts):
    a.c("---------- compute waves ----------")
    T = V_T
    a(f"s_lshr_b32 s{S_WM}, s{S_WAVE}, 1")
    a(f"s_and_b32 s{S_WN}, s{S_WAVE}, 1")
    lab = a.label("NOINIT")
    a(f"s_cmp_lg_u32 s{S_WAVE}, 0")
    a(f"s_cbranch_scc1 {lab}")
    a(f"v_lshlrev_b32 v{T}, 2, v{V_LANE}")
    a(f"v_add_u32 v{T}, {L_CNT}, v{T}")
    a(f"v_mov_b32 v{T+1}, 0")
    a(f"s_mov_b64 exec, 0xffff")
    a(f"ds_write_b32 v{T}, v{T+1}")
    a(f"s_mov_b64 exec, -1")
    a(f"{lab}:")
    loc = opts.get("local")
    kofl = opts.get("kofl")
    if kofl:
        import conv2
        a(f"s_mul_i32 s34, s{S_C}, 10")
        a(f"s_add_u32 s34, s34, s{S_S}")
        a(f"s_lshl_b32 s34, s34, 1")
        a(f"s_add_u32 s{S_KY}, s34, s{S_WN}")
        a(f"s_lshr_b32 s34, s{S_KY}, 2")
        a(f"s_lshl_b32 s34, s34, 3")
        a(f"s_and_b32 s35, s{S_KY}, 3")
        a(f"s_add_u32 s34, s34, s35")
        a(f"s_add_u32 s34, s34, 4")
        a(f"v_lshlrev_b32 v2, 2, v{V_LANE}")
        a(f"s_lshl_b32 s35, s34, 8")
        for k, P in enumerate([P_LOGA, P_AIM, P_CRE, P_CIM]):
            make_srd(a, SRD_A, P, 163840)
            a(f"buffer_load_dword v{conv2.V_PRM+k}, v2, s[{SRD_A}:{SRD_A+3}], s35 offen")
        a(f"s_lshl_b32 s35, s34, 1")
        a(f"v_mov_b32 v3, 0")
        make_srd(a, SRD_A, P_LOGDT, 1280)
        a(f"buffer_load_ushort v{conv2.V_PRM+4}, v3, s[{SRD_A}:{SRD_A+3}], s35 offen")
        a(f"buffer_load_dwordx2 v[{V_NON}:{V_NON+1}], v3, s[{SRD_DBG}:{SRD_DBG+3}], 0 offen sc1")
    a(f"v_and_b32 v{T}, 31, v{V_LANE}")
    a(f"s_lshl_b32 s34, s{S_S}, 6")
    a(f"s_lshl_b32 s35, s{S_WN}, 5")
    a(f"s_add_u32 s34, s34, s35")
    a(f"v_add_u32 v{T+1}, s34, v{T}")
    a(f"v_lshlrev_b32 v{V_EOFF}, 4, v{T+1}")
    a(f"v_lshlrev_b32 v{T+1}, 1, v{T+1}")
    make_srd(a, SRD_B, P_LRE, 1280)
    a(f"buffer_load_ushort v{T+2}, v{T+1}, s[{SRD_B}:{SRD_B+3}], 0 offen")
    make_srd(a, SRD_A, P_LIM, 1280)
    a(f"buffer_load_ushort v{T+3}, v{T+1}, s[{SRD_A}:{SRD_A+3}], 0 offen")
    make_srd(a, 92, P_LOGDTB, 1280)
    a(f"buffer_load_ushort v{T+4}, v{T+1}, s[92:95], 0 offen")
    V_DSB = 227
    make_srd(a, SRD_B, P_DSKB, 1280)
    a(f"buffer_load_ushort v{V_DSB}, v{T+1}, s[{SRD_B}:{SRD_B+3}], 0 offen")
    make_srd(a, SRD_C, P_OUT, 5242880)
    a(f"v_and_b32 v{T+5}, 31, v{V_LANE}")
    a(f"v_lshrrev_b32 v{T+6}, 5, v{V_LANE}")
    a(f"v_bfe_u32 v{T+7}, v{T+5}, 2, 1")
    a(f"v_lshlrev_b32 v{T+7}, 5, v{T+7}")
    a(f"v_lshrrev_b32 v{T+8}, 3, v{T+5}")
    a(f"v_lshl_add_u32 v{T+7}, v{T+8}, 2, v{T+7}")
    a(f"v_and_b32 v{T+8}, 3, v{T+5}")
    a(f"v_add_u32 v{T+7}, v{T+7}, v{T+8}")
    a(f"s_lshl_b32 s34, s{S_WM}, 6")
    a(f"v_add_u32 v{T+7}, s34, v{T+7}")
    a(f"v_bfe_u32 v{T+8}, v{T+7}, 1, 3")
    a(f"v_xor_b32 v{T+8}, v{T+8}, v{T+6}")
    a(f"v_lshlrev_b32 v{T+8}, 4, v{T+8}")
    a(f"v_lshl_add_u32 v{V_AA}, v{T+7}, 7, v{T+8}")
    for ks in range(1, 4): a(f"v_xor_b32 v{V_AA+ks}, {32*ks}, v{V_AA}")
    a(f"s_lshl_b32 s34, s{S_WN}, 5")
    a(f"v_add_u32 v{T+7}, s34, v{T+5}")
    a(f"v_bfe_u32 v{T+8}, v{T+7}, 1, 3")
    a(f"v_xor_b32 v{T+8}, v{T+8}, v{T+6}")
    a(f"v_lshlrev_b32 v{T+8}, 4, v{T+8}")
    a(f"v_lshl_add_u32 v{V_BA}, v{T+7}, 7, v{T+8}")
    a(f"v_mov_b32 v{221}, v{V_BA}")
    a(f"v_add_u32 v{V_BA}, 0x10000, v{V_BA}")
    for ks in range(1, 4): a(f"v_xor_b32 v{V_BA+ks}, {32*ks}, v{V_BA}")
    a(f"v_mov_b32 v{V_ZERO}, 0")
    a(f"v_lshlrev_b32 v{V_L16}, 4, v{V_LANE}")
    stamp(a, 1)
    if kofl:
        a(f"s_and_b32 s34, s{S_WAVE}, 1")
        a(f"s_mul_i32 s34, s34, 15232")
        a(f"s_lshr_b32 s35, s{S_WAVE}, 1")
        a(f"s_lshl_b32 s35, s35, 16")
        a(f"s_add_u32 s34, s34, s35")
        a(f"s_add_u32 s{S_KB}, s34, 32768")
        conv2.kgen_addr_setup(a, f"s{S_KB}")
        a(f"s_waitcnt vmcnt(5)")
        TK = conv2.V_T_
        a(f"v_lshlrev_b32 v{conv2.V_DT}, 16, v{conv2.V_PRM+4}")
        exp_accurate(a, conv2.V_DT, conv2.V_DT, TK, TK+1, TK+2)
        round_bf16(a, conv2.V_DT, conv2.V_DT)
        conv2.kgen_pass(a, f"s{S_WM}")
        a("s_nop 7\ns_nop 7\ns_nop 1")
        a(f"s_lshl_b32 s34, s{S_KY}, 1")
        a(f"s_add_u32 s34, s34, s{S_WM}")
        a(f"s_lshl_b32 s34, s34, 12")
        a(f"s_add_u32 s34, s34, {WS_KP}")
        for j in range(4):
            a(f"buffer_store_dwordx4 v[{64+4*j}:{67+4*j}], v{V_L16}, s[{SRD_WS}:{SRD_WS+3}], s34 offen offset:{j*1024} sc1")
        stamp(a, 14)
        a(f"s_waitcnt vmcnt(4)")
    else:
        a(f"s_waitcnt vmcnt(0)")
    a(f"v_lshlrev_b32 v{V_DSB}, 16, v{V_DSB}")
    a(f"v_lshlrev_b32 v{T+2}, 16, v{T+2}")
    a(f"v_lshlrev_b32 v{T+3}, 16, v{T+3}")
    a(f"v_lshlrev_b32 v{T+4}, 16, v{T+4}")
    exp_accurate(a, T+4, T+4, T+5, T+6, T+7)
    round_bf16(a, T+4, T+4)
    a(f"v_mul_f32 v{T+5}, v{T+4}, v{T+2}")
    a(f"v_mul_f32 v{T+6}, v{T+4}, v{T+3}")
    exp_accurate(a, T+5, T+5, T+7, T+8, T+9)
    a(f"v_mul_f32 v{T+6}, {fhex(INV2PI)}, v{T+6}")
    a(f"v_fract_f32 v{T+6}, v{T+6}")
    a(f"v_cos_f32 v{T+7}, v{T+6}")
    a(f"v_sin_f32 v{T+8}, v{T+6}")
    a(f"s_nop 0")
    a(f"v_mul_f32 v{V_LR}, v{T+5}, v{T+7}")
    a(f"v_mul_f32 v{V_LI}, v{T+5}, v{T+8}")
    a(f"v_add_f32 v{T+5}, -1.0, v{V_LR}")
    a(f"v_mul_f32 v{T+6}, v{T+2}, v{T+2}")
    a(f"v_fma_f32 v{T+6}, v{T+3}, v{T+3}, v{T+6}")
    a(f"v_rcp_f32 v{T+7}, v{T+6}")
    a(f"v_mul_f32 v{T+8}, v{T+5}, v{T+2}")
    a(f"v_fma_f32 v{T+9}, -v{T+6}, v{T+7}, 2.0")
    a(f"v_mul_f32 v{T+7}, v{T+7}, v{T+9}")
    a(f"v_fma_f32 v{T+8}, v{V_LI}, v{T+3}, v{T+8}")
    a(f"v_mul_f32 v{T+9}, v{V_LI}, v{T+2}")
    a(f"v_fma_f32 v{T+9}, -v{T+5}, v{T+3}, v{T+9}")
    a(f"v_add_f32 v{T+7}, v{T+7}, v{T+7}")
    a(f"v_mul_f32 v{V_C2}, v{T+8}, v{T+7}")
    a(f"v_mul_f32 v{V_C2+1}, v{T+9}, v{T+7}")
    a(f"v_mov_b32 v{V_L32}, v{V_LR}")
    a(f"v_mov_b32 v{V_L32+1}, v{V_LI}")
    for i in range(5): cmul(a, V_L32, V_L32+1, V_L32, V_L32+1, V_L32, V_L32+1, T+5)
    cmul(a, V_L128, V_L128+1, V_L32, V_L32+1, V_L32, V_L32+1, T+5)
    cmul(a, V_L128, V_L128+1, V_L128, V_L128+1, V_L128, V_L128+1, T+5)
    if loc:
        a(f"s_getreg_b32 s{S_FAST}, hwreg(HW_REG_XCC_ID)")
        a(f"s_and_b32 s{S_FAST}, s{S_FAST}, 0x7f")
        a(f"s_add_u32 s{S_FAST}, s{S_FAST}, 1")
        labx = a.label("XPUB")
        a(f"s_cmp_lg_u32 s{S_WAVE}, 0")
        a(f"s_cbranch_scc1 {labx}")
        a(f"s_mul_i32 s34, s{S_C}, 10")
        a(f"s_add_u32 s34, s34, s{S_S}")
        a(f"s_add_u32 s34, s34, 16")
        a(f"v_mov_b32 v{T}, s{S_FAST}")
        a(f"v_mov_b32 v{T+1}, 0")
        a(f"s_mov_b64 exec, 1")
        a(f"buffer_store_byte v{T}, v{T+1}, s[{SRD_DBG}:{SRD_DBG+3}], s34 offen sc1")
        a(f"s_mov_b64 exec, -1")
        a(f"{labx}:")
    a(f"s_waitcnt lgkmcnt(0)")
    stamp(a, 2)
    a(f"s_barrier")
    stamp(a, 3)
    for ins in g1_reads(0, 0): a(ins)
    for ins in g1_reads(0, 1): a(ins)
    NST = 10
    for it in range(NST):
        for ks in range(4):
            gidx = 4*it + ks
            last = (gidx == 4*NST - 1)
            if kofl and it == opts.get("kflst", 1) and ks == 0:
                lk = a.label("KN"); lk2 = a.label("KN2")
                a(f"s_mov_b32 s{S_CNT}, 100000")
                a(f"s_waitcnt vmcnt(0)")
                a(f"{lk}:")
                a(f"v_readfirstlane_b32 s{S_NONCE}, v{V_NON}")
                a(f"v_readfirstlane_b32 s{S_NONCE+1}, v{V_NON+1}")
                a(f"s_nop 0")
                a(f"s_cmp_lg_u32 s{S_NONCE}, 0")
                a(f"s_cbranch_scc1 {lk2}")
                poll_timeout(a, S_CNT, END)
                a(f"buffer_load_dwordx2 v[{V_NON}:{V_NON+1}], v{V_ZERO}, s[{SRD_DBG}:{SRD_DBG+3}], 0 offen sc1")
                a(f"s_waitcnt vmcnt(0)")
                a(f"s_branch {lk}")
                a(f"{lk2}:")
                a(f"s_lshl_b32 s34, s{S_KY}, 1")
                a(f"s_add_u32 s34, s34, s{S_WM}")
                a(f"s_lshl_b32 s34, s34, 3")
                a(f"s_add_u32 s34, s34, {WS_KFLG}")
                a(f"v_mov_b32 v248, s{S_NONCE}")
                a(f"v_mov_b32 v249, s{S_NONCE+1}")
                a(f"s_mov_b64 s[{S_EXEC}:{S_EXEC+1}], exec")
                a(f"s_mov_b64 exec, 1")
                a(f"buffer_store_dwordx2 v[248:249], v{V_ZERO}, s[{SRD_WS}:{SRD_WS+3}], s34 offen sc1")
                a(f"s_mov_b64 exec, s[{S_EXEC}:{S_EXEC+1}]")
            a(f"s_waitcnt lgkmcnt({0 if last else 4})")
            fill = []
            nx = gidx + 2
            if nx < 4*NST:
                nit, nks = nx // 4, nx % 4
                if nks == 0:
                    a(f"s_barrier")
                    if opts.get("profst"): stamp(a, 16 + nit)
                fill += g1_reads(nit, nks)
                if nks == 0 and nit == 5 and not kofl:
                    fill.append(f"buffer_load_dwordx2 v[{V_NON}:{V_NON+1}], v{V_ZERO}, s[{SRD_DBG}:{SRD_DBG+3}], 0 offen sc1")
                if nks == 0 and nit == 6 and loc:
                    fill.append(f"s_mul_i32 s35, s{S_C}, 10")
                    fill.append(f"s_add_u32 s35, s35, 16")
                    fill.append(f"buffer_load_ubyte v{V_XC}, v{V_LANE}, s[{SRD_DBG}:{SRD_DBG+3}], s35 offen sc1")
            if last:
                a(f"s_barrier")
            interleave(a, g1_mfmas(it, ks), fill)
    stamp(a, 4)
    a.c("pass 1")
    a(f"s_nop 7\ns_nop 7")
    first = True
    for m in range(2):
        for r in range(16):
            br, bi = acc(m, 0) + r, acc(m, 1) + r
            if first:
                a(f"v_mov_b32 v{V_ER}, v{br}")
                a(f"v_mov_b32 v{V_EI}, v{bi}")
                first = False
            else:
                src = (V_ER, V_EI) if cur == 0 else (T, T+1)
                dst = (T, T+1) if cur == 0 else (V_ER, V_EI)
                a(f"v_fma_f32 v{dst[0]}, v{V_LR}, v{src[0]}, v{br}")
                a(f"v_fma_f32 v{dst[1]}, v{V_LR}, v{src[1]}, v{bi}")
                a(f"v_fma_f32 v{dst[0]}, -v{V_LI}, v{src[1]}, v{dst[0]}")
                a(f"v_fma_f32 v{dst[1]}, v{V_LI}, v{src[0]}, v{dst[1]}")
                cur ^= 1
                continue
            cur = 0
    if cur == 1:
        a(f"v_mov_b32 v{V_ER}, v{T}")
        a(f"v_mov_b32 v{V_EI}, v{T+1}")
    EX = 240; G = 248; SA = 252
    a(f"v_lshrrev_b32 v{T+2}, 5, v{V_LANE}")
    a(f"s_lshl_b32 s34, s{S_WM}, 1")
    a(f"v_add_u32 v{T+2}, s34, v{T+2}")
    a(f"v_and_b32 v{T+3}, 31, v{V_LANE}")
    a(f"s_lshl_b32 s34, s{S_WN}, 5")
    a(f"v_add_u32 v{T+3}, s34, v{T+3}")
    a(f"v_lshlrev_b32 v{T+3}, 3, v{T+3}")
    a(f"v_add_u32 v{T+3}, {L_EX}, v{T+3}")
    a(f"v_lshl_add_u32 v{T+2}, v{T+2}, 9, v{T+3}")
    a(f"ds_write_b64 v{T+2}, v[{V_ER}:{V_ER+1}]")
    a(f"v_mov_b32 v{T+4}, {CNT_EX}")
    a(f"v_mov_b32 v{T+5}, 1")
    a(f"s_waitcnt lgkmcnt(0)")
    lds_inc(a, T+4, T+5)
    lab_ok = a.label("NOK"); lab_p = a.label("NPOLL")
    a(f"s_mov_b32 s{S_CNT}, 100000")
    a(f"s_waitcnt vmcnt(0)")
    a(f"{lab_p}:")
    a(f"v_readfirstlane_b32 s{S_NONCE}, v{V_NON}")
    a(f"v_readfirstlane_b32 s{S_NONCE+1}, v{V_NON+1}")
    a(f"s_nop 0")
    a(f"s_cmp_lg_u32 s{S_NONCE}, 0")
    a(f"s_cbranch_scc1 {lab_ok}")
    poll_timeout(a, S_CNT, END)
    a(f"buffer_load_dwordx2 v[{V_NON}:{V_NON+1}], v{V_ZERO}, s[{SRD_DBG}:{SRD_DBG+3}], 0 offen sc1")
    a(f"s_waitcnt vmcnt(0)")
    a(f"s_branch {lab_p}")
    a(f"{lab_ok}:")
    if loc:
        a(f"v_cmp_ne_u32 vcc, s{S_FAST}, v{V_XC}")
        a(f"s_and_b64 vcc, vcc, 0x3ff")
        a(f"s_cmp_eq_u64 vcc, 0")
        a(f"s_cselect_b32 s{S_FAST}, 1, 0")
    lds_spin(a, T+4, T+6, 4, END)
    for sg in range(4):
        a(f"ds_read_b64 v[{EX+2*sg}:{EX+2*sg+1}], v{T+3} offset:{sg*512}")
    a(f"s_waitcnt lgkmcnt(0)")
    a(f"v_mov_b32 v{V_HR}, v{EX}")
    a(f"v_mov_b32 v{V_HI}, v{EX+1}")
    for sg in range(1, 4): cfma(a, V_HR, V_HI, V_L32, V_L32+1, EX+2*sg, EX+2*sg+1, T)
    lab_np = a.label("NOPUB")
    a(f"s_cmp_lg_u32 s{S_WM}, 0")
    a(f"s_cbranch_scc1 {lab_np}")
    a(f"v_mov_b32 v{G}, v{V_HR}")
    a(f"v_mov_b32 v{G+1}, v{V_HI}")
    a(f"v_mov_b32 v{G+2}, s{S_NONCE}")
    a(f"v_mov_b32 v{G+3}, s{S_NONCE+1}")
    a(f"s_mul_i32 s34, s{S_C}, 10240")
    a(f"s_add_u32 s34, s34, {WS_E}")
    a(f"s_mov_b64 s[{S_EXEC}:{S_EXEC+1}], exec")
    a(f"s_mov_b32 exec_lo, -1")
    a(f"s_mov_b32 exec_hi, 0")
    a(f"buffer_store_dwordx4 v[{G}:{G+3}], v{V_EOFF}, s[{SRD_WS}:{SRD_WS+3}], s34 offen sc1")
    a(f"s_mov_b64 exec, s[{S_EXEC}:{S_EXEC+1}]")
    a(f"{lab_np}:")
    a(f"v_mov_b32 v{T+4}, {CNT_P}")
    a(f"v_mov_b32 v{T+5}, 1")
    lds_inc(a, T+4, T+5)
    stamp(a, 5)
    def greg(cp): return (V_FR + 4*cp) if cp < 12 else (228 + 4*(cp-12))
    def issue_polls(lab_iss):
        for cp in range(15):
            a(f"s_cmp_le_u32 s{S_C}, {cp}")
            a(f"s_cbranch_scc1 {lab_iss}")
            a(f"s_mov_b32 s34, {WS_E + cp*10240}")
            a(f"buffer_load_dwordx4 v[{greg(cp)}:{greg(cp)+3}], v{V_EOFF}, s[{SRD_WS}:{SRD_WS+3}], s34 offen sc1")
        a(f"{lab_iss}:")
    a.c("scale")
    for m in range(2):
        for r in range(0, 16, 2):
            pr, pi = acc(m,0)+r, acc(m,1)+r
            qr, qi = acc2(m,0)+r, acc2(m,1)+r
            a(f"v_pk_mul_f32 v[{qr}:{qr+1}], v[{pr}:{pr+1}], v[{V_C2}:{V_C2+1}] op_sel:[0,0] op_sel_hi:[1,0]")
            a(f"v_pk_mul_f32 v[{qi}:{qi+1}], v[{pi}:{pi+1}], v[{V_C2}:{V_C2+1}] op_sel:[0,0] op_sel_hi:[1,0] neg_lo:[1,0] neg_hi:[1,0]")
            a(f"v_pk_fma_f32 v[{qr}:{qr+1}], v[{pi}:{pi+1}], v[{V_C2}:{V_C2+1}], v[{qr}:{qr+1}] op_sel:[0,1,0] op_sel_hi:[1,1,1] neg_lo:[1,0,0] neg_hi:[1,0,0]")
            a(f"v_pk_fma_f32 v[{qi}:{qi+1}], v[{pr}:{pr+1}], v[{V_C2}:{V_C2+1}], v[{qi}:{qi+1}] op_sel:[0,1,0] op_sel_hi:[1,1,1] neg_lo:[1,0,0] neg_hi:[1,0,0]")
    stamp(a, 6)
    lab_w0 = a.label("EW0"); lab_wj = a.label("EWJ")
    eall = opts.get("eall", False)
    if not eall:
        a(f"s_cmp_eq_u32 s{S_WM}, 0")
        a(f"s_cbranch_scc1 {lab_w0}")
    a.c("E combine: lane (p, hf) handles d = 2j+1+hf")
    SE = 92
    a(f"s_add_u32 s{SE}, s{P_WS}, {WS_E}")
    a(f"s_addc_u32 s{SE+1}, s{P_WS+1}, 0")
    a(f"s_and_b32 s{SE+1}, s{SE+1}, 0xffff")
    a(f"s_mov_b32 s{SE+2}, {16*10240}")
    a(f"s_mov_b32 s{SE+3}, 0x00020000")
    L256 = T+8
    cmul(a, L256, L256+1, V_L128, V_L128+1, V_L128, V_L128+1, T)
    VO = 228
    a(f"v_lshrrev_b32 v{T+2}, 5, v{V_LANE}")
    a(f"s_sub_u32 s34, s{S_C}, 1")
    a(f"v_sub_u32 v{T+2}, s34, v{T+2}")
    a(f"v_mul_i32_i24 v{T+2}, 10240, v{T+2}")
    a(f"v_add_u32 v{VO}, v{T+2}, v{V_EOFF}")
    for j in range(1, 8):
        a(f"v_subrev_u32 v{VO+j}, {20480*j}, v{VO}")
    GR = V_FR
    lab_poll = a.label("EPOLL"); lab_ok = a.label("EOK")
    a(f"s_mov_b32 s{S_CNT}, 100000")
    a(f"{lab_poll}:")
    for j in range(8):
        a(f"buffer_load_dwordx4 v[{GR+4*j}:{GR+4*j+3}], v{VO+j}, s[{SE}:{SE+3}], 0 offen sc1")
    a(f"s_mov_b64 s[{S_MISM}:{S_MISM+1}], 0")
    for j in range(8):
        a(f"s_waitcnt vmcnt({7-j})")
        a(f"v_cmp_ne_u64 vcc, s[{S_NONCE}:{S_NONCE+1}], v[{GR+4*j+2}:{GR+4*j+3}]")
        a(f"v_cmp_le_i32 s[{S_T2}:{S_T2+1}], 0, v{VO+j}")
        a(f"s_and_b64 vcc, vcc, s[{S_T2}:{S_T2+1}]")
        a(f"s_or_b64 s[{S_MISM}:{S_MISM+1}], s[{S_MISM}:{S_MISM+1}], vcc")
    a(f"s_cmp_eq_u64 s[{S_MISM}:{S_MISM+1}], 0")
    a(f"s_cbranch_scc1 {lab_ok}")
    if opts.get("efull", True):
        a(f"s_sleep {opts.get('esleep', 2)}")
        a(f"s_sub_u32 s{S_CNT}, s{S_CNT}, 1")
        a(f"s_cbranch_scc0 {lab_poll}")
        a(f"s_branch {END}")
    CP = T+12
    a(f"v_readfirstlane_b32 s35, v{V_EOFF}")
    a(f"s_sub_u32 s34, s{S_C}, 1")
    a(f"v_sub_u32 v{CP}, s34, v{V_LANE}")
    a(f"v_mul_i32_i24 v{CP}, 10240, v{CP}")
    a(f"v_add_u32 v{CP}, s35, v{CP}")
    a(f"v_cmp_le_i32 s[{S_T2}:{S_T2+1}], 0, v{CP}")
    a(f"s_and_b64 s[{S_T2}:{S_T2+1}], s[{S_T2}:{S_T2+1}], 0xffff")
    lab_cp = a.label("ECH")
    a(f"{lab_cp}:")
    a(f"s_sleep {opts.get('esleep', 2)}")
    a(f"buffer_load_dwordx4 v[{GR}:{GR+3}], v{CP}, s[{SE}:{SE+3}], 0 offen sc1")
    a(f"s_waitcnt vmcnt(0)")
    a(f"v_cmp_ne_u64 vcc, s[{S_NONCE}:{S_NONCE+1}], v[{GR+2}:{GR+3}]")
    a(f"s_and_b64 vcc, vcc, s[{S_T2}:{S_T2+1}]")
    a(f"s_cmp_eq_u64 vcc, 0")
    a(f"s_cbranch_scc1 {lab_poll}")
    a(f"s_sub_u32 s{S_CNT}, s{S_CNT}, 1")
    a(f"s_cbranch_scc0 {lab_cp}")
    a(f"s_branch {END}")
    a(f"{lab_ok}:")
    a(f"v_mov_b32 v{V_HR}, v{GR+28}")
    a(f"v_mov_b32 v{V_HI}, v{GR+29}")
    cur = (V_HR, V_HI); oth = (T, T+1)
    for j in range(6, -1, -1):
        er, ei = GR+4*j, GR+4*j+1
        a(f"v_fma_f32 v{oth[0]}, v{cur[0]}, v{L256}, v{er}")
        a(f"v_fma_f32 v{oth[1]}, v{cur[1]}, v{L256}, v{ei}")
        a(f"v_fma_f32 v{oth[0]}, -v{cur[1]}, v{L256+1}, v{oth[0]}")
        a(f"v_fma_f32 v{oth[1]}, v{cur[0]}, v{L256+1}, v{oth[1]}")
        cur, oth = oth, cur
    hr, hi = cur
    a(f"v_mov_b32 v{T+2}, v{hr}")
    a(f"v_mov_b32 v{T+3}, v{hi}")
    a(f"s_nop 1")
    a(f"v_permlane32_swap_b32 v{hr}, v{T+2}")
    a(f"v_permlane32_swap_b32 v{hi}, v{T+3}")
    a(f"s_nop 1")
    a(f"v_fma_f32 v{V_HR}, v{T+2}, v{V_L128}, v{hr}")
    a(f"v_fma_f32 v{V_HI}, v{T+3}, v{V_L128}, v{hi}")
    a(f"v_fma_f32 v{V_HR}, -v{T+3}, v{V_L128+1}, v{V_HR}")
    a(f"v_fma_f32 v{V_HI}, v{T+2}, v{V_L128+1}, v{V_HI}")
    if not eall:
        a(f"v_and_b32 v{T+2}, 31, v{V_LANE}")
        a(f"v_lshlrev_b32 v{T+2}, 3, v{T+2}")
        a(f"s_lshl_b32 s34, s{S_WN}, 8")
        a(f"s_add_u32 s34, s34, {L_HX}")
        a(f"v_add_u32 v{T+2}, s34, v{T+2}")
        a(f"ds_write_b64 v{T+2}, v[{V_HR}:{V_HR+1}]")
        a(f"s_lshl_b32 s34, s{S_WN}, 2")
        a(f"s_add_u32 s34, s34, {CNT_HX0}")
        a(f"v_mov_b32 v{T+4}, s34")
        a(f"v_mov_b32 v{T+5}, 1")
        a(f"s_waitcnt lgkmcnt(0)")
        lds_inc(a, T+4, T+5)
        a(f"s_branch {lab_wj}")
        a(f"{lab_w0}:")
        a(f"s_lshl_b32 s34, s{S_WN}, 2")
        a(f"s_add_u32 s34, s34, {CNT_HX0}")
        a(f"v_mov_b32 v{T+4}, s34")
        lds_spin(a, T+4, T+6, 1, END)
        a(f"v_and_b32 v{T+2}, 31, v{V_LANE}")
        a(f"v_lshlrev_b32 v{T+2}, 3, v{T+2}")
        a(f"s_lshl_b32 s34, s{S_WN}, 8")
        a(f"s_add_u32 s34, s34, {L_HX}")
        a(f"v_add_u32 v{T+2}, s34, v{T+2}")
        a(f"ds_read_b64 v[{V_HR}:{V_HR+1}], v{T+2}")
        a(f"s_waitcnt lgkmcnt(0)")
        a(f"{lab_wj}:")
    a(f"v_mov_b32 v{T+4}, {CNT_E}")
    a(f"v_mov_b32 v{T+5}, 1")
    lds_inc(a, T+4, T+5)
    lab_w1 = a.label("WM1"); lab_w2 = a.label("WMD")
    a(f"s_cmp_lg_u32 s{S_WM}, 0")
    a(f"s_cbranch_scc1 {lab_w1}")
    a(f"v_mov_b32 v{SA}, v{V_HR}")
    a(f"v_mov_b32 v{SA+1}, v{V_HI}")
    cfma(a, V_HR, V_HI, V_L32, V_L32+1, EX, EX+1, T)
    a(f"s_branch {lab_w2}")
    a(f"{lab_w1}:")
    cfma(a, V_HR, V_HI, V_L32, V_L32+1, EX, EX+1, T)
    cfma(a, V_HR, V_HI, V_L32, V_L32+1, EX+2, EX+3, T)
    a(f"v_mov_b32 v{SA}, v{V_HR}")
    a(f"v_mov_b32 v{SA+1}, v{V_HI}")
    cfma(a, V_HR, V_HI, V_L32, V_L32+1, EX+4, EX+5, T)
    a(f"{lab_w2}:")
    a(f"v_cmp_gt_u32 vcc, 32, v{V_LANE}")
    a(f"s_nop 1")
    a(f"v_cndmask_b32 v{V_HR}, v{V_HR}, v{SA}, vcc")
    a(f"v_cndmask_b32 v{V_HI}, v{V_HI}, v{SA+1}, vcc")
    a(f"v_mul_f32 v{T}, v{V_HR}, v{V_C2}")
    a(f"v_mul_f32 v{T+1}, -v{V_HI}, v{V_C2}")
    a(f"v_fma_f32 v{T}, -v{V_HI}, v{V_C2+1}, v{T}")
    a(f"v_fma_f32 v{V_HI}, -v{V_HR}, v{V_C2+1}, v{T+1}")
    a(f"v_mov_b32 v{V_HR}, v{T}")
    stamp(a, 7)
    a.c("pass 2 + stores")
    a(f"s_mul_i32 s34, s{S_C}, 20")
    a(f"s_add_u32 s34, s34, s{S_S}")
    a(f"s_lshl_b32 s34, s34, 14")
    a(f"s_lshl_b32 s35, s{S_WAVE}, 12")
    a(f"s_add_u32 s34, s34, s35")
    a(f"s_add_u32 s{S_T0}, s34, {WS_H}")
    a(f"s_add_u32 s{S_T1}, s{S_T0}, {10*16384}")
    pr, pi = V_HR, V_HI
    PK = 16
    for m in range(2):
        for r in range(16):
            cr, ci = acc2(m,0)+r, acc2(m,1)+r
            a(f"v_fma_f32 v{cr}, v{V_LR}, v{pr}, v{cr}")
            a(f"v_fma_f32 v{ci}, v{V_LR}, v{pi}, v{ci}")
            a(f"v_fma_f32 v{cr}, v{V_LI}, v{pi}, v{cr}")
            a(f"v_fma_f32 v{ci}, -v{V_LI}, v{pr}, v{ci}")
            pr, pi = cr, ci
            if r % 2 == 1:
                t = 16*m + r
                j, d = t // 8, (t % 8) // 2
                a(f"v_cvt_pk_bf16_f32 v{PK + 4*j + d}, v{cr-1}, v{cr}")
                a(f"v_cvt_pk_bf16_f32 v{PK + 16 + 4*j + d}, v{ci-1}, v{ci}")
                if d == 3:
                    def st(flag):
                        a(f"buffer_store_dwordx4 v[{PK+4*j}:{PK+4*j+3}], v{V_L16}, s[{SRD_WS}:{SRD_WS+3}], s{S_T0} offen offset:{j*1024} {flag}")
                        a(f"buffer_store_dwordx4 v[{PK+16+4*j}:{PK+16+4*j+3}], v{V_L16}, s[{SRD_WS}:{SRD_WS+3}], s{S_T1} offen offset:{j*1024} {flag}")
                    if loc:
                        l1 = a.label("HS"); l2 = a.label("HS")
                        a(f"s_cmp_eq_u32 s{S_FAST}, 1")
                        a(f"s_cbranch_scc1 {l1}")
                        st("sc1")
                        a(f"s_branch {l2}")
                        a(f"{l1}:")
                        st("")
                        a(f"{l2}:")
                    else:
                        st(opts.get('hst', 'sc1'))
    stamp(a, 8)
    a.c("acc init from x tile")
    a(f"v_mov_b32 v{T+4}, {CNT_X}")
    lds_spin(a, T+4, T+6, 4, END)
    XA = T+7
    a(f"v_lshrrev_b32 v{T+8}, 5, v{V_LANE}")
    a(f"v_bfe_u32 v{T+9}, v{V_LANE}, 2, 2")
    a(f"v_lshl_add_u32 v{T+8}, v{T+8}, 2, v{T+9}")
    a(f"s_lshl_b32 s34, s{S_WM}, 6")
    a(f"v_add_u32 v{T+8}, s34, v{T+8}")
    a(f"v_lshlrev_b32 v{XA}, 7, v{T+8}")
    a(f"v_bfe_u32 v{T+8}, v{V_LANE}, 4, 1")
    a(f"v_lshlrev_b32 v{T+8}, 5, v{T+8}")
    a(f"v_and_b32 v{T+9}, 3, v{V_LANE}")
    a(f"v_lshl_add_u32 v{T+8}, v{T+9}, 3, v{T+8}")
    a(f"s_lshl_b32 s34, s{S_WN}, 6")
    a(f"s_add_u32 s34, s34, {L_XT}")
    a(f"v_add_u32 v{T+8}, s34, v{T+8}")
    a(f"v_add_u32 v{XA}, v{XA}, v{T+8}")
    XV = 96
    for m in range(2):
        for q in range(4):
            r = XV + 2*(4*m+q)
            a(f"ds_read_b64_tr_b16 v[{r}:{r+1}], v{XA} offset:{(32*m+8*q)*128}")
    a(f"s_waitcnt lgkmcnt(0)")
    for qi in range(8):
        for h in range(2):
            xv = XV + 2*qi + h
            a0 = G2_ACC + 4*qi + 2*h
            a(f"v_lshlrev_b32 v{a0}, 16, v{xv}")
            a(f"v_and_b32 v{a0+1}, 0xffff0000, v{xv}")
            a(f"v_mul_f32 v{a0}, v{a0}, v{V_DSB}")
            a(f"v_mul_f32 v{a0+1}, v{a0+1}, v{V_DSB}")
            a(f"v_cvt_pk_bf16_f32 v{a0}, v{a0}, v{a0+1}")
            a(f"v_and_b32 v{a0+1}, 0xffff0000, v{a0}")
            a(f"v_lshlrev_b32 v{a0}, 16, v{a0}")
    a(f"v_lshrrev_b32 v{T}, 4, v{V_LANE}")
    a(f"v_bfe_u32 v{T+1}, v{V_LANE}, 2, 2")
    a(f"v_and_b32 v{T+2}, 3, v{V_LANE}")
    a(f"v_and_b32 v{T+3}, 1, v{T}")
    a(f"v_lshlrev_b32 v{T+3}, 1, v{T+3}")
    a(f"v_lshrrev_b32 v{T+4}, 1, v{T+2}")
    a(f"v_add_u32 v{T+3}, v{T+3}, v{T+4}")
    a(f"v_mul_u32_u24 v{T+3}, 1088, v{T+3}")
    a(f"v_lshrrev_b32 v{T+4}, 1, v{T}")
    a(f"v_lshl_add_u32 v{T+4}, v{T+4}, 3, v{T+1}")
    a(f"v_lshl_add_u32 v{T+3}, v{T+4}, 4, v{T+3}")
    a(f"v_and_b32 v{T+4}, 1, v{T+2}")
    a(f"v_lshl_add_u32 v{T+3}, v{T+4}, 3, v{T+3}")
    a(f"s_mul_i32 s34, s{S_WM}, 8704")
    a(f"v_add_u32 v{V_HA}, s34, v{T+3}")
    a(f"v_add_u32 v{V_HA2}, {3*HSLOT}, v{V_HA}")
    for ks in range(4):
        a(f"v_xor_b32 v{2+ks}, {32*ks}, v221")
        a(f"v_add_u32 v{V_CB+ks}, {CBASE}, v{2+ks}")
    a(f"s_waitcnt vmcnt(0)")
    a(f"v_mov_b32 v{T+4}, {CNT_H}")
    a(f"v_mov_b32 v{T+5}, 1")
    a(f"s_mov_b64 s[{S_EXEC}:{S_EXEC+1}], exec")
    a(f"s_mov_b64 exec, 1")
    a(f"ds_add_rtn_u32 v{T+6}, v{T+4}, v{T+5}")
    a(f"s_waitcnt lgkmcnt(0)")
    a(f"v_readfirstlane_b32 s{S_T3}, v{T+6}")
    lab_nf = a.label("NOHF")
    a(f"s_nop 0")
    a(f"s_cmp_lg_u32 s{S_T3}, 3")
    a(f"s_cbranch_scc1 {lab_nf}")
    a(f"s_lshl_b32 s34, s{S_C}, 7")
    a(f"s_lshl_b32 s35, s{S_S}, 3")
    a(f"s_add_u32 s34, s34, s35")
    a(f"s_add_u32 s34, s34, {WS_FLAG}")
    a(f"v_mov_b32 v{G}, s{S_NONCE}")
    a(f"v_mov_b32 v{G+1}, s{S_NONCE+1}")
    if loc:
        l1 = a.label("HF"); l2 = a.label("HF")
        a(f"s_cmp_eq_u32 s{S_FAST}, 1")
        a(f"s_cbranch_scc1 {l1}")
        a(f"buffer_store_dwordx2 v[{G}:{G+1}], v{V_ZERO}, s[{SRD_WS}:{SRD_WS+3}], s34 offen sc1")
        a(f"s_branch {l2}")
        a(f"{l1}:")
        a(f"buffer_store_dwordx2 v[{G}:{G+1}], v{V_ZERO}, s[{SRD_WS}:{SRD_WS+3}], s34 offen")
        a(f"{l2}:")
    else:
        a(f"buffer_store_dwordx2 v[{G}:{G+1}], v{V_ZERO}, s[{SRD_WS}:{SRD_WS+3}], s34 offen {opts.get('hst', 'sc1')}")
    a(f"{lab_nf}:")
    a(f"s_mov_b64 exec, s[{S_EXEC}:{S_EXEC+1}]")
    stamp(a, 9)
    a(f"v_mov_b32 v{T+4-T+240}, {CNT_C}")
    lds_spin(a, 244, 245, 4, END)
    n = 0
    for ch in range(NREG):
        for ks in range(4):
            r = V_CREG + 16*ch + 4*ks
            off = L_CST + ch*8192
            reg = 2 + ks
            if off >= 65536:
                a(f"v_add_u32 v246, {off}, v{reg}")
                a(f"ds_read_b128 v[{r}:{r+3}], v246")
            else:
                a(f"ds_read_b128 v[{r}:{r+3}], v{reg} offset:{off}")
            n += 1
            if n % 12 == 0: a(f"s_waitcnt lgkmcnt(4)")
    a(f"s_waitcnt lgkmcnt(0)")
    a(f"v_mov_b32 v244, {CNT_R}")
    a(f"v_mov_b32 v245, 1")
    lds_inc(a, 244, 245)
    stamp(a, 10)
    a(f"s_barrier")
    stamp(a, 11)
    D2 = G2_NS - 1
    for k0 in range(D2):
        for ins in g2_reads(0, k0): a(ins)
    NST = 20
    for it in range(NST):
        for ks in range(4):
            gidx = 4*it + ks
            rem = 0
            for g2 in range(gidx + 1, min(gidx + D2, 4*NST)):
                rem += len(g2_reads(g2 // 4, g2 % 4))
            a(f"s_waitcnt lgkmcnt({rem})")
            fill = []
            nx = gidx + D2
            if nx < 4*NST:
                nit, nks = nx // 4, nx % 4
                if nks == 0: a(f"s_barrier")
                fill += g2_reads(nit, nks)
            interleave(a, g2_mfmas(it, ks), fill)
    stamp(a, 12)
    a(f"s_barrier")
    stamp(a, 13)
    a(f"v_and_b32 v{T}, 31, v{V_LANE}")
    a(f"s_lshl_b32 s34, s{S_WN}, 5")
    a(f"v_add_u32 v{T}, s34, v{T}")
    a(f"v_lshrrev_b32 v{T+3}, 5, v{V_LANE}")
    a(f"v_and_b32 v{T+1}, 15, v{T}")
    a(f"s_lshl_b32 s34, s{S_WM}, 3")
    a(f"v_xor_b32 v{T+1}, s34, v{T+1}")
    a(f"v_lshlrev_b32 v{T+2}, 8, v{T}")
    a(f"v_lshl_add_u32 v{T+2}, v{T+3}, 3, v{T+2}")
    a(f"v_add_u32 v{T+2}, {L_AT}, v{T+2}")
    AV = 96
    for m in range(2):
        for q in range(4):
            r = AV + 2*(4*m+q)
            a(f"v_xor_b32 v{T+4}, {4*m+q}, v{T+1}")
            a(f"v_lshl_add_u32 v{T+4}, v{T+4}, 4, v{T+2}")
            a(f"ds_read_b64 v[{r}:{r+1}], v{T+4}")
    GA = T+5
    a(f"s_lshl_b32 s34, s{S_WM}, 9")
    a(f"s_add_u32 s34, s34, {L_G}")
    a(f"v_lshlrev_b32 v{GA}, 5, v{T+3}")
    a(f"v_add_u32 v{GA}, s34, v{GA}")
    GV = 112
    for m in range(2):
        for q in range(4):
            gb = GV + 8*(4*m+q)
            a(f"ds_read_b128 v[{gb}:{gb+3}], v{GA} offset:{(32*m+8*q)*8}")
            a(f"ds_read_b128 v[{gb+4}:{gb+7}], v{GA} offset:{(32*m+8*q)*8+16}")
            if (4*m+q) == 2: a("s_waitcnt lgkmcnt(6)")
            if (4*m+q) == 5: a("s_waitcnt lgkmcnt(6)")
    OV = T+6
    a(f"v_mul_u32_u24 v{OV}, 2560, v{T+3}")
    a(f"s_lshl_b32 s34, s{S_S}, 6")
    a(f"v_add_u32 v{OV}, v{OV}, v{T}")
    a(f"v_add_u32 v{OV}, s34, v{OV}")
    a(f"v_lshlrev_b32 v{OV}, 2, v{OV}")
    a(f"s_lshl_b32 s34, s{S_C}, 7")
    a(f"s_lshl_b32 s35, s{S_WM}, 6")
    a(f"s_add_u32 s34, s34, s35")
    a(f"s_mul_i32 s{S_T2}, s34, 2560")
    a(f"s_waitcnt lgkmcnt(0)")
    W = 180
    for m in range(2):
        for q in range(4):
            qi = 4*m+q
            gb = GV + 8*qi
            for h in range(2):
                av = AV + 2*qi + h
                a0 = G2_ACC + 16*m + 4*q + 2*h
                w = W + 2*h
                a(f"v_lshlrev_b32 v{w}, 16, v{av}")
                a(f"v_and_b32 v{w+1}, 0xffff0000, v{av}")
                a(f"v_mul_f32 v{w}, v{w}, v{gb+4*h}")
                a(f"v_mul_f32 v{w+1}, v{w+1}, v{gb+4*h+2}")
                a(f"v_cvt_pk_bf16_f32 v{w}, v{w}, v{w+1}")
                a(f"v_and_b32 v{w+1}, 0xffff0000, v{w}")
                a(f"v_lshlrev_b32 v{w}, 16, v{w}")
                a(f"v_fma_f32 v{a0}, v{gb+4*h+1}, v{a0}, v{w}")
                a(f"v_fma_f32 v{a0+1}, v{gb+4*h+3}, v{a0+1}, v{w+1}")
                for e in range(2):
                    row = 32*m + 8*q + 2*h + e
                    a(f"s_add_u32 s35, s{S_T2}, {row*2560}")
                    a(f"buffer_store_dword v{a0+e}, v{OV}, s[{SRD_C}:{SRD_C+3}], s35 offen {opts.get('ost', '')}")
    stamp(a, 15)
    if PROF["on"]:
        a("s_waitcnt vmcnt(0)")
        stamp(a, 16)
    prof_end(a, opts.get("profwave", 0))

def gen_gemm(a, END, opts):
    a.c("================= GEMM role v2 =================")
    if opts.get("map45", True):
        a(f"s_mul_i32 s34, s31, 52")
        a(f"s_lshr_b32 s34, s34, 8")
        a(f"s_mul_i32 s35, s34, 5")
        a(f"s_sub_u32 s35, s31, s35")
        a(f"s_lshr_b32 s93, s30, 1")
        a(f"s_and_b32 s94, s30, 1")
        a(f"s_lshl_b32 s{S_C}, s93, 2")
        a(f"s_add_u32 s{S_C}, s{S_C}, s34")
        a(f"s_mul_i32 s{S_S}, s94, 5")
        a(f"s_add_u32 s{S_S}, s{S_S}, s35")
        a(f"s_lshl_b32 s35, s35, 1")
        a(f"s_add_u32 s35, s35, s94")
        a(f"s_add_u32 s35, s35, s93")
        a(f"s_mul_i32 s34, s34, 5")
        a(f"s_lshr_b32 s34, s34, 1")
        a(f"s_add_u32 s93, s35, s34")
        a(f"s_cmp_ge_u32 s93, 10")
        a(f"s_cselect_b32 s34, 10, 0")
        a(f"s_sub_u32 s93, s93, s34")
    else:
        a(f"s_mov_b32 s93, s30")
        a(f"s_cmp_ge_u32 s31, 10")
        a(f"s_cselect_b32 s34, 1, 0")
        a(f"s_cselect_b32 s35, 10, 0")
        a(f"s_lshl_b32 s30, s30, 1")
        a(f"s_add_u32 s{S_C}, s30, s34")
        a(f"s_sub_u32 s{S_S}, s31, s35")
        a(f"s_mul_i32 s34, s34, 5")
        a(f"s_add_u32 s93, s93, s34")
        a(f"s_add_u32 s93, s93, s{S_S}")
        for _ in range(2):
            a(f"s_cmp_ge_u32 s93, 10")
            a(f"s_cselect_b32 s34, 10, 0")
            a(f"s_sub_u32 s93, s93, s34")
    a(f"s_cmp_ge_u32 s{S_WAVE}, 4")
    a(f"s_cbranch_scc1 L_LOADER")
    gen_compute(a, END, opts)
    a(f"s_branch {END}")
    a("L_LOADER:")
    gen_loader(a, END, opts)
```

```python
from common import *
from g1 import (S_C, S_S, S_WM, S_WN, S_SX, S_SB, S_KC, S_T0, S_T1, S_M0X, S_CNT, S_MISM, S_T2, S_T3, S_EXEC,
                V_LANE, V_VOFF, V_AA, V_BA, V_FR, V_ACC, V_ACC2, V_LR, V_LI, V_C2, V_L32, V_L128, V_ER, V_EI, V_HR, V_HI,
                V_NON, V_T, V_ZERO, V_L16, V_EOFF, acc, acc2, cmul, cfma, g1_reads, g1_mfmas, interleave)
from g2 import poll_flags

HSLOT = 17408
NHS = 6
CBASE = NHS * HSLOT
NCS = 5
NREG = 9
L_EX = CBASE + NCS*8192
L_G = L_EX + 2048
L_CNT = L_G + 1024
CNT_EX, CNT_H, CNT_X, CNT_F, CNT_E, CNT_C, CNT_R, CNT_HX0, CNT_HX1, CNT_P = [L_CNT + 4*i for i in range(10)]
L_HX = L_CNT + 64
L_CST = 0
L_XT = NREG * 8192
L_AT = 2 * HSLOT
V_CREG = 96
S_LW = 83
S_DONE = 90
S_KY, S_KB = 98, 99
S_FAST = 100
V_XC = 222

def lds_spin(a, vaddr, vtmp, target, END, sleep=False):
    lp = a.label("SPIN"); ok = a.label("SPOK")
    a(f"s_mov_b32 s{S_CNT}, 2000000")
    a(f"{lp}:")
    a(f"ds_read_b32 v{vtmp}, v{vaddr}")
    a(f"s_waitcnt lgkmcnt(0)")
    a(f"v_readfirstlane_b32 s{S_T3}, v{vtmp}")
    a(f"s_nop 0")
    a(f"s_cmp_ge_u32 s{S_T3}, {target}")
    a(f"s_cbranch_scc1 {ok}")
    a(f"s_sleep 1")
    a(f"s_sub_u32 s{S_CNT}, s{S_CNT}, 1")
    a(f"s_cbranch_scc0 {lp}")
    a(f"{ok}:")

def lds_inc(a, vaddr, vone):
    a(f"s_mov_b64 s[{S_EXEC}:{S_EXEC+1}], exec")
    a(f"s_mov_b64 exec, 1")
    a(f"ds_add_u32 v{vaddr}, v{vone}")
    a(f"s_mov_b64 exec, s[{S_EXEC}:{S_EXEC+1}]")

def ld_g1_dma(a, it):
    slot = it % 4
    a(f"s_lshl_b32 s{S_T0}, s{S_KC}, 7")
    a(f"s_add_u32 s{S_T1}, s{S_T0}, s{S_SB}")
    a(f"s_add_u32 s{S_T0}, s{S_T0}, s{S_SX}")
    for jj in range(4):
        a(f"s_add_u32 m0, s{S_M0X}, {slot*16384 + jj*1024}")
        a(f"s_nop 0")
        a(f"buffer_load_dwordx4 v{V_VOFF+jj}, s[{SRD_X}:{SRD_X+3}], s{S_T0} offen lds")
        a(f"s_add_u32 m0, s{S_M0X}, {65536 + slot*16384 + jj*1024}")
        a(f"s_nop 0")
        a(f"buffer_load_dwordx4 v{V_VOFF+jj}, s[{SRD_A}:{SRD_A+3}], s{S_T1} offen lds")
    a(f"s_add_u32 s{S_KC}, s{S_KC}, 1")
    a(f"s_cmp_eq_u32 s{S_KC}, 10")
    a(f"s_cselect_b32 s{S_KC}, 0, s{S_KC}")

S_HB, S_CB, S_SP, S_SPC = 76, 77, 78, 91
S_M0H, S_M0C = 81, 92

def ld_c_chunk(a, ch):
    plane = ch & 1
    dst = L_CST + ch*8192 if ch < NREG else CBASE + ((ch - NREG) % NCS)*8192
    srd = SRD_C if plane else SRD_B
    a(f"s_lshl_b32 s{S_T1}, s{S_SPC}, 7")
    a(f"s_add_u32 s{S_T1}, s{S_T1}, s{S_CB}")
    for jj in range(2):
        a(f"s_add_u32 m0, s{S_M0C}, {dst + jj*1024}")
        a(f"s_nop 0")
        a(f"buffer_load_dwordx4 v{V_VOFF+jj}, s[{srd}:{srd+3}], s{S_T1} offen lds")
    if plane:
        a(f"s_add_u32 s{S_SPC}, s{S_SPC}, 1")
        a(f"s_cmp_eq_u32 s{S_SPC}, 10")
        a(f"s_cselect_b32 s{S_SPC}, 0, s{S_SPC}")

HSC = {"v": "sc1"}
def ld_h_stage(a, it):
    slot = it % NHS
    plane = it & 1
    a(f"s_lshl_b32 s{S_T0}, s{S_SP}, 14")
    a(f"s_add_u32 s{S_T0}, s{S_T0}, s{S_HB}")
    if plane: a(f"s_add_u32 s{S_T0}, s{S_T0}, {10*16384}")
    for jj in range(4):
        a(f"s_add_u32 m0, s{S_M0H}, {slot*HSLOT + jj*64}")
        a(f"s_nop 0")
        a(f"buffer_load_dwordx4 v{V_L16}, s[{SRD_WS}:{SRD_WS+3}], s{S_T0} offen offset:{jj*1024} {HSC['v']} lds")
    if plane:
        a(f"s_add_u32 s{S_SP}, s{S_SP}, 1")
        a(f"s_cmp_eq_u32 s{S_SP}, 10")
        a(f"s_cselect_b32 s{S_SP}, 0, s{S_SP}")

def ld_a_tile(a, T):
    a(f"v_lshrrev_b32 v{T}, 4, v{V_LANE}")
    a(f"v_and_b32 v{T+1}, 15, v{V_LANE}")
    a(f"s_lshl_b32 s34, s{S_S}, 6")
    a(f"s_lshl_b32 s35, s{S_LW}, 4")
    a(f"s_add_u32 s34, s34, s35")
    a(f"s_lshl_b32 s34, s34, 12")
    a(f"s_lshl_b32 s35, s{S_C}, 8")
    a(f"s_add_u32 s34, s34, s35")
    a(f"s_add_u32 s34, s34, {WS_A}")
    a(f"s_lshl_b32 s{S_T2}, s{S_LW}, 12")
    a(f"s_add_u32 s{S_T2}, s{S_T2}, {L_AT}")
    for jj in range(4):
        a(f"v_add_u32 v{T+2}, {4*jj}, v{T}")
        a(f"v_xor_b32 v{T+2}, v{T+2}, v{T+1}")
        a(f"v_lshlrev_b32 v{T+2}, 4, v{T+2}")
        a(f"v_lshl_add_u32 v{T+3+jj}, v{T}, 12, v{T+2}")
    for jj in range(4):
        a(f"s_add_u32 m0, s{S_T2}, {jj*1024}")
        a(f"s_add_u32 s35, s34, {jj*4*4096}")
        a(f"buffer_load_dwordx4 v{T+3+jj}, s[{SRD_WS}:{SRD_WS+3}], s35 offen sc1 lds")
    a(f"s_lshl_b32 s34, s{S_C}, 10")
    a(f"s_add_u32 s34, s34, {WS_G}")
    a(f"s_mov_b32 m0, {L_G}")
    a(f"s_nop 0")
    a(f"buffer_load_dwordx4 v{V_L16}, s[{SRD_WS}:{SRD_WS+3}], s34 offen sc1 lds")

def gen_loader(a, END, opts):
    HSC["v"] = opts.get("hsc", "sc1")
    a.c("---------- loader waves ----------")
    T = V_T
    a(f"s_sub_u32 s{S_LW}, s{S_WAVE}, 4")
    a(f"s_cmp_ge_u32 s{S_LW}, 2")
    a(f"s_cselect_b32 s{SRD_A}, s{P_BIM}, s{P_BRE}")
    a(f"s_cselect_b32 s{SRD_A+1}, s{P_BIM+1}, s{P_BRE+1}")
    a(f"s_and_b32 s{SRD_A+1}, s{SRD_A+1}, 0xffff")
    a(f"s_mov_b32 s{SRD_A+2}, 819200")
    a(f"s_mov_b32 s{SRD_A+3}, 0x00020000")
    a(f"v_lshrrev_b32 v{T+5}, 3, v{V_LANE}")
    a(f"v_mul_u32_u24 v{T+5}, 1280, v{T+5}")
    a(f"v_and_b32 v{T+6}, 7, v{V_LANE}")
    a(f"v_lshrrev_b32 v{T+7}, 4, v{V_LANE}")
    a(f"v_xor_b32 v{T+6}, v{T+6}, v{T+7}")
    a(f"v_lshl_add_u32 v{V_VOFF}, v{T+6}, 4, v{T+5}")
    a(f"v_xor_b32 v{V_VOFF+1}, 64, v{V_VOFF}")
    a(f"v_add_u32 v{V_VOFF+1}, 10240, v{V_VOFF+1}")
    a(f"v_add_u32 v{V_VOFF+2}, 20480, v{V_VOFF}")
    a(f"v_add_u32 v{V_VOFF+3}, 20480, v{V_VOFF+1}")
    a(f"s_lshl_b32 s34, s{S_C}, 7")
    a(f"s_lshl_b32 s35, s{S_LW}, 5")
    a(f"s_add_u32 s34, s34, s35")
    a(f"s_mul_i32 s{S_SX}, s34, 1280")
    a(f"s_lshl_b32 s34, s{S_S}, 6")
    a(f"s_and_b32 s35, s{S_LW}, 1")
    a(f"s_lshl_b32 s35, s35, 5")
    a(f"s_add_u32 s34, s34, s35")
    a(f"s_mul_i32 s{S_SB}, s34, 1280")
    a(f"s_lshl_b32 s{S_M0X}, s{S_LW}, 12")
    a(f"s_mov_b32 s{S_KC}, s93")
    for it in range(2): ld_g1_dma(a, it)
    stamp(a, 1)
    a(f"v_mov_b32 v{V_ZERO}, 0")
    a(f"v_lshlrev_b32 v{V_L16}, 4, v{V_LANE}")
    a(f"s_waitcnt vmcnt(8)")
    a(f"s_barrier")
    ld_g1_dma(a, 2)
    for nit in range(1, 10):
        a(f"s_waitcnt vmcnt({0 if nit == 9 else 8})")
        if opts.get("profl"): stamp(a, 9 + nit)
        a(f"s_barrier")
        if nit + 2 < 10: ld_g1_dma(a, nit + 2)
    a(f"s_barrier")
    stamp(a, 2)
    make_srd(a, SRD_B, P_C2RE, 819200)
    make_srd(a, SRD_C, P_C2IM, 819200)
    a(f"buffer_load_dwordx2 v[{V_NON}:{V_NON+1}], v{V_ZERO}, s[{SRD_DBG}:{SRD_DBG+3}], 0 offen sc1")
    if opts.get("pwait", True):
        a(f"v_mov_b32 v{T+4}, {CNT_EX if opts.get('pwex') else CNT_P}")
        lds_spin(a, T+4, T+6, 4, END)
    a(f"v_lshrrev_b32 v{T}, 3, v{V_LANE}")
    a(f"v_mul_u32_u24 v{T}, 1280, v{T}")
    a(f"v_and_b32 v{T+1}, 7, v{V_LANE}")
    a(f"v_lshl_add_u32 v{T}, v{T+1}, 4, v{T}")
    a(f"s_lshl_b32 s35, s{S_S}, 7")
    a(f"s_add_u32 s34, s{S_SX}, s35")
    a(f"s_add_u32 s{S_T2}, s{S_M0X}, {L_XT}")
    for jj in range(4):
        a(f"s_add_u32 m0, s{S_T2}, {jj*1024}")
        a(f"s_add_u32 s35, s34, {jj*10240}")
        a(f"buffer_load_dwordx4 v{T}, s[{SRD_X}:{SRD_X+3}], s35 offen lds")
    if opts.get("cwait", False):
        a(f"v_mov_b32 v{T+4}, {CNT_E}")
        lds_spin(a, T+4, T+6, 4, END, sleep=True)
    a(f"s_lshl_b32 s34, s{S_S}, 6")
    a(f"s_lshl_b32 s35, s{S_LW}, 4")
    a(f"s_add_u32 s34, s34, s35")
    a(f"s_mul_i32 s{S_CB}, s34, 1280")
    a(f"s_mov_b32 s{S_SPC}, s93")
    a(f"s_mov_b32 s94, s{S_SPC}")
    a(f"s_lshl_b32 s{S_M0C}, s{S_LW}, 11")
    thr = opts.get("cthr", 2)
    for ch in range(NREG + NCS):
        ld_c_chunk(a, ch)
        if thr: a(f"s_waitcnt vmcnt({thr})")
        if ch == 3:
            if not thr or thr > 8: a(f"s_waitcnt vmcnt(8)")
            a(f"v_mov_b32 v{T+4}, {CNT_X}")
            a(f"v_mov_b32 v{T+5}, 1")
            lds_inc(a, T+4, T+5)
        if opts.get("profc"): stamp(a, 10 + ch)
    a(f"s_waitcnt vmcnt(0)")
    a(f"v_mov_b32 v{T+4}, {CNT_C}")
    a(f"v_mov_b32 v{T+5}, 1")
    lds_inc(a, T+4, T+5)
    if opts.get("touchc", True):
        a(f"v_lshrrev_b32 v{T+6}, 2, v{V_LANE}")
        a(f"v_mul_u32_u24 v{T+6}, 1280, v{T+6}")
        a(f"v_and_b32 v{T+7}, 3, v{V_LANE}")
        a(f"v_lshl_add_u32 v{T+6}, v{T+7}, 6, v{T+6}")
        a(f"s_mov_b32 s{S_T2}, s{S_SPC}")
        for k in range(2):
            for srd in (SRD_B, SRD_C):
                a(f"s_lshl_b32 s{S_T1}, s{S_T2}, 7")
                a(f"s_add_u32 s{S_T1}, s{S_T1}, s{S_CB}")
                a(f"buffer_load_dword v{T+8}, v{T+6}, s[{srd}:{srd+3}], s{S_T1} offen")
                if thr: a(f"s_waitcnt vmcnt(1)")
            a(f"s_add_u32 s{S_T2}, s{S_T2}, 2")
            a(f"s_cmp_ge_u32 s{S_T2}, 10")
            a(f"s_cselect_b32 s34, 10, 0")
            a(f"s_sub_u32 s{S_T2}, s{S_T2}, s34")
    stamp(a, 3)
    lp = a.label("LNP"); ok = a.label("LNOK")
    a(f"s_mov_b32 s{S_CNT}, 100000")
    a(f"s_waitcnt vmcnt(0)")
    a(f"{lp}:")
    a(f"v_readfirstlane_b32 s{S_NONCE}, v{V_NON}")
    a(f"v_readfirstlane_b32 s{S_NONCE+1}, v{V_NON+1}")
    a(f"s_nop 0")
    a(f"s_cmp_lg_u32 s{S_NONCE}, 0")
    a(f"s_cbranch_scc1 {ok}")
    poll_timeout(a, S_CNT, END)
    a(f"buffer_load_dwordx2 v[{V_NON}:{V_NON+1}], v{V_ZERO}, s[{SRD_DBG}:{SRD_DBG+3}], 0 offen sc1")
    a(f"s_waitcnt vmcnt(0)")
    a(f"s_branch {lp}")
    a(f"{ok}:")
    stamp(a, 4)
    a(f"s_mul_i32 s34, s{S_C}, {20*16384}")
    a(f"s_lshl_b32 s35, s{S_LW}, 12")
    a(f"s_add_u32 s34, s34, s35")
    a(f"s_add_u32 s{S_HB}, s34, {WS_H}")
    a(f"s_mov_b32 s{S_SP}, s94")
    a(f"s_mul_i32 s{S_M0H}, s{S_LW}, 4352")
    labp = a.label("HP1"); labq = a.label("HP2")
    a(f"v_mov_b32 v{T+4}, {CNT_F}")
    a(f"s_cmp_lg_u32 s{S_LW}, 0")
    a(f"s_cbranch_scc1 {labp}")
    a(f"s_lshl_b32 s34, s{S_C}, 7")
    a(f"s_add_u32 s34, s34, {WS_FLAG}")
    poll_flags(a, END, 34, 10, T, T+2)
    a(f"v_mov_b32 v{T+5}, 1")
    lds_inc(a, T+4, T+5)
    a(f"s_branch {labq}")
    a(f"{labp}:")
    lds_spin(a, T+4, T+6, 1, END)
    a(f"{labq}:")
    stamp(a, 5)
    a(f"v_mov_b32 v{T+4}, {CNT_R}")
    lds_spin(a, T+4, T+6, 4, END)
    stamp(a, 8)
    PF = NHS - 2
    for it in range(PF): ld_h_stage(a, it)
    stamp(a, 9)
    a(f"s_waitcnt vmcnt({4*(PF-1)})")
    a(f"s_barrier")
    stamp(a, 6)
    a(f"s_mov_b32 s{S_DONE}, 0")
    FL = T + 10
    q = [("h", k, 4) for k in range(1, PF)]
    ld_h_stage(a, PF); q.append(("h", PF, 4))
    for nit in range(1, 20):
        idx = max(i for i, e in enumerate(q) if (e[0] == "h" and e[1] == nit) or (e[0] == "c" and e[1] == nit))
        rem = sum(e[2] for e in q[idx+1:])
        a(f"s_waitcnt vmcnt({min(rem, 63)})")
        if opts.get("profl") and nit <= 12: stamp(a, 19 + nit)
        if opts.get("profl2") and nit >= 8: stamp(a, 2 + nit)
        q = q[idx+1:]
        a(f"s_barrier")
        ch = nit - 2 + NCS
        if ch >= NREG + NCS and ch < 20:
            ld_c_chunk(a, ch); q.append(("c", ch, 2))
        if nit + PF < 20:
            ld_h_stage(a, nit + PF); q.append(("h", nit + PF, 4))
        if nit == 12:
            a(f"v_lshlrev_b32 v{T}, 3, v{V_LANE}")
            a(f"s_lshl_b32 s34, s{S_S}, 7")
            a(f"s_add_u32 s34, s34, {WS_AFLG}")
            a(f"v_add_u32 v{T}, s34, v{T}")
            a(f"s_lshl_b32 s34, s{S_C}, 7")
            a(f"s_add_u32 s34, s34, {WS_FLAG + 80}")
            a(f"v_mov_b32 v{T+1}, s34")
            a(f"v_cmp_eq_u32 vcc, 8, v{V_LANE}")
            a(f"s_nop 1")
            a(f"v_cndmask_b32 v{T+14}, v{T}, v{T+1}, vcc")
            a(f"s_mov_b64 s[{S_EXEC}:{S_EXEC+1}], exec")
            a(f"s_mov_b64 exec, 0x1ff")
            a(f"buffer_load_dwordx2 v[{FL}:{FL+1}], v{T+14}, s[{SRD_WS}:{SRD_WS+3}], 0 offen sc1")
            a(f"s_mov_b64 exec, s[{S_EXEC}:{S_EXEC+1}]")
            q.append(("f", 0, 1))
        if nit == 17:
            if any(e[0] == "f" for e in q):
                idf = max(i for i, e in enumerate(q) if e[0] == "f")
                a(f"s_waitcnt vmcnt({sum(e[2] for e in q[idf+1:])})")
                q = q[idf+1:]
            lab = a.label("ANR")
            a(f"s_mov_b64 s[{S_EXEC}:{S_EXEC+1}], exec")
            a(f"s_mov_b64 exec, 0x1ff")
            a(f"v_cmp_ne_u64 vcc, s[{S_NONCE}:{S_NONCE+1}], v[{FL}:{FL+1}]")
            a(f"s_mov_b64 exec, s[{S_EXEC}:{S_EXEC+1}]")
            a(f"s_cmp_lg_u64 vcc, 0")
            a(f"s_cbranch_scc1 {lab}")
            ld_a_tile(a, T)
            a(f"s_mov_b32 s{S_DONE}, 1")
            lab2 = a.label("ANR2")
            a(f"s_branch {lab2}")
            a(f"{lab}:")
            for _ in range(5):
                a(f"buffer_load_dword v{T+8}, v{V_ZERO}, s[{SRD_X}:{SRD_X+3}], 0 offen")
            a(f"{lab2}:")
            q.append(("a", 0, 5))
    lab = a.label("ADONE")
    a(f"s_cmp_eq_u32 s{S_DONE}, 1")
    a(f"s_cbranch_scc1 {lab}")
    lp = a.label("AGP"); ld = a.label("AGD")
    a(f"s_mov_b32 s{S_CNT}, 100000")
    a(f"s_mov_b64 s[{S_EXEC}:{S_EXEC+1}], exec")
    a(f"s_mov_b64 exec, 0x1ff")
    a(f"{lp}:")
    a(f"buffer_load_dwordx2 v[{FL}:{FL+1}], v{T+14}, s[{SRD_WS}:{SRD_WS+3}], 0 offen sc1")
    a(f"s_waitcnt vmcnt(0)")
    a(f"v_cmp_ne_u64 vcc, s[{S_NONCE}:{S_NONCE+1}], v[{FL}:{FL+1}]")
    a(f"s_cmp_eq_u64 vcc, 0")
    a(f"s_cbranch_scc1 {ld}")
    a(f"s_sleep 1")
    a(f"s_sub_u32 s{S_CNT}, s{S_CNT}, 1")
    a(f"s_cbranch_scc0 {lp}")
    a(f"{ld}:")
    a(f"s_mov_b64 exec, s[{S_EXEC}:{S_EXEC+1}]")
    ld_a_tile(a, T)
    a(f"{lab}:")
    a(f"s_waitcnt vmcnt(0)")
    stamp(a, 7)
    a(f"s_barrier")
    prof_end(a, 4, 32768)
    a(f"s_branch {END}")

G2_FR = 16
G2_ACC = 64
V_HA = 6
V_CB = 10
V_HA2 = 7

G2_NS = 4
def g2_reads(it, ks):
    slot = it % NHS
    st = G2_FR + 12 * ((4*it + ks) % G2_NS)
    base = slot*HSLOT + (ks >> 1)*4352 + (ks & 1)*256
    out = []
    for m in range(2):
        for half in range(2):
            off = base + m*512 + half*64
            reg = V_HA if off < 65536 else V_HA2
            if off >= 65536: off -= 3*HSLOT
            out.append(f"ds_read_b64_tr_b16 v[{st+4*m+2*half}:{st+4*m+2*half+1}], v{reg} offset:{off}")
    if it >= NREG:
        cs = (it - NREG) % NCS
        out.append(f"ds_read_b128 v[{st+8}:{st+11}], v{V_CB+ks} offset:{cs*8192}")
    return out

def g2_mfmas(it, ks):
    st = G2_FR + 12 * ((4*it + ks) % G2_NS)
    out = []
    b = (V_CREG + 16*it + 4*ks) if it < NREG else st + 8
    for m in range(2):
        d = G2_ACC + 16*m
        out.append(f"v_mfma_f32_32x32x16_bf16 v[{d}:{d+15}], v[{st+4*m}:{st+4*m+3}], v[{b}:{b+3}], v[{d}:{d+15}]")
    return out

def gen_compute(a, END, opts):
    a.c("---------- compute waves ----------")
    T = V_T
    a(f"s_lshr_b32 s{S_WM}, s{S_WAVE}, 1")
    a(f"s_and_b32 s{S_WN}, s{S_WAVE}, 1")
    lab = a.label("NOINIT")
    a(f"s_cmp_lg_u32 s{S_WAVE}, 0")
    a(f"s_cbranch_scc1 {lab}")
    a(f"v_lshlrev_b32 v{T}, 2, v{V_LANE}")
    a(f"v_add_u32 v{T}, {L_CNT}, v{T}")
    a(f"v_mov_b32 v{T+1}, 0")
    a(f"s_mov_b64 exec, 0xffff")
    a(f"ds_write_b32 v{T}, v{T+1}")
    a(f"s_mov_b64 exec, -1")
    a(f"{lab}:")
    loc = opts.get("local")
    kofl = opts.get("kofl")
    if kofl:
        import conv2
        a(f"s_mul_i32 s34, s{S_C}, 10")
        a(f"s_add_u32 s34, s34, s{S_S}")
        a(f"s_lshl_b32 s34, s34, 1")
        a(f"s_add_u32 s{S_KY}, s34, s{S_WN}")
        a(f"s_lshr_b32 s34, s{S_KY}, 2")
        a(f"s_lshl_b32 s34, s34, 3")
        a(f"s_and_b32 s35, s{S_KY}, 3")
        a(f"s_add_u32 s34, s34, s35")
        a(f"s_add_u32 s34, s34, 4")
        a(f"v_lshlrev_b32 v2, 2, v{V_LANE}")
        a(f"s_lshl_b32 s35, s34, 8")
        for k, P in enumerate([P_LOGA, P_AIM, P_CRE, P_CIM]):
            make_srd(a, SRD_A, P, 163840)
            a(f"buffer_load_dword v{conv2.V_PRM+k}, v2, s[{SRD_A}:{SRD_A+3}], s35 offen")
        a(f"s_lshl_b32 s35, s34, 1")
        a(f"v_mov_b32 v3, 0")
        make_srd(a, SRD_A, P_LOGDT, 1280)
        a(f"buffer_load_ushort v{conv2.V_PRM+4}, v3, s[{SRD_A}:{SRD_A+3}], s35 offen")
        a(f"buffer_load_dwordx2 v[{V_NON}:{V_NON+1}], v3, s[{SRD_DBG}:{SRD_DBG+3}], 0 offen sc1")
    a(f"v_and_b32 v{T}, 31, v{V_LANE}")
    a(f"s_lshl_b32 s34, s{S_S}, 6")
    a(f"s_lshl_b32 s35, s{S_WN}, 5")
    a(f"s_add_u32 s34, s34, s35")
    a(f"v_add_u32 v{T+1}, s34, v{T}")
    a(f"v_lshlrev_b32 v{V_EOFF}, 4, v{T+1}")
    a(f"v_lshlrev_b32 v{T+1}, 1, v{T+1}")
    make_srd(a, SRD_B, P_LRE, 1280)
    a(f"buffer_load_ushort v{T+2}, v{T+1}, s[{SRD_B}:{SRD_B+3}], 0 offen")
    make_srd(a, SRD_A, P_LIM, 1280)
    a(f"buffer_load_ushort v{T+3}, v{T+1}, s[{SRD_A}:{SRD_A+3}], 0 offen")
    make_srd(a, 92, P_LOGDTB, 1280)
    a(f"buffer_load_ushort v{T+4}, v{T+1}, s[92:95], 0 offen")
    V_DSB = 227
    make_srd(a, SRD_B, P_DSKB, 1280)
    a(f"buffer_load_ushort v{V_DSB}, v{T+1}, s[{SRD_B}:{SRD_B+3}], 0 offen")
    make_srd(a, SRD_C, P_OUT, 5242880)
    a(f"v_and_b32 v{T+5}, 31, v{V_LANE}")
    a(f"v_lshrrev_b32 v{T+6}, 5, v{V_LANE}")
    a(f"v_bfe_u32 v{T+7}, v{T+5}, 2, 1")
    a(f"v_lshlrev_b32 v{T+7}, 5, v{T+7}")
    a(f"v_lshrrev_b32 v{T+8}, 3, v{T+5}")
    a(f"v_lshl_add_u32 v{T+7}, v{T+8}, 2, v{T+7}")
    a(f"v_and_b32 v{T+8}, 3, v{T+5}")
    a(f"v_add_u32 v{T+7}, v{T+7}, v{T+8}")
    a(f"s_lshl_b32 s34, s{S_WM}, 6")
    a(f"v_add_u32 v{T+7}, s34, v{T+7}")
    a(f"v_bfe_u32 v{T+8}, v{T+7}, 1, 3")
    a(f"v_xor_b32 v{T+8}, v{T+8}, v{T+6}")
    a(f"v_lshlrev_b32 v{T+8}, 4, v{T+8}")
    a(f"v_lshl_add_u32 v{V_AA}, v{T+7}, 7, v{T+8}")
    for ks in range(1, 4): a(f"v_xor_b32 v{V_AA+ks}, {32*ks}, v{V_AA}")
    a(f"s_lshl_b32 s34, s{S_WN}, 5")
    a(f"v_add_u32 v{T+7}, s34, v{T+5}")
    a(f"v_bfe_u32 v{T+8}, v{T+7}, 1, 3")
    a(f"v_xor_b32 v{T+8}, v{T+8}, v{T+6}")
    a(f"v_lshlrev_b32 v{T+8}, 4, v{T+8}")
    a(f"v_lshl_add_u32 v{V_BA}, v{T+7}, 7, v{T+8}")
    a(f"v_mov_b32 v{221}, v{V_BA}")
    a(f"v_add_u32 v{V_BA}, 0x10000, v{V_BA}")
    for ks in range(1, 4): a(f"v_xor_b32 v{V_BA+ks}, {32*ks}, v{V_BA}")
    a(f"v_mov_b32 v{V_ZERO}, 0")
    a(f"v_lshlrev_b32 v{V_L16}, 4, v{V_LANE}")
    stamp(a, 1)
    if kofl:
        a(f"s_and_b32 s34, s{S_WAVE}, 1")
        a(f"s_mul_i32 s34, s34, 15232")
        a(f"s_lshr_b32 s35, s{S_WAVE}, 1")
        a(f"s_lshl_b32 s35, s35, 16")
        a(f"s_add_u32 s34, s34, s35")
        a(f"s_add_u32 s{S_KB}, s34, 32768")
        conv2.kgen_addr_setup(a, f"s{S_KB}")
        a(f"s_waitcnt vmcnt(5)")
        TK = conv2.V_T_
        a(f"v_lshlrev_b32 v{conv2.V_DT}, 16, v{conv2.V_PRM+4}")
        exp_accurate(a, conv2.V_DT, conv2.V_DT, TK, TK+1, TK+2)
        round_bf16(a, conv2.V_DT, conv2.V_DT)
        conv2.kgen_pass(a, f"s{S_WM}")
        a("s_nop 7\ns_nop 7\ns_nop 1")
        a(f"s_lshl_b32 s34, s{S_KY}, 1")
        a(f"s_add_u32 s34, s34, s{S_WM}")
        a(f"s_lshl_b32 s34, s34, 12")
        a(f"s_add_u32 s34, s34, {WS_KP}")
        for j in range(4):
            a(f"buffer_store_dwordx4 v[{64+4*j}:{67+4*j}], v{V_L16}, s[{SRD_WS}:{SRD_WS+3}], s34 offen offset:{j*1024} sc1")
        stamp(a, 14)
        a(f"s_waitcnt vmcnt(4)")
    else:
        a(f"s_waitcnt vmcnt(0)")
    a(f"v_lshlrev_b32 v{V_DSB}, 16, v{V_DSB}")
    a(f"v_lshlrev_b32 v{T+2}, 16, v{T+2}")
    a(f"v_lshlrev_b32 v{T+3}, 16, v{T+3}")
    a(f"v_lshlrev_b32 v{T+4}, 16, v{T+4}")
    exp_accurate(a, T+4, T+4, T+5, T+6, T+7)
    round_bf16(a, T+4, T+4)
    a(f"v_mul_f32 v{T+5}, v{T+4}, v{T+2}")
    a(f"v_mul_f32 v{T+6}, v{T+4}, v{T+3}")
    exp_accurate(a, T+5, T+5, T+7, T+8, T+9)
    a(f"v_mul_f32 v{T+6}, {fhex(INV2PI)}, v{T+6}")
    a(f"v_fract_f32 v{T+6}, v{T+6}")
    a(f"v_cos_f32 v{T+7}, v{T+6}")
    a(f"v_sin_f32 v{T+8}, v{T+6}")
    a(f"s_nop 0")
    a(f"v_mul_f32 v{V_LR}, v{T+5}, v{T+7}")
    a(f"v_mul_f32 v{V_LI}, v{T+5}, v{T+8}")
    a(f"v_add_f32 v{T+5}, -1.0, v{V_LR}")
    a(f"v_mul_f32 v{T+6}, v{T+2}, v{T+2}")
    a(f"v_fma_f32 v{T+6}, v{T+3}, v{T+3}, v{T+6}")
    a(f"v_rcp_f32 v{T+7}, v{T+6}")
    a(f"v_mul_f32 v{T+8}, v{T+5}, v{T+2}")
    a(f"v_fma_f32 v{T+9}, -v{T+6}, v{T+7}, 2.0")
    a(f"v_mul_f32 v{T+7}, v{T+7}, v{T+9}")
    a(f"v_fma_f32 v{T+8}, v{V_LI}, v{T+3}, v{T+8}")
    a(f"v_mul_f32 v{T+9}, v{V_LI}, v{T+2}")
    a(f"v_fma_f32 v{T+9}, -v{T+5}, v{T+3}, v{T+9}")
    a(f"v_add_f32 v{T+7}, v{T+7}, v{T+7}")
    a(f"v_mul_f32 v{V_C2}, v{T+8}, v{T+7}")
    a(f"v_mul_f32 v{V_C2+1}, v{T+9}, v{T+7}")
    a(f"v_mov_b32 v{V_L32}, v{V_LR}")
    a(f"v_mov_b32 v{V_L32+1}, v{V_LI}")
    for i in range(5): cmul(a, V_L32, V_L32+1, V_L32, V_L32+1, V_L32, V_L32+1, T+5)
    cmul(a, V_L128, V_L128+1, V_L32, V_L32+1, V_L32, V_L32+1, T+5)
    cmul(a, V_L128, V_L128+1, V_L128, V_L128+1, V_L128, V_L128+1, T+5)
    if loc:
        a(f"s_getreg_b32 s{S_FAST}, hwreg(HW_REG_XCC_ID)")
        a(f"s_and_b32 s{S_FAST}, s{S_FAST}, 0x7f")
        a(f"s_add_u32 s{S_FAST}, s{S_FAST}, 1")
        labx = a.label("XPUB")
        a(f"s_cmp_lg_u32 s{S_WAVE}, 0")
        a(f"s_cbranch_scc1 {labx}")
        a(f"s_mul_i32 s34, s{S_C}, 10")
        a(f"s_add_u32 s34, s34, s{S_S}")
        a(f"s_add_u32 s34, s34, 16")
        a(f"v_mov_b32 v{T}, s{S_FAST}")
        a(f"v_mov_b32 v{T+1}, 0")
        a(f"s_mov_b64 exec, 1")
        a(f"buffer_store_byte v{T}, v{T+1}, s[{SRD_DBG}:{SRD_DBG+3}], s34 offen sc1")
        a(f"s_mov_b64 exec, -1")
        a(f"{labx}:")
    a(f"s_waitcnt lgkmcnt(0)")
    stamp(a, 2)
    a(f"s_barrier")
    stamp(a, 3)
    for ins in g1_reads(0, 0): a(ins)
    for ins in g1_reads(0, 1): a(ins)
    NST = 10
    for it in range(NST):
        for ks in range(4):
            gidx = 4*it + ks
            last = (gidx == 4*NST - 1)
            if kofl and it == opts.get("kflst", 1) and ks == 0:
                lk = a.label("KN"); lk2 = a.label("KN2")
                a(f"s_mov_b32 s{S_CNT}, 100000")
                a(f"s_waitcnt vmcnt(0)")
                a(f"{lk}:")
                a(f"v_readfirstlane_b32 s{S_NONCE}, v{V_NON}")
                a(f"v_readfirstlane_b32 s{S_NONCE+1}, v{V_NON+1}")
                a(f"s_nop 0")
                a(f"s_cmp_lg_u32 s{S_NONCE}, 0")
                a(f"s_cbranch_scc1 {lk2}")
                poll_timeout(a, S_CNT, END)
                a(f"buffer_load_dwordx2 v[{V_NON}:{V_NON+1}], v{V_ZERO}, s[{SRD_DBG}:{SRD_DBG+3}], 0 offen sc1")
                a(f"s_waitcnt vmcnt(0)")
                a(f"s_branch {lk}")
                a(f"{lk2}:")
                a(f"s_lshl_b32 s34, s{S_KY}, 1")
                a(f"s_add_u32 s34, s34, s{S_WM}")
                a(f"s_lshl_b32 s34, s34, 3")
                a(f"s_add_u32 s34, s34, {WS_KFLG}")
                a(f"v_mov_b32 v248, s{S_NONCE}")
                a(f"v_mov_b32 v249, s{S_NONCE+1}")
                a(f"s_mov_b64 s[{S_EXEC}:{S_EXEC+1}], exec")
                a(f"s_mov_b64 exec, 1")
                a(f"buffer_store_dwordx2 v[248:249], v{V_ZERO}, s[{SRD_WS}:{SRD_WS+3}], s34 offen sc1")
                a(f"s_mov_b64 exec, s[{S_EXEC}:{S_EXEC+1}]")
            a(f"s_waitcnt lgkmcnt({0 if last else 4})")
            fill = []
            nx = gidx + 2
            if nx < 4*NST:
                nit, nks = nx // 4, nx % 4
                if nks == 0:
                    a(f"s_barrier")
                    if opts.get("profst"): stamp(a, 16 + nit)
                fill += g1_reads(nit, nks)
                if nks == 0 and nit == 5 and not kofl:
                    fill.append(f"buffer_load_dwordx2 v[{V_NON}:{V_NON+1}], v{V_ZERO}, s[{SRD_DBG}:{SRD_DBG+3}], 0 offen sc1")
                if nks == 0 and nit == 6 and loc:
                    fill.append(f"s_mul_i32 s35, s{S_C}, 10")
                    fill.append(f"s_add_u32 s35, s35, 16")
                    fill.append(f"buffer_load_ubyte v{V_XC}, v{V_LANE}, s[{SRD_DBG}:{SRD_DBG+3}], s35 offen sc1")
            if last:
                a(f"s_barrier")
            interleave(a, g1_mfmas(it, ks), fill)
    stamp(a, 4)
    a.c("pass 1")
    a(f"s_nop 7\ns_nop 7")
    first = True
    for m in range(2):
        for r in range(16):
            br, bi = acc(m, 0) + r, acc(m, 1) + r
            if first:
                a(f"v_mov_b32 v{V_ER}, v{br}")
                a(f"v_mov_b32 v{V_EI}, v{bi}")
                first = False
            else:
                src = (V_ER, V_EI) if cur == 0 else (T, T+1)
                dst = (T, T+1) if cur == 0 else (V_ER, V_EI)
                a(f"v_fma_f32 v{dst[0]}, v{V_LR}, v{src[0]}, v{br}")
                a(f"v_fma_f32 v{dst[1]}, v{V_LR}, v{src[1]}, v{bi}")
                a(f"v_fma_f32 v{dst[0]}, -v{V_LI}, v{src[1]}, v{dst[0]}")
                a(f"v_fma_f32 v{dst[1]}, v{V_LI}, v{src[0]}, v{dst[1]}")
                cur ^= 1
                continue
            cur = 0
    if cur == 1:
        a(f"v_mov_b32 v{V_ER}, v{T}")
        a(f"v_mov_b32 v{V_EI}, v{T+1}")
    EX = 240; G = 248; SA = 252
    a(f"v_lshrrev_b32 v{T+2}, 5, v{V_LANE}")
    a(f"s_lshl_b32 s34, s{S_WM}, 1")
    a(f"v_add_u32 v{T+2}, s34, v{T+2}")
    a(f"v_and_b32 v{T+3}, 31, v{V_LANE}")
    a(f"s_lshl_b32 s34, s{S_WN}, 5")
    a(f"v_add_u32 v{T+3}, s34, v{T+3}")
    a(f"v_lshlrev_b32 v{T+3}, 3, v{T+3}")
    a(f"v_add_u32 v{T+3}, {L_EX}, v{T+3}")
    a(f"v_lshl_add_u32 v{T+2}, v{T+2}, 9, v{T+3}")
    a(f"ds_write_b64 v{T+2}, v[{V_ER}:{V_ER+1}]")
    a(f"v_mov_b32 v{T+4}, {CNT_EX}")
    a(f"v_mov_b32 v{T+5}, 1")
    a(f"s_waitcnt lgkmcnt(0)")
    lds_inc(a, T+4, T+5)
    lab_ok = a.label("NOK"); lab_p = a.label("NPOLL")
    a(f"s_mov_b32 s{S_CNT}, 100000")
    a(f"s_waitcnt vmcnt(0)")
    a(f"{lab_p}:")
    a(f"v_readfirstlane_b32 s{S_NONCE}, v{V_NON}")
    a(f"v_readfirstlane_b32 s{S_NONCE+1}, v{V_NON+1}")
    a(f"s_nop 0")
    a(f"s_cmp_lg_u32 s{S_NONCE}, 0")
    a(f"s_cbranch_scc1 {lab_ok}")
    poll_timeout(a, S_CNT, END)
    a(f"buffer_load_dwordx2 v[{V_NON}:{V_NON+1}], v{V_ZERO}, s[{SRD_DBG}:{SRD_DBG+3}], 0 offen sc1")
    a(f"s_waitcnt vmcnt(0)")
    a(f"s_branch {lab_p}")
    a(f"{lab_ok}:")
    if loc:
        a(f"v_cmp_ne_u32 vcc, s{S_FAST}, v{V_XC}")
        a(f"s_and_b64 vcc, vcc, 0x3ff")
        a(f"s_cmp_eq_u64 vcc, 0")
        a(f"s_cselect_b32 s{S_FAST}, 1, 0")
    lds_spin(a, T+4, T+6, 4, END)
    for sg in range(4):
        a(f"ds_read_b64 v[{EX+2*sg}:{EX+2*sg+1}], v{T+3} offset:{sg*512}")
    a(f"s_waitcnt lgkmcnt(0)")
    a(f"v_mov_b32 v{V_HR}, v{EX}")
    a(f"v_mov_b32 v{V_HI}, v{EX+1}")
    for sg in range(1, 4): cfma(a, V_HR, V_HI, V_L32, V_L32+1, EX+2*sg, EX+2*sg+1, T)
    lab_np = a.label("NOPUB")
    a(f"s_cmp_lg_u32 s{S_WM}, 0")
    a(f"s_cbranch_scc1 {lab_np}")
    a(f"v_mov_b32 v{G}, v{V_HR}")
    a(f"v_mov_b32 v{G+1}, v{V_HI}")
    a(f"v_mov_b32 v{G+2}, s{S_NONCE}")
    a(f"v_mov_b32 v{G+3}, s{S_NONCE+1}")
    a(f"s_mul_i32 s34, s{S_C}, 10240")
    a(f"s_add_u32 s34, s34, {WS_E}")
    a(f"s_mov_b64 s[{S_EXEC}:{S_EXEC+1}], exec")
    a(f"s_mov_b32 exec_lo, -1")
    a(f"s_mov_b32 exec_hi, 0")
    a(f"buffer_store_dwordx4 v[{G}:{G+3}], v{V_EOFF}, s[{SRD_WS}:{SRD_WS+3}], s34 offen sc1")
    a(f"s_mov_b64 exec, s[{S_EXEC}:{S_EXEC+1}]")
    a(f"{lab_np}:")
    a(f"v_mov_b32 v{T+4}, {CNT_P}")
    a(f"v_mov_b32 v{T+5}, 1")
    lds_inc(a, T+4, T+5)
    stamp(a, 5)
    def greg(cp): return (V_FR + 4*cp) if cp < 12 else (228 + 4*(cp-12))
    def issue_polls(lab_iss):
        for cp in range(15):
            a(f"s_cmp_le_u32 s{S_C}, {cp}")
            a(f"s_cbranch_scc1 {lab_iss}")
            a(f"s_mov_b32 s34, {WS_E + cp*10240}")
            a(f"buffer_load_dwordx4 v[{greg(cp)}:{greg(cp)+3}], v{V_EOFF}, s[{SRD_WS}:{SRD_WS+3}], s34 offen sc1")
        a(f"{lab_iss}:")
    a.c("scale")
    for m in range(2):
        for r in range(0, 16, 2):
            pr, pi = acc(m,0)+r, acc(m,1)+r
            qr, qi = acc2(m,0)+r, acc2(m,1)+r
            a(f"v_pk_mul_f32 v[{qr}:{qr+1}], v[{pr}:{pr+1}], v[{V_C2}:{V_C2+1}] op_sel:[0,0] op_sel_hi:[1,0]")
            a(f"v_pk_mul_f32 v[{qi}:{qi+1}], v[{pi}:{pi+1}], v[{V_C2}:{V_C2+1}] op_sel:[0,0] op_sel_hi:[1,0] neg_lo:[1,0] neg_hi:[1,0]")
            a(f"v_pk_fma_f32 v[{qr}:{qr+1}], v[{pi}:{pi+1}], v[{V_C2}:{V_C2+1}], v[{qr}:{qr+1}] op_sel:[0,1,0] op_sel_hi:[1,1,1] neg_lo:[1,0,0] neg_hi:[1,0,0]")
            a(f"v_pk_fma_f32 v[{qi}:{qi+1}], v[{pr}:{pr+1}], v[{V_C2}:{V_C2+1}], v[{qi}:{qi+1}] op_sel:[0,1,0] op_sel_hi:[1,1,1] neg_lo:[1,0,0] neg_hi:[1,0,0]")
    stamp(a, 6)
    lab_w0 = a.label("EW0"); lab_wj = a.label("EWJ")
    eall = opts.get("eall", False)
    if not eall:
        a(f"s_cmp_eq_u32 s{S_WM}, 0")
        a(f"s_cbranch_scc1 {lab_w0}")
    a.c("E combine: lane (p, hf) handles d = 2j+1+hf")
    SE = 92
    a(f"s_add_u32 s{SE}, s{P_WS}, {WS_E}")
    a(f"s_addc_u32 s{SE+1}, s{P_WS+1}, 0")
    a(f"s_and_b32 s{SE+1}, s{SE+1}, 0xffff")
    a(f"s_mov_b32 s{SE+2}, {16*10240}")
    a(f"s_mov_b32 s{SE+3}, 0x00020000")
    L256 = T+8
    cmul(a, L256, L256+1, V_L128, V_L128+1, V_L128, V_L128+1, T)
    VO = 228
    a(f"v_lshrrev_b32 v{T+2}, 5, v{V_LANE}")
    a(f"s_sub_u32 s34, s{S_C}, 1")
    a(f"v_sub_u32 v{T+2}, s34, v{T+2}")
    a(f"v_mul_i32_i24 v{T+2}, 10240, v{T+2}")
    a(f"v_add_u32 v{VO}, v{T+2}, v{V_EOFF}")
    for j in range(1, 8):
        a(f"v_subrev_u32 v{VO+j}, {20480*j}, v{VO}")
    GR = V_FR
    lab_poll = a.label("EPOLL"); lab_ok = a.label("EOK")
    a(f"s_mov_b32 s{S_CNT}, 100000")
    a(f"{lab_poll}:")
    for j in range(8):
        a(f"buffer_load_dwordx4 v[{GR+4*j}:{GR+4*j+3}], v{VO+j}, s[{SE}:{SE+3}], 0 offen sc1")
    a(f"s_mov_b64 s[{S_MISM}:{S_MISM+1}], 0")
    for j in range(8):
        a(f"s_waitcnt vmcnt({7-j})")
        a(f"v_cmp_ne_u64 vcc, s[{S_NONCE}:{S_NONCE+1}], v[{GR+4*j+2}:{GR+4*j+3}]")
        a(f"v_cmp_le_i32 s[{S_T2}:{S_T2+1}], 0, v{VO+j}")
        a(f"s_and_b64 vcc, vcc, s[{S_T2}:{S_T2+1}]")
        a(f"s_or_b64 s[{S_MISM}:{S_MISM+1}], s[{S_MISM}:{S_MISM+1}], vcc")
    a(f"s_cmp_eq_u64 s[{S_MISM}:{S_MISM+1}], 0")
    a(f"s_cbranch_scc1 {lab_ok}")
    if opts.get("efull", True):
        a(f"s_sleep {opts.get('esleep', 2)}")
        a(f"s_sub_u32 s{S_CNT}, s{S_CNT}, 1")
        a(f"s_cbranch_scc0 {lab_poll}")
        a(f"s_branch {END}")
    CP = T+12
    a(f"v_readfirstlane_b32 s35, v{V_EOFF}")
    a(f"s_sub_u32 s34, s{S_C}, 1")
    a(f"v_sub_u32 v{CP}, s34, v{V_LANE}")
    a(f"v_mul_i32_i24 v{CP}, 10240, v{CP}")
    a(f"v_add_u32 v{CP}, s35, v{CP}")
    a(f"v_cmp_le_i32 s[{S_T2}:{S_T2+1}], 0, v{CP}")
    a(f"s_and_b64 s[{S_T2}:{S_T2+1}], s[{S_T2}:{S_T2+1}], 0xffff")
    lab_cp = a.label("ECH")
    a(f"{lab_cp}:")
    a(f"s_sleep {opts.get('esleep', 2)}")
    a(f"buffer_load_dwordx4 v[{GR}:{GR+3}], v{CP}, s[{SE}:{SE+3}], 0 offen sc1")
    a(f"s_waitcnt vmcnt(0)")
    a(f"v_cmp_ne_u64 vcc, s[{S_NONCE}:{S_NONCE+1}], v[{GR+2}:{GR+3}]")
    a(f"s_and_b64 vcc, vcc, s[{S_T2}:{S_T2+1}]")
    a(f"s_cmp_eq_u64 vcc, 0")
    a(f"s_cbranch_scc1 {lab_poll}")
    a(f"s_sub_u32 s{S_CNT}, s{S_CNT}, 1")
    a(f"s_cbranch_scc0 {lab_cp}")
    a(f"s_branch {END}")
    a(f"{lab_ok}:")
    a(f"v_mov_b32 v{V_HR}, v{GR+28}")
    a(f"v_mov_b32 v{V_HI}, v{GR+29}")
    cur = (V_HR, V_HI); oth = (T, T+1)
    for j in range(6, -1, -1):
        er, ei = GR+4*j, GR+4*j+1
        a(f"v_fma_f32 v{oth[0]}, v{cur[0]}, v{L256}, v{er}")
        a(f"v_fma_f32 v{oth[1]}, v{cur[1]}, v{L256}, v{ei}")
        a(f"v_fma_f32 v{oth[0]}, -v{cur[1]}, v{L256+1}, v{oth[0]}")
        a(f"v_fma_f32 v{oth[1]}, v{cur[0]}, v{L256+1}, v{oth[1]}")
        cur, oth = oth, cur
    hr, hi = cur
    a(f"v_mov_b32 v{T+2}, v{hr}")
    a(f"v_mov_b32 v{T+3}, v{hi}")
    a(f"s_nop 1")
    a(f"v_permlane32_swap_b32 v{hr}, v{T+2}")
    a(f"v_permlane32_swap_b32 v{hi}, v{T+3}")
    a(f"s_nop 1")
    a(f"v_fma_f32 v{V_HR}, v{T+2}, v{V_L128}, v{hr}")
    a(f"v_fma_f32 v{V_HI}, v{T+3}, v{V_L128}, v{hi}")
    a(f"v_fma_f32 v{V_HR}, -v{T+3}, v{V_L128+1}, v{V_HR}")
    a(f"v_fma_f32 v{V_HI}, v{T+2}, v{V_L128+1}, v{V_HI}")
    if not eall:
        a(f"v_and_b32 v{T+2}, 31, v{V_LANE}")
        a(f"v_lshlrev_b32 v{T+2}, 3, v{T+2}")
        a(f"s_lshl_b32 s34, s{S_WN}, 8")
        a(f"s_add_u32 s34, s34, {L_HX}")
        a(f"v_add_u32 v{T+2}, s34, v{T+2}")
        a(f"ds_write_b64 v{T+2}, v[{V_HR}:{V_HR+1}]")
        a(f"s_lshl_b32 s34, s{S_WN}, 2")
        a(f"s_add_u32 s34, s34, {CNT_HX0}")
        a(f"v_mov_b32 v{T+4}, s34")
        a(f"v_mov_b32 v{T+5}, 1")
        a(f"s_waitcnt lgkmcnt(0)")
        lds_inc(a, T+4, T+5)
        a(f"s_branch {lab_wj}")
        a(f"{lab_w0}:")
        a(f"s_lshl_b32 s34, s{S_WN}, 2")
        a(f"s_add_u32 s34, s34, {CNT_HX0}")
        a(f"v_mov_b32 v{T+4}, s34")
        lds_spin(a, T+4, T+6, 1, END)
        a(f"v_and_b32 v{T+2}, 31, v{V_LANE}")
        a(f"v_lshlrev_b32 v{T+2}, 3, v{T+2}")
        a(f"s_lshl_b32 s34, s{S_WN}, 8")
        a(f"s_add_u32 s34, s34, {L_HX}")
        a(f"v_add_u32 v{T+2}, s34, v{T+2}")
        a(f"ds_read_b64 v[{V_HR}:{V_HR+1}], v{T+2}")
        a(f"s_waitcnt lgkmcnt(0)")
        a(f"{lab_wj}:")
    a(f"v_mov_b32 v{T+4}, {CNT_E}")
    a(f"v_mov_b32 v{T+5}, 1")
    lds_inc(a, T+4, T+5)
    lab_w1 = a.label("WM1"); lab_w2 = a.label("WMD")
    a(f"s_cmp_lg_u32 s{S_WM}, 0")
    a(f"s_cbranch_scc1 {lab_w1}")
    a(f"v_mov_b32 v{SA}, v{V_HR}")
    a(f"v_mov_b32 v{SA+1}, v{V_HI}")
    cfma(a, V_HR, V_HI, V_L32, V_L32+1, EX, EX+1, T)
    a(f"s_branch {lab_w2}")
    a(f"{lab_w1}:")
    cfma(a, V_HR, V_HI, V_L32, V_L32+1, EX, EX+1, T)
    cfma(a, V_HR, V_HI, V_L32, V_L32+1, EX+2, EX+3, T)
    a(f"v_mov_b32 v{SA}, v{V_HR}")
    a(f"v_mov_b32 v{SA+1}, v{V_HI}")
    cfma(a, V_HR, V_HI, V_L32, V_L32+1, EX+4, EX+5, T)
    a(f"{lab_w2}:")
    a(f"v_cmp_gt_u32 vcc, 32, v{V_LANE}")
    a(f"s_nop 1")
    a(f"v_cndmask_b32 v{V_HR}, v{V_HR}, v{SA}, vcc")
    a(f"v_cndmask_b32 v{V_HI}, v{V_HI}, v{SA+1}, vcc")
    a(f"v_mul_f32 v{T}, v{V_HR}, v{V_C2}")
    a(f"v_mul_f32 v{T+1}, -v{V_HI}, v{V_C2}")
    a(f"v_fma_f32 v{T}, -v{V_HI}, v{V_C2+1}, v{T}")
    a(f"v_fma_f32 v{V_HI}, -v{V_HR}, v{V_C2+1}, v{T+1}")
    a(f"v_mov_b32 v{V_HR}, v{T}")
    stamp(a, 7)
    a.c("pass 2 + stores")
    a(f"s_mul_i32 s34, s{S_C}, 20")
    a(f"s_add_u32 s34, s34, s{S_S}")
    a(f"s_lshl_b32 s34, s34, 14")
    a(f"s_lshl_b32 s35, s{S_WAVE}, 12")
    a(f"s_add_u32 s34, s34, s35")
    a(f"s_add_u32 s{S_T0}, s34, {WS_H}")
    a(f"s_add_u32 s{S_T1}, s{S_T0}, {10*16384}")
    pr, pi = V_HR, V_HI
    PK = 16
    for m in range(2):
        for r in range(16):
            cr, ci = acc2(m,0)+r, acc2(m,1)+r
            a(f"v_fma_f32 v{cr}, v{V_LR}, v{pr}, v{cr}")
            a(f"v_fma_f32 v{ci}, v{V_LR}, v{pi}, v{ci}")
            a(f"v_fma_f32 v{cr}, v{V_LI}, v{pi}, v{cr}")
            a(f"v_fma_f32 v{ci}, -v{V_LI}, v{pr}, v{ci}")
            pr, pi = cr, ci
            if r % 2 == 1:
                t = 16*m + r
                j, d = t // 8, (t % 8) // 2
                a(f"v_cvt_pk_bf16_f32 v{PK + 4*j + d}, v{cr-1}, v{cr}")
                a(f"v_cvt_pk_bf16_f32 v{PK + 16 + 4*j + d}, v{ci-1}, v{ci}")
                if d == 3:
                    def st(flag):
                        a(f"buffer_store_dwordx4 v[{PK+4*j}:{PK+4*j+3}], v{V_L16}, s[{SRD_WS}:{SRD_WS+3}], s{S_T0} offen offset:{j*1024} {flag}")
                        a(f"buffer_store_dwordx4 v[{PK+16+4*j}:{PK+16+4*j+3}], v{V_L16}, s[{SRD_WS}:{SRD_WS+3}], s{S_T1} offen offset:{j*1024} {flag}")
                    if loc:
                        l1 = a.label("HS"); l2 = a.label("HS")
                        a(f"s_cmp_eq_u32 s{S_FAST}, 1")
                        a(f"s_cbranch_scc1 {l1}")
                        st("sc1")
                        a(f"s_branch {l2}")
                        a(f"{l1}:")
                        st("")
                        a(f"{l2}:")
                    else:
                        st(opts.get('hst', 'sc1'))
    stamp(a, 8)
    a.c("acc init from x tile")
    a(f"v_mov_b32 v{T+4}, {CNT_X}")
    lds_spin(a, T+4, T+6, 4, END)
    XA = T+7
    a(f"v_lshrrev_b32 v{T+8}, 5, v{V_LANE}")
    a(f"v_bfe_u32 v{T+9}, v{V_LANE}, 2, 2")
    a(f"v_lshl_add_u32 v{T+8}, v{T+8}, 2, v{T+9}")
    a(f"s_lshl_b32 s34, s{S_WM}, 6")
    a(f"v_add_u32 v{T+8}, s34, v{T+8}")
    a(f"v_lshlrev_b32 v{XA}, 7, v{T+8}")
    a(f"v_bfe_u32 v{T+8}, v{V_LANE}, 4, 1")
    a(f"v_lshlrev_b32 v{T+8}, 5, v{T+8}")
    a(f"v_and_b32 v{T+9}, 3, v{V_LANE}")
    a(f"v_lshl_add_u32 v{T+8}, v{T+9}, 3, v{T+8}")
    a(f"s_lshl_b32 s34, s{S_WN}, 6")
    a(f"s_add_u32 s34, s34, {L_XT}")
    a(f"v_add_u32 v{T+8}, s34, v{T+8}")
    a(f"v_add_u32 v{XA}, v{XA}, v{T+8}")
    XV = 96
    for m in range(2):
        for q in range(4):
            r = XV + 2*(4*m+q)
            a(f"ds_read_b64_tr_b16 v[{r}:{r+1}], v{XA} offset:{(32*m+8*q)*128}")
    a(f"s_waitcnt lgkmcnt(0)")
    for qi in range(8):
        for h in range(2):
            xv = XV + 2*qi + h
            a0 = G2_ACC + 4*qi + 2*h
            a(f"v_lshlrev_b32 v{a0}, 16, v{xv}")
            a(f"v_and_b32 v{a0+1}, 0xffff0000, v{xv}")
            a(f"v_mul_f32 v{a0}, v{a0}, v{V_DSB}")
            a(f"v_mul_f32 v{a0+1}, v{a0+1}, v{V_DSB}")
            a(f"v_cvt_pk_bf16_f32 v{a0}, v{a0}, v{a0+1}")
            a(f"v_and_b32 v{a0+1}, 0xffff0000, v{a0}")
            a(f"v_lshlrev_b32 v{a0}, 16, v{a0}")
    a(f"v_lshrrev_b32 v{T}, 4, v{V_LANE}")
    a(f"v_bfe_u32 v{T+1}, v{V_LANE}, 2, 2")
    a(f"v_and_b32 v{T+2}, 3, v{V_LANE}")
    a(f"v_and_b32 v{T+3}, 1, v{T}")
    a(f"v_lshlrev_b32 v{T+3}, 1, v{T+3}")
    a(f"v_lshrrev_b32 v{T+4}, 1, v{T+2}")
    a(f"v_add_u32 v{T+3}, v{T+3}, v{T+4}")
    a(f"v_mul_u32_u24 v{T+3}, 1088, v{T+3}")
    a(f"v_lshrrev_b32 v{T+4}, 1, v{T}")
    a(f"v_lshl_add_u32 v{T+4}, v{T+4}, 3, v{T+1}")
    a(f"v_lshl_add_u32 v{T+3}, v{T+4}, 4, v{T+3}")
    a(f"v_and_b32 v{T+4}, 1, v{T+2}")
    a(f"v_lshl_add_u32 v{T+3}, v{T+4}, 3, v{T+3}")
    a(f"s_mul_i32 s34, s{S_WM}, 8704")
    a(f"v_add_u32 v{V_HA}, s34, v{T+3}")
    a(f"v_add_u32 v{V_HA2}, {3*HSLOT}, v{V_HA}")
    for ks in range(4):
        a(f"v_xor_b32 v{2+ks}, {32*ks}, v221")
        a(f"v_add_u32 v{V_CB+ks}, {CBASE}, v{2+ks}")
    a(f"s_waitcnt vmcnt(0)")
    a(f"v_mov_b32 v{T+4}, {CNT_H}")
    a(f"v_mov_b32 v{T+5}, 1")
    a(f"s_mov_b64 s[{S_EXEC}:{S_EXEC+1}], exec")
    a(f"s_mov_b64 exec, 1")
    a(f"ds_add_rtn_u32 v{T+6}, v{T+4}, v{T+5}")
    a(f"s_waitcnt lgkmcnt(0)")
    a(f"v_readfirstlane_b32 s{S_T3}, v{T+6}")
    lab_nf = a.label("NOHF")
    a(f"s_nop 0")
    a(f"s_cmp_lg_u32 s{S_T3}, 3")
    a(f"s_cbranch_scc1 {lab_nf}")
    a(f"s_lshl_b32 s34, s{S_C}, 7")
    a(f"s_lshl_b32 s35, s{S_S}, 3")
    a(f"s_add_u32 s34, s34, s35")
    a(f"s_add_u32 s34, s34, {WS_FLAG}")
    a(f"v_mov_b32 v{G}, s{S_NONCE}")
    a(f"v_mov_b32 v{G+1}, s{S_NONCE+1}")
    if loc:
        l1 = a.label("HF"); l2 = a.label("HF")
        a(f"s_cmp_eq_u32 s{S_FAST}, 1")
        a(f"s_cbranch_scc1 {l1}")
        a(f"buffer_store_dwordx2 v[{G}:{G+1}], v{V_ZERO}, s[{SRD_WS}:{SRD_WS+3}], s34 offen sc1")
        a(f"s_branch {l2}")
        a(f"{l1}:")
        a(f"buffer_store_dwordx2 v[{G}:{G+1}], v{V_ZERO}, s[{SRD_WS}:{SRD_WS+3}], s34 offen")
        a(f"{l2}:")
    else:
        a(f"buffer_store_dwordx2 v[{G}:{G+1}], v{V_ZERO}, s[{SRD_WS}:{SRD_WS+3}], s34 offen {opts.get('hst', 'sc1')}")
    a(f"{lab_nf}:")
    a(f"s_mov_b64 exec, s[{S_EXEC}:{S_EXEC+1}]")
    stamp(a, 9)
    a(f"v_mov_b32 v{T+4-T+240}, {CNT_C}")
    lds_spin(a, 244, 245, 4, END)
    n = 0
    for ch in range(NREG):
        for ks in range(4):
            r = V_CREG + 16*ch + 4*ks
            off = L_CST + ch*8192
            reg = 2 + ks
            if off >= 65536:
                a(f"v_add_u32 v246, {off}, v{reg}")
                a(f"ds_read_b128 v[{r}:{r+3}], v246")
            else:
                a(f"ds_read_b128 v[{r}:{r+3}], v{reg} offset:{off}")
            n += 1
            if n % 12 == 0: a(f"s_waitcnt lgkmcnt(4)")
    a(f"s_waitcnt lgkmcnt(0)")
    a(f"v_mov_b32 v244, {CNT_R}")
    a(f"v_mov_b32 v245, 1")
    lds_inc(a, 244, 245)
    stamp(a, 10)
    a(f"s_barrier")
    stamp(a, 11)
    D2 = G2_NS - 1
    for k0 in range(D2):
        for ins in g2_reads(0, k0): a(ins)
    NST = 20
    for it in range(NST):
        for ks in range(4):
            gidx = 4*it + ks
            rem = 0
            for g2 in range(gidx + 1, min(gidx + D2, 4*NST)):
                rem += len(g2_reads(g2 // 4, g2 % 4))
            a(f"s_waitcnt lgkmcnt({rem})")
            fill = []
            nx = gidx + D2
            if nx < 4*NST:
                nit, nks = nx // 4, nx % 4
                if nks == 0: a(f"s_barrier")
                fill += g2_reads(nit, nks)
            interleave(a, g2_mfmas(it, ks), fill)
    stamp(a, 12)
    a(f"s_barrier")
    stamp(a, 13)
    a(f"v_and_b32 v{T}, 31, v{V_LANE}")
    a(f"s_lshl_b32 s34, s{S_WN}, 5")
    a(f"v_add_u32 v{T}, s34, v{T}")
    a(f"v_lshrrev_b32 v{T+3}, 5, v{V_LANE}")
    a(f"v_and_b32 v{T+1}, 15, v{T}")
    a(f"s_lshl_b32 s34, s{S_WM}, 3")
    a(f"v_xor_b32 v{T+1}, s34, v{T+1}")
    a(f"v_lshlrev_b32 v{T+2}, 8, v{T}")
    a(f"v_lshl_add_u32 v{T+2}, v{T+3}, 3, v{T+2}")
    a(f"v_add_u32 v{T+2}, {L_AT}, v{T+2}")
    AV = 96
    for m in range(2):
        for q in range(4):
            r = AV + 2*(4*m+q)
            a(f"v_xor_b32 v{T+4}, {4*m+q}, v{T+1}")
            a(f"v_lshl_add_u32 v{T+4}, v{T+4}, 4, v{T+2}")
            a(f"ds_read_b64 v[{r}:{r+1}], v{T+4}")
    GA = T+5
    a(f"s_lshl_b32 s34, s{S_WM}, 9")
    a(f"s_add_u32 s34, s34, {L_G}")
    a(f"v_lshlrev_b32 v{GA}, 5, v{T+3}")
    a(f"v_add_u32 v{GA}, s34, v{GA}")
    GV = 112
    for m in range(2):
        for q in range(4):
            gb = GV + 8*(4*m+q)
            a(f"ds_read_b128 v[{gb}:{gb+3}], v{GA} offset:{(32*m+8*q)*8}")
            a(f"ds_read_b128 v[{gb+4}:{gb+7}], v{GA} offset:{(32*m+8*q)*8+16}")
            if (4*m+q) == 2: a("s_waitcnt lgkmcnt(6)")
            if (4*m+q) == 5: a("s_waitcnt lgkmcnt(6)")
    OV = T+6
    a(f"v_mul_u32_u24 v{OV}, 2560, v{T+3}")
    a(f"s_lshl_b32 s34, s{S_S}, 6")
    a(f"v_add_u32 v{OV}, v{OV}, v{T}")
    a(f"v_add_u32 v{OV}, s34, v{OV}")
    a(f"v_lshlrev_b32 v{OV}, 2, v{OV}")
    a(f"s_lshl_b32 s34, s{S_C}, 7")
    a(f"s_lshl_b32 s35, s{S_WM}, 6")
    a(f"s_add_u32 s34, s34, s35")
    a(f"s_mul_i32 s{S_T2}, s34, 2560")
    a(f"s_waitcnt lgkmcnt(0)")
    W = 180
    ldsout = opts.get("ldsout", True)
    if ldsout:
        a(f"s_lshl_b32 s34, s{S_WAVE}, 13")
        a(f"s_add_u32 s34, s34, 65536")
        a(f"s_mov_b32 m0, s34")
        a(f"v_lshlrev_b32 v190, 4, v{V_LANE}")
        a(f"v_add_u32 v190, s34, v190")
        a(f"v_lshrrev_b32 v192, 4, v{V_LANE}")
        a(f"v_bfe_u32 v193, v{V_LANE}, 3, 1")
        a(f"v_lshl_add_u32 v192, v193, 2, v192")
        a(f"v_mul_u32_u24 v192, 2560, v192")
        a(f"v_and_b32 v193, 7, v{V_LANE}")
        a(f"v_lshl_add_u32 v192, v193, 4, v192")
        a(f"s_lshl_b32 s34, s{S_S}, 8")
        a(f"s_lshl_b32 s35, s{S_WN}, 7")
        a(f"s_add_u32 s34, s34, s35")
        a(f"v_add_u32 v191, s34, v192")
    for m in range(2):
        for q in range(4):
            qi = 4*m+q
            gb = GV + 8*qi
            for h in range(2):
                av = AV + 2*qi + h
                a0 = G2_ACC + 16*m + 4*q + 2*h
                w = W + 2*h
                a(f"v_lshlrev_b32 v{w}, 16, v{av}")
                a(f"v_and_b32 v{w+1}, 0xffff0000, v{av}")
                a(f"v_mul_f32 v{w}, v{w}, v{gb+4*h}")
                a(f"v_mul_f32 v{w+1}, v{w+1}, v{gb+4*h+2}")
                a(f"v_cvt_pk_bf16_f32 v{w}, v{w}, v{w+1}")
                a(f"v_and_b32 v{w+1}, 0xffff0000, v{w}")
                a(f"v_lshlrev_b32 v{w}, 16, v{w}")
                a(f"v_fma_f32 v{a0}, v{gb+4*h+1}, v{a0}, v{w}")
                a(f"v_fma_f32 v{a0+1}, v{gb+4*h+3}, v{a0+1}, v{w+1}")
                for e in range(2):
                    row = 32*m + 8*q + 2*h + e
                    if ldsout:
                        a(f"ds_write_addtid_b32 v{a0+e} offset:{(4*qi + 2*h + e)*256}")
                    else:
                        a(f"s_add_u32 s35, s{S_T2}, {row*2560}")
                        a(f"buffer_store_dword v{a0+e}, v{OV}, s[{SRD_C}:{SRD_C+3}], s35 offen {opts.get('ost', '')}")
            if ldsout and qi >= 1:
                j = qi - 1
                a(f"ds_read_b128 v[{112+4*j}:{115+4*j}], v190 offset:{j*1024}")
            if ldsout and qi >= 2:
                j = qi - 2
                a(f"s_waitcnt lgkmcnt(5)")
                a(f"s_add_u32 s35, s{S_T2}, {(32*(j >> 2) + 8*(j & 3))*2560}")
                a(f"buffer_store_dwordx4 v[{112+4*j}:{115+4*j}], v191, s[{SRD_C}:{SRD_C+3}], s35 offen {opts.get('ost', '')}")
    if ldsout:
        a(f"ds_read_b128 v[{112+28}:{115+28}], v190 offset:{7*1024}")
        for j in (6, 7):
            a(f"s_waitcnt lgkmcnt({7-j})")
            a(f"s_add_u32 s35, s{S_T2}, {(32*(j >> 2) + 8*(j & 3))*2560}")
            a(f"buffer_store_dwordx4 v[{112+4*j}:{115+4*j}], v191, s[{SRD_C}:{SRD_C+3}], s35 offen {opts.get('ost', '')}")
    stamp(a, 15)
    if PROF["on"]:
        a("s_waitcnt vmcnt(0)")
        stamp(a, 16)
    prof_end(a, opts.get("profwave", 0))

def gen_gemm(a, END, opts):
    a.c("================= GEMM role v2 =================")
    if opts.get("map45", True):
        a(f"s_mul_i32 s34, s31, 52")
        a(f"s_lshr_b32 s34, s34, 8")
        a(f"s_mul_i32 s35, s34, 5")
        a(f"s_sub_u32 s35, s31, s35")
        a(f"s_lshr_b32 s93, s30, 1")
        a(f"s_and_b32 s94, s30, 1")
        a(f"s_lshl_b32 s{S_C}, s93, 2")
        a(f"s_add_u32 s{S_C}, s{S_C}, s34")
        a(f"s_mul_i32 s{S_S}, s94, 5")
        a(f"s_add_u32 s{S_S}, s{S_S}, s35")
        a(f"s_lshl_b32 s35, s35, 1")
        a(f"s_add_u32 s35, s35, s94")
        a(f"s_add_u32 s35, s35, s93")
        a(f"s_mul_i32 s34, s34, 5")
        a(f"s_lshr_b32 s34, s34, 1")
        a(f"s_add_u32 s93, s35, s34")
        a(f"s_cmp_ge_u32 s93, 10")
        a(f"s_cselect_b32 s34, 10, 0")
        a(f"s_sub_u32 s93, s93, s34")
    else:
        a(f"s_mov_b32 s93, s30")
        a(f"s_cmp_ge_u32 s31, 10")
        a(f"s_cselect_b32 s34, 1, 0")
        a(f"s_cselect_b32 s35, 10, 0")
        a(f"s_lshl_b32 s30, s30, 1")
        a(f"s_add_u32 s{S_C}, s30, s34")
        a(f"s_sub_u32 s{S_S}, s31, s35")
        a(f"s_mul_i32 s34, s34, 5")
        a(f"s_add_u32 s93, s93, s34")
        a(f"s_add_u32 s93, s93, s{S_S}")
        for _ in range(2):
            a(f"s_cmp_ge_u32 s93, 10")
            a(f"s_cselect_b32 s34, 10, 0")
            a(f"s_sub_u32 s93, s93, s34")
    a(f"s_cmp_ge_u32 s{S_WAVE}, 4")
    a(f"s_cbranch_scc1 L_LOADER")
    gen_compute(a, END, opts)
    a(f"s_branch {END}")
    a("L_LOADER:")
    gen_loader(a, END, opts)
```

```python
NAME = "gated_mix__ssm_conv_s4d__ssm_conv_s5__prompt"

class Asm:
    def __init__(self):
        self.lines = []
        self.lab = 0
    def __call__(self, s=""):
        for ln in s.split("\n"):
            ln = ln.strip()
            if ln: self.lines.append(ln if ln.endswith(":") else "    " + ln)
    def c(self, s):
        self.lines.append("    ; " + s)
    def label(self, base="L"):
        self.lab += 1
        return f"{base}_{self.lab}"
    def text(self):
        return "\n".join(self.lines) + "\n"

def vr(a, n=1):
    return f"v{a}" if n == 1 else f"v[{a}:{a+n-1}]"
def sr(a, n=1):
    return f"s{a}" if n == 1 else f"s[{a}:{a+n-1}]"

WS_E    = 0x0
WS_FLAG = 0x40000
WS_AFLG = 0x41000
WS_KFLG = 0x44000
WS_KP   = 0x900000
WS_G    = 0x50000
WS_H    = 0x100000
WS_A    = 0x600000
WS_SIZE = 0xC00000

P_X, P_LOGA, P_AIM, P_CRE, P_CIM, P_LOGDT, P_DSKA, P_BX = 36, 38, 40, 42, 44, 46, 48, 50
P_LRE, P_LIM, P_BRE, P_BIM, P_C2RE, P_C2IM, P_LOGDTB, P_DSKB = 52, 54, 56, 58, 60, 62, 64, 66
P_GW, P_OUT, P_DBG, P_WS = 68, 70, 72, 74

S_WG, S_WAVE = 2, 3
SRD_X, SRD_WS, SRD_A, SRD_B, SRD_C, SRD_DBG = 4, 8, 12, 16, 20, 24
S_NONCE = 28

LOG2E = 1.4426950408889634
import struct
def f2u(f):
    return struct.unpack("<I", struct.pack("<f", f))[0]
def fhex(f):
    return "0x%08x" % f2u(f)
LOG2E_HI = struct.unpack("<f", struct.pack("<f", LOG2E))[0]
LOG2E_LO = LOG2E - LOG2E_HI
LN2 = 0.6931471805599453
INV2PI = 0.15915494309189535

def make_srd(a, dst, ptr, nbytes):
    a(f"s_mov_b32 s{dst}, s{ptr}")
    a(f"s_and_b32 s{dst+1}, s{ptr+1}, 0xffff")
    a(f"s_mov_b32 s{dst+2}, {nbytes}")
    a(f"s_mov_b32 s{dst+3}, 0x00020000")

def exp_accurate(a, dst, x, t0, t1, t2):
    a(f"v_mul_f32 v{t0}, {fhex(LOG2E_HI)}, v{x}")
    a(f"s_mov_b32 s34, {fhex(LOG2E_HI)}")
    a(f"v_fma_f32 v{t1}, v{x}, s34, -v{t0}")
    a(f"v_fmac_f32 v{t1}, {fhex(LOG2E_LO)}, v{x}")
    a(f"v_exp_f32 v{t2}, v{t0}")
    a(f"v_mul_f32 v{t1}, {fhex(LN2)}, v{t1}")
    a(f"s_nop 0")
    a(f"v_fma_f32 v{dst}, v{t2}, v{t1}, v{t2}")

def round_bf16(a, dst, x):
    a(f"v_cvt_pk_bf16_f32 v{dst}, v{x}, v{x}")
    a(f"v_and_b32 v{dst}, 0xffff0000, v{dst}")

def poll_timeout(a, scnt, fail_label):
    a(f"s_sub_u32 s{scnt}, s{scnt}, 1")
    a(f"s_cbranch_scc1 {fail_label}")

def wrap(body, grid=256, block=512, lds=163840, vgpr=256, sgpr=102):
    accum = min(256, (vgpr + 3) // 4 * 4)
    hdr = open("cdna_kernels/" + NAME + ".s.ref").read().split("; Override launch")[0]
    return f"""{hdr}; @launch grid=({grid},1,1) block=({block},1,1) lds={lds}
.amdgcn_target "amdgcn-amd-amdhsa--gfx950"
.text
.globl {NAME}_kernel
.p2align 8
.type {NAME}_kernel,@function
{NAME}_kernel:
{body}
.section .rodata,"a"
.p2align 6
.amdhsa_kernel {NAME}_kernel
  .amdhsa_next_free_vgpr {vgpr}
  .amdhsa_next_free_sgpr {sgpr}
  .amdhsa_accum_offset {accum}
  .amdhsa_group_segment_fixed_size 0
  .amdhsa_kernarg_size 160
  .amdhsa_user_sgpr_count 2
  .amdhsa_user_sgpr_kernarg_segment_ptr 1
  .amdhsa_system_sgpr_workgroup_id_x 1
.end_amdhsa_kernel
"""

PROF = {"on": False}
WS_PROF = 0x8C0000
V_PROF = 255
def stamp(a, k):
    if not PROF["on"]: return
    a("s_memrealtime s[96:97]")
    a("s_waitcnt lgkmcnt(0)")
    a(f"v_writelane_b32 v{V_PROF}, s96, {k}")
def prof_end(a, wave_cond=0, extra=0):
    if not PROF["on"]: return
    lab = a.label("PEND")
    a(f"s_cmp_lg_u32 s{S_WAVE}, {wave_cond}")
    a(f"s_cbranch_scc1 {lab}")
    a("v_and_b32 v254, 63, v0")
    a("v_lshlrev_b32 v254, 2, v254")
    a("s_lshl_b32 s96, s2, 7")
    a(f"s_add_u32 s96, s96, {WS_PROF + extra}")
    a("s_mov_b32 exec_lo, -1")
    a("s_mov_b32 exec_hi, 0")
    a(f"buffer_store_dword v{V_PROF}, v254, s[{SRD_WS}:{SRD_WS+3}], s96 offen")
    a("s_mov_b64 exec, -1")
    a(f"{lab}:")

def cstamp(a, k):
    if not PROF["on"]: return
    a("s_memtime s[96:97]")
    a("s_waitcnt lgkmcnt(0)")
    a(f"v_writelane_b32 v{V_PROF}, s96, {k}")

def common_init(a, nonce=False):
    a("s_waitcnt lgkmcnt(0)")
    make_srd(a, SRD_X, P_X, 2621440)
    make_srd(a, SRD_WS, P_WS, WS_SIZE)
    make_srd(a, SRD_DBG, P_DBG, 256)
    if nonce:
        lab = a.label("NONONCE")
        a(f"s_or_b32 s34, s2, s{S_WAVE}")
        a("s_cmp_lg_u32 s34, 0")
        a(f"s_cbranch_scc1 {lab}")
        a(f"s_memrealtime s[{S_NONCE}:{S_NONCE+1}]")
        a("s_waitcnt lgkmcnt(0)")
        a(f"s_or_b32 s{S_NONCE}, s{S_NONCE}, 1")
        a(f"v_mov_b32 v2, s{S_NONCE}")
        a(f"v_mov_b32 v3, s{S_NONCE+1}")
        a("v_mov_b32 v4, 0")
        a("s_mov_b64 s[34:35], exec")
        a("s_mov_b64 exec, 1")
        a(f"buffer_store_dwordx2 v[2:3], v4, s[{SRD_DBG}:{SRD_DBG+3}], 0 offen sc1")
        a("s_mov_b64 exec, s[34:35]")
        a(f"{lab}:")
    if PROF["on"]: a(f"v_mov_b32 v{V_PROF}, 0")
    stamp(a, 0)

EARLY = {"on": True}
```

```python
from common import *
from g1 import V_LANE, S_CNT, S_EXEC, S_MISM, interleave
from gate import get_nonce
from g2 import poll_flags

RSZ = 20480
U_OFF = 80
T_OFF = 5200
CS = 2368
R_OFF = T_OFF
W_OFF = T_OFF + 32
G_OFF = W_OFF + 4*CS
GD = G_OFF - R_OFF
CNT_OFF = 20416
S_IDX, S_D, S_RB = 30, 31, 32
S_T3 = 87

def slot_alpha(i):
    q, g, e = i >> 3, (i >> 2) & 1, i & 3
    if q == 0: return 4*g + e
    if q == 1:
        if e < 2: return 1024 + 256*(2*g + e)
        if e == 2 and g == 0: return 2048
        return None
    if q == 2: return None if e == 3 else 512 + 256*g + 4*e
    if q == 3: return None if e == 3 else 256 + 4*g + 2*e
XROW = {}
for i in range(32):
    al = slot_alpha(i)
    if al is None or i == 28: continue
    XROW[al] = i
HOLES = [11, 14, 15, 19, 23, 27, 28, 31]
assert all(h not in XROW.values() for h in HOLES) and len(XROW) == 24
def yrow(b): return 32 + b if b < 24 else HOLES[b - 24]

def pcmul(a, d, x, y):
    a(f"v_pk_mul_f32 v[{d}:{d+1}], v[{x}:{x+1}], v[{y}:{y+1}] op_sel:[0,0] op_sel_hi:[0,1]")
    a(f"v_pk_fma_f32 v[{d}:{d+1}], v[{x}:{x+1}], v[{y}:{y+1}], v[{d}:{d+1}] op_sel:[1,1,0] op_sel_hi:[1,0,1] neg_lo:[1,0,0]")

V_U = 16
V_PRM = 32
V_AW = 40
V_AA_ = 56
V_ACC_ = 64
V_AB_ = 96
V_E = 104
V_E256 = 120
V_B0, V_B1 = 122, 124
V_Y0, V_Y1 = 126, 128
V_X = 130
V_CP = 132
V_T_ = 134
V_E16 = 150
V_BB = 152
V_YY = 168
V_X2, V_X3 = 176, 178
V_PK = 186
V_FRK = 104
V_DT = 184
V_DSK = 185
def Ek(k): return V_E + 2*(k-1)

def cis_exp(a, d, zr2, zi, p, t):
    if p == 1:
        a(f"v_exp_f32 v{t}, v{zr2}")
        a(f"v_fract_f32 v{t+1}, v{zi}")
    else:
        a(f"v_mul_f32 v{t}, {fhex(float(p))}, v{zr2}")
        a(f"v_mul_f32 v{t+1}, {fhex(float(p))}, v{zi}")
        a(f"v_exp_f32 v{t}, v{t}")
        a(f"v_fract_f32 v{t+1}, v{t+1}")
    a(f"v_cos_f32 v{t+2}, v{t+1}")
    a(f"v_sin_f32 v{t+3}, v{t+1}")
    a(f"s_nop 0")
    a(f"v_mul_f32 v{d}, v{t}, v{t+2}")
    a(f"v_mul_f32 v{d+1}, v{t}, v{t+3}")

class TabWriter:
    NPK = 8
    def __init__(self, a): self.a = a; self.k = 0; self.q = []
    def put(self, row, pair, neg):
        t = V_PK + (self.k % self.NPK); self.k += 1
        self.a(f"v_cvt_pk_bf16_f32 v{t}, v{pair}, {'-' if neg else ''}v{pair+1}")
        self.q.append(f"ds_write_addtid_b32 v{t} offset:{row*272}")
        while len(self.q) > 2: self.a(self.q.pop(0))
    def flush(self):
        while self.q: self.a(self.q.pop(0))

def kgen_pass(a, hh, extras=None, pk=True, every=4):
    T = V_T_
    a.c(f"K-gen pass {hh}")
    fresh = (hh == 0) or isinstance(hh, str)
    if hh == "one":
        for k in range(4): a(f"v_and_b32 v{T+k}, 0xffff0000, v{V_PRM+k}")
    elif isinstance(hh, str):
        l0 = a.label("KH0"); l1 = a.label("KH1")
        a(f"s_cmp_lg_u32 {hh}, 0")
        a(f"s_cbranch_scc1 {l0}")
        for k in range(4): a(f"v_lshlrev_b32 v{T+k}, 16, v{V_PRM+k}")
        a(f"s_branch {l1}")
        a(f"{l0}:")
        for k in range(4): a(f"v_and_b32 v{T+k}, 0xffff0000, v{V_PRM+k}")
        a(f"{l1}:")
    else:
        for k in range(4):
            if hh == 0: a(f"v_lshlrev_b32 v{T+k}, 16, v{V_PRM+k}")
            else:       a(f"v_and_b32 v{T+k}, 0xffff0000, v{V_PRM+k}")
    exp_accurate(a, T, T, T+4, T+5, T+6)
    round_bf16(a, T, T)
    a(f"v_mul_f32 v{T}, -v{T}, v{V_DT}")
    a(f"v_mul_f32 v{T+1}, v{T+1}, v{V_DT}")
    a(f"v_mul_f32 v{T}, {fhex(LOG2E)}, v{T}")
    a(f"v_mul_f32 v{T+1}, {fhex(INV2PI)}, v{T+1}")
    a(f"v_mul_f32 v{T+2}, v{T+2}, v{V_DT}")
    a(f"v_mul_f32 v{T+3}, v{T+3}, v{V_DT}")
    a(f"v_add_f32 v{V_B0}, v{T+2}, v{T+2}")
    a(f"v_add_f32 v{V_B0+1}, v{T+3}, v{T+3}")
    t, u = T+4, T+8
    a(f"v_exp_f32 v{t}, v{T}")
    a(f"v_mul_f32 v{u}, {fhex(256.0)}, v{T}")
    a(f"v_fract_f32 v{t+1}, v{T+1}")
    a(f"v_mul_f32 v{u+1}, {fhex(256.0)}, v{T+1}")
    a(f"v_exp_f32 v{u}, v{u}")
    a(f"v_cos_f32 v{t+2}, v{t+1}")
    a(f"v_fract_f32 v{u+1}, v{u+1}")
    a(f"v_sin_f32 v{t+3}, v{t+1}")
    a(f"v_cos_f32 v{u+2}, v{u+1}")
    a(f"v_mul_f32 v{Ek(1)}, v{t}, v{t+2}")
    a(f"v_sin_f32 v{u+3}, v{u+1}")
    a(f"v_mul_f32 v{Ek(1)+1}, v{t}, v{t+3}")
    a(f"v_mul_f32 v{V_E256}, v{u}, v{u+2}")
    a(f"v_mul_f32 v{V_E256+1}, v{u}, v{u+3}")
    ops = []
    val = {"E1": Ek(1), "E256": V_E256, "B0": V_B0}
    def op(name, dst, x, y, row=None, neg=False):
        ops.append(dict(name=name, dst=dst, x=x, y=y, row=row, neg=neg))
    op("E2", Ek(2), "E1", "E1")
    op("E4", Ek(4), "E2", "E2")
    op("E3", Ek(3), "E2", "E1")
    op("E8", Ek(8), "E4", "E4", yrow(1))
    op("E5", Ek(5), "E4", "E1")
    op("E6", Ek(6), "E4", "E2")
    op("E7", Ek(7), "E4", "E3")
    op("E16", V_E16, "E8", "E8", yrow(2))
    for kb in range(1, 9):
        op(f"B{kb}", V_BB + 2*(kb-1), f"B{kb-1}", "E256", XROW[256*kb], True)
    def yn(b): return "E8" if b == 1 else ("E16" if b == 2 else f"Y{b}")
    for b in range(3, 32):
        op(f"Y{b}", V_YY + 2*(b % 4), yn(b-2), "E16", yrow(b), False)
    xr = [V_X, V_CP, V_X2, V_X3]
    n = 0
    xl = [(0, k) for k in range(1, 8)] + [(1, k) for k in (2, 4, 6, 8)] + [(2, 4), (2, 8), (3, 4), (3, 8)]
    for kb, k in xl:
        op(f"X{kb}_{k}", xr[n % 4], f"B{kb}", f"E{k}", XROW[256*kb + k], True); n += 1
    order = []
    done = {"E1": -9, "E256": -9, "B0": -9}
    pend = list(ops)
    slot = 0
    def ready(o):
        if not (o["x"] in done and o["y"] in done): return False
        if slot - done[o["x"]] < 2 or slot - done[o["y"]] < 2: return False
        cls = o["name"][0]
        if cls in "YX":
            for p in pend:
                if p is o: break
                if p["name"][0] == cls: return False
        return True
    rr = 0
    while pend:
        cand = [o for o in pend if ready(o)]
        if not cand:
            slot += 1; order.append(None); continue
        pri = {"E": 0, "B": 1, "Y": 2 + (rr & 1), "X": 3 - (rr & 1)}
        cand.sort(key=lambda o: pri[o["name"][0]])
        o = cand[0]
        pend.remove(o); done[o["name"]] = slot; val[o["name"]] = o["dst"]
        order.append(o); slot += 1; rr += 1
    tw = TabWriter(a)
    tw.put(XROW[0], V_B0, True)
    a(f"v_mov_b32 v180, 0x00003f80")
    a(f"ds_write_addtid_b32 v180 offset:{yrow(0)*272}")
    real = [o for o in order if o is not None]
    def mul(o):
        d, x, y = o["dst"], val[o["x"]], val[o["y"]]
        if not pk:
            a(f"v_mul_f32 v{d}, v{x}, v{y}")
            a(f"v_mul_f32 v{d+1}, v{x}, v{y+1}")
            return
        a(f"v_pk_mul_f32 v[{d}:{d+1}], v[{x}:{x+1}], v[{y}:{y+1}] op_sel:[0,0] op_sel_hi:[0,1]")
    def fma(o):
        d, x, y = o["dst"], val[o["x"]], val[o["y"]]
        if not pk:
            a(f"v_fma_f32 v{d}, -v{x+1}, v{y+1}, v{d}")
            a(f"v_fma_f32 v{d+1}, v{x+1}, v{y}, v{d+1}")
            return
        a(f"v_pk_fma_f32 v[{d}:{d+1}], v[{x}:{x+1}], v[{y}:{y+1}], v[{d}:{d+1}] op_sel:[1,1,0] op_sel_hi:[1,0,1] neg_lo:[1,0,0]")
    i = 0
    grp = 0
    lastput = None
    while i < len(real):
        o = real[i]
        o2 = real[i+1] if i + 1 < len(real) else None
        grp += 1
        if extras and grp % every == 1 and grp > 0:
            for ins in extras.pop(0): a(ins)
        if o2 is not None and o["name"] not in (o2["x"], o2["y"]) and o2["dst"] != o["dst"] and o2["dst"] not in (val[o["x"]], val[o["y"]]):
            mul(o); mul(o2)
            if lastput:
                for p in lastput: tw.put(p["row"], p["dst"], p["neg"])
            fma(o); fma(o2)
            lastput = [p for p in (o, o2) if p["row"] is not None]
            i += 2
        else:
            mul(o)
            if lastput:
                for p in lastput: tw.put(p["row"], p["dst"], p["neg"])
            fma(o)
            lastput = [o] if o["row"] is not None else []
            i += 1
    for p in lastput: tw.put(p["row"], p["dst"], p["neg"])
    tw.flush()
    assert not extras, "extras not all placed"
    a(f"s_waitcnt lgkmcnt(0)")
    def rd(ks):
        st = V_FRK + 8*ks
        return [f"ds_read_b128 v[{st}:{st+3}], v{V_AA_} offset:{32*ks}", f"ds_read_b128 v[{st+4}:{st+7}], v{V_AB_} offset:{32*ks}"]
    for ks in range(7):
        for ins in rd(ks): a(ins)
    for ks in range(8):
        if ks == 0:
            a(f"s_waitcnt lgkmcnt(12)")
        elif ks == 1:
            for ins in rd(7): a(ins)
            a(f"s_waitcnt lgkmcnt(12)")
        else:
            a(f"s_waitcnt lgkmcnt({2*(7-ks)})")
        st = V_FRK + 8*ks
        c = "0" if (fresh and ks == 0) else f"v[{V_ACC_}:{V_ACC_+15}]"
        a(f"v_mfma_f32_32x32x16_bf16 v[{V_ACC_}:{V_ACC_+15}], v[{st}:{st+3}], v[{st+4}:{st+7}], {c}")

def kgen_addr_setup(a, sbase):
    K5, K6, K7, K8, K9, K10 = 80, 81, 82, 83, 84, 85
    a(f"s_mov_b32 m0, {sbase}")
    a(f"v_and_b32 v{K5}, 31, v{V_LANE}")
    a(f"v_lshrrev_b32 v{K6}, 5, v{V_LANE}")
    a(f"v_lshlrev_b32 v{K6}, 4, v{K6}")
    a(f"v_add_u32 v{K6}, {sbase}, v{K6}")
    a(f"v_mov_b32 v{K7}, 26")
    a(f"v_cmp_eq_u32 vcc, 28, v{K5}")
    lo = HOLES[0] | HOLES[1] << 8 | HOLES[2] << 16 | HOLES[3] << 24
    hi = HOLES[4] | HOLES[5] << 8 | HOLES[6] << 16 | HOLES[7] << 24
    a(f"v_mov_b32 v{K9}, {hex(lo)}")
    a("s_nop 0")
    a(f"v_cndmask_b32 v{K7}, v{K5}, v{K7}, vcc")
    a(f"v_mov_b32 v{K10}, {hex(hi)}")
    a(f"v_mul_u32_u24 v{K7}, 272, v{K7}")
    a(f"v_add_u32 v{V_AA_}, v{K7}, v{K6}")
    a(f"v_and_b32 v{K8}, 7, v{K5}")
    a(f"v_or_b32 v{K8}, 0x0c0c0c00, v{K8}")
    a(f"v_perm_b32 v{K8}, v{K10}, v{K9}, v{K8}")
    a(f"v_add_u32 v{K7}, 32, v{K5}")
    a(f"v_cmp_lt_u32 vcc, 23, v{K5}")
    a("s_nop 1")
    a(f"v_cndmask_b32 v{K7}, v{K7}, v{K8}, vcc")
    a(f"v_mul_u32_u24 v{K7}, 272, v{K7}")
    a(f"v_add_u32 v{V_AB_}, v{K7}, v{K6}")

def build_W(a, vsrc, vdst):
    S = 104
    regs = [(104, 112), (124, 132)]
    def rd(it):
        S, Wk = regs[it & 1]
        a(f"ds_read_b128 v[{S}:{S+3}], v{vsrc} offset:{32 + it*1024}")
        a(f"ds_read_b128 v[{S+4}:{S+7}], v{vsrc} offset:{32 + it*1024 + 16}")
    rd(0); rd(1)
    for it in range(3):
        S, Wk = regs[it & 1]
        if it == 2:
            a(f"s_mov_b64 s[{S_EXEC}:{S_EXEC+1}], exec")
            a(f"s_mov_b64 exec, 0x3ff")
            rd(2)
            a(f"s_waitcnt lgkmcnt(0)")
        else:
            a(f"s_waitcnt lgkmcnt({2 if it == 0 else 3})")
        for k in range(4): a(f"v_alignbyte_b32 v{Wk+k}, v{S+k+1}, v{S+k}, 2")
        for k in range(4): a(f"v_mov_b32 v{Wk+4+k}, v{S+k+1}")
        a(f"ds_write_b128 v{vdst}, v[{Wk}:{Wk+3}] offset:{CS + it*1024}")
        for k in range(4): a(f"v_alignbyte_b32 v{Wk+8+k}, v{S+k+2}, v{S+k+1}, 2")
        a(f"ds_write_b128 v{vdst}, v[{Wk+4}:{Wk+7}] offset:{2*CS + it*1024}")
        a(f"ds_write_b128 v{vdst}, v[{Wk+8}:{Wk+11}] offset:{3*CS + it*1024}")
        if it == 2:
            a(f"s_mov_b64 exec, s[{S_EXEC}:{S_EXEC+1}]")

V_CA = 40
V_CP33 = 41
V_CQ = 42
V_CZ = 43
V_CQC = 44
V_CF = 104

def conv_dense(a, extra=None):
    NSET = 4
    D = NSET - 1
    subs = [(d, h, True) for d in range(32) for h in range(2)] + [(32, 0, False), (32, 1, False), (33, 1, False)]
    def qreg(d): return V_CQC + (d % 4)
    def addr_ops(d):
        if d >= 32: return []
        if d == 0: return [f"v_max_i32 v{qreg(0)}, v{V_CQ}, v{V_CZ}"]
        return [f"v_subrev_u32 v{V_CQ}, 80, v{V_CQ}", f"v_max_i32 v{qreg(d)}, v{V_CQ}, v{V_CZ}"]
    def reads(s):
        d, h, both = subs[s]
        st = V_CF + 12*(s % NSET)
        o = 64*(33-d) + 32*h
        L = [f"ds_read_b64 v[{st}:{st+1}], v{V_CA} offset:{o}",
             f"ds_read_b64 v[{st+2}:{st+3}], v{V_CA} offset:{o+8}",
             f"ds_read_b128 v[{st+8}:{st+11}], v{V_CP33} offset:{80*(33-d) + 32*h}"]
        if both: L.append(f"ds_read_b128 v[{st+4}:{st+7}], v{qreg(d)} offset:{32*h}")
        return L
    def mf(s):
        d, h, both = subs[s]
        st = V_CF + 12*(s % NSET)
        a0, a1 = V_ACC_, V_ACC_+16
        c0 = "0" if s == 0 else f"v[{a0}:{a0+15}]"
        c1 = "0" if s == 0 else f"v[{a1}:{a1+15}]"
        L = [f"v_mfma_f32_32x32x16_bf16 v[{a1}:{a1+15}], v[{st}:{st+3}], v[{st+8}:{st+11}], {c1}"]
        if both: L.append(f"v_mfma_f32_32x32x16_bf16 v[{a0}:{a0+15}], v[{st}:{st+3}], v[{st+4}:{st+7}], {c0}")
        return L
    N = len(subs)
    done_addr = set()
    def need_addr(s):
        d = subs[s][0]
        if d not in done_addr:
            done_addr.add(d)
            return addr_ops(d)
        return []
    for s in range(D):
        for ins in need_addr(s): a(ins)
        for ins in reads(s): a(ins)
    for s in range(N):
        rem = sum(len(reads(t)) for t in range(s+1, min(s+D, N)))
        a(f"s_waitcnt lgkmcnt({rem})")
        fill = []
        if s + D < N:
            fill += need_addr(s+D)
            fill += reads(s+D)
        if extra and s in extra: fill += extra[s]
        interleave(a, mf(s), fill)

V_BD = 216
V_UA = 240

def far_setup(a):
    T = 186
    a(f"v_and_b32 v{T}, 31, v{V_LANE}")
    a(f"v_lshrrev_b32 v{T+1}, 5, v{V_LANE}")
    a(f"v_lshlrev_b32 v{T+2}, 3, v{T+1}")
    a(f"v_sub_u32 v{T+2}, v{T+2}, v{T}")
    a(f"v_subrev_u32 v{T+2}, 8, v{T+2}")
    a(f"v_lshlrev_b32 v{T+3}, 4, v{T}")
    a(f"v_lshl_add_u32 v{T+3}, v{T+1}, 3, v{T+3}")
    a(f"s_add_u32 s95, s{S_RB}, {80 - 160 + 1280}")
    a(f"v_mov_b32 v{T+6}, s{S_RB}")
    for par in range(2):
        for ks in range(3):
            c0 = (-40 if par == 0 else -32) + 16*ks
            r = V_UA + 3*par + ks
            a(f"v_add_u32 v{T+4}, {c0 + 64}, v{T+3}")
            a(f"v_lshrrev_b32 v{T+5}, 5, v{T+4}")
            a(f"v_mul_u32_u24 v{T+5}, 80, v{T+5}")
            a(f"v_and_b32 v{T+4}, 31, v{T+4}")
            a(f"v_lshl_add_u32 v{T+5}, v{T+4}, 1, v{T+5}")
            a(f"v_add_u32 v{r+6}, s95, v{T+5}")
            a(f"v_subrev_u32 v{T+5}, 1280, v{r+6}")
            a(f"v_max_i32 v{r}, v{T+5}, v{T+6}")
    a(f"v_lshlrev_b32 v{T+9}, 3, v{T+1}")
    for par in range(2):
        w = 4 - par
        M = T + 10
        a(f"v_mov_b32 v{M}, {(1 << (2*w+1)) - 1}")
        a(f"v_mov_b32 v{M+1}, 0")
        a(f"v_add_u32 v{T+4}, {8 - w}, v{T}")
        a(f"v_lshlrev_b64 v[{M}:{M+1}], v{T+4}, v[{M}:{M+1}]")
        a(f"v_lshrrev_b64 v[{M}:{M+1}], v{T+9}, v[{M}:{M+1}]")
        for ks in range(3):
            word = M if ks < 2 else M + 1
            for dw in range(4):
                r = V_BD + 12*par + 4*ks + dw
                a(f"v_bfe_u32 v{r}, v{word}, {(16*ks) % 32 + 2*dw}, 2")
                a(f"v_lshl_or_b32 v{r}, v{r}, 15, v{r}")
                a(f"v_and_b32 v{r}, 0x00010001, v{r}")
                a(f"v_mul_u32_u24 v{r}, 0x3f80, v{r}")

def conv_far(a):
    a.c("far part")
    ZA = 144
    FR = 104
    seq = [(t, par, ks) for t in range(2) for par in range(2) for ks in range(3)]
    def rd(j):
        t, par, ks = seq[j]
        r = FR + 4*(j % 8)
        return f"ds_read_b128 v[{r}:{r+3}], v{V_UA + 6*t + 3*par + ks}"
    for j in range(8): a(rd(j))
    for j in range(12):
        t, par, ks = seq[j]
        issued = min(12, 8 + j)
        a(f"s_waitcnt lgkmcnt({issued - j - 1})")
        r = FR + 4*(j % 8)
        d = ZA + 16*(2*t + par)
        c = "0" if ks == 0 else f"v[{d}:{d+15}]"
        b = V_BD + 12*par + 4*ks
        a(f"v_mfma_f32_32x32x16_bf16 v[{d}:{d+15}], v[{r}:{r+3}], v[{b}:{b+3}], {c}")
        if j + 8 < 12: a(rd(j+8))
    ZF = 104
    GF = 144
    for q in range(4):
        for e in range(4):
            a(f"v_cvt_pk_bf16_f32 v{ZF + 4*q + e}, v{ZA + 4*q + e}, v{ZA + 16 + 4*q + e}")
    def grd(ks):
        r = GF + 4*ks
        return [f"ds_read_b64 v[{r}:{r+1}], v{V_GA} offset:{32*ks}", f"ds_read_b64 v[{r+2}:{r+3}], v{V_GA} offset:{32*ks+8}"]
    for ks in range(6):
        for ins in grd(ks): a(ins)
    for q in range(4):
        for e in range(4):
            a(f"v_cvt_pk_bf16_f32 v{ZF + 16 + 4*q + e}, v{ZA + 32 + 4*q + e}, v{ZA + 48 + 4*q + e}")
    a1 = V_ACC_ + 16
    for ks in range(8):
        if ks == 0:
            a(f"s_waitcnt lgkmcnt(10)")
        elif ks == 1:
            for k2 in (6, 7):
                for ins in grd(k2): a(ins)
            a(f"s_waitcnt lgkmcnt(12)")
        else:
            a(f"s_waitcnt lgkmcnt({2*(7-ks)})")
        r = GF + 4*ks
        a(f"v_mfma_f32_32x32x16_bf16 v[{a1}:{a1+15}], v[{ZF+4*ks}:{ZF+4*ks+3}], v[{r}:{r+3}], v[{a1}:{a1+15}]")

V_CZ2 = 48
V_GA = 51

def u_stage(a, UREG):
    a(f"s_waitcnt vmcnt(0)")
    stamp(a, 5)
    a(f"s_and_b32 s35, s{S_WAVE}, 3")
    a(f"v_lshrrev_b32 v5, 5, v{V_LANE}")
    a(f"s_lshl_b32 s33, s35, 4")
    a(f"v_add_u32 v5, s33, v5")
    a(f"v_mul_u32_u24 v5, 80, v5")
    a(f"v_and_b32 v3, 31, v{V_LANE}")
    a(f"v_lshl_add_u32 v5, v3, 1, v5")
    a(f"v_add_u32 v5, {U_OFF}, v5")
    for i in range(8):
        a(f"s_lshl_b32 s34, s{S_IDX}, 1")
        a(f"s_add_u32 s34, s34, {i}")
        a(f"s_and_b32 s34, s34, 7")
        a(f"s_mul_i32 s34, s34, 160")
        a(f"v_add_u32 v6, s34, v5")
        a(f"v_add_u32 v7, {3*RSZ}, v6")
        a(f"v_add_u32 v8, {6*RSZ}, v6")
        for ch in range(8):
            base = [6, 7, 8][ch // 3]
            off = (ch % 3)*RSZ
            op = "ds_write_b16" if ch % 2 == 0 else "ds_write_b16_d16_hi"
            a(f"{op} v{base}, v{UREG[i] + ch//2} offset:{off}")
    a(f"v_mov_b32 v8, 0\nv_mov_b32 v9, 0\nv_mov_b32 v10, 0\nv_mov_b32 v11, 0")
    a(f"s_mul_i32 s34, s35, {RSZ}")
    a(f"v_lshlrev_b32 v5, 4, v{V_LANE}")
    a(f"v_add_u32 v5, s34, v5")
    a(f"v_add_u32 v6, {4*RSZ}, v5")
    a(f"s_mov_b64 s[{S_EXEC}:{S_EXEC+1}], exec")
    a(f"s_mov_b64 exec, 31")
    a(f"ds_write_b128 v5, v[8:11]")
    a(f"ds_write_b128 v6, v[8:11]")
    a("s_waitcnt lgkmcnt(0)")
    a(f"s_mov_b64 exec, 1")
    a(f"v_mov_b32 v12, {CNT_OFF}")
    a(f"v_mov_b32 v13, 1")
    a(f"ds_add_u32 v12, v13")
    a(f"s_mov_b64 exec, s[{S_EXEC}:{S_EXEC+1}]")

SRD_T0, SRD_T1 = 12, 16
S_TOUCH = 94
MAP45 = {"v": True}
def touch_setup(a, map45):
    make_srd(a, SRD_T0, P_C2RE, 819200)
    make_srd(a, SRD_T1, P_C2IM, 819200)
    a(f"s_cmp_lt_u32 s{S_WAVE}, 4")
    a(f"s_cselect_b32 s{SRD_T0+2}, 819200, 0")
    a(f"s_cselect_b32 s{SRD_T1+2}, 819200, 0")
    a(f"v_lshrrev_b32 v14, 3, v{V_LANE}")
    a(f"v_mul_u32_u24 v14, 1280, v14")
    a(f"v_and_b32 v15, 7, v{V_LANE}")
    a(f"v_lshl_add_u32 v39, v15, 6, v14")
    a(f"s_mul_hi_u32 s35, s{S_IDX}, {(2**32 + 9)//10}")
    a(f"s_mul_i32 s34, s35, 10")
    a(f"s_sub_u32 s34, s{S_IDX}, s34")
    if MAP45["v"]:
        a(f"s_and_b32 s35, s35, 1")
        a(f"s_mul_i32 s35, s35, 40")
        a(f"s_lshl_b32 s34, s34, 2")
        a(f"s_add_u32 s35, s35, s34")
        a(f"s_and_b32 s34, s{S_WAVE}, 3")
        a(f"s_add_u32 s35, s35, s34")
        a(f"s_mul_i32 s{S_TOUCH}, s35, {8*1280}")
    else:
        a(f"s_lshl_b32 s34, s34, 2")
        a(f"s_and_b32 s35, s{S_WAVE}, 3")
        a(f"s_add_u32 s35, s35, s34")
        a(f"s_mul_i32 s{S_TOUCH}, s35, {16*1280}")
        a(f"s_add_u32 s98, s{S_TOUCH}, {8*1280}")
def touch(k):
    srd = SRD_T0 if (k & 1) == 0 else SRD_T1
    off = 512*(k >> 1)
    L = [f"buffer_load_dword v38, v39, s[{srd}:{srd+3}], s{S_TOUCH} offen offset:{off}"]
    if not MAP45["v"]:
        L.append(f"buffer_load_dword v38, v39, s[{srd}:{srd+3}], s98 offen offset:{off}")
    return L

def gen_conv(a, END, opts):
    MAP45["v"] = opts.get("map45", True)
    a.c("================= CONV role v2 =================")
    a("s_mul_i32 s30, s30, 10")
    a("s_add_u32 s30, s30, s31")
    a(f"s_sub_u32 s{S_IDX}, s30, 20")
    a(f"s_lshl_b32 s{S_D}, s{S_IDX}, 3")
    a(f"s_add_u32 s{S_D}, s{S_D}, s{S_WAVE}")
    a(f"s_mul_i32 s{S_RB}, s{S_WAVE}, {RSZ}")
    T = V_T_
    a(f"v_lshlrev_b32 v5, 2, v{V_LANE}")
    a(f"s_add_u32 s33, s{S_RB}, {CNT_OFF}")
    a(f"v_add_u32 v5, s33, v5")
    a(f"v_mov_b32 v3, 0")
    a(f"s_mov_b64 exec, 15")
    a(f"ds_write_b32 v5, v3")
    a(f"s_mov_b64 exec, -1")
    a(f"s_waitcnt lgkmcnt(0)")
    a("s_barrier")
    coop = opts.get("coop")
    V_PRMB = 40
    a(f"v_lshlrev_b32 v2, 2, v{V_LANE}")
    if coop:
        a(f"s_and_b32 s35, s{S_D}, 0xfffffffb")
    else:
        a(f"s_mov_b32 s35, s{S_D}")
    a(f"s_lshl_b32 s33, s35, 8")
    for k, P in enumerate([P_LOGA, P_AIM, P_CRE, P_CIM]):
        make_srd(a, SRD_A, P, 163840)
        a(f"buffer_load_dword v{V_PRM+k}, v2, s[{SRD_A}:{SRD_A+3}], s33 offen")
    a(f"s_lshl_b32 s33, s35, 1")
    a(f"v_mov_b32 v3, 0")
    make_srd(a, SRD_A, P_LOGDT, 1280)
    a(f"buffer_load_ushort v{V_PRM+4}, v3, s[{SRD_A}:{SRD_A+3}], s33 offen")
    a(f"s_lshl_b32 s33, s{S_D}, 1")
    make_srd(a, SRD_B, P_DSKA, 1280)
    a(f"buffer_load_ushort v{V_PRM+5}, v3, s[{SRD_B}:{SRD_B+3}], s33 offen")
    if coop:
        labb = a.label("PB")
        a(f"s_cmp_lt_u32 s{S_WAVE}, 4")
        a(f"s_cbranch_scc1 {labb}")
        a(f"buffer_load_ushort v{V_PRMB+4}, v3, s[{SRD_A}:{SRD_A+3}], s33 offen")
        a(f"s_lshl_b32 s33, s{S_D}, 8")
        for k, P in enumerate([P_LOGA, P_AIM, P_CRE, P_CIM]):
            make_srd(a, SRD_A, P, 163840)
            a(f"buffer_load_dword v{V_PRMB+k}, v2, s[{SRD_A}:{SRD_A+3}], s33 offen")
        a(f"{labb}:")
    UREG = [16, 20, 24, 28, 194, 198, 202, 206]
    a(f"v_mul_u32_u24 v15, 1280, v{V_LANE}")
    a(f"s_and_b32 s35, s{S_WAVE}, 3")
    a(f"s_mul_i32 s33, s35, {512*1280}")
    a(f"s_lshl_b32 s34, s{S_IDX}, 4")
    a(f"s_add_u32 s33, s33, s34")
    uloads = []
    for i in range(8):
        a(f"s_lshl_b32 s34, s{S_IDX}, 1")
        a(f"s_add_u32 s34, s34, {i}")
        a(f"s_and_b32 s34, s34, 7")
        a(f"s_mul_i32 s34, s34, {64*1280}")
        a(f"s_add_u32 s{76+i}, s34, s33")
        uloads.append([f"buffer_load_dwordx4 v[{UREG[i]}:{UREG[i]+3}], v15, s[{SRD_X}:{SRD_X+3}], s{76+i} offen"])
    if opts.get("uold") or opts.get("uimm") or opts.get("uimm2") or opts.get("uimm3") or opts.get("uimm4") or opts.get("kofl") or coop:
        lab = a.label("UIMM")
        a(f"s_cmp_lt_u32 s{S_WAVE}, 4")
        a(f"s_cbranch_scc{0 if opts.get('uold') else 1} {lab}")
        for l in uloads:
            for ins in l: a(ins)
        a(f"{lab}:")
    if opts.get("prio", False):
        lab = a.label("PRIO")
        a(f"s_cmp_ge_u32 s{S_WAVE}, 4")
        a(f"s_cbranch_scc1 {lab}")
        a("s_setprio 2")
        a(f"{lab}:")
    a(f"v_lshlrev_b32 v2, 2, v{V_LANE}")
    a(f"s_add_u32 s33, s{S_RB}, {T_OFF}")
    a(f"s_mov_b32 m0, s33")
    a(f"v_and_b32 v5, 31, v{V_LANE}")
    a(f"v_lshrrev_b32 v6, 5, v{V_LANE}")
    a(f"v_lshlrev_b32 v6, 4, v6")
    a(f"v_add_u32 v6, s33, v6")
    a(f"v_mov_b32 v7, 26")
    a(f"v_cmp_eq_u32 vcc, 28, v5")
    lo = HOLES[0] | HOLES[1] << 8 | HOLES[2] << 16 | HOLES[3] << 24
    hi = HOLES[4] | HOLES[5] << 8 | HOLES[6] << 16 | HOLES[7] << 24
    a(f"v_mov_b32 v9, {hex(lo)}")
    a("s_nop 0")
    a(f"v_cndmask_b32 v7, v5, v7, vcc")
    a(f"v_mov_b32 v10, {hex(hi)}")
    a(f"v_mul_u32_u24 v7, 272, v7")
    a(f"v_add_u32 v{V_AA_}, v7, v6")
    a(f"v_and_b32 v8, 7, v5")
    a(f"v_or_b32 v8, 0x0c0c0c00, v8")
    a(f"v_perm_b32 v8, v10, v9, v8")
    a(f"v_add_u32 v7, 32, v5")
    a(f"v_cmp_lt_u32 vcc, 23, v5")
    a("s_nop 1")
    a(f"v_cndmask_b32 v7, v7, v8, vcc")
    a(f"v_mul_u32_u24 v7, 272, v7")
    a(f"v_add_u32 v{V_AB_}, v7, v6")
    stamp(a, 1)
    if opts.get("uold") or opts.get("uimm") or opts.get("uimm2") or opts.get("uimm3") or opts.get("uimm4") or opts.get("kofl") or coop:
        labw = a.label("PW"); labw2 = a.label("PW2")
        a(f"s_cmp_lt_u32 s{S_WAVE}, 4")
        a(f"s_cbranch_scc{0 if opts.get('uold') else 1} {labw}")
        a(f"s_waitcnt vmcnt({13 if coop else 8})")
        a(f"s_branch {labw2}")
        a(f"{labw}:")
        a("s_waitcnt vmcnt(0)")
        a(f"{labw2}:")
    else:
        a("s_waitcnt vmcnt(0)")
    stamp(a, 2)
    if opts.get("tlbw"):
        a(f"v_lshlrev_b32 v4, 20, v{V_LANE}")
        a(f"s_mov_b64 exec, 0x3ff")
        a(f"buffer_load_dword v38, v4, s[{SRD_WS}:{SRD_WS+3}], 0 offen")
        a(f"s_mov_b64 exec, -1")
    a(f"v_lshlrev_b32 v{V_DT}, 16, v{V_PRM+4}")
    exp_accurate(a, V_DT, V_DT, T, T+1, T+2)
    round_bf16(a, V_DT, V_DT)
    a(f"v_lshlrev_b32 v{V_DSK}, 16, v{V_PRM+5}")
    ct = opts.get("ctouch", False)
    if ct: touch_setup(a)
    if opts.get("nou"): uloads = [[], [], [], []]
    if opts.get("uearly"):
        for l in uloads:
            for ins in l: a(ins)
        uloads = [[], [], [], []]
    lab_yk = a.label("YK"); lab_kd = a.label("KD")
    a(f"s_cmp_ge_u32 s{S_WAVE}, 4")
    a(f"s_cbranch_scc1 {lab_yk}")
    et = opts.get("etouch", False)
    if et: touch_setup(a, True)
    kgen_pass(a, 0)
    stamp(a, 3)
    if coop:
        if et:
            for ins in touch(0) + touch(1): a(ins)
        a(f"s_add_u32 s33, s{S_RB}, {4*RSZ}")
        a(f"s_add_u32 s34, s33, {CNT_OFF}")
        a(f"v_mov_b32 v12, s34")
        lp = a.label("PSP"); ok = a.label("PSOK")
        a(f"s_mov_b32 s{S_CNT}, 2000000")
        a(f"{lp}:")
        a(f"ds_read_b32 v13, v12")
        a(f"s_waitcnt lgkmcnt(0)")
        a(f"v_readfirstlane_b32 s{S_T3}, v13")
        a(f"s_nop 0")
        a(f"s_cmp_ge_u32 s{S_T3}, 1")
        a(f"s_cbranch_scc1 {ok}")
        a(f"s_sleep 1")
        a(f"s_sub_u32 s{S_CNT}, s{S_CNT}, 1")
        a(f"s_cbranch_scc0 {lp}")
        a(f"{ok}:")
        a(f"v_lshlrev_b32 v5, 2, v{V_LANE}")
        a(f"s_add_u32 s33, s33, {T_OFF}")
        a(f"v_add_u32 v5, s33, v5")
        for r in range(15):
            a(f"ds_read_b32 v{104+r}, v5 offset:{r*272}")
        a(f"s_waitcnt lgkmcnt(0)")
        a(f"v_mov_b32 v13, 1")
        a(f"s_mov_b64 exec, 1")
        a(f"ds_add_u32 v12, v13 offset:4")
        a(f"s_mov_b64 exec, -1")
        for r in range(15):
            a(f"v_add_f32 v{V_ACC_+r}, v{V_ACC_+r}, v{104+r}")
    else:
        if opts.get("uold") == 2:
            u_stage(a, UREG)
        kgen_pass(a, 1, [touch(0), touch(1)] if et else None, every=opts.get("etev", 14))
        if opts.get("uold") == 1:
            u_stage(a, UREG)
    a(f"s_branch {lab_kd}")
    a(f"{lab_yk}:")
    if et: touch_setup(a, True)
    if opts.get("uold"):
        kgen_pass(a, 0)
        stamp(a, 3)
        kgen_pass(a, 1, None, pk=opts.get("ypk", True))
    elif coop:
        kgen_pass(a, "one")
        stamp(a, 13)
        a("s_nop 7\ns_nop 7")
        for r in range(15):
            a(f"ds_write_addtid_b32 v{V_ACC_+r} offset:{r*272}")
        a(f"s_add_u32 s34, s{S_RB}, {CNT_OFF}")
        a(f"v_mov_b32 v12, s34")
        a(f"v_mov_b32 v13, 1")
        a(f"s_waitcnt lgkmcnt(0)")
        a(f"s_mov_b64 exec, 1")
        a(f"ds_add_u32 v12, v13")
        a(f"s_mov_b64 exec, -1")
        a("s_setprio 3")
        u_stage(a, UREG)
        a(f"s_setprio {opts.get('yprio0', 0)}")
        stamp(a, 14)
        a(f"s_add_u32 s34, s{S_RB}, {CNT_OFF + 4}")
        a(f"v_mov_b32 v12, s34")
        lp = a.label("ASP"); ok = a.label("ASOK")
        a(f"s_mov_b32 s{S_CNT}, 2000000")
        a(f"{lp}:")
        a(f"ds_read_b32 v13, v12")
        a(f"s_waitcnt lgkmcnt(0)")
        a(f"v_readfirstlane_b32 s{S_T3}, v13")
        a(f"s_nop 0")
        a(f"s_cmp_ge_u32 s{S_T3}, 1")
        a(f"s_cbranch_scc1 {ok}")
        a(f"s_sleep 1")
        a(f"s_sub_u32 s{S_CNT}, s{S_CNT}, 1")
        a(f"s_cbranch_scc0 {lp}")
        a(f"{ok}:")
        for k in range(4): a(f"v_mov_b32 v{V_PRM+k}, v{V_PRMB+k}")
        a(f"v_lshlrev_b32 v{V_DT}, 16, v{V_PRMB+4}")
        exp_accurate(a, V_DT, V_DT, T, T+1, T+2)
        round_bf16(a, V_DT, V_DT)
        kgen_pass(a, 0, None, pk=False)
        stamp(a, 3)
    elif opts.get("kofl"):
        a("s_setprio 3")
        u_stage(a, UREG)
        a("s_setprio 0")
        stamp(a, 3)
        a("v_mov_b32 v5, 0")
        get_nonce(a, END, 5, 2)
        a(f"s_lshl_b32 s33, s{S_IDX}, 2")
        a(f"s_and_b32 s34, s{S_WAVE}, 3")
        a(f"s_add_u32 s33, s33, s34")
        a(f"s_lshl_b32 s34, s33, 4")
        a(f"s_add_u32 s34, s34, {WS_KFLG}")
        poll_flags(a, END, 34, 2, 6, 8)
        a(f"s_lshl_b32 s33, s33, 13")
        a(f"s_add_u32 s33, s33, {WS_KP}")
        a(f"v_lshlrev_b32 v6, 4, v{V_LANE}")
        for p in range(2):
            for j in range(4):
                r = (V_ACC_ if p == 0 else 104) + 4*j
                a(f"s_add_u32 s34, s33, {p*4096}") if j == 0 else None
                a(f"buffer_load_dwordx4 v[{r}:{r+3}], v6, s[{SRD_WS}:{SRD_WS+3}], s34 offen offset:{j*1024} sc1")
        a("s_waitcnt vmcnt(0)")
        for k in range(16):
            a(f"v_add_f32 v{V_ACC_+k}, v{V_ACC_+k}, v{104+k}")
    elif opts.get("uimm4"):
        kgen_pass(a, 0)
        stamp(a, 3)
        if opts.get("u4mid"):
            a("s_setprio 3")
            u_stage(a, UREG)
            a("s_setprio 0")
            kgen_pass(a, 1)
        else:
            kgen_pass(a, 1)
            a("s_setprio 3")
            u_stage(a, UREG)
            a("s_setprio 0")
    elif opts.get("uimm3"):
        tmp = Asm(); tmp("s_setprio 3"); u_stage(tmp, UREG); tmp(f"s_setprio {opts.get('yprio0', 0)}")
        kgen_pass(a, 0, [[l.strip() for l in tmp.lines]], every=opts.get("u3at", 8))
        stamp(a, 3)
    elif opts.get("uimm2"):
        kgen_pass(a, 0)
        stamp(a, 3)
        a("s_setprio 3")
        u_stage(a, UREG)
    elif opts.get("uimm"):
        a("s_setprio 3")
        u_stage(a, UREG)
        a(f"s_setprio {opts.get('yprio0', 0)}")
        kgen_pass(a, 0, None, pk=False)
        stamp(a, 3)
    else:
        kgen_pass(a, 0, list(uloads), every=opts.get("uevy", 3))
        stamp(a, 3)
        a("s_setprio 3")
        u_stage(a, UREG)
    if not opts.get("kofl") and not opts.get("uimm4") and not opts.get("uold"):
        a(f"s_setprio {opts.get('yprio', 1)}")
        kgen_pass(a, 1, None, pk=False)
    a(f"{lab_kd}:")
    stamp(a, 4)
    if ct:
        for ins in touch(6) + touch(7): a(ins)
    a(f"v_mov_b32 v8, 0\nv_mov_b32 v9, 0\nv_mov_b32 v10, 0\nv_mov_b32 v11, 0")
    a(f"s_mov_b64 s[{S_EXEC}:{S_EXEC+1}], exec")
    if et:
        for ins in touch(2): a(ins)
    a.c("expand K -> R, G")
    a("s_nop 7")
    A = V_ACC_
    a(f"v_and_b32 v5, 31, v{V_LANE}")
    a(f"v_lshrrev_b32 v6, 5, v{V_LANE}")
    a(f"s_add_u32 s33, s{S_RB}, {R_OFF}")
    a(f"v_lshlrev_b32 v7, 4, v{V_LANE}")
    a(f"v_add_u32 v7, s33, v7")
    a(f"s_mov_b64 exec, 0x7f")
    a(f"ds_write_b128 v7, v[8:11]")
    a(f"s_mov_b64 exec, 15")
    a(f"ds_write_b128 v7, v[8:11] offset:2176")
    a(f"s_mov_b64 exec, 0xffff")
    a(f"ds_write_b128 v7, v[8:11] offset:{GD + 256}")
    a(f"s_mov_b64 exec, -1")
    a(f"v_lshlrev_b32 v12, 4, v5")
    a(f"v_lshl_add_u32 v12, v6, 3, v12")
    a(f"v_sub_u32 v12, 1656, v12")
    a(f"v_add_u32 v12, s33, v12")
    a(f"v_cvt_pk_bf16_f32 v200, v{A+3}, v{A+2}")
    a(f"v_cvt_pk_bf16_f32 v201, v{A+1}, v{A+0}")
    a(f"ds_write_b64 v12, v[200:201] offset:512")
    a(f"v_cvt_pk_bf16_f32 v202, v{A+14}, v{A+13}")
    a(f"v_cvt_pk_bf16_f32 v203, v{A+12}, v{A+12}")
    a(f"ds_write_b64 v12, v[202:203]")
    a(f"v_lshlrev_b32 v12, 4, v5")
    a(f"v_lshl_add_u32 v12, v6, 9, v12")
    a(f"v_sub_u32 v12, 1136, v12")
    a(f"v_add_u32 v12, s33, v12")
    a(f"v_cvt_pk_bf16_f32 v206, v{A+10}, v{A+10}")
    a(f"v_cvt_pk_bf16_f32 v207, v{A+9}, v{A+9}")
    a(f"v_cvt_pk_bf16_f32 v208, v{A+9}, v{A+8}")
    a(f"v_cvt_pk_bf16_f32 v209, v{A+8}, v{A+8}")
    a(f"ds_write_b128 v12, v[206:209]")
    a(f"v_cvt_pk_bf16_f32 v213, v{A+4}, v{A+4}")
    a(f"v_mov_b32 v210, 0")
    a(f"v_and_b32 v211, 0xffff0000, v213")
    a(f"v_mov_b32 v212, v213")
    a(f"v_mov_b32 v13, s33")
    a(f"s_mov_b64 exec, 1")
    a(f"ds_write_b128 v13, v[210:213] offset:112")
    a(f"s_mov_b64 exec, -1")
    a(f"v_lshlrev_b32 v12, 1, v5")
    a(f"v_lshl_add_u32 v12, v6, 7, v12")
    a(f"v_sub_u32 v12, {256 - 64}, v12")
    a(f"v_add_u32 v12, s33, v12")
    a(f"v_cvt_pk_bf16_f32 v200, v{A+4}, v{A+5}")
    a(f"ds_write_b16 v12, v200 offset:{GD + 64}")
    a(f"ds_write_b16_d16_hi v12, v200 offset:{GD}")
    a(f"v_cvt_pk_bf16_f32 v201, v{A+6}, v{A+6}")
    a(f"v_mov_b32 v202, 0")
    a(f"s_mov_b64 exec, 1")
    a(f"ds_write_b16 v13, v202 offset:{GD + 256}")
    a(f"ds_write_b16 v13, v201 offset:{GD}")
    a(f"s_mov_b64 exec, -1")
    a("s_waitcnt lgkmcnt(0)")
    a(f"v_lshlrev_b32 v6, 4, v{V_LANE}")
    a(f"s_add_u32 s34, s{S_RB}, {W_OFF}")
    a(f"v_add_u32 v6, s34, v6")
    stamp(a, 6)
    if et:
        for ins in touch(3): a(ins)
    build_W(a, 7, 6)
    if et:
        for ins in touch(4): a(ins)
    a(f"s_add_u32 s34, s{S_RB}, {W_OFF}")
    a(f"v_and_b32 v9, 31, v{V_LANE}")
    a(f"v_lshrrev_b32 v8, 5, v{V_LANE}")
    a(f"v_sub_u32 v10, 3, v9")
    a(f"v_and_b32 v10, 3, v10")
    a(f"v_lshlrev_b32 v11, 3, v8")
    a(f"v_sub_u32 v11, v11, v9")
    a(f"v_sub_u32 v11, v11, v10")
    a(f"v_lshlrev_b32 v11, 1, v11")
    a(f"v_add_u32 v11, {2*1071 - 64*33}, v11")
    a(f"v_mul_u32_u24 v10, {CS}, v10")
    a(f"v_add_u32 v11, v11, v10")
    a(f"v_add_u32 v{V_CA}, s34, v11")
    a(f"v_lshlrev_b32 v11, 4, v8")
    a(f"v_add_u32 v{V_CZ}, s{S_RB}, v11")
    a(f"v_mul_u32_u24 v10, 80, v9")
    a(f"v_add_u32 v{V_CP33}, v10, v{V_CZ}")
    a(f"v_add_u32 v{V_CQ}, 80, v{V_CP33}")
    a(f"v_mov_b32 v{V_CZ2}, s{S_RB}")
    a(f"v_mov_b32 v54, v{V_DSK}")
    a(f"v_lshlrev_b32 v10, 3, v9")
    a(f"v_lshlrev_b32 v11, 4, v8")
    a(f"v_sub_u32 v11, v11, v10")
    a(f"v_add_u32 v11, {248 + G_OFF}, v11")
    a(f"v_add_u32 v{V_GA}, s{S_RB}, v11")
    a("v_mov_b32 v5, 0")
    get_nonce(a, END, 5, 2)
    a(f"v_mov_b32 v12, {CNT_OFF}")
    lp = a.label("USP"); ok = a.label("USOK")
    a(f"s_mov_b32 s{S_CNT}, 2000000")
    a(f"{lp}:")
    a(f"ds_read_b32 v13, v12")
    a(f"s_waitcnt lgkmcnt(0)")
    a(f"v_readfirstlane_b32 s{S_T3}, v13")
    a(f"s_nop 0")
    a(f"s_cmp_ge_u32 s{S_T3}, 4")
    a(f"s_cbranch_scc1 {ok}")
    a(f"s_sleep 2")
    a(f"s_sub_u32 s{S_CNT}, s{S_CNT}, 1")
    a(f"s_cbranch_scc0 {lp}")
    a(f"{ok}:")
    stamp(a, 7)
    a("s_setprio 0")
    if opts.get("ydprio"):
        labd = a.label("YDP")
        a(f"s_cmp_lt_u32 s{S_WAVE}, 4")
        a(f"s_cbranch_scc1 {labd}")
        a(f"s_setprio {opts.get('ydprio')}")
        a(f"{labd}:")
    tmp = Asm(); far_setup(tmp)
    fl = [l.strip() for l in tmp.lines]
    extra = {}
    per = (len(fl) + 59) // 60
    k = 0
    for sidx in range(2, 64):
        extra[sidx] = fl[k:k+per]; k += per
    assert k >= len(fl)
    if et:
        extra[1] = touch(5) + extra.get(1, [])
    if opts.get("dtouch", False) and not et:
        touch_setup(a, True)
        for kk in range(6):
            sidx = 1 + opts.get("dtstep", 6)*kk
            extra.setdefault(sidx, [])
            extra[sidx] = touch(kk) + extra[sidx]
    cstamp(a, 20)
    conv_dense(a, extra)
    cstamp(a, 21)
    stamp(a, 8)
    conv_far(a)
    stamp(a, 10)
    a.c("conv epilogue")
    a(f"v_and_b32 v7, 31, v{V_LANE}")
    a(f"v_lshrrev_b32 v8, 5, v{V_LANE}")
    a(f"v_mul_u32_u24 v9, 80, v7")
    a(f"v_lshl_add_u32 v9, v8, 3, v9")
    a(f"v_add_u32 v9, s{S_RB}, v9")
    UV = 104
    for t in range(2):
        for q in range(4):
            r = UV + 2*(4*t+q)
            a(f"ds_read_b64 v[{r}:{r+1}], v9 offset:{80 + 2560*t + 16*q}")
    a(f"s_add_u32 s34, s{S_RB}, {W_OFF}")
    a(f"v_lshlrev_b32 v10, 6, v7")
    a(f"v_lshl_add_u32 v10, v8, 3, v10")
    a(f"v_add_u32 v10, s34, v10")
    a(f"v_lshlrev_b32 v6, 4, v{V_LANE}")
    a(f"v_add_u32 v6, s34, v6")
    a("s_waitcnt lgkmcnt(0)")
    a("s_nop 7")
    Wk = 124
    for t in range(2):
        for q in range(4):
            for h in range(2):
                uv = UV + 2*(4*t+q) + h
                y0 = V_ACC_ + 16*t + 4*q + 2*h
                o = Wk + 12 + 2*((4*t+q) & 1) + h
                w = Wk + 6*h
                a(f"v_lshlrev_b32 v{w+1}, 16, v{uv}")
                a(f"v_and_b32 v{w+2}, 0xffff0000, v{uv}")
                a(f"v_cvt_pk_bf16_f32 v{w}, v{y0}, v{y0+1}")
                a(f"v_mul_f32 v{w+1}, v{w+1}, v54")
                a(f"v_mul_f32 v{w+2}, v{w+2}, v54")
                a(f"v_lshlrev_b32 v{w+3}, 16, v{w}")
                a(f"v_cvt_pk_bf16_f32 v{w+1}, v{w+1}, v{w+2}")
                a(f"v_and_b32 v{w}, 0xffff0000, v{w}")
                a(f"v_lshlrev_b32 v{w+4}, 16, v{w+1}")
                a(f"v_and_b32 v{w+1}, 0xffff0000, v{w+1}")
                a(f"v_add_f32 v{w+3}, v{w+3}, v{w+4}")
                a(f"v_add_f32 v{w}, v{w}, v{w+1}")
                a(f"v_cvt_pk_bf16_f32 v{o}, v{w+3}, v{w}")
            o = Wk + 12 + 2*((4*t+q) & 1)
            a(f"ds_write_b64 v10, v[{o}:{o+1}] offset:{2048*t + 16*q}")
    a("s_waitcnt lgkmcnt(0)")
    for j in range(4):
        a(f"ds_read_b128 v[{104+4*j}:{107+4*j}], v6 offset:{1024*j}")
    a(f"v_lshlrev_b32 v7, 4, v{V_LANE}")
    a(f"s_lshl_b32 s33, s{S_D}, 12")
    a(f"s_add_u32 s33, s33, {WS_A}")
    for j in range(4):
        a(f"s_waitcnt lgkmcnt({3-j})")
        a(f"buffer_store_dwordx4 v[{104+4*j}:{107+4*j}], v7, s[{SRD_WS}:{SRD_WS+3}], s33 offen offset:{1024*j} sc1")
    stamp(a, 11)
    a("v_mov_b32 v5, 0")
    a("s_waitcnt vmcnt(0)")
    a("s_setprio 0")
    a("s_barrier")
    lab = a.label("CNF")
    a(f"s_cmp_lg_u32 s{S_WAVE}, 0")
    a(f"s_cbranch_scc1 {lab}")
    a(f"s_lshr_b32 s33, s{S_IDX}, 3")
    a(f"s_lshl_b32 s33, s33, 7")
    a(f"s_and_b32 s34, s{S_IDX}, 7")
    a(f"s_lshl_b32 s34, s34, 3")
    a(f"s_add_u32 s33, s33, s34")
    a(f"s_add_u32 s33, s33, {WS_AFLG}")
    a(f"v_mov_b32 v6, s{S_NONCE}")
    a(f"v_mov_b32 v7, s{S_NONCE+1}")
    a("s_mov_b64 exec, 1")
    a(f"buffer_store_dwordx2 v[6:7], v5, s[{SRD_WS}:{SRD_WS+3}], s33 offen sc1")
    a("s_mov_b64 exec, -1")
    a(f"{lab}:")
    stamp(a, 12)
    prof_end(a, opts.get("cprofwave", 0))
```

```python
from common import *
from g1 import *

V_HA = 6
V_CB = 10
G2_FR = 16
G2_ACC = 64
HSLOT = 17408
CBASE = 4 * HSLOT
S_HB, S_CB, S_SP = 76, 77, 78
S_M0H, S_M0C = 81, 83

def g2_dma(it):
    slot = it % 4
    plane = it & 1
    L = []
    L.append(f"s_lshl_b32 s{S_T0}, s{S_SP}, 14")
    L.append(f"s_add_u32 s{S_T0}, s{S_T0}, s{S_HB}")
    if plane: L.append(f"s_add_u32 s{S_T0}, s{S_T0}, {10*16384}")
    L.append(f"s_lshl_b32 s{S_T1}, s{S_SP}, 7")
    L.append(f"s_add_u32 s{S_T1}, s{S_T1}, s{S_CB}")
    for jj in range(4):
        L.append(f"s_add_u32 m0, s{S_M0H}, {slot*HSLOT + jj*64}")
        L.append(f"s_nop 0")
        L.append(f"buffer_load_dwordx4 v{V_L16}, s[{SRD_WS}:{SRD_WS+3}], s{S_T0} offen offset:{jj*1024} sc1 lds")
    srd = SRD_B if plane else SRD_A
    for jj in range(2):
        L.append(f"s_add_u32 m0, s{S_M0C}, {slot*8192 + jj*1024}")
        L.append(f"s_nop 0")
        L.append(f"buffer_load_dwordx4 v{V_VOFF+jj}, s[{srd}:{srd+3}], s{S_T1} offen lds")
    if plane:
        L.append(f"s_add_u32 s{S_SP}, s{S_SP}, 1")
        L.append(f"s_cmp_eq_u32 s{S_SP}, 10")
        L.append(f"s_cselect_b32 s{S_SP}, 0, s{S_SP}")
    return L

def g2_reads(it, ks):
    slot = it % 4
    st = G2_FR + 12 * ((4*it + ks) % 3)
    base = slot*HSLOT + (ks >> 1)*4352 + (ks & 1)*256
    out = []
    for m in range(2):
        for half in range(2):
            out.append(f"ds_read_b64_tr_b16 v[{st+4*m+2*half}:{st+4*m+2*half+1}], v{V_HA} offset:{base + m*512 + half*64}")
    out.append(f"ds_read_b128 v[{st+8}:{st+11}], v{V_CB+ks} offset:{slot*8192}")
    return out

def g2_mfmas(it, ks):
    st = G2_FR + 12 * ((4*it + ks) % 3)
    out = []
    for m in range(2):
        d = G2_ACC + 16*m
        c = "0" if (it == 0 and ks == 0) else f"v[{d}:{d+15}]"
        out.append(f"v_mfma_f32_32x32x16_bf16 v[{d}:{d+15}], v[{st+4*m}:{st+4*m+3}], v[{st+8}:{st+11}], {c}")
    return out

def poll_flags(a, END, soff_sgpr, nlanes, vaddr, vdata, extra_lane_off=None):
    lp = a.label("FPOLL"); ld = a.label("FDONE")
    a(f"v_lshlrev_b32 v{vaddr}, 3, v{V_LANE}")
    a(f"v_cmp_gt_u32 vcc, {nlanes}, v{V_LANE}")
    a(f"s_and_saveexec_b64 s[{S_EXEC}:{S_EXEC+1}], vcc")
    a(f"s_mov_b32 s{S_CNT}, 100000")
    a(f"{lp}:")
    a(f"buffer_load_dwordx2 v[{vdata}:{vdata+1}], v{vaddr}, s[{SRD_WS}:{SRD_WS+3}], s{soff_sgpr} offen sc1")
    a(f"s_waitcnt vmcnt(0)")
    a(f"v_cmp_ne_u32 vcc, s{S_NONCE}, v{vdata}")
    a(f"s_mov_b64 s[{S_MISM}:{S_MISM+1}], vcc")
    a(f"v_cmp_ne_u32 vcc, s{S_NONCE+1}, v{vdata+1}")
    a(f"s_or_b64 s[{S_MISM}:{S_MISM+1}], s[{S_MISM}:{S_MISM+1}], vcc")
    a(f"s_cmp_eq_u64 s[{S_MISM}:{S_MISM+1}], 0")
    a(f"s_cbranch_scc1 {ld}")
    a(f"s_sleep 2")
    a(f"s_sub_u32 s{S_CNT}, s{S_CNT}, 1")
    a(f"s_cbranch_scc0 {lp}")
    a(f"s_mov_b32 s{S_CNT}, -1")
    a(f"{ld}:")
    a(f"s_mov_b64 exec, s[{S_EXEC}:{S_EXEC+1}]")

def gen_g2(a, END, opts):
    a.c("================= G2 =================")
    make_srd(a, SRD_A, P_C2RE, 819200)
    make_srd(a, SRD_B, P_C2IM, 819200)
    make_srd(a, SRD_C, P_OUT, 5242880)
    T = V_T
    a(f"v_lshrrev_b32 v{T}, 4, v{V_LANE}")
    a(f"v_bfe_u32 v{T+1}, v{V_LANE}, 2, 2")
    a(f"v_and_b32 v{T+2}, 3, v{V_LANE}")
    a(f"v_and_b32 v{T+3}, 1, v{T}")
    a(f"v_lshlrev_b32 v{T+3}, 1, v{T+3}")
    a(f"v_lshrrev_b32 v{T+4}, 1, v{T+2}")
    a(f"v_add_u32 v{T+3}, v{T+3}, v{T+4}")
    a(f"v_mul_u32_u24 v{T+3}, 1088, v{T+3}")
    a(f"v_lshrrev_b32 v{T+4}, 1, v{T}")
    a(f"v_lshl_add_u32 v{T+4}, v{T+4}, 3, v{T+1}")
    a(f"v_lshl_add_u32 v{T+3}, v{T+4}, 4, v{T+3}")
    a(f"v_and_b32 v{T+4}, 1, v{T+2}")
    a(f"v_lshl_add_u32 v{T+3}, v{T+4}, 3, v{T+3}")
    a(f"s_mul_i32 s34, s{S_WM}, 8704")
    a(f"v_add_u32 v{V_HA}, s34, v{T+3}")
    a(f"v_and_b32 v{T+5}, 31, v{V_LANE}")
    a(f"v_lshrrev_b32 v{T+6}, 5, v{V_LANE}")
    a(f"s_lshl_b32 s34, s{S_WN}, 5")
    a(f"v_add_u32 v{T+7}, s34, v{T+5}")
    a(f"v_bfe_u32 v{T+8}, v{T+7}, 1, 3")
    a(f"v_xor_b32 v{T+8}, v{T+8}, v{T+6}")
    a(f"v_lshlrev_b32 v{T+8}, 4, v{T+8}")
    a(f"v_lshl_add_u32 v{V_CB}, v{T+7}, 7, v{T+8}")
    a(f"v_add_u32 v{V_CB}, {CBASE}, v{V_CB}")
    for ks in range(1, 4):
        a(f"v_xor_b32 v{V_CB+ks}, {32*ks}, v{V_CB}")
    a(f"s_mul_i32 s34, s{S_C}, {20*16384}")
    a(f"s_lshl_b32 s35, s{S_WAVE}, 12")
    a(f"s_add_u32 s34, s34, s35")
    a(f"s_add_u32 s{S_HB}, s34, {WS_H}")
    a(f"s_lshl_b32 s34, s{S_S}, 6")
    a(f"s_lshl_b32 s35, s{S_WAVE}, 4")
    a(f"s_add_u32 s34, s34, s35")
    a(f"s_mul_i32 s{S_CB}, s34, 1280")
    a(f"s_mov_b32 s{S_SP}, s{S_S}")
    a(f"s_mul_i32 s{S_M0H}, s{S_WAVE}, 4352")
    a(f"s_lshl_b32 s{S_M0C}, s{S_WAVE}, 11")
    a(f"s_add_u32 s{S_M0C}, s{S_M0C}, {CBASE}")
    lab = a.label("NOPOLL")
    a(f"s_cmp_lg_u32 s{S_WAVE}, 0")
    a(f"s_cbranch_scc1 {lab}")
    a(f"s_lshl_b32 s34, s{S_C}, 7")
    a(f"s_add_u32 s34, s34, {WS_FLAG}")
    poll_flags(a, END, 34, 10, T, T+2)
    a(f"{lab}:")
    a(f"s_barrier")
    stamp(a, 10)
    for it in range(3):
        for ins in g2_dma(it): a(ins)
    a(f"s_waitcnt vmcnt(12)")
    a(f"s_barrier")
    stamp(a, 11)
    for ins in g2_reads(0, 0): a(ins)
    for ins in g2_reads(0, 1): a(ins)
    NST = 20
    for it in range(NST):
        for ks in range(4):
            gidx = 4*it + ks
            last = (gidx == 4*NST - 1)
            a(f"s_waitcnt lgkmcnt({0 if last else 5})")
            fill = []
            nx = gidx + 2
            if nx < 4*NST:
                nit, nks = nx // 4, nx % 4
                if nks == 0:
                    vm = 0 if nit == NST - 1 else 6
                    a(f"s_waitcnt vmcnt({vm})")
                    a(f"s_barrier")
                    fill += g2_reads(nit, nks)
                    if nit + 2 < NST:
                        fill += g2_dma(nit + 2)
                else:
                    fill += g2_reads(nit, nks)
            interleave(a, g2_mfmas(it, ks), fill)
    stamp(a, 12)
    a.c("G2 epilogue")
    lab = a.label("NOPOLL2")
    a(f"s_cmp_lg_u32 s{S_WAVE}, 0")
    a(f"s_cbranch_scc1 {lab}")
    if not opts.get("no_a"):
        a(f"s_lshl_b32 s34, s{S_S}, 7")
        a(f"s_add_u32 s34, s34, {WS_AFLG}")
        poll_flags(a, END, 34, 8, T, T+2)
    if not opts.get("no_g"):
        a(f"s_lshl_b32 s34, s{S_C}, 7")
        a(f"s_add_u32 s34, s34, {WS_FLAG + 80}")
        poll_flags(a, END, 34, 1, T, T+2)
    a(f"{lab}:")
    a(f"s_barrier")
    stamp(a, 13)
    a(f"v_lshrrev_b32 v{T}, 3, v{V_LANE}")
    a(f"v_mul_u32_u24 v{T}, 1280, v{T}")
    a(f"v_and_b32 v{T+1}, 7, v{V_LANE}")
    a(f"v_lshl_add_u32 v{T}, v{T+1}, 4, v{T}")
    a(f"s_lshl_b32 s34, s{S_C}, 7")
    a(f"s_lshl_b32 s35, s{S_WAVE}, 5")
    a(f"s_add_u32 s34, s34, s35")
    a(f"s_mul_i32 s34, s34, 1280")
    a(f"s_lshl_b32 s35, s{S_S}, 7")
    a(f"s_add_u32 s34, s34, s35")
    a(f"s_lshl_b32 s{S_T2}, s{S_WAVE}, 12")
    for jj in range(4):
        a(f"s_add_u32 m0, s{S_T2}, {jj*1024}")
        a(f"s_add_u32 s35, s34, {jj*10240}")
        a(f"buffer_load_dwordx4 v{T}, s[{SRD_X}:{SRD_X+3}], s35 offen lds")
    a(f"s_lshl_b32 s34, s{S_C}, 10")
    a(f"s_add_u32 s34, s34, {WS_G}")
    a(f"s_mov_b32 m0, 16384")
    a(f"s_nop 0")
    a(f"buffer_load_dwordx4 v{V_L16}, s[{SRD_WS}:{SRD_WS+3}], s34 offen sc1 lds")
    AV = 96
    a(f"v_and_b32 v{T+1}, 31, v{V_LANE}")
    a(f"s_lshl_b32 s34, s{S_S}, 6")
    a(f"s_lshl_b32 s35, s{S_WN}, 5")
    a(f"s_add_u32 s34, s34, s35")
    a(f"v_add_u32 v{T+1}, s34, v{T+1}")
    a(f"v_lshlrev_b32 v{T+2}, 12, v{T+1}")
    a(f"v_lshrrev_b32 v{T+3}, 5, v{V_LANE}")
    a(f"v_lshl_add_u32 v{T+2}, v{T+3}, 3, v{T+2}")
    a(f"s_lshl_b32 s34, s{S_C}, 8")
    a(f"s_lshl_b32 s35, s{S_WM}, 7")
    a(f"s_add_u32 s34, s34, s35")
    a(f"s_add_u32 s34, s34, {WS_A}")
    for m in range(2):
        for q in range(4):
            r = AV + 2*(4*m+q)
            a(f"buffer_load_dwordx2 v[{r}:{r+1}], v{T+2}, s[{SRD_WS}:{SRD_WS+3}], s34 offen offset:{64*m+16*q} sc1")
    DS = T+4
    make_srd(a, 92, P_DSKB, 1280)
    a(f"v_lshlrev_b32 v{T+5}, 1, v{T+1}")
    a(f"buffer_load_ushort v{DS}, v{T+5}, s[92:95], 0 offen")
    OV = T+6
    a(f"v_mul_u32_u24 v{OV}, 2560, v{T+3}")
    a(f"v_add_u32 v{OV}, v{OV}, v{T+1}")
    a(f"v_lshlrev_b32 v{OV}, 2, v{OV}")
    a(f"s_lshl_b32 s34, s{S_C}, 7")
    a(f"s_lshl_b32 s35, s{S_WM}, 6")
    a(f"s_add_u32 s34, s34, s35")
    a(f"s_mul_i32 s{S_T2}, s34, 2560")
    XA = T+7
    a(f"v_lshrrev_b32 v{T+8}, 5, v{V_LANE}")
    a(f"v_bfe_u32 v{T+9}, v{V_LANE}, 2, 2")
    a(f"v_lshl_add_u32 v{T+8}, v{T+8}, 2, v{T+9}")
    a(f"s_lshl_b32 s34, s{S_WM}, 6")
    a(f"v_add_u32 v{T+8}, s34, v{T+8}")
    a(f"v_lshlrev_b32 v{XA}, 7, v{T+8}")
    a(f"v_bfe_u32 v{T+8}, v{V_LANE}, 4, 1")
    a(f"v_lshlrev_b32 v{T+8}, 5, v{T+8}")
    a(f"v_and_b32 v{T+9}, 3, v{V_LANE}")
    a(f"v_lshl_add_u32 v{T+8}, v{T+9}, 3, v{T+8}")
    a(f"s_lshl_b32 s34, s{S_WN}, 6")
    a(f"v_add_u32 v{T+8}, s34, v{T+8}")
    a(f"v_add_u32 v{XA}, v{XA}, v{T+8}")
    GA = T+10
    a(f"s_lshl_b32 s34, s{S_WM}, 9")
    a(f"s_add_u32 s34, s34, 16384")
    a(f"v_lshlrev_b32 v{GA}, 5, v{T+3}")
    a(f"v_add_u32 v{GA}, s34, v{GA}")
    a(f"s_waitcnt vmcnt(0)")
    a(f"s_barrier")
    stamp(a, 14)
    a(f"v_lshlrev_b32 v{DS}, 16, v{DS}")
    XV = 112
    GV = 128
    for m in range(2):
        for q in range(4):
            r = XV + 2*(4*m+q)
            a(f"ds_read_b64_tr_b16 v[{r}:{r+1}], v{XA} offset:{(32*m+8*q)*128}")
    W = 144
    for m in range(2):
        for q in range(4):
            qi = 4*m+q
            gb = GV + 8*(qi & 1)
            a(f"ds_read_b128 v[{gb}:{gb+3}], v{GA} offset:{(32*m+8*q)*8}")
            a(f"ds_read_b128 v[{gb+4}:{gb+7}], v{GA} offset:{(32*m+8*q)*8+16}")
            a(f"s_waitcnt lgkmcnt(0)")
            for h in range(2):
                xv = XV + 2*qi + h; av = AV + 2*qi + h
                a0 = G2_ACC + 16*m + 4*q + 2*h
                a(f"v_lshlrev_b32 v{W}, 16, v{xv}")
                a(f"v_and_b32 v{W+1}, 0xffff0000, v{xv}")
                a(f"v_mul_f32 v{W}, v{W}, v{DS}")
                a(f"v_mul_f32 v{W+1}, v{W+1}, v{DS}")
                a(f"v_cvt_pk_bf16_f32 v{W}, v{W}, v{W+1}")
                a(f"v_and_b32 v{W+1}, 0xffff0000, v{W}")
                a(f"v_lshlrev_b32 v{W}, 16, v{W}")
                a(f"v_add_f32 v{a0}, v{a0}, v{W}")
                a(f"v_add_f32 v{a0+1}, v{a0+1}, v{W+1}")
                if opts.get("no_a"):
                    a(f"v_mov_b32 v{W+2}, 0")
                    a(f"v_mov_b32 v{W+3}, 0")
                else:
                    a(f"v_lshlrev_b32 v{W+2}, 16, v{av}")
                    a(f"v_and_b32 v{W+3}, 0xffff0000, v{av}")
                    a(f"v_mul_f32 v{W+2}, v{W+2}, v{gb+4*h}")
                    a(f"v_mul_f32 v{W+3}, v{W+3}, v{gb+4*h+2}")
                    a(f"v_cvt_pk_bf16_f32 v{W+2}, v{W+2}, v{W+3}")
                    a(f"v_and_b32 v{W+3}, 0xffff0000, v{W+2}")
                    a(f"v_lshlrev_b32 v{W+2}, 16, v{W+2}")
                if opts.get("no_g"):
                    pass
                else:
                    a(f"v_fma_f32 v{a0}, v{gb+4*h+1}, v{a0}, v{W+2}")
                    a(f"v_fma_f32 v{a0+1}, v{gb+4*h+3}, v{a0+1}, v{W+3}")
                for e in range(2):
                    row = 32*m + 8*q + 2*h + e
                    a(f"s_add_u32 s35, s{S_T2}, {row*2560}")
                    a(f"buffer_store_dword v{a0+e}, v{OV}, s[{SRD_C}:{SRD_C+3}], s35 offen")
    stamp(a, 15)
    a("s_waitcnt vmcnt(0)")
    stamp(a, 16)
    prof_end(a)


def poll_pipe(a, vaddr, soff, mask, r0, gap=5):
    lp = a.label("PP"); ld = a.label("PPD")
    a(f"s_mov_b64 s[{S_EXEC}:{S_EXEC+1}], exec")
    a(f"s_mov_b64 exec, {mask}")
    a(f"s_mov_b32 s{S_CNT}, 60000")
    for k in range(3):
        a(f"buffer_load_dwordx2 v[{r0+2*k}:{r0+2*k+1}], v{vaddr}, s[{SRD_WS}:{SRD_WS+3}], {soff} offen sc1")
        if k < 2: a(f"s_sleep {gap}")
    a(f"{lp}:")
    for k in range(3):
        a(f"s_waitcnt vmcnt(2)")
        a(f"v_cmp_ne_u64 vcc, s[{S_NONCE}:{S_NONCE+1}], v[{r0+2*k}:{r0+2*k+1}]")
        a(f"s_cmp_eq_u64 vcc, 0")
        a(f"s_cbranch_scc1 {ld}")
        a(f"buffer_load_dwordx2 v[{r0+2*k}:{r0+2*k+1}], v{vaddr}, s[{SRD_WS}:{SRD_WS+3}], {soff} offen sc1")
    a(f"s_sub_u32 s{S_CNT}, s{S_CNT}, 1")
    a(f"s_cbranch_scc0 {lp}")
    a(f"{ld}:")
    a(f"s_mov_b64 exec, s[{S_EXEC}:{S_EXEC+1}]")
```

```python
from common import *
from g1 import (S_C, S_S, S_WM, S_WN, S_SX, S_SB, S_KC, S_T0, S_T1, S_M0X, S_CNT, S_MISM, S_T2, S_T3, S_EXEC,
                V_LANE, V_VOFF, V_AA, V_BA, V_FR, V_ACC, V_ACC2, V_LR, V_LI, V_C2, V_L32, V_L128, V_ER, V_EI, V_HR, V_HI,
                V_NON, V_T, V_ZERO, V_L16, V_EOFF, acc, acc2, cmul, cfma, g1_reads, g1_mfmas, interleave)
from g2 import poll_flags, poll_pipe

HSLOT = 17408
NHS = 6
CBASE = NHS * HSLOT
NCS = 5
NREG = 9
L_EX = CBASE + NCS*8192
L_G = L_EX + 2048
L_CNT = L_G + 1024
CNT_EX, CNT_H, CNT_X, CNT_F, CNT_E, CNT_C, CNT_R, CNT_HX0, CNT_HX1, CNT_P = [L_CNT + 4*i for i in range(10)]
L_HX = L_CNT + 64
L_CST = 0
L_XT = NREG * 8192
L_AT = 2 * HSLOT
V_CREG = 96
S_LW = 83
S_DONE = 90
S_KY, S_KB = 98, 99
S_FAST = 100
V_XC = 222

def lds_spin(a, vaddr, vtmp, target, END, sleep=False):
    lp = a.label("SPIN"); ok = a.label("SPOK")
    a(f"s_mov_b32 s{S_CNT}, 2000000")
    a(f"{lp}:")
    a(f"ds_read_b32 v{vtmp}, v{vaddr}")
    a(f"s_waitcnt lgkmcnt(0)")
    a(f"v_readfirstlane_b32 s{S_T3}, v{vtmp}")
    a(f"s_nop 0")
    a(f"s_cmp_ge_u32 s{S_T3}, {target}")
    a(f"s_cbranch_scc1 {ok}")
    a(f"s_sleep 1")
    a(f"s_sub_u32 s{S_CNT}, s{S_CNT}, 1")
    a(f"s_cbranch_scc0 {lp}")
    a(f"{ok}:")

def lds_inc(a, vaddr, vone):
    a(f"s_mov_b64 s[{S_EXEC}:{S_EXEC+1}], exec")
    a(f"s_mov_b64 exec, 1")
    a(f"ds_add_u32 v{vaddr}, v{vone}")
    a(f"s_mov_b64 exec, s[{S_EXEC}:{S_EXEC+1}]")

def ld_g1_dma(a, it):
    slot = it % 4
    a(f"s_lshl_b32 s{S_T0}, s{S_KC}, 7")
    a(f"s_add_u32 s{S_T1}, s{S_T0}, s{S_SB}")
    a(f"s_add_u32 s{S_T0}, s{S_T0}, s{S_SX}")
    for jj in range(4):
        a(f"s_add_u32 m0, s{S_M0X}, {slot*16384 + jj*1024}")
        a(f"s_nop 0")
        a(f"buffer_load_dwordx4 v{V_VOFF+jj}, s[{SRD_X}:{SRD_X+3}], s{S_T0} offen lds")
        a(f"s_add_u32 m0, s{S_M0X}, {65536 + slot*16384 + jj*1024}")
        a(f"s_nop 0")
        a(f"buffer_load_dwordx4 v{V_VOFF+jj}, s[{SRD_A}:{SRD_A+3}], s{S_T1} offen lds")
    a(f"s_add_u32 s{S_KC}, s{S_KC}, 1")
    a(f"s_cmp_eq_u32 s{S_KC}, 10")
    a(f"s_cselect_b32 s{S_KC}, 0, s{S_KC}")

S_HB, S_CB, S_SP, S_SPC = 76, 77, 78, 91
S_M0H, S_M0C = 81, 92

def ld_c_chunk(a, ch):
    plane = ch & 1
    dst = L_CST + ch*8192 if ch < NREG else CBASE + ((ch - NREG) % NCS)*8192
    srd = SRD_C if plane else SRD_B
    a(f"s_lshl_b32 s{S_T1}, s{S_SPC}, 7")
    a(f"s_add_u32 s{S_T1}, s{S_T1}, s{S_CB}")
    for jj in range(2):
        a(f"s_add_u32 m0, s{S_M0C}, {dst + jj*1024}")
        a(f"s_nop 0")
        a(f"buffer_load_dwordx4 v{V_VOFF+jj}, s[{srd}:{srd+3}], s{S_T1} offen lds")
    if plane:
        a(f"s_add_u32 s{S_SPC}, s{S_SPC}, 1")
        a(f"s_cmp_eq_u32 s{S_SPC}, 10")
        a(f"s_cselect_b32 s{S_SPC}, 0, s{S_SPC}")

HSC = {"v": "sc1"}
def ld_h_stage(a, it):
    slot = it % NHS
    plane = it & 1
    a(f"s_lshl_b32 s{S_T0}, s{S_SP}, 14")
    a(f"s_add_u32 s{S_T0}, s{S_T0}, s{S_HB}")
    if plane: a(f"s_add_u32 s{S_T0}, s{S_T0}, {10*16384}")
    for jj in range(4):
        a(f"s_add_u32 m0, s{S_M0H}, {slot*HSLOT + jj*64}")
        a(f"s_nop 0")
        a(f"buffer_load_dwordx4 v{V_L16}, s[{SRD_WS}:{SRD_WS+3}], s{S_T0} offen offset:{jj*1024} {HSC['v']} lds")
    if plane:
        a(f"s_add_u32 s{S_SP}, s{S_SP}, 1")
        a(f"s_cmp_eq_u32 s{S_SP}, 10")
        a(f"s_cselect_b32 s{S_SP}, 0, s{S_SP}")

S_AT0, S_AT1 = 95, 101
def a_tile_addr(a, T):
    a(f"v_lshrrev_b32 v{T}, 4, v{V_LANE}")
    a(f"v_and_b32 v{T+1}, 15, v{V_LANE}")
    a(f"s_lshl_b32 s34, s{S_S}, 6")
    a(f"s_lshl_b32 s35, s{S_LW}, 4")
    a(f"s_add_u32 s34, s34, s35")
    a(f"s_lshl_b32 s34, s34, 12")
    a(f"s_lshl_b32 s35, s{S_C}, 8")
    a(f"s_add_u32 s34, s34, s35")
    a(f"s_add_u32 s{S_AT0}, s34, {WS_A}")
    a(f"s_lshl_b32 s{S_AT1}, s{S_LW}, 12")
    a(f"s_add_u32 s{S_AT1}, s{S_AT1}, {L_AT}")
    for jj in range(4):
        a(f"v_add_u32 v{T+2}, {4*jj}, v{T}")
        a(f"v_xor_b32 v{T+2}, v{T+2}, v{T+1}")
        a(f"v_lshlrev_b32 v{T+2}, 4, v{T+2}")
        a(f"v_lshl_add_u32 v{236+jj}, v{T}, 12, v{T+2}")

def ld_a_tile(a, T):
    for jj in range(4):
        a(f"s_add_u32 m0, s{S_AT1}, {jj*1024}")
        a(f"s_add_u32 s35, s{S_AT0}, {jj*4*4096}")
        a(f"buffer_load_dwordx4 v{236+jj}, s[{SRD_WS}:{SRD_WS+3}], s35 offen sc1 lds")

def ld_g_tile(a):
    a(f"s_lshl_b32 s34, s{S_C}, 10")
    a(f"s_add_u32 s34, s34, {WS_G}")
    a(f"s_mov_b32 m0, {L_G}")
    a(f"s_nop 0")
    a(f"buffer_load_dwordx4 v{V_L16}, s[{SRD_WS}:{SRD_WS+3}], s34 offen sc1 lds")

def gen_loader(a, END, opts):
    HSC["v"] = opts.get("hsc", "sc1")
    a.c("---------- loader waves ----------")
    T = V_T
    a(f"s_sub_u32 s{S_LW}, s{S_WAVE}, 4")
    a(f"v_lshrrev_b32 v{T+5}, 3, v{V_LANE}")
    a(f"v_mul_u32_u24 v{T+5}, 1280, v{T+5}")
    a(f"v_and_b32 v{T+6}, 7, v{V_LANE}")
    a(f"v_lshrrev_b32 v{T+7}, 4, v{V_LANE}")
    a(f"v_xor_b32 v{T+6}, v{T+6}, v{T+7}")
    a(f"v_lshl_add_u32 v{V_VOFF}, v{T+6}, 4, v{T+5}")
    a(f"v_xor_b32 v{V_VOFF+1}, 64, v{V_VOFF}")
    a(f"v_add_u32 v{V_VOFF+1}, 10240, v{V_VOFF+1}")
    a(f"v_add_u32 v{V_VOFF+2}, 20480, v{V_VOFF}")
    a(f"v_add_u32 v{V_VOFF+3}, 20480, v{V_VOFF+1}")
    a(f"s_lshl_b32 s34, s{S_C}, 7")
    a(f"s_lshl_b32 s35, s{S_LW}, 5")
    a(f"s_add_u32 s34, s34, s35")
    a(f"s_mul_i32 s{S_SX}, s34, 1280")
    a(f"s_lshl_b32 s34, s{S_S}, 6")
    a(f"s_and_b32 s35, s{S_LW}, 1")
    a(f"s_lshl_b32 s35, s35, 5")
    a(f"s_add_u32 s34, s34, s35")
    a(f"s_mul_i32 s{S_SB}, s34, 1280")
    a(f"s_lshl_b32 s{S_M0X}, s{S_LW}, 12")
    a(f"s_mov_b32 s{S_KC}, s93")
    if EARLY["on"]: common_init(a)
    a(f"s_cmp_ge_u32 s{S_LW}, 2")
    a(f"s_cselect_b32 s{SRD_A}, s{P_BIM}, s{P_BRE}")
    a(f"s_cselect_b32 s{SRD_A+1}, s{P_BIM+1}, s{P_BRE+1}")
    a(f"s_and_b32 s{SRD_A+1}, s{SRD_A+1}, 0xffff")
    a(f"s_mov_b32 s{SRD_A+2}, 819200")
    a(f"s_mov_b32 s{SRD_A+3}, 0x00020000")
    for it in range(2): ld_g1_dma(a, it)
    stamp(a, 1)
    a(f"v_mov_b32 v{V_ZERO}, 0")
    a(f"v_lshlrev_b32 v{V_L16}, 4, v{V_LANE}")
    a(f"s_waitcnt vmcnt(8)")
    a(f"s_barrier")
    ld_g1_dma(a, 2)
    for nit in range(1, 10):
        a(f"s_waitcnt vmcnt({0 if nit == 9 else 8})")
        if opts.get("profl"): stamp(a, 9 + nit)
        a(f"s_barrier")
        if nit + 2 < 10: ld_g1_dma(a, nit + 2)
    a(f"s_barrier")
    stamp(a, 2)
    make_srd(a, SRD_B, P_C2RE, 819200)
    make_srd(a, SRD_C, P_C2IM, 819200)
    a(f"buffer_load_dwordx2 v[{V_NON}:{V_NON+1}], v{V_ZERO}, s[{SRD_DBG}:{SRD_DBG+3}], 0 offen sc1")
    if opts.get("pwait", True):
        a(f"v_mov_b32 v{T+4}, {CNT_EX if opts.get('pwex') else CNT_P}")
        lds_spin(a, T+4, T+6, 4, END)
    a(f"v_lshrrev_b32 v{T}, 3, v{V_LANE}")
    a(f"v_mul_u32_u24 v{T}, 1280, v{T}")
    a(f"v_and_b32 v{T+1}, 7, v{V_LANE}")
    a(f"v_lshl_add_u32 v{T}, v{T+1}, 4, v{T}")
    a(f"s_lshl_b32 s35, s{S_S}, 7")
    a(f"s_add_u32 s34, s{S_SX}, s35")
    a(f"s_add_u32 s{S_T2}, s{S_M0X}, {L_XT}")
    for jj in range(4):
        a(f"s_add_u32 m0, s{S_T2}, {jj*1024}")
        a(f"s_add_u32 s35, s34, {jj*10240}")
        a(f"buffer_load_dwordx4 v{T}, s[{SRD_X}:{SRD_X+3}], s35 offen lds")
    if opts.get("cwait", False):
        a(f"v_mov_b32 v{T+4}, {CNT_E}")
        lds_spin(a, T+4, T+6, 4, END, sleep=True)
    a(f"s_lshl_b32 s34, s{S_S}, 6")
    a(f"s_lshl_b32 s35, s{S_LW}, 4")
    a(f"s_add_u32 s34, s34, s35")
    a(f"s_mul_i32 s{S_CB}, s34, 1280")
    a(f"s_mov_b32 s{S_SPC}, {'s%d' % S_S if opts.get('ownfirst') else 's93'}")
    a(f"s_mov_b32 s94, s{S_SPC}")
    a(f"s_lshl_b32 s{S_M0C}, s{S_LW}, 11")
    thr = opts.get("cthr", 2)
    for ch in range(NREG + NCS):
        ld_c_chunk(a, ch)
        if thr: a(f"s_waitcnt vmcnt({thr})")
        if ch == 3:
            if not thr or thr > 8: a(f"s_waitcnt vmcnt(8)")
            a(f"v_mov_b32 v{T+4}, {CNT_X}")
            a(f"v_mov_b32 v{T+5}, 1")
            lds_inc(a, T+4, T+5)
        if opts.get("profc"): stamp(a, 10 + ch)
    a(f"s_waitcnt vmcnt(0)")
    a(f"v_mov_b32 v{T+4}, {CNT_C}")
    a(f"v_mov_b32 v{T+5}, 1")
    lds_inc(a, T+4, T+5)
    if opts.get("touchc", True):
        a(f"v_lshrrev_b32 v{T+6}, 2, v{V_LANE}")
        a(f"v_mul_u32_u24 v{T+6}, 1280, v{T+6}")
        a(f"v_and_b32 v{T+7}, 3, v{V_LANE}")
        a(f"v_lshl_add_u32 v{T+6}, v{T+7}, 6, v{T+6}")
        a(f"s_mov_b32 s{S_T2}, s{S_SPC}")
        for k in range(2):
            for srd in (SRD_B, SRD_C):
                a(f"s_lshl_b32 s{S_T1}, s{S_T2}, 7")
                a(f"s_add_u32 s{S_T1}, s{S_T1}, s{S_CB}")
                a(f"buffer_load_dword v{T+8}, v{T+6}, s[{srd}:{srd+3}], s{S_T1} offen")
                if thr: a(f"s_waitcnt vmcnt(1)")
            a(f"s_add_u32 s{S_T2}, s{S_T2}, 2")
            a(f"s_cmp_ge_u32 s{S_T2}, 10")
            a(f"s_cselect_b32 s34, 10, 0")
            a(f"s_sub_u32 s{S_T2}, s{S_T2}, s34")
    stamp(a, 3)
    lp = a.label("LNP"); ok = a.label("LNOK")
    a(f"s_mov_b32 s{S_CNT}, 100000")
    a(f"s_waitcnt vmcnt(0)")
    a(f"{lp}:")
    a(f"v_readfirstlane_b32 s{S_NONCE}, v{V_NON}")
    a(f"v_readfirstlane_b32 s{S_NONCE+1}, v{V_NON+1}")
    a(f"s_nop 0")
    a(f"s_cmp_lg_u32 s{S_NONCE}, 0")
    a(f"s_cbranch_scc1 {ok}")
    poll_timeout(a, S_CNT, END)
    a(f"buffer_load_dwordx2 v[{V_NON}:{V_NON+1}], v{V_ZERO}, s[{SRD_DBG}:{SRD_DBG+3}], 0 offen sc1")
    a(f"s_waitcnt vmcnt(0)")
    a(f"s_branch {lp}")
    a(f"{ok}:")
    stamp(a, 4)
    a(f"s_mul_i32 s34, s{S_C}, {20*16384}")
    a(f"s_lshl_b32 s35, s{S_LW}, 12")
    a(f"s_add_u32 s34, s34, s35")
    a(f"s_add_u32 s{S_HB}, s34, {WS_H}")
    a(f"s_mov_b32 s{S_SP}, s94")
    a(f"s_mul_i32 s{S_M0H}, s{S_LW}, 4352")
    def poll_h():
        labp = a.label("HP1"); labq = a.label("HP2")
        a(f"v_mov_b32 v{T+4}, {CNT_F}")
        a(f"s_cmp_lg_u32 s{S_LW}, 0")
        a(f"s_cbranch_scc1 {labp}")
        a(f"s_lshl_b32 s34, s{S_C}, 7")
        a(f"s_add_u32 s34, s34, {WS_FLAG}")
        if opts.get("ppipe"):
            a(f"v_lshlrev_b32 v{T}, 3, v{V_LANE}")
            poll_pipe(a, T, "s34", "0x3ff", 230)
        else:
            poll_flags(a, END, 34, 10, T, T+2)
        a(f"v_mov_b32 v{T+5}, 1")
        lds_inc(a, T+4, T+5)
        a(f"s_branch {labq}")
        a(f"{labp}:")
        labg = a.label("GT")
        a(f"s_cmp_lg_u32 s{S_LW}, 1")
        a(f"s_cbranch_scc1 {labg}")
        a(f"s_lshl_b32 s34, s{S_C}, 7")
        a(f"s_add_u32 s34, s34, {WS_FLAG + 80}")
        poll_flags(a, END, 34, 1, T, T+2)
        ld_g_tile(a)
        a(f"{labg}:")
        a(f"v_mov_b32 v{T+4}, {CNT_F}")
        lds_spin(a, T+4, T+6, 1, END)
        a(f"{labq}:")
    PF = NHS - 2
    FL = T + 10
    own = opts.get("ownfirst")
    if own:
        a(f"v_mov_b32 v{T+4}, {CNT_R}")
        lds_spin(a, T+4, T+6, 4, END)
        stamp(a, 8)
        ld_h_stage(a, 0); ld_h_stage(a, 1)
        a(f"s_waitcnt vmcnt(4)")
        a(f"s_barrier")
        stamp(a, 6)
        a(f"s_waitcnt vmcnt(0)")
        a(f"s_barrier")
        poll_h()
        stamp(a, 5)
        for it in range(2, 6): ld_h_stage(a, it)
        a(f"s_mov_b32 s{S_DONE}, 0")
        q = [("h", k, 4) for k in range(2, 6)]
        first = 2
    else:
        poll_h()
        stamp(a, 5)
        a(f"v_mov_b32 v{T+4}, {CNT_R}")
        lds_spin(a, T+4, T+6, 4, END)
        stamp(a, 8)
        for it in range(PF): ld_h_stage(a, it)
        stamp(a, 9)
        a(f"s_waitcnt vmcnt({4*(PF-1)})")
        a(f"s_barrier")
        stamp(a, 6)
        a(f"s_mov_b32 s{S_DONE}, 0")
        q = [("h", k, 4) for k in range(1, PF)]
        ld_h_stage(a, PF); q.append(("h", PF, 4))
        first = 1
    for nit in range(first, 20):
        idx = max(i for i, e in enumerate(q) if (e[0] == "h" and e[1] == nit) or (e[0] == "c" and e[1] == nit))
        rem = sum(e[2] for e in q[idx+1:])
        a(f"s_waitcnt vmcnt({min(rem, 63)})")
        if opts.get("profl") and nit <= 12: stamp(a, 19 + nit)
        if opts.get("profl2") and nit >= 8: stamp(a, 2 + nit)
        q = q[idx+1:]
        a(f"s_barrier")
        ch = nit - 2 + NCS
        if ch >= NREG + NCS and ch < 20:
            ld_c_chunk(a, ch); q.append(("c", ch, 2))
        if nit + PF < 20:
            ld_h_stage(a, nit + PF); q.append(("h", nit + PF, 4))
        if nit == 12:
            a(f"v_lshlrev_b32 v{T}, 3, v{V_LANE}")
            a(f"s_lshl_b32 s34, s{S_S}, 7")
            a(f"s_add_u32 s34, s34, {WS_AFLG}")
            a(f"v_add_u32 v{T+14}, s34, v{T}")
            a_tile_addr(a, T)
        if nit == opts.get("achk", 15):
            a(f"s_mov_b64 s[{S_EXEC}:{S_EXEC+1}], exec")
            a(f"s_mov_b64 exec, 0xff")
            a(f"buffer_load_dwordx2 v[{FL}:{FL+1}], v{T+14}, s[{SRD_WS}:{SRD_WS+3}], 0 offen sc1")
            a(f"s_mov_b64 exec, s[{S_EXEC}:{S_EXEC+1}]")
            q.append(("f", 0, 1))
        if nit == 18:
            if any(e[0] == "f" for e in q):
                idf = max(i for i, e in enumerate(q) if e[0] == "f")
                a(f"s_waitcnt vmcnt({sum(e[2] for e in q[idf+1:])})")
                q = q[idf+1:]
            lab = a.label("ANR")
            a(f"s_mov_b64 s[{S_EXEC}:{S_EXEC+1}], exec")
            a(f"s_mov_b64 exec, 0xff")
            a(f"v_cmp_ne_u64 vcc, s[{S_NONCE}:{S_NONCE+1}], v[{FL}:{FL+1}]")
            a(f"s_mov_b64 exec, s[{S_EXEC}:{S_EXEC+1}]")
            a(f"s_cmp_lg_u64 vcc, 0")
            a(f"s_cbranch_scc1 {lab}")
            ld_a_tile(a, T)
            a(f"s_mov_b32 s{S_DONE}, 1")
            lab2 = a.label("ANR2")
            a(f"s_branch {lab2}")
            a(f"{lab}:")
            for _ in range(4):
                a(f"buffer_load_dword v{T+8}, v{V_ZERO}, s[{SRD_X}:{SRD_X+3}], 0 offen")
            a(f"{lab2}:")
            q.append(("a", 0, 4))
    lab = a.label("ADONE")
    a(f"s_cmp_eq_u32 s{S_DONE}, 1")
    a(f"s_cbranch_scc1 {lab}")
    if opts.get("ppipe"):
        poll_pipe(a, T+14, "0", "0xff", 230)
    else:
        lp = a.label("AGP"); ld = a.label("AGD")
        a(f"s_mov_b32 s{S_CNT}, 100000")
        a(f"s_mov_b64 s[{S_EXEC}:{S_EXEC+1}], exec")
        a(f"s_mov_b64 exec, 0xff")
        a(f"{lp}:")
        a(f"buffer_load_dwordx2 v[{FL}:{FL+1}], v{T+14}, s[{SRD_WS}:{SRD_WS+3}], 0 offen sc1")
        a(f"s_waitcnt vmcnt(0)")
        a(f"v_cmp_ne_u64 vcc, s[{S_NONCE}:{S_NONCE+1}], v[{FL}:{FL+1}]")
        a(f"s_cmp_eq_u64 vcc, 0")
        a(f"s_cbranch_scc1 {ld}")
        a(f"s_sleep 1")
        a(f"s_sub_u32 s{S_CNT}, s{S_CNT}, 1")
        a(f"s_cbranch_scc0 {lp}")
        a(f"{ld}:")
        a(f"s_mov_b64 exec, s[{S_EXEC}:{S_EXEC+1}]")
    ld_a_tile(a, T)
    a(f"{lab}:")
    a(f"s_waitcnt vmcnt(0)")
    stamp(a, 7)
    a(f"s_barrier")
    prof_end(a, 4, 32768)
    a(f"s_branch {END}")

G2_FR = 16
G2_ACC = 64
V_HA = 6
V_CB = 10
V_HA2 = 7

G2_NS = 4
def g2_reads(it, ks):
    slot = it % NHS
    st = G2_FR + 12 * ((4*it + ks) % G2_NS)
    base = slot*HSLOT + (ks >> 1)*4352 + (ks & 1)*256
    out = []
    for m in range(2):
        for half in range(2):
            off = base + m*512 + half*64
            reg = V_HA if off < 65536 else V_HA2
            if off >= 65536: off -= 3*HSLOT
            out.append(f"ds_read_b64_tr_b16 v[{st+4*m+2*half}:{st+4*m+2*half+1}], v{reg} offset:{off}")
    if it >= NREG:
        cs = (it - NREG) % NCS
        out.append(f"ds_read_b128 v[{st+8}:{st+11}], v{V_CB+ks} offset:{cs*8192}")
    return out

def g2_mfmas(it, ks):
    st = G2_FR + 12 * ((4*it + ks) % G2_NS)
    out = []
    b = (V_CREG + 16*it + 4*ks) if it < NREG else st + 8
    for m in range(2):
        d = G2_ACC + 16*m
        out.append(f"v_mfma_f32_32x32x16_bf16 v[{d}:{d+15}], v[{st+4*m}:{st+4*m+3}], v[{b}:{b+3}], v[{d}:{d+15}]")
    return out

def gen_compute(a, END, opts):
    a.c("---------- compute waves ----------")
    T = V_T
    a(f"s_lshr_b32 s{S_WM}, s{S_WAVE}, 1")
    a(f"s_and_b32 s{S_WN}, s{S_WAVE}, 1")
    lab = a.label("NOINIT")
    a(f"s_cmp_lg_u32 s{S_WAVE}, 0")
    a(f"s_cbranch_scc1 {lab}")
    a(f"v_lshlrev_b32 v{T}, 2, v{V_LANE}")
    a(f"v_add_u32 v{T}, {L_CNT}, v{T}")
    a(f"v_mov_b32 v{T+1}, 0")
    a(f"s_mov_b64 exec, 0xffff")
    a(f"ds_write_b32 v{T}, v{T+1}")
    a(f"s_mov_b64 exec, -1")
    a(f"{lab}:")
    loc = opts.get("local")
    kofl = opts.get("kofl")
    if kofl:
        import conv2
        a(f"s_mul_i32 s34, s{S_C}, 10")
        a(f"s_add_u32 s34, s34, s{S_S}")
        a(f"s_lshl_b32 s34, s34, 1")
        a(f"s_add_u32 s{S_KY}, s34, s{S_WN}")
        a(f"s_lshr_b32 s34, s{S_KY}, 2")
        a(f"s_lshl_b32 s34, s34, 3")
        a(f"s_and_b32 s35, s{S_KY}, 3")
        a(f"s_add_u32 s34, s34, s35")
        a(f"s_add_u32 s34, s34, 4")
        a(f"v_lshlrev_b32 v2, 2, v{V_LANE}")
        a(f"s_lshl_b32 s35, s34, 8")
        for k, P in enumerate([P_LOGA, P_AIM, P_CRE, P_CIM]):
            make_srd(a, SRD_A, P, 163840)
            a(f"buffer_load_dword v{conv2.V_PRM+k}, v2, s[{SRD_A}:{SRD_A+3}], s35 offen")
        a(f"s_lshl_b32 s35, s34, 1")
        a(f"v_mov_b32 v3, 0")
        make_srd(a, SRD_A, P_LOGDT, 1280)
        a(f"buffer_load_ushort v{conv2.V_PRM+4}, v3, s[{SRD_A}:{SRD_A+3}], s35 offen")
        a(f"buffer_load_dwordx2 v[{V_NON}:{V_NON+1}], v3, s[{SRD_DBG}:{SRD_DBG+3}], 0 offen sc1")
    a(f"v_and_b32 v{T}, 31, v{V_LANE}")
    a(f"s_lshl_b32 s34, s{S_S}, 6")
    a(f"s_lshl_b32 s35, s{S_WN}, 5")
    a(f"s_add_u32 s34, s34, s35")
    a(f"v_add_u32 v{T+1}, s34, v{T}")
    a(f"v_lshlrev_b32 v{V_EOFF}, 4, v{T+1}")
    a(f"v_lshlrev_b32 v{T+1}, 1, v{T+1}")
    make_srd(a, SRD_B, P_LRE, 1280)
    a(f"buffer_load_ushort v{T+2}, v{T+1}, s[{SRD_B}:{SRD_B+3}], 0 offen")
    make_srd(a, SRD_A, P_LIM, 1280)
    a(f"buffer_load_ushort v{T+3}, v{T+1}, s[{SRD_A}:{SRD_A+3}], 0 offen")
    make_srd(a, 92, P_LOGDTB, 1280)
    a(f"buffer_load_ushort v{T+4}, v{T+1}, s[92:95], 0 offen")
    V_DSB = 227
    make_srd(a, SRD_B, P_DSKB, 1280)
    a(f"buffer_load_ushort v{V_DSB}, v{T+1}, s[{SRD_B}:{SRD_B+3}], 0 offen")
    make_srd(a, SRD_C, P_OUT, 5242880)
    a(f"v_and_b32 v{T+5}, 31, v{V_LANE}")
    a(f"v_lshrrev_b32 v{T+6}, 5, v{V_LANE}")
    a(f"v_bfe_u32 v{T+7}, v{T+5}, 2, 1")
    a(f"v_lshlrev_b32 v{T+7}, 5, v{T+7}")
    a(f"v_lshrrev_b32 v{T+8}, 3, v{T+5}")
    a(f"v_lshl_add_u32 v{T+7}, v{T+8}, 2, v{T+7}")
    a(f"v_and_b32 v{T+8}, 3, v{T+5}")
    a(f"v_add_u32 v{T+7}, v{T+7}, v{T+8}")
    a(f"s_lshl_b32 s34, s{S_WM}, 6")
    a(f"v_add_u32 v{T+7}, s34, v{T+7}")
    a(f"v_bfe_u32 v{T+8}, v{T+7}, 1, 3")
    a(f"v_xor_b32 v{T+8}, v{T+8}, v{T+6}")
    a(f"v_lshlrev_b32 v{T+8}, 4, v{T+8}")
    a(f"v_lshl_add_u32 v{V_AA}, v{T+7}, 7, v{T+8}")
    for ks in range(1, 4): a(f"v_xor_b32 v{V_AA+ks}, {32*ks}, v{V_AA}")
    a(f"s_lshl_b32 s34, s{S_WN}, 5")
    a(f"v_add_u32 v{T+7}, s34, v{T+5}")
    a(f"v_bfe_u32 v{T+8}, v{T+7}, 1, 3")
    a(f"v_xor_b32 v{T+8}, v{T+8}, v{T+6}")
    a(f"v_lshlrev_b32 v{T+8}, 4, v{T+8}")
    a(f"v_lshl_add_u32 v{V_BA}, v{T+7}, 7, v{T+8}")
    a(f"v_mov_b32 v{221}, v{V_BA}")
    a(f"v_add_u32 v{V_BA}, 0x10000, v{V_BA}")
    for ks in range(1, 4): a(f"v_xor_b32 v{V_BA+ks}, {32*ks}, v{V_BA}")
    a(f"v_mov_b32 v{V_ZERO}, 0")
    a(f"v_lshlrev_b32 v{V_L16}, 4, v{V_LANE}")
    stamp(a, 1)
    if kofl:
        a(f"s_and_b32 s34, s{S_WAVE}, 1")
        a(f"s_mul_i32 s34, s34, 15232")
        a(f"s_lshr_b32 s35, s{S_WAVE}, 1")
        a(f"s_lshl_b32 s35, s35, 16")
        a(f"s_add_u32 s34, s34, s35")
        a(f"s_add_u32 s{S_KB}, s34, 32768")
        conv2.kgen_addr_setup(a, f"s{S_KB}")
        a(f"s_waitcnt vmcnt(5)")
        TK = conv2.V_T_
        a(f"v_lshlrev_b32 v{conv2.V_DT}, 16, v{conv2.V_PRM+4}")
        exp_accurate(a, conv2.V_DT, conv2.V_DT, TK, TK+1, TK+2)
        round_bf16(a, conv2.V_DT, conv2.V_DT)
        conv2.kgen_pass(a, f"s{S_WM}")
        a("s_nop 7\ns_nop 7\ns_nop 1")
        a(f"s_lshl_b32 s34, s{S_KY}, 1")
        a(f"s_add_u32 s34, s34, s{S_WM}")
        a(f"s_lshl_b32 s34, s34, 12")
        a(f"s_add_u32 s34, s34, {WS_KP}")
        for j in range(4):
            a(f"buffer_store_dwordx4 v[{64+4*j}:{67+4*j}], v{V_L16}, s[{SRD_WS}:{SRD_WS+3}], s34 offen offset:{j*1024} sc1")
        stamp(a, 14)
        a(f"s_waitcnt vmcnt(4)")
    else:
        a(f"s_waitcnt vmcnt(0)")
    a(f"v_lshlrev_b32 v{V_DSB}, 16, v{V_DSB}")
    a(f"v_lshlrev_b32 v{T+2}, 16, v{T+2}")
    a(f"v_lshlrev_b32 v{T+3}, 16, v{T+3}")
    a(f"v_lshlrev_b32 v{T+4}, 16, v{T+4}")
    exp_accurate(a, T+4, T+4, T+5, T+6, T+7)
    round_bf16(a, T+4, T+4)
    a(f"v_mul_f32 v{T+5}, v{T+4}, v{T+2}")
    a(f"v_mul_f32 v{T+6}, v{T+4}, v{T+3}")
    exp_accurate(a, T+5, T+5, T+7, T+8, T+9)
    a(f"v_mul_f32 v{T+6}, {fhex(INV2PI)}, v{T+6}")
    a(f"v_fract_f32 v{T+6}, v{T+6}")
    a(f"v_cos_f32 v{T+7}, v{T+6}")
    a(f"v_sin_f32 v{T+8}, v{T+6}")
    a(f"s_nop 0")
    a(f"v_mul_f32 v{V_LR}, v{T+5}, v{T+7}")
    a(f"v_mul_f32 v{V_LI}, v{T+5}, v{T+8}")
    a(f"v_add_f32 v{T+5}, -1.0, v{V_LR}")
    a(f"v_mul_f32 v{T+6}, v{T+2}, v{T+2}")
    a(f"v_fma_f32 v{T+6}, v{T+3}, v{T+3}, v{T+6}")
    a(f"v_rcp_f32 v{T+7}, v{T+6}")
    a(f"v_mul_f32 v{T+8}, v{T+5}, v{T+2}")
    a(f"v_fma_f32 v{T+9}, -v{T+6}, v{T+7}, 2.0")
    a(f"v_mul_f32 v{T+7}, v{T+7}, v{T+9}")
    a(f"v_fma_f32 v{T+8}, v{V_LI}, v{T+3}, v{T+8}")
    a(f"v_mul_f32 v{T+9}, v{V_LI}, v{T+2}")
    a(f"v_fma_f32 v{T+9}, -v{T+5}, v{T+3}, v{T+9}")
    a(f"v_add_f32 v{T+7}, v{T+7}, v{T+7}")
    a(f"v_mul_f32 v{V_C2}, v{T+8}, v{T+7}")
    a(f"v_mul_f32 v{V_C2+1}, v{T+9}, v{T+7}")
    a(f"v_mov_b32 v{V_L32}, v{V_LR}")
    a(f"v_mov_b32 v{V_L32+1}, v{V_LI}")
    for i in range(5): cmul(a, V_L32, V_L32+1, V_L32, V_L32+1, V_L32, V_L32+1, T+5)
    cmul(a, V_L128, V_L128+1, V_L32, V_L32+1, V_L32, V_L32+1, T+5)
    cmul(a, V_L128, V_L128+1, V_L128, V_L128+1, V_L128, V_L128+1, T+5)
    if loc:
        a(f"s_getreg_b32 s{S_FAST}, hwreg(HW_REG_XCC_ID)")
        a(f"s_and_b32 s{S_FAST}, s{S_FAST}, 0x7f")
        a(f"s_add_u32 s{S_FAST}, s{S_FAST}, 1")
        labx = a.label("XPUB")
        a(f"s_cmp_lg_u32 s{S_WAVE}, 0")
        a(f"s_cbranch_scc1 {labx}")
        a(f"s_mul_i32 s34, s{S_C}, 10")
        a(f"s_add_u32 s34, s34, s{S_S}")
        a(f"s_add_u32 s34, s34, 16")
        a(f"v_mov_b32 v{T}, s{S_FAST}")
        a(f"v_mov_b32 v{T+1}, 0")
        a(f"s_mov_b64 exec, 1")
        a(f"buffer_store_byte v{T}, v{T+1}, s[{SRD_DBG}:{SRD_DBG+3}], s34 offen sc1")
        a(f"s_mov_b64 exec, -1")
        a(f"{labx}:")
    if opts.get("tlbw"):
        a(f"v_lshlrev_b32 v{T}, 20, v{V_LANE}")
        a(f"s_mov_b64 exec, 0xfff")
        a(f"buffer_load_dword v{T+1}, v{T}, s[{SRD_WS}:{SRD_WS+3}], 0 offen")
        a(f"s_mov_b64 exec, 7")
        a(f"v_lshlrev_b32 v{T}, 21, v{V_LANE}")
        a(f"buffer_load_dword v{T+2}, v{T}, s[{SRD_C}:{SRD_C+3}], 0 offen")
        a(f"s_mov_b64 exec, -1")
    a(f"s_waitcnt lgkmcnt(0)")
    stamp(a, 2)
    a(f"s_barrier")
    stamp(a, 3)
    cstamp(a, 20)
    for ins in g1_reads(0, 0): a(ins)
    for ins in g1_reads(0, 1): a(ins)
    NST = 10
    for it in range(NST):
        for ks in range(4):
            gidx = 4*it + ks
            last = (gidx == 4*NST - 1)
            if kofl and it == opts.get("kflst", 1) and ks == 0:
                lk = a.label("KN"); lk2 = a.label("KN2")
                a(f"s_mov_b32 s{S_CNT}, 100000")
                a(f"s_waitcnt vmcnt(0)")
                a(f"{lk}:")
                a(f"v_readfirstlane_b32 s{S_NONCE}, v{V_NON}")
                a(f"v_readfirstlane_b32 s{S_NONCE+1}, v{V_NON+1}")
                a(f"s_nop 0")
                a(f"s_cmp_lg_u32 s{S_NONCE}, 0")
                a(f"s_cbranch_scc1 {lk2}")
                poll_timeout(a, S_CNT, END)
                a(f"buffer_load_dwordx2 v[{V_NON}:{V_NON+1}], v{V_ZERO}, s[{SRD_DBG}:{SRD_DBG+3}], 0 offen sc1")
                a(f"s_waitcnt vmcnt(0)")
                a(f"s_branch {lk}")
                a(f"{lk2}:")
                a(f"s_lshl_b32 s34, s{S_KY}, 1")
                a(f"s_add_u32 s34, s34, s{S_WM}")
                a(f"s_lshl_b32 s34, s34, 3")
                a(f"s_add_u32 s34, s34, {WS_KFLG}")
                a(f"v_mov_b32 v248, s{S_NONCE}")
                a(f"v_mov_b32 v249, s{S_NONCE+1}")
                a(f"s_mov_b64 s[{S_EXEC}:{S_EXEC+1}], exec")
                a(f"s_mov_b64 exec, 1")
                a(f"buffer_store_dwordx2 v[248:249], v{V_ZERO}, s[{SRD_WS}:{SRD_WS+3}], s34 offen sc1")
                a(f"s_mov_b64 exec, s[{S_EXEC}:{S_EXEC+1}]")
            a(f"s_waitcnt lgkmcnt({0 if last else 4})")
            fill = []
            nx = gidx + 2
            if nx < 4*NST:
                nit, nks = nx // 4, nx % 4
                if nks == 0:
                    a(f"s_barrier")
                    if opts.get("profst"): stamp(a, 16 + nit)
                fill += g1_reads(nit, nks)
                if nks == 0 and nit == 5 and not kofl:
                    fill.append(f"buffer_load_dwordx2 v[{V_NON}:{V_NON+1}], v{V_ZERO}, s[{SRD_DBG}:{SRD_DBG+3}], 0 offen sc1")
                if nks == 0 and nit == 6 and loc:
                    fill.append(f"s_mul_i32 s35, s{S_C}, 10")
                    fill.append(f"s_add_u32 s35, s35, 16")
                    fill.append(f"buffer_load_ubyte v{V_XC}, v{V_LANE}, s[{SRD_DBG}:{SRD_DBG+3}], s35 offen sc1")
            if last:
                a(f"s_barrier")
            interleave(a, g1_mfmas(it, ks), fill)
    cstamp(a, 21)
    stamp(a, 4)
    a.c("pass 1")
    a(f"s_nop 7\ns_nop 7")
    first = True
    for m in range(2):
        for r in range(16):
            br, bi = acc(m, 0) + r, acc(m, 1) + r
            if first:
                a(f"v_mov_b32 v{V_ER}, v{br}")
                a(f"v_mov_b32 v{V_EI}, v{bi}")
                first = False
            else:
                src = (V_ER, V_EI) if cur == 0 else (T, T+1)
                dst = (T, T+1) if cur == 0 else (V_ER, V_EI)
                a(f"v_fma_f32 v{dst[0]}, v{V_LR}, v{src[0]}, v{br}")
                a(f"v_fma_f32 v{dst[1]}, v{V_LR}, v{src[1]}, v{bi}")
                a(f"v_fma_f32 v{dst[0]}, -v{V_LI}, v{src[1]}, v{dst[0]}")
                a(f"v_fma_f32 v{dst[1]}, v{V_LI}, v{src[0]}, v{dst[1]}")
                cur ^= 1
                continue
            cur = 0
    if cur == 1:
        a(f"v_mov_b32 v{V_ER}, v{T}")
        a(f"v_mov_b32 v{V_EI}, v{T+1}")
    EX = 240; G = 248; SA = 252
    a(f"v_lshrrev_b32 v{T+2}, 5, v{V_LANE}")
    a(f"s_lshl_b32 s34, s{S_WM}, 1")
    a(f"v_add_u32 v{T+2}, s34, v{T+2}")
    a(f"v_and_b32 v{T+3}, 31, v{V_LANE}")
    a(f"s_lshl_b32 s34, s{S_WN}, 5")
    a(f"v_add_u32 v{T+3}, s34, v{T+3}")
    a(f"v_lshlrev_b32 v{T+3}, 3, v{T+3}")
    a(f"v_add_u32 v{T+3}, {L_EX}, v{T+3}")
    a(f"v_lshl_add_u32 v{T+2}, v{T+2}, 9, v{T+3}")
    a(f"ds_write_b64 v{T+2}, v[{V_ER}:{V_ER+1}]")
    a(f"v_mov_b32 v{T+4}, {CNT_EX}")
    a(f"v_mov_b32 v{T+5}, 1")
    a(f"s_waitcnt lgkmcnt(0)")
    lds_inc(a, T+4, T+5)
    lab_ok = a.label("NOK"); lab_p = a.label("NPOLL")
    a(f"s_mov_b32 s{S_CNT}, 100000")
    a(f"s_waitcnt vmcnt(0)")
    a(f"{lab_p}:")
    a(f"v_readfirstlane_b32 s{S_NONCE}, v{V_NON}")
    a(f"v_readfirstlane_b32 s{S_NONCE+1}, v{V_NON+1}")
    a(f"s_nop 0")
    a(f"s_cmp_lg_u32 s{S_NONCE}, 0")
    a(f"s_cbranch_scc1 {lab_ok}")
    poll_timeout(a, S_CNT, END)
    a(f"buffer_load_dwordx2 v[{V_NON}:{V_NON+1}], v{V_ZERO}, s[{SRD_DBG}:{SRD_DBG+3}], 0 offen sc1")
    a(f"s_waitcnt vmcnt(0)")
    a(f"s_branch {lab_p}")
    a(f"{lab_ok}:")
    if loc:
        a(f"v_cmp_ne_u32 vcc, s{S_FAST}, v{V_XC}")
        a(f"s_and_b64 vcc, vcc, 0x3ff")
        a(f"s_cmp_eq_u64 vcc, 0")
        a(f"s_cselect_b32 s{S_FAST}, 1, 0")
    lds_spin(a, T+4, T+6, 4, END)
    for sg in range(4):
        a(f"ds_read_b64 v[{EX+2*sg}:{EX+2*sg+1}], v{T+3} offset:{sg*512}")
    a(f"s_waitcnt lgkmcnt(0)")
    a(f"v_mov_b32 v{V_HR}, v{EX}")
    a(f"v_mov_b32 v{V_HI}, v{EX+1}")
    for sg in range(1, 4): cfma(a, V_HR, V_HI, V_L32, V_L32+1, EX+2*sg, EX+2*sg+1, T)
    lab_np = a.label("NOPUB")
    a(f"s_cmp_lg_u32 s{S_WM}, 0")
    a(f"s_cbranch_scc1 {lab_np}")
    a(f"v_mov_b32 v{G}, v{V_HR}")
    a(f"v_mov_b32 v{G+1}, v{V_HI}")
    a(f"v_mov_b32 v{G+2}, s{S_NONCE}")
    a(f"v_mov_b32 v{G+3}, s{S_NONCE+1}")
    a(f"s_mul_i32 s34, s{S_C}, 10240")
    a(f"s_add_u32 s34, s34, {WS_E}")
    a(f"s_mov_b64 s[{S_EXEC}:{S_EXEC+1}], exec")
    a(f"s_mov_b32 exec_lo, -1")
    a(f"s_mov_b32 exec_hi, 0")
    a(f"buffer_store_dwordx4 v[{G}:{G+3}], v{V_EOFF}, s[{SRD_WS}:{SRD_WS+3}], s34 offen sc1")
    a(f"s_mov_b64 exec, s[{S_EXEC}:{S_EXEC+1}]")
    a(f"{lab_np}:")
    a(f"v_mov_b32 v{T+4}, {CNT_P}")
    a(f"v_mov_b32 v{T+5}, 1")
    lds_inc(a, T+4, T+5)
    stamp(a, 5)
    def greg(cp): return (V_FR + 4*cp) if cp < 12 else (228 + 4*(cp-12))
    def issue_polls(lab_iss):
        for cp in range(15):
            a(f"s_cmp_le_u32 s{S_C}, {cp}")
            a(f"s_cbranch_scc1 {lab_iss}")
            a(f"s_mov_b32 s34, {WS_E + cp*10240}")
            a(f"buffer_load_dwordx4 v[{greg(cp)}:{greg(cp)+3}], v{V_EOFF}, s[{SRD_WS}:{SRD_WS+3}], s34 offen sc1")
        a(f"{lab_iss}:")
    a.c("scale")
    for m in range(2):
        for r in range(0, 16, 2):
            pr, pi = acc(m,0)+r, acc(m,1)+r
            qr, qi = acc2(m,0)+r, acc2(m,1)+r
            a(f"v_pk_mul_f32 v[{qr}:{qr+1}], v[{pr}:{pr+1}], v[{V_C2}:{V_C2+1}] op_sel:[0,0] op_sel_hi:[1,0]")
            a(f"v_pk_mul_f32 v[{qi}:{qi+1}], v[{pi}:{pi+1}], v[{V_C2}:{V_C2+1}] op_sel:[0,0] op_sel_hi:[1,0] neg_lo:[1,0] neg_hi:[1,0]")
            a(f"v_pk_fma_f32 v[{qr}:{qr+1}], v[{pi}:{pi+1}], v[{V_C2}:{V_C2+1}], v[{qr}:{qr+1}] op_sel:[0,1,0] op_sel_hi:[1,1,1] neg_lo:[1,0,0] neg_hi:[1,0,0]")
            a(f"v_pk_fma_f32 v[{qi}:{qi+1}], v[{pr}:{pr+1}], v[{V_C2}:{V_C2+1}], v[{qi}:{qi+1}] op_sel:[0,1,0] op_sel_hi:[1,1,1] neg_lo:[1,0,0] neg_hi:[1,0,0]")
    stamp(a, 6)
    lab_w0 = a.label("EW0"); lab_wj = a.label("EWJ")
    eall = opts.get("eall", False)
    if not eall:
        a(f"s_cmp_eq_u32 s{S_WM}, 0")
        a(f"s_cbranch_scc1 {lab_w0}")
    a.c("E combine: lane (p, hf) handles d = 2j+1+hf")
    SE = 92
    a(f"s_add_u32 s{SE}, s{P_WS}, {WS_E}")
    a(f"s_addc_u32 s{SE+1}, s{P_WS+1}, 0")
    a(f"s_and_b32 s{SE+1}, s{SE+1}, 0xffff")
    a(f"s_mov_b32 s{SE+2}, {16*10240}")
    a(f"s_mov_b32 s{SE+3}, 0x00020000")
    L256 = T+8
    cmul(a, L256, L256+1, V_L128, V_L128+1, V_L128, V_L128+1, T)
    VO = 228
    a(f"v_lshrrev_b32 v{T+2}, 5, v{V_LANE}")
    a(f"s_sub_u32 s34, s{S_C}, 1")
    a(f"v_sub_u32 v{T+2}, s34, v{T+2}")
    a(f"v_mul_i32_i24 v{T+2}, 10240, v{T+2}")
    a(f"v_add_u32 v{VO}, v{T+2}, v{V_EOFF}")
    for j in range(1, 8):
        a(f"v_subrev_u32 v{VO+j}, {20480*j}, v{VO}")
    GR = V_FR
    lab_poll = a.label("EPOLL"); lab_ok = a.label("EOK")
    a(f"s_mov_b32 s{S_CNT}, 100000")
    a(f"{lab_poll}:")
    for j in range(8):
        a(f"buffer_load_dwordx4 v[{GR+4*j}:{GR+4*j+3}], v{VO+j}, s[{SE}:{SE+3}], 0 offen sc1")
    a(f"s_mov_b64 s[{S_MISM}:{S_MISM+1}], 0")
    for j in range(8):
        a(f"s_waitcnt vmcnt({7-j})")
        a(f"v_cmp_ne_u64 vcc, s[{S_NONCE}:{S_NONCE+1}], v[{GR+4*j+2}:{GR+4*j+3}]")
        a(f"v_cmp_le_i32 s[{S_T2}:{S_T2+1}], 0, v{VO+j}")
        a(f"s_and_b64 vcc, vcc, s[{S_T2}:{S_T2+1}]")
        a(f"s_or_b64 s[{S_MISM}:{S_MISM+1}], s[{S_MISM}:{S_MISM+1}], vcc")
    a(f"s_cmp_eq_u64 s[{S_MISM}:{S_MISM+1}], 0")
    a(f"s_cbranch_scc1 {lab_ok}")
    if opts.get("efull", True):
        a(f"s_sleep {opts.get('esleep', 2)}")
        a(f"s_sub_u32 s{S_CNT}, s{S_CNT}, 1")
        a(f"s_cbranch_scc0 {lab_poll}")
        a(f"s_branch {END}")
    CP = T+12
    a(f"v_readfirstlane_b32 s35, v{V_EOFF}")
    a(f"s_sub_u32 s34, s{S_C}, 1")
    a(f"v_sub_u32 v{CP}, s34, v{V_LANE}")
    a(f"v_mul_i32_i24 v{CP}, 10240, v{CP}")
    a(f"v_add_u32 v{CP}, s35, v{CP}")
    a(f"v_cmp_le_i32 s[{S_T2}:{S_T2+1}], 0, v{CP}")
    a(f"s_and_b64 s[{S_T2}:{S_T2+1}], s[{S_T2}:{S_T2+1}], 0xffff")
    lab_cp = a.label("ECH")
    a(f"{lab_cp}:")
    a(f"s_sleep {opts.get('esleep', 2)}")
    a(f"buffer_load_dwordx4 v[{GR}:{GR+3}], v{CP}, s[{SE}:{SE+3}], 0 offen sc1")
    a(f"s_waitcnt vmcnt(0)")
    a(f"v_cmp_ne_u64 vcc, s[{S_NONCE}:{S_NONCE+1}], v[{GR+2}:{GR+3}]")
    a(f"s_and_b64 vcc, vcc, s[{S_T2}:{S_T2+1}]")
    a(f"s_cmp_eq_u64 vcc, 0")
    a(f"s_cbranch_scc1 {lab_poll}")
    a(f"s_sub_u32 s{S_CNT}, s{S_CNT}, 1")
    a(f"s_cbranch_scc0 {lab_cp}")
    a(f"s_branch {END}")
    a(f"{lab_ok}:")
    a(f"v_mov_b32 v{V_HR}, v{GR+28}")
    a(f"v_mov_b32 v{V_HI}, v{GR+29}")
    cur = (V_HR, V_HI); oth = (T, T+1)
    for j in range(6, -1, -1):
        er, ei = GR+4*j, GR+4*j+1
        a(f"v_fma_f32 v{oth[0]}, v{cur[0]}, v{L256}, v{er}")
        a(f"v_fma_f32 v{oth[1]}, v{cur[1]}, v{L256}, v{ei}")
        a(f"v_fma_f32 v{oth[0]}, -v{cur[1]}, v{L256+1}, v{oth[0]}")
        a(f"v_fma_f32 v{oth[1]}, v{cur[0]}, v{L256+1}, v{oth[1]}")
        cur, oth = oth, cur
    hr, hi = cur
    a(f"v_mov_b32 v{T+2}, v{hr}")
    a(f"v_mov_b32 v{T+3}, v{hi}")
    a(f"s_nop 1")
    a(f"v_permlane32_swap_b32 v{hr}, v{T+2}")
    a(f"v_permlane32_swap_b32 v{hi}, v{T+3}")
    a(f"s_nop 1")
    a(f"v_fma_f32 v{V_HR}, v{T+2}, v{V_L128}, v{hr}")
    a(f"v_fma_f32 v{V_HI}, v{T+3}, v{V_L128}, v{hi}")
    a(f"v_fma_f32 v{V_HR}, -v{T+3}, v{V_L128+1}, v{V_HR}")
    a(f"v_fma_f32 v{V_HI}, v{T+2}, v{V_L128+1}, v{V_HI}")
    if not eall:
        a(f"v_and_b32 v{T+2}, 31, v{V_LANE}")
        a(f"v_lshlrev_b32 v{T+2}, 3, v{T+2}")
        a(f"s_lshl_b32 s34, s{S_WN}, 8")
        a(f"s_add_u32 s34, s34, {L_HX}")
        a(f"v_add_u32 v{T+2}, s34, v{T+2}")
        a(f"ds_write_b64 v{T+2}, v[{V_HR}:{V_HR+1}]")
        a(f"s_lshl_b32 s34, s{S_WN}, 2")
        a(f"s_add_u32 s34, s34, {CNT_HX0}")
        a(f"v_mov_b32 v{T+4}, s34")
        a(f"v_mov_b32 v{T+5}, 1")
        a(f"s_waitcnt lgkmcnt(0)")
        lds_inc(a, T+4, T+5)
        a(f"s_branch {lab_wj}")
        a(f"{lab_w0}:")
        a(f"s_lshl_b32 s34, s{S_WN}, 2")
        a(f"s_add_u32 s34, s34, {CNT_HX0}")
        a(f"v_mov_b32 v{T+4}, s34")
        lds_spin(a, T+4, T+6, 1, END)
        a(f"v_and_b32 v{T+2}, 31, v{V_LANE}")
        a(f"v_lshlrev_b32 v{T+2}, 3, v{T+2}")
        a(f"s_lshl_b32 s34, s{S_WN}, 8")
        a(f"s_add_u32 s34, s34, {L_HX}")
        a(f"v_add_u32 v{T+2}, s34, v{T+2}")
        a(f"ds_read_b64 v[{V_HR}:{V_HR+1}], v{T+2}")
        a(f"s_waitcnt lgkmcnt(0)")
        a(f"{lab_wj}:")
    a(f"v_mov_b32 v{T+4}, {CNT_E}")
    a(f"v_mov_b32 v{T+5}, 1")
    lds_inc(a, T+4, T+5)
    lab_w1 = a.label("WM1"); lab_w2 = a.label("WMD")
    a(f"s_cmp_lg_u32 s{S_WM}, 0")
    a(f"s_cbranch_scc1 {lab_w1}")
    a(f"v_mov_b32 v{SA}, v{V_HR}")
    a(f"v_mov_b32 v{SA+1}, v{V_HI}")
    cfma(a, V_HR, V_HI, V_L32, V_L32+1, EX, EX+1, T)
    a(f"s_branch {lab_w2}")
    a(f"{lab_w1}:")
    cfma(a, V_HR, V_HI, V_L32, V_L32+1, EX, EX+1, T)
    cfma(a, V_HR, V_HI, V_L32, V_L32+1, EX+2, EX+3, T)
    a(f"v_mov_b32 v{SA}, v{V_HR}")
    a(f"v_mov_b32 v{SA+1}, v{V_HI}")
    cfma(a, V_HR, V_HI, V_L32, V_L32+1, EX+4, EX+5, T)
    a(f"{lab_w2}:")
    a(f"v_cmp_gt_u32 vcc, 32, v{V_LANE}")
    a(f"s_nop 1")
    a(f"v_cndmask_b32 v{V_HR}, v{V_HR}, v{SA}, vcc")
    a(f"v_cndmask_b32 v{V_HI}, v{V_HI}, v{SA+1}, vcc")
    a(f"v_mul_f32 v{T}, v{V_HR}, v{V_C2}")
    a(f"v_mul_f32 v{T+1}, -v{V_HI}, v{V_C2}")
    a(f"v_fma_f32 v{T}, -v{V_HI}, v{V_C2+1}, v{T}")
    a(f"v_fma_f32 v{V_HI}, -v{V_HR}, v{V_C2+1}, v{T+1}")
    a(f"v_mov_b32 v{V_HR}, v{T}")
    stamp(a, 7)
    a.c("pass 2 + stores")
    a(f"s_mul_i32 s34, s{S_C}, 20")
    a(f"s_add_u32 s34, s34, s{S_S}")
    a(f"s_lshl_b32 s34, s34, 14")
    a(f"s_lshl_b32 s35, s{S_WAVE}, 12")
    a(f"s_add_u32 s34, s34, s35")
    a(f"s_add_u32 s{S_T0}, s34, {WS_H}")
    a(f"s_add_u32 s{S_T1}, s{S_T0}, {10*16384}")
    pr, pi = V_HR, V_HI
    PK = 16
    for m in range(2):
        for r in range(16):
            cr, ci = acc2(m,0)+r, acc2(m,1)+r
            a(f"v_fma_f32 v{cr}, v{V_LR}, v{pr}, v{cr}")
            a(f"v_fma_f32 v{ci}, v{V_LR}, v{pi}, v{ci}")
            a(f"v_fma_f32 v{cr}, v{V_LI}, v{pi}, v{cr}")
            a(f"v_fma_f32 v{ci}, -v{V_LI}, v{pr}, v{ci}")
            pr, pi = cr, ci
            if r % 2 == 1:
                t = 16*m + r
                j, d = t // 8, (t % 8) // 2
                a(f"v_cvt_pk_bf16_f32 v{PK + 4*j + d}, v{cr-1}, v{cr}")
                a(f"v_cvt_pk_bf16_f32 v{PK + 16 + 4*j + d}, v{ci-1}, v{ci}")
                if d == 3:
                    def st(flag):
                        a(f"buffer_store_dwordx4 v[{PK+4*j}:{PK+4*j+3}], v{V_L16}, s[{SRD_WS}:{SRD_WS+3}], s{S_T0} offen offset:{j*1024} {flag}")
                        a(f"buffer_store_dwordx4 v[{PK+16+4*j}:{PK+16+4*j+3}], v{V_L16}, s[{SRD_WS}:{SRD_WS+3}], s{S_T1} offen offset:{j*1024} {flag}")
                    if loc:
                        l1 = a.label("HS"); l2 = a.label("HS")
                        a(f"s_cmp_eq_u32 s{S_FAST}, 1")
                        a(f"s_cbranch_scc1 {l1}")
                        st("sc1")
                        a(f"s_branch {l2}")
                        a(f"{l1}:")
                        st("")
                        a(f"{l2}:")
                    else:
                        st(opts.get('hst', 'sc1'))
    stamp(a, 8)
    a.c("acc init from x tile")
    a(f"v_mov_b32 v{T+4}, {CNT_X}")
    lds_spin(a, T+4, T+6, 4, END)
    XA = T+7
    a(f"v_lshrrev_b32 v{T+8}, 5, v{V_LANE}")
    a(f"v_bfe_u32 v{T+9}, v{V_LANE}, 2, 2")
    a(f"v_lshl_add_u32 v{T+8}, v{T+8}, 2, v{T+9}")
    a(f"s_lshl_b32 s34, s{S_WM}, 6")
    a(f"v_add_u32 v{T+8}, s34, v{T+8}")
    a(f"v_lshlrev_b32 v{XA}, 7, v{T+8}")
    a(f"v_bfe_u32 v{T+8}, v{V_LANE}, 4, 1")
    a(f"v_lshlrev_b32 v{T+8}, 5, v{T+8}")
    a(f"v_and_b32 v{T+9}, 3, v{V_LANE}")
    a(f"v_lshl_add_u32 v{T+8}, v{T+9}, 3, v{T+8}")
    a(f"s_lshl_b32 s34, s{S_WN}, 6")
    a(f"s_add_u32 s34, s34, {L_XT}")
    a(f"v_add_u32 v{T+8}, s34, v{T+8}")
    a(f"v_add_u32 v{XA}, v{XA}, v{T+8}")
    XV = 96
    for m in range(2):
        for q in range(4):
            r = XV + 2*(4*m+q)
            a(f"ds_read_b64_tr_b16 v[{r}:{r+1}], v{XA} offset:{(32*m+8*q)*128}")
    a(f"s_waitcnt lgkmcnt(0)")
    for qi in range(8):
        for h in range(2):
            xv = XV + 2*qi + h
            a0 = G2_ACC + 4*qi + 2*h
            a(f"v_lshlrev_b32 v{a0}, 16, v{xv}")
            a(f"v_and_b32 v{a0+1}, 0xffff0000, v{xv}")
            a(f"v_mul_f32 v{a0}, v{a0}, v{V_DSB}")
            a(f"v_mul_f32 v{a0+1}, v{a0+1}, v{V_DSB}")
            a(f"v_cvt_pk_bf16_f32 v{a0}, v{a0}, v{a0+1}")
            a(f"v_and_b32 v{a0+1}, 0xffff0000, v{a0}")
            a(f"v_lshlrev_b32 v{a0}, 16, v{a0}")
    a(f"v_lshrrev_b32 v{T}, 4, v{V_LANE}")
    a(f"v_bfe_u32 v{T+1}, v{V_LANE}, 2, 2")
    a(f"v_and_b32 v{T+2}, 3, v{V_LANE}")
    a(f"v_and_b32 v{T+3}, 1, v{T}")
    a(f"v_lshlrev_b32 v{T+3}, 1, v{T+3}")
    a(f"v_lshrrev_b32 v{T+4}, 1, v{T+2}")
    a(f"v_add_u32 v{T+3}, v{T+3}, v{T+4}")
    a(f"v_mul_u32_u24 v{T+3}, 1088, v{T+3}")
    a(f"v_lshrrev_b32 v{T+4}, 1, v{T}")
    a(f"v_lshl_add_u32 v{T+4}, v{T+4}, 3, v{T+1}")
    a(f"v_lshl_add_u32 v{T+3}, v{T+4}, 4, v{T+3}")
    a(f"v_and_b32 v{T+4}, 1, v{T+2}")
    a(f"v_lshl_add_u32 v{T+3}, v{T+4}, 3, v{T+3}")
    a(f"s_mul_i32 s34, s{S_WM}, 8704")
    a(f"v_add_u32 v{V_HA}, s34, v{T+3}")
    a(f"v_add_u32 v{V_HA2}, {3*HSLOT}, v{V_HA}")
    for ks in range(4):
        a(f"v_xor_b32 v{2+ks}, {32*ks}, v221")
        a(f"v_add_u32 v{V_CB+ks}, {CBASE}, v{2+ks}")
    a(f"s_waitcnt vmcnt(0)")
    a(f"v_mov_b32 v{T+4}, {CNT_H}")
    a(f"v_mov_b32 v{T+5}, 1")
    a(f"s_mov_b64 s[{S_EXEC}:{S_EXEC+1}], exec")
    a(f"s_mov_b64 exec, 1")
    a(f"ds_add_rtn_u32 v{T+6}, v{T+4}, v{T+5}")
    a(f"s_waitcnt lgkmcnt(0)")
    a(f"v_readfirstlane_b32 s{S_T3}, v{T+6}")
    lab_nf = a.label("NOHF")
    a(f"s_nop 0")
    a(f"s_cmp_lg_u32 s{S_T3}, 3")
    a(f"s_cbranch_scc1 {lab_nf}")
    a(f"s_lshl_b32 s34, s{S_C}, 7")
    a(f"s_lshl_b32 s35, s{S_S}, 3")
    a(f"s_add_u32 s34, s34, s35")
    a(f"s_add_u32 s34, s34, {WS_FLAG}")
    a(f"v_mov_b32 v{G}, s{S_NONCE}")
    a(f"v_mov_b32 v{G+1}, s{S_NONCE+1}")
    if loc:
        l1 = a.label("HF"); l2 = a.label("HF")
        a(f"s_cmp_eq_u32 s{S_FAST}, 1")
        a(f"s_cbranch_scc1 {l1}")
        a(f"buffer_store_dwordx2 v[{G}:{G+1}], v{V_ZERO}, s[{SRD_WS}:{SRD_WS+3}], s34 offen sc1")
        a(f"s_branch {l2}")
        a(f"{l1}:")
        a(f"buffer_store_dwordx2 v[{G}:{G+1}], v{V_ZERO}, s[{SRD_WS}:{SRD_WS+3}], s34 offen")
        a(f"{l2}:")
    else:
        a(f"buffer_store_dwordx2 v[{G}:{G+1}], v{V_ZERO}, s[{SRD_WS}:{SRD_WS+3}], s34 offen {opts.get('hst', 'sc1')}")
    a(f"{lab_nf}:")
    a(f"s_mov_b64 exec, s[{S_EXEC}:{S_EXEC+1}]")
    stamp(a, 9)
    a(f"v_mov_b32 v{T+4-T+240}, {CNT_C}")
    lds_spin(a, 244, 245, 4, END)
    n = 0
    for ch in range(NREG):
        for ks in range(4):
            r = V_CREG + 16*ch + 4*ks
            off = L_CST + ch*8192
            reg = 2 + ks
            if off >= 65536:
                a(f"v_add_u32 v246, {off}, v{reg}")
                a(f"ds_read_b128 v[{r}:{r+3}], v246")
            else:
                a(f"ds_read_b128 v[{r}:{r+3}], v{reg} offset:{off}")
            n += 1
            if n % 12 == 0: a(f"s_waitcnt lgkmcnt(4)")
    a(f"s_waitcnt lgkmcnt(0)")
    a(f"v_mov_b32 v244, {CNT_R}")
    a(f"v_mov_b32 v245, 1")
    lds_inc(a, 244, 245)
    stamp(a, 10)
    a(f"s_barrier")
    stamp(a, 11)
    cstamp(a, 22)
    D2 = G2_NS - 1
    for k0 in range(D2):
        for ins in g2_reads(0, k0): a(ins)
    NST = 20
    for it in range(NST):
        for ks in range(4):
            gidx = 4*it + ks
            rem = 0
            for g2 in range(gidx + 1, min(gidx + D2, 4*NST)):
                rem += len(g2_reads(g2 // 4, g2 % 4))
            a(f"s_waitcnt lgkmcnt({rem})")
            fill = []
            nx = gidx + D2
            if nx < 4*NST:
                nit, nks = nx // 4, nx % 4
                if nks == 0: a(f"s_barrier")
                fill += g2_reads(nit, nks)
            interleave(a, g2_mfmas(it, ks), fill)
    cstamp(a, 23)
    stamp(a, 12)
    a(f"v_and_b32 v{T}, 31, v{V_LANE}")
    a(f"s_lshl_b32 s34, s{S_WN}, 5")
    a(f"v_add_u32 v{T}, s34, v{T}")
    a(f"v_lshrrev_b32 v{T+3}, 5, v{V_LANE}")
    a(f"v_and_b32 v{T+1}, 15, v{T}")
    a(f"s_lshl_b32 s34, s{S_WM}, 3")
    a(f"v_xor_b32 v{T+1}, s34, v{T+1}")
    a(f"v_lshlrev_b32 v{T+2}, 8, v{T}")
    a(f"v_lshl_add_u32 v{T+2}, v{T+3}, 3, v{T+2}")
    a(f"v_add_u32 v{T+2}, {L_AT}, v{T+2}")
    GA = T+5
    a(f"s_lshl_b32 s34, s{S_WM}, 9")
    a(f"s_add_u32 s34, s34, {L_G}")
    a(f"v_lshlrev_b32 v{GA}, 5, v{T+3}")
    a(f"v_add_u32 v{GA}, s34, v{GA}")
    GV = 112
    for m in range(2):
        for q in range(4):
            gb = GV + 8*(4*m+q)
            a(f"ds_read_b128 v[{gb}:{gb+3}], v{GA} offset:{(32*m+8*q)*8}")
            a(f"ds_read_b128 v[{gb+4}:{gb+7}], v{GA} offset:{(32*m+8*q)*8+16}")
            if (4*m+q) == 2: a("s_waitcnt lgkmcnt(6)")
            if (4*m+q) == 5: a("s_waitcnt lgkmcnt(6)")
    OV = T+6
    a(f"v_mul_u32_u24 v{OV}, 2560, v{T+3}")
    a(f"s_lshl_b32 s34, s{S_S}, 6")
    a(f"v_add_u32 v{OV}, v{OV}, v{T}")
    a(f"v_add_u32 v{OV}, s34, v{OV}")
    a(f"v_lshlrev_b32 v{OV}, 2, v{OV}")
    a(f"s_lshl_b32 s34, s{S_C}, 7")
    a(f"s_lshl_b32 s35, s{S_WM}, 6")
    a(f"s_add_u32 s34, s34, s35")
    a(f"s_mul_i32 s{S_T2}, s34, 2560")
    for m in range(2):
        for q in range(4):
            a(f"v_xor_b32 v{T+4}, {4*m+q}, v{T+1}")
            a(f"v_lshl_add_u32 v{240+4*m+q}, v{T+4}, 4, v{T+2}")
    a(f"s_barrier")
    stamp(a, 13)
    AV = 96
    for m in range(2):
        for q in range(4):
            r = AV + 2*(4*m+q)
            a(f"ds_read_b64 v[{r}:{r+1}], v{240+4*m+q}")
    a(f"s_waitcnt lgkmcnt(0)")
    W = 180
    ldsout = opts.get("ldsout", True)
    if ldsout:
        a(f"s_lshl_b32 s34, s{S_WAVE}, 13")
        a(f"s_add_u32 s34, s34, 65536")
        a(f"s_mov_b32 m0, s34")
        a(f"v_lshlrev_b32 v190, 4, v{V_LANE}")
        a(f"v_add_u32 v190, s34, v190")
        a(f"v_lshrrev_b32 v192, 4, v{V_LANE}")
        a(f"v_bfe_u32 v193, v{V_LANE}, 3, 1")
        a(f"v_lshl_add_u32 v192, v193, 2, v192")
        a(f"v_mul_u32_u24 v192, 2560, v192")
        a(f"v_and_b32 v193, 7, v{V_LANE}")
        a(f"v_lshl_add_u32 v192, v193, 4, v192")
        a(f"s_lshl_b32 s34, s{S_S}, 8")
        a(f"s_lshl_b32 s35, s{S_WN}, 7")
        a(f"s_add_u32 s34, s34, s35")
        a(f"v_add_u32 v191, s34, v192")
    for m in range(2):
        for q in range(4):
            qi = 4*m+q
            gb = GV + 8*qi
            for h in range(2):
                av = AV + 2*qi + h
                a0 = G2_ACC + 16*m + 4*q + 2*h
                w = W + 2*h
                a(f"v_lshlrev_b32 v{w}, 16, v{av}")
                a(f"v_and_b32 v{w+1}, 0xffff0000, v{av}")
                a(f"v_mul_f32 v{w}, v{w}, v{gb+4*h}")
                a(f"v_mul_f32 v{w+1}, v{w+1}, v{gb+4*h+2}")
                a(f"v_cvt_pk_bf16_f32 v{w}, v{w}, v{w+1}")
                a(f"v_and_b32 v{w+1}, 0xffff0000, v{w}")
                a(f"v_lshlrev_b32 v{w}, 16, v{w}")
                a(f"v_fma_f32 v{a0}, v{gb+4*h+1}, v{a0}, v{w}")
                a(f"v_fma_f32 v{a0+1}, v{gb+4*h+3}, v{a0+1}, v{w+1}")
                for e in range(2):
                    row = 32*m + 8*q + 2*h + e
                    if ldsout:
                        a(f"ds_write_addtid_b32 v{a0+e} offset:{(4*qi + 2*h + e)*256}")
                    else:
                        a(f"s_add_u32 s35, s{S_T2}, {row*2560}")
                        a(f"buffer_store_dword v{a0+e}, v{OV}, s[{SRD_C}:{SRD_C+3}], s35 offen {opts.get('ost', '')}")
            if ldsout and qi >= 1:
                j = qi - 1
                a(f"ds_read_b128 v[{112+4*j}:{115+4*j}], v190 offset:{j*1024}")
            if ldsout and qi >= 2:
                j = qi - 2
                a(f"s_waitcnt lgkmcnt(5)")
                a(f"s_add_u32 s35, s{S_T2}, {(32*(j >> 2) + 8*(j & 3))*2560}")
                a(f"buffer_store_dwordx4 v[{112+4*j}:{115+4*j}], v191, s[{SRD_C}:{SRD_C+3}], s35 offen {opts.get('ost', '')}")
    if ldsout:
        a(f"ds_read_b128 v[{112+28}:{115+28}], v190 offset:{7*1024}")
        for j in (6, 7):
            a(f"s_waitcnt lgkmcnt({7-j})")
            a(f"s_add_u32 s35, s{S_T2}, {(32*(j >> 2) + 8*(j & 3))*2560}")
            a(f"buffer_store_dwordx4 v[{112+4*j}:{115+4*j}], v191, s[{SRD_C}:{SRD_C+3}], s35 offen {opts.get('ost', '')}")
    stamp(a, 15)
    if PROF["on"]:
        a("s_waitcnt vmcnt(0)")
        stamp(a, 16)
    prof_end(a, opts.get("profwave", 0))

def gen_gemm(a, END, opts):
    a.c("================= GEMM role v2 =================")
    if opts.get("map45", True):
        a(f"s_mul_i32 s34, s31, 52")
        a(f"s_lshr_b32 s34, s34, 8")
        a(f"s_mul_i32 s35, s34, 5")
        a(f"s_sub_u32 s35, s31, s35")
        a(f"s_lshr_b32 s93, s30, 1")
        a(f"s_and_b32 s94, s30, 1")
        a(f"s_lshl_b32 s{S_C}, s93, 2")
        a(f"s_add_u32 s{S_C}, s{S_C}, s34")
        a(f"s_mul_i32 s{S_S}, s94, 5")
        a(f"s_add_u32 s{S_S}, s{S_S}, s35")
        a(f"s_lshl_b32 s35, s35, 1")
        a(f"s_add_u32 s35, s35, s94")
        a(f"s_add_u32 s35, s35, s93")
        a(f"s_mul_i32 s34, s34, 5")
        a(f"s_lshr_b32 s34, s34, 1")
        a(f"s_add_u32 s93, s35, s34")
        a(f"s_cmp_ge_u32 s93, 10")
        a(f"s_cselect_b32 s34, 10, 0")
        a(f"s_sub_u32 s93, s93, s34")
    else:
        a(f"s_mov_b32 s93, s30")
        a(f"s_cmp_ge_u32 s31, 10")
        a(f"s_cselect_b32 s34, 1, 0")
        a(f"s_cselect_b32 s35, 10, 0")
        a(f"s_lshl_b32 s30, s30, 1")
        a(f"s_add_u32 s{S_C}, s30, s34")
        a(f"s_sub_u32 s{S_S}, s31, s35")
        a(f"s_mul_i32 s34, s34, 5")
        a(f"s_add_u32 s93, s93, s34")
        a(f"s_add_u32 s93, s93, s{S_S}")
        for _ in range(2):
            a(f"s_cmp_ge_u32 s93, 10")
            a(f"s_cselect_b32 s34, 10, 0")
            a(f"s_sub_u32 s93, s93, s34")
    a(f"s_cmp_lt_u32 s{S_WAVE}, 4")
    a(f"s_cbranch_scc1 L_COMPUTE")
    gen_loader(a, END, opts)
    a("L_COMPUTE:")
    if EARLY["on"]: common_init(a, True)
    gen_compute(a, END, opts)
```

```python
import sys
from common import *
import g1
def build(opts):
    a = Asm()
    PROF["on"] = bool(opts.get("prof"))
    END = "L_END"
    a("s_load_dwordx16 s[36:51], s[0:1], 0")
    a("s_load_dwordx16 s[52:67], s[0:1], 64")
    a("s_load_dwordx8 s[68:75], s[0:1], 128")
    a(f"s_cmp_ge_u32 s2, 256")
    a(f"s_cbranch_scc1 {END}")
    a("v_lshrrev_b32 v1, 6, v0")
    a("s_nop 0")
    a(f"v_readfirstlane_b32 s{S_WAVE}, v1")
    a("v_and_b32 v1, 63, v0")
    a("s_and_b32 s30, s2, 7")
    a("s_lshr_b32 s31, s2, 3")
    early = opts.get("early", True)
    EARLY["on"] = early
    if not early:
        common_init(a, True)
    a("s_cmp_lt_u32 s31, 20")
    a("s_cbranch_scc1 L_GEMM")
    a("s_cmp_lt_u32 s31, 30")
    a("s_cbranch_scc1 L_CONV")
    a("s_branch L_GATE")
    a("L_GEMM:")
    if opts.get("v1"):
        g1.gen_g1(a, END, opts)
        if opts.get("g2"):
            import g2
            g2.gen_g2(a, END, opts)
        else:
            prof_end(a)
    else:
        import gemm2
        gemm2.gen_gemm(a, END, opts)
    a(f"s_branch {END}")
    a("L_CONV:")
    if early: common_init(a)
    if opts.get("conv"):
        if opts.get("conv1"):
            import conv
            conv.gen_conv(a, END, opts)
        else:
            import conv2
            conv2.gen_conv(a, END, opts)
    a(f"s_branch {END}")
    a("L_GATE:")
    if early: common_init(a)
    if opts.get("gate"):
        import gate
        gate.gen_gate(a, END, opts)
    a(f"{END}:")
    a("s_endpgm")
    a("L_CODE_END:")
    return wrap(a.text())
if __name__ == "__main__":
    out = sys.argv[1]
    opts = {k.split("=")[0]: (True if "=" not in k else eval(k.split("=")[1])) for k in sys.argv[2:]}
    open(out, "w").write(build(opts))
    print("wrote", out)
```

```python
from common import *
from g1 import (S_C, S_S, S_WM, S_WN, S_SX, S_SB, S_KC, S_T0, S_T1, S_M0X, S_CNT, S_MISM, S_T2, S_T3, S_EXEC,
                V_LANE, V_VOFF, V_AA, V_BA, V_FR, V_ACC, V_ACC2, V_LR, V_LI, V_C2, V_L32, V_L128, V_ER, V_EI, V_HR, V_HI,
                V_NON, V_T, V_ZERO, V_L16, V_EOFF, acc, acc2, cmul, cfma, g1_reads, g1_mfmas, interleave)
from g2 import poll_flags, poll_pipe

HSLOT = 17408
NHS = 6
CBASE = NHS * HSLOT
NCS = 5
NREG = 9
L_EX = CBASE + NCS*8192
L_G = L_EX + 2048
L_CNT = L_G + 1024
CNT_EX, CNT_H, CNT_X, CNT_F, CNT_E, CNT_C, CNT_R, CNT_HX0, CNT_HX1, CNT_P = [L_CNT + 4*i for i in range(10)]
L_HX = L_CNT + 64
L_CST = 0
L_XT = NREG * 8192
L_AT = 2 * HSLOT
V_CREG = 96
S_LW = 83
S_DONE = 90
S_KY, S_KB = 98, 99
S_FAST = 100
V_XC = 222

def lds_spin(a, vaddr, vtmp, target, END, sleep=False):
    lp = a.label("SPIN"); ok = a.label("SPOK")
    a(f"s_mov_b32 s{S_CNT}, 2000000")
    a(f"{lp}:")
    a(f"ds_read_b32 v{vtmp}, v{vaddr}")
    a(f"s_waitcnt lgkmcnt(0)")
    a(f"v_readfirstlane_b32 s{S_T3}, v{vtmp}")
    a(f"s_nop 0")
    a(f"s_cmp_ge_u32 s{S_T3}, {target}")
    a(f"s_cbranch_scc1 {ok}")
    a(f"s_sleep 1")
    a(f"s_sub_u32 s{S_CNT}, s{S_CNT}, 1")
    a(f"s_cbranch_scc0 {lp}")
    a(f"{ok}:")

def lds_inc(a, vaddr, vone):
    a(f"s_mov_b64 s[{S_EXEC}:{S_EXEC+1}], exec")
    a(f"s_mov_b64 exec, 1")
    a(f"ds_add_u32 v{vaddr}, v{vone}")
    a(f"s_mov_b64 exec, s[{S_EXEC}:{S_EXEC+1}]")

def ld_g1_dma(a, it):
    slot = it % 4
    a(f"s_lshl_b32 s{S_T0}, s{S_KC}, 7")
    a(f"s_add_u32 s{S_T1}, s{S_T0}, s{S_SB}")
    a(f"s_add_u32 s{S_T0}, s{S_T0}, s{S_SX}")
    for jj in range(4):
        a(f"s_add_u32 m0, s{S_M0X}, {slot*16384 + jj*1024}")
        a(f"s_nop 0")
        a(f"buffer_load_dwordx4 v{V_VOFF+jj}, s[{SRD_X}:{SRD_X+3}], s{S_T0} offen lds")
        a(f"s_add_u32 m0, s{S_M0X}, {65536 + slot*16384 + jj*1024}")
        a(f"s_nop 0")
        a(f"buffer_load_dwordx4 v{V_VOFF+jj}, s[{SRD_A}:{SRD_A+3}], s{S_T1} offen lds")
    a(f"s_add_u32 s{S_KC}, s{S_KC}, 1")
    a(f"s_cmp_eq_u32 s{S_KC}, 10")
    a(f"s_cselect_b32 s{S_KC}, 0, s{S_KC}")

S_HB, S_CB, S_SP, S_SPC = 76, 77, 78, 91
S_M0H, S_M0C = 81, 92

def ld_c_chunk(a, ch):
    plane = ch & 1
    dst = L_CST + ch*8192 if ch < NREG else CBASE + ((ch - NREG) % NCS)*8192
    srd = SRD_C if plane else SRD_B
    a(f"s_lshl_b32 s{S_T1}, s{S_SPC}, 7")
    a(f"s_add_u32 s{S_T1}, s{S_T1}, s{S_CB}")
    for jj in range(2):
        a(f"s_add_u32 m0, s{S_M0C}, {dst + jj*1024}")
        a(f"s_nop 0")
        a(f"buffer_load_dwordx4 v{V_VOFF+jj}, s[{srd}:{srd+3}], s{S_T1} offen lds")
    if plane:
        a(f"s_add_u32 s{S_SPC}, s{S_SPC}, 1")
        a(f"s_cmp_eq_u32 s{S_SPC}, 10")
        a(f"s_cselect_b32 s{S_SPC}, 0, s{S_SPC}")

HSC = {"v": "sc1"}
def ld_h_stage(a, it):
    slot = it % NHS
    plane = it & 1
    a(f"s_lshl_b32 s{S_T0}, s{S_SP}, 14")
    a(f"s_add_u32 s{S_T0}, s{S_T0}, s{S_HB}")
    if plane: a(f"s_add_u32 s{S_T0}, s{S_T0}, {10*16384}")
    for jj in range(4):
        a(f"s_add_u32 m0, s{S_M0H}, {slot*HSLOT + jj*64}")
        a(f"s_nop 0")
        a(f"buffer_load_dwordx4 v{V_L16}, s[{SRD_WS}:{SRD_WS+3}], s{S_T0} offen offset:{jj*1024} {HSC['v']} lds")
    if plane:
        a(f"s_add_u32 s{S_SP}, s{S_SP}, 1")
        a(f"s_cmp_eq_u32 s{S_SP}, 10")
        a(f"s_cselect_b32 s{S_SP}, 0, s{S_SP}")

S_AT0, S_AT1 = 95, 101
def a_tile_addr(a, T):
    a(f"v_lshrrev_b32 v{T}, 4, v{V_LANE}")
    a(f"v_and_b32 v{T+1}, 15, v{V_LANE}")
    a(f"s_lshl_b32 s34, s{S_S}, 6")
    a(f"s_lshl_b32 s35, s{S_LW}, 4")
    a(f"s_add_u32 s34, s34, s35")
    a(f"s_lshl_b32 s34, s34, 12")
    a(f"s_lshl_b32 s35, s{S_C}, 8")
    a(f"s_add_u32 s34, s34, s35")
    a(f"s_add_u32 s{S_AT0}, s34, {WS_A}")
    a(f"s_lshl_b32 s{S_AT1}, s{S_LW}, 12")
    a(f"s_add_u32 s{S_AT1}, s{S_AT1}, {L_AT}")
    for jj in range(4):
        a(f"v_add_u32 v{T+2}, {4*jj}, v{T}")
        a(f"v_xor_b32 v{T+2}, v{T+2}, v{T+1}")
        a(f"v_lshlrev_b32 v{T+2}, 4, v{T+2}")
        a(f"v_lshl_add_u32 v{236+jj}, v{T}, 12, v{T+2}")

def ld_a_tile(a, T):
    for jj in range(4):
        a(f"s_add_u32 m0, s{S_AT1}, {jj*1024}")
        a(f"s_add_u32 s35, s{S_AT0}, {jj*4*4096}")
        a(f"buffer_load_dwordx4 v{236+jj}, s[{SRD_WS}:{SRD_WS+3}], s35 offen sc1 lds")

def ld_g_tile(a):
    a(f"s_lshl_b32 s34, s{S_C}, 10")
    a(f"s_add_u32 s34, s34, {WS_G}")
    a(f"s_mov_b32 m0, {L_G}")
    a(f"s_nop 0")
    a(f"buffer_load_dwordx4 v{V_L16}, s[{SRD_WS}:{SRD_WS+3}], s34 offen sc1 lds")

def gen_loader(a, END, opts):
    HSC["v"] = opts.get("hsc", "sc1")
    a.c("---------- loader waves ----------")
    T = V_T
    a(f"s_sub_u32 s{S_LW}, s{S_WAVE}, 4")
    a(f"v_lshrrev_b32 v{T+5}, 3, v{V_LANE}")
    a(f"v_mul_u32_u24 v{T+5}, 1280, v{T+5}")
    a(f"v_and_b32 v{T+6}, 7, v{V_LANE}")
    a(f"v_lshrrev_b32 v{T+7}, 4, v{V_LANE}")
    a(f"v_xor_b32 v{T+6}, v{T+6}, v{T+7}")
    a(f"v_lshl_add_u32 v{V_VOFF}, v{T+6}, 4, v{T+5}")
    a(f"v_xor_b32 v{V_VOFF+1}, 64, v{V_VOFF}")
    a(f"v_add_u32 v{V_VOFF+1}, 10240, v{V_VOFF+1}")
    a(f"v_add_u32 v{V_VOFF+2}, 20480, v{V_VOFF}")
    a(f"v_add_u32 v{V_VOFF+3}, 20480, v{V_VOFF+1}")
    a(f"s_lshl_b32 s34, s{S_C}, 7")
    a(f"s_lshl_b32 s35, s{S_LW}, 5")
    a(f"s_add_u32 s34, s34, s35")
    a(f"s_mul_i32 s{S_SX}, s34, 1280")
    a(f"s_lshl_b32 s34, s{S_S}, 6")
    a(f"s_and_b32 s35, s{S_LW}, 1")
    a(f"s_lshl_b32 s35, s35, 5")
    a(f"s_add_u32 s34, s34, s35")
    a(f"s_mul_i32 s{S_SB}, s34, 1280")
    a(f"s_lshl_b32 s{S_M0X}, s{S_LW}, 12")
    a(f"s_mov_b32 s{S_KC}, s93")
    if EARLY["on"]: common_init(a)
    a(f"s_cmp_ge_u32 s{S_LW}, 2")
    a(f"s_cselect_b32 s{SRD_A}, s{P_BIM}, s{P_BRE}")
    a(f"s_cselect_b32 s{SRD_A+1}, s{P_BIM+1}, s{P_BRE+1}")
    a(f"s_and_b32 s{SRD_A+1}, s{SRD_A+1}, 0xffff")
    a(f"s_mov_b32 s{SRD_A+2}, 819200")
    a(f"s_mov_b32 s{SRD_A+3}, 0x00020000")
    for it in range(2): ld_g1_dma(a, it)
    stamp(a, 1)
    a(f"v_mov_b32 v{V_ZERO}, 0")
    a(f"v_lshlrev_b32 v{V_L16}, 4, v{V_LANE}")
    a(f"s_waitcnt vmcnt(8)")
    a(f"s_barrier")
    ld_g1_dma(a, 2)
    for nit in range(1, 10):
        a(f"s_waitcnt vmcnt({0 if nit == 9 else 8})")
        if opts.get("profl"): stamp(a, 9 + nit)
        a(f"s_barrier")
        if nit + 2 < 10: ld_g1_dma(a, nit + 2)
    a(f"s_barrier")
    stamp(a, 2)
    make_srd(a, SRD_B, P_C2RE, 819200)
    make_srd(a, SRD_C, P_C2IM, 819200)
    a(f"buffer_load_dwordx2 v[{V_NON}:{V_NON+1}], v{V_ZERO}, s[{SRD_DBG}:{SRD_DBG+3}], 0 offen sc1")
    if opts.get("pwait", True):
        a(f"v_mov_b32 v{T+4}, {CNT_EX if opts.get('pwex') else CNT_P}")
        lds_spin(a, T+4, T+6, 4, END)
    a(f"v_lshrrev_b32 v{T}, 3, v{V_LANE}")
    a(f"v_mul_u32_u24 v{T}, 1280, v{T}")
    a(f"v_and_b32 v{T+1}, 7, v{V_LANE}")
    a(f"v_lshl_add_u32 v{T}, v{T+1}, 4, v{T}")
    a(f"s_lshl_b32 s35, s{S_S}, 7")
    a(f"s_add_u32 s34, s{S_SX}, s35")
    a(f"s_add_u32 s{S_T2}, s{S_M0X}, {L_XT}")
    for jj in range(4):
        a(f"s_add_u32 m0, s{S_T2}, {jj*1024}")
        a(f"s_add_u32 s35, s34, {jj*10240}")
        a(f"buffer_load_dwordx4 v{T}, s[{SRD_X}:{SRD_X+3}], s35 offen lds")
    if opts.get("cwait", False):
        a(f"v_mov_b32 v{T+4}, {CNT_E}")
        lds_spin(a, T+4, T+6, 4, END, sleep=True)
    a(f"s_lshl_b32 s34, s{S_S}, 6")
    a(f"s_lshl_b32 s35, s{S_LW}, 4")
    a(f"s_add_u32 s34, s34, s35")
    a(f"s_mul_i32 s{S_CB}, s34, 1280")
    a(f"s_mov_b32 s{S_SPC}, {'s%d' % S_S if opts.get('ownfirst') else 's93'}")
    a(f"s_mov_b32 s94, s{S_SPC}")
    a(f"s_lshl_b32 s{S_M0C}, s{S_LW}, 11")
    thr = opts.get("cthr", 2)
    for ch in range(NREG + NCS):
        ld_c_chunk(a, ch)
        if thr: a(f"s_waitcnt vmcnt({thr})")
        if ch == 3:
            if not thr or thr > 8: a(f"s_waitcnt vmcnt(8)")
            a(f"v_mov_b32 v{T+4}, {CNT_X}")
            a(f"v_mov_b32 v{T+5}, 1")
            lds_inc(a, T+4, T+5)
        if opts.get("profc"): stamp(a, 10 + ch)
    a(f"s_waitcnt vmcnt(0)")
    a(f"v_mov_b32 v{T+4}, {CNT_C}")
    a(f"v_mov_b32 v{T+5}, 1")
    lds_inc(a, T+4, T+5)
    if opts.get("touchc", True):
        a(f"v_lshrrev_b32 v{T+6}, 2, v{V_LANE}")
        a(f"v_mul_u32_u24 v{T+6}, 1280, v{T+6}")
        a(f"v_and_b32 v{T+7}, 3, v{V_LANE}")
        a(f"v_lshl_add_u32 v{T+6}, v{T+7}, 6, v{T+6}")
        a(f"s_mov_b32 s{S_T2}, s{S_SPC}")
        for k in range(2):
            for srd in (SRD_B, SRD_C):
                a(f"s_lshl_b32 s{S_T1}, s{S_T2}, 7")
                a(f"s_add_u32 s{S_T1}, s{S_T1}, s{S_CB}")
                a(f"buffer_load_dword v{T+8}, v{T+6}, s[{srd}:{srd+3}], s{S_T1} offen")
                if thr: a(f"s_waitcnt vmcnt(1)")
            a(f"s_add_u32 s{S_T2}, s{S_T2}, 2")
            a(f"s_cmp_ge_u32 s{S_T2}, 10")
            a(f"s_cselect_b32 s34, 10, 0")
            a(f"s_sub_u32 s{S_T2}, s{S_T2}, s34")
    stamp(a, 3)
    lp = a.label("LNP"); ok = a.label("LNOK")
    a(f"s_mov_b32 s{S_CNT}, 100000")
    a(f"s_waitcnt vmcnt(0)")
    a(f"{lp}:")
    a(f"v_readfirstlane_b32 s{S_NONCE}, v{V_NON}")
    a(f"v_readfirstlane_b32 s{S_NONCE+1}, v{V_NON+1}")
    a(f"s_nop 0")
    a(f"s_cmp_lg_u32 s{S_NONCE}, 0")
    a(f"s_cbranch_scc1 {ok}")
    poll_timeout(a, S_CNT, END)
    a(f"buffer_load_dwordx2 v[{V_NON}:{V_NON+1}], v{V_ZERO}, s[{SRD_DBG}:{SRD_DBG+3}], 0 offen sc1")
    a(f"s_waitcnt vmcnt(0)")
    a(f"s_branch {lp}")
    a(f"{ok}:")
    stamp(a, 4)
    a(f"s_mul_i32 s34, s{S_C}, {20*16384}")
    a(f"s_lshl_b32 s35, s{S_LW}, 12")
    a(f"s_add_u32 s34, s34, s35")
    a(f"s_add_u32 s{S_HB}, s34, {WS_H}")
    a(f"s_mov_b32 s{S_SP}, s94")
    a(f"s_mul_i32 s{S_M0H}, s{S_LW}, 4352")
    def poll_h():
        labp = a.label("HP1"); labq = a.label("HP2")
        a(f"v_mov_b32 v{T+4}, {CNT_F}")
        a(f"s_cmp_lg_u32 s{S_LW}, 0")
        a(f"s_cbranch_scc1 {labp}")
        a(f"s_lshl_b32 s34, s{S_C}, 7")
        a(f"s_add_u32 s34, s34, {WS_FLAG}")
        if opts.get("ppipe"):
            a(f"v_lshlrev_b32 v{T}, 3, v{V_LANE}")
            poll_pipe(a, T, "s34", "0x3ff", 230)
        else:
            poll_flags(a, END, 34, 10, T, T+2)
        a(f"v_mov_b32 v{T+5}, 1")
        lds_inc(a, T+4, T+5)
        a(f"s_branch {labq}")
        a(f"{labp}:")
        labg = a.label("GT")
        a(f"s_cmp_lg_u32 s{S_LW}, 1")
        a(f"s_cbranch_scc1 {labg}")
        a(f"s_lshl_b32 s34, s{S_C}, 7")
        a(f"s_add_u32 s34, s34, {WS_FLAG + 80}")
        poll_flags(a, END, 34, 1, T, T+2)
        ld_g_tile(a)
        a(f"{labg}:")
        a(f"v_mov_b32 v{T+4}, {CNT_F}")
        lds_spin(a, T+4, T+6, 1, END)
        a(f"{labq}:")
    PF = NHS - 2
    FL = T + 10
    own = opts.get("ownfirst")
    if own:
        a(f"v_mov_b32 v{T+4}, {CNT_R}")
        lds_spin(a, T+4, T+6, 4, END)
        stamp(a, 8)
        ld_h_stage(a, 0); ld_h_stage(a, 1)
        a(f"s_waitcnt vmcnt(4)")
        a(f"s_barrier")
        stamp(a, 6)
        a(f"s_waitcnt vmcnt(0)")
        a(f"s_barrier")
        poll_h()
        stamp(a, 5)
        for it in range(2, 6): ld_h_stage(a, it)
        a(f"s_mov_b32 s{S_DONE}, 0")
        q = [("h", k, 4) for k in range(2, 6)]
        first = 2
    else:
        poll_h()
        stamp(a, 5)
        a(f"v_mov_b32 v{T+4}, {CNT_R}")
        lds_spin(a, T+4, T+6, 4, END)
        stamp(a, 8)
        for it in range(PF): ld_h_stage(a, it)
        stamp(a, 9)
        a(f"s_waitcnt vmcnt({4*(PF-1)})")
        a(f"s_barrier")
        stamp(a, 6)
        a(f"s_mov_b32 s{S_DONE}, 0")
        q = [("h", k, 4) for k in range(1, PF)]
        ld_h_stage(a, PF); q.append(("h", PF, 4))
        first = 1
    for nit in range(first, 20):
        idx = max(i for i, e in enumerate(q) if (e[0] == "h" and e[1] == nit) or (e[0] == "c" and e[1] == nit))
        rem = sum(e[2] for e in q[idx+1:])
        a(f"s_waitcnt vmcnt({min(rem, 63)})")
        if opts.get("profl") and nit <= 12: stamp(a, 19 + nit)
        if opts.get("profl2") and nit >= 8: stamp(a, 2 + nit)
        q = q[idx+1:]
        a(f"s_barrier")
        ch = nit - 2 + NCS
        if ch >= NREG + NCS and ch < 20:
            ld_c_chunk(a, ch); q.append(("c", ch, 2))
        if nit + PF < 20:
            ld_h_stage(a, nit + PF); q.append(("h", nit + PF, 4))
        if nit == 12:
            a(f"v_lshlrev_b32 v{T}, 3, v{V_LANE}")
            a(f"s_lshl_b32 s34, s{S_S}, 7")
            a(f"s_add_u32 s34, s34, {WS_AFLG}")
            a(f"v_add_u32 v{T+14}, s34, v{T}")
            a_tile_addr(a, T)
        if nit == opts.get("achk", 15):
            a(f"s_mov_b64 s[{S_EXEC}:{S_EXEC+1}], exec")
            a(f"s_mov_b64 exec, 0xff")
            a(f"buffer_load_dwordx2 v[{FL}:{FL+1}], v{T+14}, s[{SRD_WS}:{SRD_WS+3}], 0 offen sc1")
            a(f"s_mov_b64 exec, s[{S_EXEC}:{S_EXEC+1}]")
            q.append(("f", 0, 1))
        if nit == 18:
            if any(e[0] == "f" for e in q):
                idf = max(i for i, e in enumerate(q) if e[0] == "f")
                a(f"s_waitcnt vmcnt({sum(e[2] for e in q[idf+1:])})")
                q = q[idf+1:]
            lab = a.label("ANR")
            a(f"s_mov_b64 s[{S_EXEC}:{S_EXEC+1}], exec")
            a(f"s_mov_b64 exec, 0xff")
            a(f"v_cmp_ne_u64 vcc, s[{S_NONCE}:{S_NONCE+1}], v[{FL}:{FL+1}]")
            a(f"s_mov_b64 exec, s[{S_EXEC}:{S_EXEC+1}]")
            a(f"s_cmp_lg_u64 vcc, 0")
            a(f"s_cbranch_scc1 {lab}")
            ld_a_tile(a, T)
            a(f"s_mov_b32 s{S_DONE}, 1")
            lab2 = a.label("ANR2")
            a(f"s_branch {lab2}")
            a(f"{lab}:")
            for _ in range(4):
                a(f"buffer_load_dword v{T+8}, v{V_ZERO}, s[{SRD_X}:{SRD_X+3}], 0 offen")
            a(f"{lab2}:")
            q.append(("a", 0, 4))
    lab = a.label("ADONE")
    a(f"s_cmp_eq_u32 s{S_DONE}, 1")
    a(f"s_cbranch_scc1 {lab}")
    if opts.get("ppipe"):
        poll_pipe(a, T+14, "0", "0xff", 230)
    else:
        lp = a.label("AGP"); ld = a.label("AGD")
        a(f"s_mov_b32 s{S_CNT}, 100000")
        a(f"s_mov_b64 s[{S_EXEC}:{S_EXEC+1}], exec")
        a(f"s_mov_b64 exec, 0xff")
        a(f"{lp}:")
        a(f"buffer_load_dwordx2 v[{FL}:{FL+1}], v{T+14}, s[{SRD_WS}:{SRD_WS+3}], 0 offen sc1")
        a(f"s_waitcnt vmcnt(0)")
        a(f"v_cmp_ne_u64 vcc, s[{S_NONCE}:{S_NONCE+1}], v[{FL}:{FL+1}]")
        a(f"s_cmp_eq_u64 vcc, 0")
        a(f"s_cbranch_scc1 {ld}")
        a(f"s_sleep 1")
        a(f"s_sub_u32 s{S_CNT}, s{S_CNT}, 1")
        a(f"s_cbranch_scc0 {lp}")
        a(f"{ld}:")
        a(f"s_mov_b64 exec, s[{S_EXEC}:{S_EXEC+1}]")
    ld_a_tile(a, T)
    a(f"{lab}:")
    a(f"s_waitcnt vmcnt(0)")
    stamp(a, 7)
    a(f"s_barrier")
    prof_end(a, 4, 32768)
    a(f"s_branch {END}")

G2_FR = 16
G2_ACC = 64
V_HA = 6
V_CB = 10
V_HA2 = 7

G2_NS = 4
def g2_reads(it, ks):
    slot = it % NHS
    st = G2_FR + 12 * ((4*it + ks) % G2_NS)
    base = slot*HSLOT + (ks >> 1)*4352 + (ks & 1)*256
    out = []
    for m in range(2):
        for half in range(2):
            off = base + m*512 + half*64
            reg = V_HA if off < 65536 else V_HA2
            if off >= 65536: off -= 3*HSLOT
            out.append(f"ds_read_b64_tr_b16 v[{st+4*m+2*half}:{st+4*m+2*half+1}], v{reg} offset:{off}")
    if it >= NREG:
        cs = (it - NREG) % NCS
        out.append(f"ds_read_b128 v[{st+8}:{st+11}], v{V_CB+ks} offset:{cs*8192}")
    return out

def g2_mfmas(it, ks):
    st = G2_FR + 12 * ((4*it + ks) % G2_NS)
    out = []
    b = (V_CREG + 16*it + 4*ks) if it < NREG else st + 8
    for m in range(2):
        d = G2_ACC + 16*m
        out.append(f"v_mfma_f32_32x32x16_bf16 v[{d}:{d+15}], v[{st+4*m}:{st+4*m+3}], v[{b}:{b+3}], v[{d}:{d+15}]")
    return out

def gen_compute(a, END, opts):
    a.c("---------- compute waves ----------")
    T = V_T
    a(f"s_lshr_b32 s{S_WM}, s{S_WAVE}, 1")
    a(f"s_and_b32 s{S_WN}, s{S_WAVE}, 1")
    lab = a.label("NOINIT")
    a(f"s_cmp_lg_u32 s{S_WAVE}, 0")
    a(f"s_cbranch_scc1 {lab}")
    a(f"v_lshlrev_b32 v{T}, 2, v{V_LANE}")
    a(f"v_add_u32 v{T}, {L_CNT}, v{T}")
    a(f"v_mov_b32 v{T+1}, 0")
    a(f"s_mov_b64 exec, 0xffff")
    a(f"ds_write_b32 v{T}, v{T+1}")
    a(f"s_mov_b64 exec, -1")
    a(f"{lab}:")
    loc = opts.get("local")
    kofl = opts.get("kofl")
    if kofl:
        import conv2
        a(f"s_mul_i32 s34, s{S_C}, 10")
        a(f"s_add_u32 s34, s34, s{S_S}")
        a(f"s_lshl_b32 s34, s34, 1")
        a(f"s_add_u32 s{S_KY}, s34, s{S_WN}")
        a(f"s_lshr_b32 s34, s{S_KY}, 2")
        a(f"s_lshl_b32 s34, s34, 3")
        a(f"s_and_b32 s35, s{S_KY}, 3")
        a(f"s_add_u32 s34, s34, s35")
        a(f"s_add_u32 s34, s34, 4")
        a(f"v_lshlrev_b32 v2, 2, v{V_LANE}")
        a(f"s_lshl_b32 s35, s34, 8")
        for k, P in enumerate([P_LOGA, P_AIM, P_CRE, P_CIM]):
            make_srd(a, SRD_A, P, 163840)
            a(f"buffer_load_dword v{conv2.V_PRM+k}, v2, s[{SRD_A}:{SRD_A+3}], s35 offen")
        a(f"s_lshl_b32 s35, s34, 1")
        a(f"v_mov_b32 v3, 0")
        make_srd(a, SRD_A, P_LOGDT, 1280)
        a(f"buffer_load_ushort v{conv2.V_PRM+4}, v3, s[{SRD_A}:{SRD_A+3}], s35 offen")
        a(f"buffer_load_dwordx2 v[{V_NON}:{V_NON+1}], v3, s[{SRD_DBG}:{SRD_DBG+3}], 0 offen sc1")
    a(f"v_and_b32 v{T}, 31, v{V_LANE}")
    a(f"s_lshl_b32 s34, s{S_S}, 6")
    a(f"s_lshl_b32 s35, s{S_WN}, 5")
    a(f"s_add_u32 s34, s34, s35")
    a(f"v_add_u32 v{T+1}, s34, v{T}")
    a(f"v_lshlrev_b32 v{V_EOFF}, 4, v{T+1}")
    a(f"v_lshlrev_b32 v{T+1}, 1, v{T+1}")
    make_srd(a, SRD_B, P_LRE, 1280)
    a(f"buffer_load_ushort v{T+2}, v{T+1}, s[{SRD_B}:{SRD_B+3}], 0 offen")
    make_srd(a, SRD_A, P_LIM, 1280)
    a(f"buffer_load_ushort v{T+3}, v{T+1}, s[{SRD_A}:{SRD_A+3}], 0 offen")
    make_srd(a, 92, P_LOGDTB, 1280)
    a(f"buffer_load_ushort v{T+4}, v{T+1}, s[92:95], 0 offen")
    V_DSB = 227
    make_srd(a, SRD_B, P_DSKB, 1280)
    a(f"buffer_load_ushort v{V_DSB}, v{T+1}, s[{SRD_B}:{SRD_B+3}], 0 offen")
    make_srd(a, SRD_C, P_OUT, 5242880)
    a(f"v_and_b32 v{T+5}, 31, v{V_LANE}")
    a(f"v_lshrrev_b32 v{T+6}, 5, v{V_LANE}")
    a(f"v_bfe_u32 v{T+7}, v{T+5}, 2, 1")
    a(f"v_lshlrev_b32 v{T+7}, 5, v{T+7}")
    a(f"v_lshrrev_b32 v{T+8}, 3, v{T+5}")
    a(f"v_lshl_add_u32 v{T+7}, v{T+8}, 2, v{T+7}")
    a(f"v_and_b32 v{T+8}, 3, v{T+5}")
    a(f"v_add_u32 v{T+7}, v{T+7}, v{T+8}")
    a(f"s_lshl_b32 s34, s{S_WM}, 6")
    a(f"v_add_u32 v{T+7}, s34, v{T+7}")
    a(f"v_bfe_u32 v{T+8}, v{T+7}, 1, 3")
    a(f"v_xor_b32 v{T+8}, v{T+8}, v{T+6}")
    a(f"v_lshlrev_b32 v{T+8}, 4, v{T+8}")
    a(f"v_lshl_add_u32 v{V_AA}, v{T+7}, 7, v{T+8}")
    for ks in range(1, 4): a(f"v_xor_b32 v{V_AA+ks}, {32*ks}, v{V_AA}")
    a(f"s_lshl_b32 s34, s{S_WN}, 5")
    a(f"v_add_u32 v{T+7}, s34, v{T+5}")
    a(f"v_bfe_u32 v{T+8}, v{T+7}, 1, 3")
    a(f"v_xor_b32 v{T+8}, v{T+8}, v{T+6}")
    a(f"v_lshlrev_b32 v{T+8}, 4, v{T+8}")
    a(f"v_lshl_add_u32 v{V_BA}, v{T+7}, 7, v{T+8}")
    a(f"v_mov_b32 v{221}, v{V_BA}")
    a(f"v_add_u32 v{V_BA}, 0x10000, v{V_BA}")
    for ks in range(1, 4): a(f"v_xor_b32 v{V_BA+ks}, {32*ks}, v{V_BA}")
    a(f"v_mov_b32 v{V_ZERO}, 0")
    a(f"v_lshlrev_b32 v{V_L16}, 4, v{V_LANE}")
    stamp(a, 1)
    if kofl:
        a(f"s_and_b32 s34, s{S_WAVE}, 1")
        a(f"s_mul_i32 s34, s34, 15232")
        a(f"s_lshr_b32 s35, s{S_WAVE}, 1")
        a(f"s_lshl_b32 s35, s35, 16")
        a(f"s_add_u32 s34, s34, s35")
        a(f"s_add_u32 s{S_KB}, s34, 32768")
        conv2.kgen_addr_setup(a, f"s{S_KB}")
        a(f"s_waitcnt vmcnt(5)")
        TK = conv2.V_T_
        a(f"v_lshlrev_b32 v{conv2.V_DT}, 16, v{conv2.V_PRM+4}")
        exp_accurate(a, conv2.V_DT, conv2.V_DT, TK, TK+1, TK+2)
        round_bf16(a, conv2.V_DT, conv2.V_DT)
        conv2.kgen_pass(a, f"s{S_WM}")
        a("s_nop 7\ns_nop 7\ns_nop 1")
        a(f"s_lshl_b32 s34, s{S_KY}, 1")
        a(f"s_add_u32 s34, s34, s{S_WM}")
        a(f"s_lshl_b32 s34, s34, 12")
        a(f"s_add_u32 s34, s34, {WS_KP}")
        for j in range(4):
            a(f"buffer_store_dwordx4 v[{64+4*j}:{67+4*j}], v{V_L16}, s[{SRD_WS}:{SRD_WS+3}], s34 offen offset:{j*1024} sc1")
        stamp(a, 14)
        a(f"s_waitcnt vmcnt(4)")
    else:
        a(f"s_waitcnt vmcnt(0)")
    a(f"v_lshlrev_b32 v{V_DSB}, 16, v{V_DSB}")
    a(f"v_lshlrev_b32 v{T+2}, 16, v{T+2}")
    a(f"v_lshlrev_b32 v{T+3}, 16, v{T+3}")
    a(f"v_lshlrev_b32 v{T+4}, 16, v{T+4}")
    exp_accurate(a, T+4, T+4, T+5, T+6, T+7)
    round_bf16(a, T+4, T+4)
    a(f"v_mul_f32 v{T+5}, v{T+4}, v{T+2}")
    a(f"v_mul_f32 v{T+6}, v{T+4}, v{T+3}")
    exp_accurate(a, T+5, T+5, T+7, T+8, T+9)
    a(f"v_mul_f32 v{T+6}, {fhex(INV2PI)}, v{T+6}")
    a(f"v_fract_f32 v{T+6}, v{T+6}")
    a(f"v_cos_f32 v{T+7}, v{T+6}")
    a(f"v_sin_f32 v{T+8}, v{T+6}")
    a(f"s_nop 0")
    a(f"v_mul_f32 v{V_LR}, v{T+5}, v{T+7}")
    a(f"v_mul_f32 v{V_LI}, v{T+5}, v{T+8}")
    a(f"v_add_f32 v{T+5}, -1.0, v{V_LR}")
    a(f"v_mul_f32 v{T+6}, v{T+2}, v{T+2}")
    a(f"v_fma_f32 v{T+6}, v{T+3}, v{T+3}, v{T+6}")
    a(f"v_rcp_f32 v{T+7}, v{T+6}")
    a(f"v_mul_f32 v{T+8}, v{T+5}, v{T+2}")
    a(f"v_fma_f32 v{T+9}, -v{T+6}, v{T+7}, 2.0")
    a(f"v_mul_f32 v{T+7}, v{T+7}, v{T+9}")
    a(f"v_fma_f32 v{T+8}, v{V_LI}, v{T+3}, v{T+8}")
    a(f"v_mul_f32 v{T+9}, v{V_LI}, v{T+2}")
    a(f"v_fma_f32 v{T+9}, -v{T+5}, v{T+3}, v{T+9}")
    a(f"v_add_f32 v{T+7}, v{T+7}, v{T+7}")
    a(f"v_mul_f32 v{V_C2}, v{T+8}, v{T+7}")
    a(f"v_mul_f32 v{V_C2+1}, v{T+9}, v{T+7}")
    a(f"v_mov_b32 v{V_L32}, v{V_LR}")
    a(f"v_mov_b32 v{V_L32+1}, v{V_LI}")
    for i in range(5): cmul(a, V_L32, V_L32+1, V_L32, V_L32+1, V_L32, V_L32+1, T+5)
    cmul(a, V_L128, V_L128+1, V_L32, V_L32+1, V_L32, V_L32+1, T+5)
    cmul(a, V_L128, V_L128+1, V_L128, V_L128+1, V_L128, V_L128+1, T+5)
    if loc:
        a(f"s_getreg_b32 s{S_FAST}, hwreg(HW_REG_XCC_ID)")
        a(f"s_and_b32 s{S_FAST}, s{S_FAST}, 0x7f")
        a(f"s_add_u32 s{S_FAST}, s{S_FAST}, 1")
        labx = a.label("XPUB")
        a(f"s_cmp_lg_u32 s{S_WAVE}, 0")
        a(f"s_cbranch_scc1 {labx}")
        a(f"s_mul_i32 s34, s{S_C}, 10")
        a(f"s_add_u32 s34, s34, s{S_S}")
        a(f"s_add_u32 s34, s34, 16")
        a(f"v_mov_b32 v{T}, s{S_FAST}")
        a(f"v_mov_b32 v{T+1}, 0")
        a(f"s_mov_b64 exec, 1")
        a(f"buffer_store_byte v{T}, v{T+1}, s[{SRD_DBG}:{SRD_DBG+3}], s34 offen sc1")
        a(f"s_mov_b64 exec, -1")
        a(f"{labx}:")
    if opts.get("tlbw"):
        a(f"v_lshlrev_b32 v{T}, 20, v{V_LANE}")
        a(f"s_mov_b64 exec, 0xfff")
        a(f"buffer_load_dword v{T+1}, v{T}, s[{SRD_WS}:{SRD_WS+3}], 0 offen")
        a(f"s_mov_b64 exec, 7")
        a(f"v_lshlrev_b32 v{T}, 21, v{V_LANE}")
        a(f"buffer_load_dword v{T+2}, v{T}, s[{SRD_C}:{SRD_C+3}], 0 offen")
        a(f"s_mov_b64 exec, -1")
    if opts.get("tlbw2"):
        a(f"v_lshlrev_b32 v{T}, 16, v{V_LANE}")
        a(f"s_mul_i32 s34, s{S_C}, 327680")
        a(f"s_add_u32 s35, s34, {WS_H}")
        a(f"s_mov_b64 exec, 0x3f")
        a(f"buffer_load_dword v{T+1}, v{T}, s[{SRD_WS}:{SRD_WS+3}], 0 offen")
        a(f"buffer_load_dword v{T+2}, v{T}, s[{SRD_WS}:{SRD_WS+3}], s35 offen")
        a(f"buffer_load_dword v{T+3}, v{T}, s[{SRD_C}:{SRD_C+3}], s34 offen")
        a(f"s_lshl_b32 s35, s{S_S}, 18")
        a(f"s_add_u32 s35, s35, {WS_A}")
        a(f"buffer_load_dword v{T+4}, v{T}, s[{SRD_WS}:{SRD_WS+3}], s35 offen")
        make_srd(a, 92, P_C2RE, 819200)
        a(f"s_mul_i32 s35, s{S_S}, 81920")
        a(f"s_mov_b64 exec, 3")
        a(f"buffer_load_dword v{T+5}, v{T}, s[92:95], s35 offen")
        make_srd(a, 92, P_C2IM, 819200)
        a(f"buffer_load_dword v{T+6}, v{T}, s[92:95], s35 offen")
        a(f"s_mov_b64 exec, -1")
    a(f"s_waitcnt lgkmcnt(0)")
    stamp(a, 2)
    a(f"s_barrier")
    stamp(a, 3)
    cstamp(a, 20)
    for ins in g1_reads(0, 0): a(ins)
    for ins in g1_reads(0, 1): a(ins)
    NST = 10
    for it in range(NST):
        for ks in range(4):
            gidx = 4*it + ks
            last = (gidx == 4*NST - 1)
            if kofl and it == opts.get("kflst", 1) and ks == 0:
                lk = a.label("KN"); lk2 = a.label("KN2")
                a(f"s_mov_b32 s{S_CNT}, 100000")
                a(f"s_waitcnt vmcnt(0)")
                a(f"{lk}:")
                a(f"v_readfirstlane_b32 s{S_NONCE}, v{V_NON}")
                a(f"v_readfirstlane_b32 s{S_NONCE+1}, v{V_NON+1}")
                a(f"s_nop 0")
                a(f"s_cmp_lg_u32 s{S_NONCE}, 0")
                a(f"s_cbranch_scc1 {lk2}")
                poll_timeout(a, S_CNT, END)
                a(f"buffer_load_dwordx2 v[{V_NON}:{V_NON+1}], v{V_ZERO}, s[{SRD_DBG}:{SRD_DBG+3}], 0 offen sc1")
                a(f"s_waitcnt vmcnt(0)")
                a(f"s_branch {lk}")
                a(f"{lk2}:")
                a(f"s_lshl_b32 s34, s{S_KY}, 1")
                a(f"s_add_u32 s34, s34, s{S_WM}")
                a(f"s_lshl_b32 s34, s34, 3")
                a(f"s_add_u32 s34, s34, {WS_KFLG}")
                a(f"v_mov_b32 v248, s{S_NONCE}")
                a(f"v_mov_b32 v249, s{S_NONCE+1}")
                a(f"s_mov_b64 s[{S_EXEC}:{S_EXEC+1}], exec")
                a(f"s_mov_b64 exec, 1")
                a(f"buffer_store_dwordx2 v[248:249], v{V_ZERO}, s[{SRD_WS}:{SRD_WS+3}], s34 offen sc1")
                a(f"s_mov_b64 exec, s[{S_EXEC}:{S_EXEC+1}]")
            a(f"s_waitcnt lgkmcnt({0 if last else 4})")
            fill = []
            nx = gidx + 2
            if nx < 4*NST:
                nit, nks = nx // 4, nx % 4
                if nks == 0:
                    a(f"s_barrier")
                    if opts.get("profst"): stamp(a, 16 + nit)
                fill += g1_reads(nit, nks)
                if nks == 0 and nit == 5 and not kofl:
                    fill.append(f"buffer_load_dwordx2 v[{V_NON}:{V_NON+1}], v{V_ZERO}, s[{SRD_DBG}:{SRD_DBG+3}], 0 offen sc1")
                if nks == 0 and nit == 6 and loc:
                    fill.append(f"s_mul_i32 s35, s{S_C}, 10")
                    fill.append(f"s_add_u32 s35, s35, 16")
                    fill.append(f"buffer_load_ubyte v{V_XC}, v{V_LANE}, s[{SRD_DBG}:{SRD_DBG+3}], s35 offen sc1")
            if last:
                a(f"s_barrier")
            interleave(a, g1_mfmas(it, ks), fill)
    cstamp(a, 21)
    stamp(a, 4)
    a.c("pass 1")
    a(f"s_nop 7\ns_nop 7")
    first = True
    for m in range(2):
        for r in range(16):
            br, bi = acc(m, 0) + r, acc(m, 1) + r
            if first:
                a(f"v_mov_b32 v{V_ER}, v{br}")
                a(f"v_mov_b32 v{V_EI}, v{bi}")
                first = False
            else:
                src = (V_ER, V_EI) if cur == 0 else (T, T+1)
                dst = (T, T+1) if cur == 0 else (V_ER, V_EI)
                a(f"v_fma_f32 v{dst[0]}, v{V_LR}, v{src[0]}, v{br}")
                a(f"v_fma_f32 v{dst[1]}, v{V_LR}, v{src[1]}, v{bi}")
                a(f"v_fma_f32 v{dst[0]}, -v{V_LI}, v{src[1]}, v{dst[0]}")
                a(f"v_fma_f32 v{dst[1]}, v{V_LI}, v{src[0]}, v{dst[1]}")
                cur ^= 1
                continue
            cur = 0
    if cur == 1:
        a(f"v_mov_b32 v{V_ER}, v{T}")
        a(f"v_mov_b32 v{V_EI}, v{T+1}")
    EX = 240; G = 248; SA = 252
    a(f"v_lshrrev_b32 v{T+2}, 5, v{V_LANE}")
    a(f"s_lshl_b32 s34, s{S_WM}, 1")
    a(f"v_add_u32 v{T+2}, s34, v{T+2}")
    a(f"v_and_b32 v{T+3}, 31, v{V_LANE}")
    a(f"s_lshl_b32 s34, s{S_WN}, 5")
    a(f"v_add_u32 v{T+3}, s34, v{T+3}")
    a(f"v_lshlrev_b32 v{T+3}, 3, v{T+3}")
    a(f"v_add_u32 v{T+3}, {L_EX}, v{T+3}")
    a(f"v_lshl_add_u32 v{T+2}, v{T+2}, 9, v{T+3}")
    a(f"ds_write_b64 v{T+2}, v[{V_ER}:{V_ER+1}]")
    a(f"v_mov_b32 v{T+4}, {CNT_EX}")
    a(f"v_mov_b32 v{T+5}, 1")
    a(f"s_waitcnt lgkmcnt(0)")
    lds_inc(a, T+4, T+5)
    lab_ok = a.label("NOK"); lab_p = a.label("NPOLL")
    a(f"s_mov_b32 s{S_CNT}, 100000")
    a(f"s_waitcnt vmcnt(0)")
    a(f"{lab_p}:")
    a(f"v_readfirstlane_b32 s{S_NONCE}, v{V_NON}")
    a(f"v_readfirstlane_b32 s{S_NONCE+1}, v{V_NON+1}")
    a(f"s_nop 0")
    a(f"s_cmp_lg_u32 s{S_NONCE}, 0")
    a(f"s_cbranch_scc1 {lab_ok}")
    poll_timeout(a, S_CNT, END)
    a(f"buffer_load_dwordx2 v[{V_NON}:{V_NON+1}], v{V_ZERO}, s[{SRD_DBG}:{SRD_DBG+3}], 0 offen sc1")
    a(f"s_waitcnt vmcnt(0)")
    a(f"s_branch {lab_p}")
    a(f"{lab_ok}:")
    if loc:
        a(f"v_cmp_ne_u32 vcc, s{S_FAST}, v{V_XC}")
        a(f"s_and_b64 vcc, vcc, 0x3ff")
        a(f"s_cmp_eq_u64 vcc, 0")
        a(f"s_cselect_b32 s{S_FAST}, 1, 0")
    lds_spin(a, T+4, T+6, 4, END)
    for sg in range(4):
        a(f"ds_read_b64 v[{EX+2*sg}:{EX+2*sg+1}], v{T+3} offset:{sg*512}")
    a(f"s_waitcnt lgkmcnt(0)")
    a(f"v_mov_b32 v{V_HR}, v{EX}")
    a(f"v_mov_b32 v{V_HI}, v{EX+1}")
    for sg in range(1, 4): cfma(a, V_HR, V_HI, V_L32, V_L32+1, EX+2*sg, EX+2*sg+1, T)
    lab_np = a.label("NOPUB")
    a(f"s_cmp_lg_u32 s{S_WM}, 0")
    a(f"s_cbranch_scc1 {lab_np}")
    a(f"v_mov_b32 v{G}, v{V_HR}")
    a(f"v_mov_b32 v{G+1}, v{V_HI}")
    a(f"v_mov_b32 v{G+2}, s{S_NONCE}")
    a(f"v_mov_b32 v{G+3}, s{S_NONCE+1}")
    a(f"s_mul_i32 s34, s{S_C}, 10240")
    a(f"s_add_u32 s34, s34, {WS_E}")
    a(f"s_mov_b64 s[{S_EXEC}:{S_EXEC+1}], exec")
    a(f"s_mov_b32 exec_lo, -1")
    a(f"s_mov_b32 exec_hi, 0")
    a(f"buffer_store_dwordx4 v[{G}:{G+3}], v{V_EOFF}, s[{SRD_WS}:{SRD_WS+3}], s34 offen sc1")
    a(f"s_mov_b64 exec, s[{S_EXEC}:{S_EXEC+1}]")
    a(f"{lab_np}:")
    a(f"v_mov_b32 v{T+4}, {CNT_P}")
    a(f"v_mov_b32 v{T+5}, 1")
    lds_inc(a, T+4, T+5)
    stamp(a, 5)
    def greg(cp): return (V_FR + 4*cp) if cp < 12 else (228 + 4*(cp-12))
    def issue_polls(lab_iss):
        for cp in range(15):
            a(f"s_cmp_le_u32 s{S_C}, {cp}")
            a(f"s_cbranch_scc1 {lab_iss}")
            a(f"s_mov_b32 s34, {WS_E + cp*10240}")
            a(f"buffer_load_dwordx4 v[{greg(cp)}:{greg(cp)+3}], v{V_EOFF}, s[{SRD_WS}:{SRD_WS+3}], s34 offen sc1")
        a(f"{lab_iss}:")
    a.c("scale")
    for m in range(2):
        for r in range(0, 16, 2):
            pr, pi = acc(m,0)+r, acc(m,1)+r
            qr, qi = acc2(m,0)+r, acc2(m,1)+r
            a(f"v_pk_mul_f32 v[{qr}:{qr+1}], v[{pr}:{pr+1}], v[{V_C2}:{V_C2+1}] op_sel:[0,0] op_sel_hi:[1,0]")
            a(f"v_pk_mul_f32 v[{qi}:{qi+1}], v[{pi}:{pi+1}], v[{V_C2}:{V_C2+1}] op_sel:[0,0] op_sel_hi:[1,0] neg_lo:[1,0] neg_hi:[1,0]")
            a(f"v_pk_fma_f32 v[{qr}:{qr+1}], v[{pi}:{pi+1}], v[{V_C2}:{V_C2+1}], v[{qr}:{qr+1}] op_sel:[0,1,0] op_sel_hi:[1,1,1] neg_lo:[1,0,0] neg_hi:[1,0,0]")
            a(f"v_pk_fma_f32 v[{qi}:{qi+1}], v[{pr}:{pr+1}], v[{V_C2}:{V_C2+1}], v[{qi}:{qi+1}] op_sel:[0,1,0] op_sel_hi:[1,1,1] neg_lo:[1,0,0] neg_hi:[1,0,0]")
    stamp(a, 6)
    lab_w0 = a.label("EW0"); lab_wj = a.label("EWJ")
    eall = opts.get("eall", False)
    if not eall:
        a(f"s_cmp_eq_u32 s{S_WM}, 0")
        a(f"s_cbranch_scc1 {lab_w0}")
    a.c("E combine: lane (p, hf) handles d = 2j+1+hf")
    SE = 92
    a(f"s_add_u32 s{SE}, s{P_WS}, {WS_E}")
    a(f"s_addc_u32 s{SE+1}, s{P_WS+1}, 0")
    a(f"s_and_b32 s{SE+1}, s{SE+1}, 0xffff")
    a(f"s_mov_b32 s{SE+2}, {16*10240}")
    a(f"s_mov_b32 s{SE+3}, 0x00020000")
    L256 = T+8
    cmul(a, L256, L256+1, V_L128, V_L128+1, V_L128, V_L128+1, T)
    VO = 228
    a(f"v_lshrrev_b32 v{T+2}, 5, v{V_LANE}")
    a(f"s_sub_u32 s34, s{S_C}, 1")
    a(f"v_sub_u32 v{T+2}, s34, v{T+2}")
    a(f"v_mul_i32_i24 v{T+2}, 10240, v{T+2}")
    a(f"v_add_u32 v{VO}, v{T+2}, v{V_EOFF}")
    for j in range(1, 8):
        a(f"v_subrev_u32 v{VO+j}, {20480*j}, v{VO}")
    GR = V_FR
    lab_poll = a.label("EPOLL"); lab_ok = a.label("EOK")
    a(f"s_mov_b32 s{S_CNT}, 100000")
    a(f"{lab_poll}:")
    for j in range(8):
        a(f"buffer_load_dwordx4 v[{GR+4*j}:{GR+4*j+3}], v{VO+j}, s[{SE}:{SE+3}], 0 offen sc1")
    a(f"s_mov_b64 s[{S_MISM}:{S_MISM+1}], 0")
    for j in range(8):
        a(f"s_waitcnt vmcnt({7-j})")
        a(f"v_cmp_ne_u64 vcc, s[{S_NONCE}:{S_NONCE+1}], v[{GR+4*j+2}:{GR+4*j+3}]")
        a(f"v_cmp_le_i32 s[{S_T2}:{S_T2+1}], 0, v{VO+j}")
        a(f"s_and_b64 vcc, vcc, s[{S_T2}:{S_T2+1}]")
        a(f"s_or_b64 s[{S_MISM}:{S_MISM+1}], s[{S_MISM}:{S_MISM+1}], vcc")
    a(f"s_cmp_eq_u64 s[{S_MISM}:{S_MISM+1}], 0")
    a(f"s_cbranch_scc1 {lab_ok}")
    if opts.get("efull", True):
        a(f"s_sleep {opts.get('esleep', 2)}")
        a(f"s_sub_u32 s{S_CNT}, s{S_CNT}, 1")
        a(f"s_cbranch_scc0 {lab_poll}")
        a(f"s_branch {END}")
    CP = T+12
    a(f"v_readfirstlane_b32 s35, v{V_EOFF}")
    a(f"s_sub_u32 s34, s{S_C}, 1")
    a(f"v_sub_u32 v{CP}, s34, v{V_LANE}")
    a(f"v_mul_i32_i24 v{CP}, 10240, v{CP}")
    a(f"v_add_u32 v{CP}, s35, v{CP}")
    a(f"v_cmp_le_i32 s[{S_T2}:{S_T2+1}], 0, v{CP}")
    a(f"s_and_b64 s[{S_T2}:{S_T2+1}], s[{S_T2}:{S_T2+1}], 0xffff")
    lab_cp = a.label("ECH")
    a(f"{lab_cp}:")
    a(f"s_sleep {opts.get('esleep', 2)}")
    a(f"buffer_load_dwordx4 v[{GR}:{GR+3}], v{CP}, s[{SE}:{SE+3}], 0 offen sc1")
    a(f"s_waitcnt vmcnt(0)")
    a(f"v_cmp_ne_u64 vcc, s[{S_NONCE}:{S_NONCE+1}], v[{GR+2}:{GR+3}]")
    a(f"s_and_b64 vcc, vcc, s[{S_T2}:{S_T2+1}]")
    a(f"s_cmp_eq_u64 vcc, 0")
    a(f"s_cbranch_scc1 {lab_poll}")
    a(f"s_sub_u32 s{S_CNT}, s{S_CNT}, 1")
    a(f"s_cbranch_scc0 {lab_cp}")
    a(f"s_branch {END}")
    a(f"{lab_ok}:")
    a(f"v_mov_b32 v{V_HR}, v{GR+28}")
    a(f"v_mov_b32 v{V_HI}, v{GR+29}")
    cur = (V_HR, V_HI); oth = (T, T+1)
    for j in range(6, -1, -1):
        er, ei = GR+4*j, GR+4*j+1
        a(f"v_fma_f32 v{oth[0]}, v{cur[0]}, v{L256}, v{er}")
        a(f"v_fma_f32 v{oth[1]}, v{cur[1]}, v{L256}, v{ei}")
        a(f"v_fma_f32 v{oth[0]}, -v{cur[1]}, v{L256+1}, v{oth[0]}")
        a(f"v_fma_f32 v{oth[1]}, v{cur[0]}, v{L256+1}, v{oth[1]}")
        cur, oth = oth, cur
    hr, hi = cur
    a(f"v_mov_b32 v{T+2}, v{hr}")
    a(f"v_mov_b32 v{T+3}, v{hi}")
    a(f"s_nop 1")
    a(f"v_permlane32_swap_b32 v{hr}, v{T+2}")
    a(f"v_permlane32_swap_b32 v{hi}, v{T+3}")
    a(f"s_nop 1")
    a(f"v_fma_f32 v{V_HR}, v{T+2}, v{V_L128}, v{hr}")
    a(f"v_fma_f32 v{V_HI}, v{T+3}, v{V_L128}, v{hi}")
    a(f"v_fma_f32 v{V_HR}, -v{T+3}, v{V_L128+1}, v{V_HR}")
    a(f"v_fma_f32 v{V_HI}, v{T+2}, v{V_L128+1}, v{V_HI}")
    if not eall:
        a(f"v_and_b32 v{T+2}, 31, v{V_LANE}")
        a(f"v_lshlrev_b32 v{T+2}, 3, v{T+2}")
        a(f"s_lshl_b32 s34, s{S_WN}, 8")
        a(f"s_add_u32 s34, s34, {L_HX}")
        a(f"v_add_u32 v{T+2}, s34, v{T+2}")
        a(f"ds_write_b64 v{T+2}, v[{V_HR}:{V_HR+1}]")
        a(f"s_lshl_b32 s34, s{S_WN}, 2")
        a(f"s_add_u32 s34, s34, {CNT_HX0}")
        a(f"v_mov_b32 v{T+4}, s34")
        a(f"v_mov_b32 v{T+5}, 1")
        a(f"s_waitcnt lgkmcnt(0)")
        lds_inc(a, T+4, T+5)
        a(f"s_branch {lab_wj}")
        a(f"{lab_w0}:")
        a(f"s_lshl_b32 s34, s{S_WN}, 2")
        a(f"s_add_u32 s34, s34, {CNT_HX0}")
        a(f"v_mov_b32 v{T+4}, s34")
        lds_spin(a, T+4, T+6, 1, END)
        a(f"v_and_b32 v{T+2}, 31, v{V_LANE}")
        a(f"v_lshlrev_b32 v{T+2}, 3, v{T+2}")
        a(f"s_lshl_b32 s34, s{S_WN}, 8")
        a(f"s_add_u32 s34, s34, {L_HX}")
        a(f"v_add_u32 v{T+2}, s34, v{T+2}")
        a(f"ds_read_b64 v[{V_HR}:{V_HR+1}], v{T+2}")
        a(f"s_waitcnt lgkmcnt(0)")
        a(f"{lab_wj}:")
    a(f"v_mov_b32 v{T+4}, {CNT_E}")
    a(f"v_mov_b32 v{T+5}, 1")
    lds_inc(a, T+4, T+5)
    lab_w1 = a.label("WM1"); lab_w2 = a.label("WMD")
    a(f"s_cmp_lg_u32 s{S_WM}, 0")
    a(f"s_cbranch_scc1 {lab_w1}")
    a(f"v_mov_b32 v{SA}, v{V_HR}")
    a(f"v_mov_b32 v{SA+1}, v{V_HI}")
    cfma(a, V_HR, V_HI, V_L32, V_L32+1, EX, EX+1, T)
    a(f"s_branch {lab_w2}")
    a(f"{lab_w1}:")
    cfma(a, V_HR, V_HI, V_L32, V_L32+1, EX, EX+1, T)
    cfma(a, V_HR, V_HI, V_L32, V_L32+1, EX+2, EX+3, T)
    a(f"v_mov_b32 v{SA}, v{V_HR}")
    a(f"v_mov_b32 v{SA+1}, v{V_HI}")
    cfma(a, V_HR, V_HI, V_L32, V_L32+1, EX+4, EX+5, T)
    a(f"{lab_w2}:")
    a(f"v_cmp_gt_u32 vcc, 32, v{V_LANE}")
    a(f"s_nop 1")
    a(f"v_cndmask_b32 v{V_HR}, v{V_HR}, v{SA}, vcc")
    a(f"v_cndmask_b32 v{V_HI}, v{V_HI}, v{SA+1}, vcc")
    a(f"v_mul_f32 v{T}, v{V_HR}, v{V_C2}")
    a(f"v_mul_f32 v{T+1}, -v{V_HI}, v{V_C2}")
    a(f"v_fma_f32 v{T}, -v{V_HI}, v{V_C2+1}, v{T}")
    a(f"v_fma_f32 v{V_HI}, -v{V_HR}, v{V_C2+1}, v{T+1}")
    a(f"v_mov_b32 v{V_HR}, v{T}")
    stamp(a, 7)
    a.c("pass 2 + stores")
    a(f"s_mul_i32 s34, s{S_C}, 20")
    a(f"s_add_u32 s34, s34, s{S_S}")
    a(f"s_lshl_b32 s34, s34, 14")
    a(f"s_lshl_b32 s35, s{S_WAVE}, 12")
    a(f"s_add_u32 s34, s34, s35")
    a(f"s_add_u32 s{S_T0}, s34, {WS_H}")
    a(f"s_add_u32 s{S_T1}, s{S_T0}, {10*16384}")
    pr, pi = V_HR, V_HI
    PK = 16
    for m in range(2):
        for r in range(16):
            cr, ci = acc2(m,0)+r, acc2(m,1)+r
            a(f"v_fma_f32 v{cr}, v{V_LR}, v{pr}, v{cr}")
            a(f"v_fma_f32 v{ci}, v{V_LR}, v{pi}, v{ci}")
            a(f"v_fma_f32 v{cr}, v{V_LI}, v{pi}, v{cr}")
            a(f"v_fma_f32 v{ci}, -v{V_LI}, v{pr}, v{ci}")
            pr, pi = cr, ci
            if r % 2 == 1:
                t = 16*m + r
                j, d = t // 8, (t % 8) // 2
                a(f"v_cvt_pk_bf16_f32 v{PK + 4*j + d}, v{cr-1}, v{cr}")
                a(f"v_cvt_pk_bf16_f32 v{PK + 16 + 4*j + d}, v{ci-1}, v{ci}")
                if d == 3:
                    def st(flag):
                        a(f"buffer_store_dwordx4 v[{PK+4*j}:{PK+4*j+3}], v{V_L16}, s[{SRD_WS}:{SRD_WS+3}], s{S_T0} offen offset:{j*1024} {flag}")
                        a(f"buffer_store_dwordx4 v[{PK+16+4*j}:{PK+16+4*j+3}], v{V_L16}, s[{SRD_WS}:{SRD_WS+3}], s{S_T1} offen offset:{j*1024} {flag}")
                    if loc:
                        l1 = a.label("HS"); l2 = a.label("HS")
                        a(f"s_cmp_eq_u32 s{S_FAST}, 1")
                        a(f"s_cbranch_scc1 {l1}")
                        st("sc1")
                        a(f"s_branch {l2}")
                        a(f"{l1}:")
                        st("")
                        a(f"{l2}:")
                    else:
                        st(opts.get('hst', 'sc1'))
    stamp(a, 8)
    a.c("acc init from x tile")
    a(f"v_mov_b32 v{T+4}, {CNT_X}")
    lds_spin(a, T+4, T+6, 4, END)
    XA = T+7
    a(f"v_lshrrev_b32 v{T+8}, 5, v{V_LANE}")
    a(f"v_bfe_u32 v{T+9}, v{V_LANE}, 2, 2")
    a(f"v_lshl_add_u32 v{T+8}, v{T+8}, 2, v{T+9}")
    a(f"s_lshl_b32 s34, s{S_WM}, 6")
    a(f"v_add_u32 v{T+8}, s34, v{T+8}")
    a(f"v_lshlrev_b32 v{XA}, 7, v{T+8}")
    a(f"v_bfe_u32 v{T+8}, v{V_LANE}, 4, 1")
    a(f"v_lshlrev_b32 v{T+8}, 5, v{T+8}")
    a(f"v_and_b32 v{T+9}, 3, v{V_LANE}")
    a(f"v_lshl_add_u32 v{T+8}, v{T+9}, 3, v{T+8}")
    a(f"s_lshl_b32 s34, s{S_WN}, 6")
    a(f"s_add_u32 s34, s34, {L_XT}")
    a(f"v_add_u32 v{T+8}, s34, v{T+8}")
    a(f"v_add_u32 v{XA}, v{XA}, v{T+8}")
    XV = 96
    for m in range(2):
        for q in range(4):
            r = XV + 2*(4*m+q)
            a(f"ds_read_b64_tr_b16 v[{r}:{r+1}], v{XA} offset:{(32*m+8*q)*128}")
    a(f"s_waitcnt lgkmcnt(0)")
    for qi in range(8):
        for h in range(2):
            xv = XV + 2*qi + h
            a0 = G2_ACC + 4*qi + 2*h
            a(f"v_lshlrev_b32 v{a0}, 16, v{xv}")
            a(f"v_and_b32 v{a0+1}, 0xffff0000, v{xv}")
            a(f"v_mul_f32 v{a0}, v{a0}, v{V_DSB}")
            a(f"v_mul_f32 v{a0+1}, v{a0+1}, v{V_DSB}")
            a(f"v_cvt_pk_bf16_f32 v{a0}, v{a0}, v{a0+1}")
            a(f"v_and_b32 v{a0+1}, 0xffff0000, v{a0}")
            a(f"v_lshlrev_b32 v{a0}, 16, v{a0}")
    a(f"v_lshrrev_b32 v{T}, 4, v{V_LANE}")
    a(f"v_bfe_u32 v{T+1}, v{V_LANE}, 2, 2")
    a(f"v_and_b32 v{T+2}, 3, v{V_LANE}")
    a(f"v_and_b32 v{T+3}, 1, v{T}")
    a(f"v_lshlrev_b32 v{T+3}, 1, v{T+3}")
    a(f"v_lshrrev_b32 v{T+4}, 1, v{T+2}")
    a(f"v_add_u32 v{T+3}, v{T+3}, v{T+4}")
    a(f"v_mul_u32_u24 v{T+3}, 1088, v{T+3}")
    a(f"v_lshrrev_b32 v{T+4}, 1, v{T}")
    a(f"v_lshl_add_u32 v{T+4}, v{T+4}, 3, v{T+1}")
    a(f"v_lshl_add_u32 v{T+3}, v{T+4}, 4, v{T+3}")
    a(f"v_and_b32 v{T+4}, 1, v{T+2}")
    a(f"v_lshl_add_u32 v{T+3}, v{T+4}, 3, v{T+3}")
    a(f"s_mul_i32 s34, s{S_WM}, 8704")
    a(f"v_add_u32 v{V_HA}, s34, v{T+3}")
    a(f"v_add_u32 v{V_HA2}, {3*HSLOT}, v{V_HA}")
    for ks in range(4):
        a(f"v_xor_b32 v{2+ks}, {32*ks}, v221")
        a(f"v_add_u32 v{V_CB+ks}, {CBASE}, v{2+ks}")
    a(f"s_waitcnt vmcnt(0)")
    a(f"v_mov_b32 v{T+4}, {CNT_H}")
    a(f"v_mov_b32 v{T+5}, 1")
    a(f"s_mov_b64 s[{S_EXEC}:{S_EXEC+1}], exec")
    a(f"s_mov_b64 exec, 1")
    a(f"ds_add_rtn_u32 v{T+6}, v{T+4}, v{T+5}")
    a(f"s_waitcnt lgkmcnt(0)")
    a(f"v_readfirstlane_b32 s{S_T3}, v{T+6}")
    lab_nf = a.label("NOHF")
    a(f"s_nop 0")
    a(f"s_cmp_lg_u32 s{S_T3}, 3")
    a(f"s_cbranch_scc1 {lab_nf}")
    a(f"s_lshl_b32 s34, s{S_C}, 7")
    a(f"s_lshl_b32 s35, s{S_S}, 3")
    a(f"s_add_u32 s34, s34, s35")
    a(f"s_add_u32 s34, s34, {WS_FLAG}")
    a(f"v_mov_b32 v{G}, s{S_NONCE}")
    a(f"v_mov_b32 v{G+1}, s{S_NONCE+1}")
    if loc:
        l1 = a.label("HF"); l2 = a.label("HF")
        a(f"s_cmp_eq_u32 s{S_FAST}, 1")
        a(f"s_cbranch_scc1 {l1}")
        a(f"buffer_store_dwordx2 v[{G}:{G+1}], v{V_ZERO}, s[{SRD_WS}:{SRD_WS+3}], s34 offen sc1")
        a(f"s_branch {l2}")
        a(f"{l1}:")
        a(f"buffer_store_dwordx2 v[{G}:{G+1}], v{V_ZERO}, s[{SRD_WS}:{SRD_WS+3}], s34 offen")
        a(f"{l2}:")
    else:
        a(f"buffer_store_dwordx2 v[{G}:{G+1}], v{V_ZERO}, s[{SRD_WS}:{SRD_WS+3}], s34 offen {opts.get('hst', 'sc1')}")
    a(f"{lab_nf}:")
    a(f"s_mov_b64 exec, s[{S_EXEC}:{S_EXEC+1}]")
    stamp(a, 9)
    a(f"v_mov_b32 v{T+4-T+240}, {CNT_C}")
    lds_spin(a, 244, 245, 4, END)
    n = 0
    for ch in range(NREG):
        for ks in range(4):
            r = V_CREG + 16*ch + 4*ks
            off = L_CST + ch*8192
            reg = 2 + ks
            if off >= 65536:
                a(f"v_add_u32 v246, {off}, v{reg}")
                a(f"ds_read_b128 v[{r}:{r+3}], v246")
            else:
                a(f"ds_read_b128 v[{r}:{r+3}], v{reg} offset:{off}")
            n += 1
            if n % 12 == 0: a(f"s_waitcnt lgkmcnt(4)")
    a(f"s_waitcnt lgkmcnt(0)")
    a(f"v_mov_b32 v244, {CNT_R}")
    a(f"v_mov_b32 v245, 1")
    lds_inc(a, 244, 245)
    stamp(a, 10)
    a(f"s_barrier")
    stamp(a, 11)
    cstamp(a, 22)
    D2 = G2_NS - 1
    for k0 in range(D2):
        for ins in g2_reads(0, k0): a(ins)
    NST = 20
    for it in range(NST):
        for ks in range(4):
            gidx = 4*it + ks
            rem = 0
            for g2 in range(gidx + 1, min(gidx + D2, 4*NST)):
                rem += len(g2_reads(g2 // 4, g2 % 4))
            a(f"s_waitcnt lgkmcnt({rem})")
            fill = []
            nx = gidx + D2
            if nx < 4*NST:
                nit, nks = nx // 4, nx % 4
                if nks == 0: a(f"s_barrier")
                fill += g2_reads(nit, nks)
            interleave(a, g2_mfmas(it, ks), fill)
    cstamp(a, 23)
    stamp(a, 12)
    a(f"v_and_b32 v{T}, 31, v{V_LANE}")
    a(f"s_lshl_b32 s34, s{S_WN}, 5")
    a(f"v_add_u32 v{T}, s34, v{T}")
    a(f"v_lshrrev_b32 v{T+3}, 5, v{V_LANE}")
    a(f"v_and_b32 v{T+1}, 15, v{T}")
    a(f"s_lshl_b32 s34, s{S_WM}, 3")
    a(f"v_xor_b32 v{T+1}, s34, v{T+1}")
    a(f"v_lshlrev_b32 v{T+2}, 8, v{T}")
    a(f"v_lshl_add_u32 v{T+2}, v{T+3}, 3, v{T+2}")
    a(f"v_add_u32 v{T+2}, {L_AT}, v{T+2}")
    GA = T+5
    a(f"s_lshl_b32 s34, s{S_WM}, 9")
    a(f"s_add_u32 s34, s34, {L_G}")
    a(f"v_lshlrev_b32 v{GA}, 5, v{T+3}")
    a(f"v_add_u32 v{GA}, s34, v{GA}")
    GV = 112
    for m in range(2):
        for q in range(4):
            gb = GV + 8*(4*m+q)
            a(f"ds_read_b128 v[{gb}:{gb+3}], v{GA} offset:{(32*m+8*q)*8}")
            a(f"ds_read_b128 v[{gb+4}:{gb+7}], v{GA} offset:{(32*m+8*q)*8+16}")
            if (4*m+q) == 2: a("s_waitcnt lgkmcnt(6)")
            if (4*m+q) == 5: a("s_waitcnt lgkmcnt(6)")
    OV = T+6
    a(f"v_mul_u32_u24 v{OV}, 2560, v{T+3}")
    a(f"s_lshl_b32 s34, s{S_S}, 6")
    a(f"v_add_u32 v{OV}, v{OV}, v{T}")
    a(f"v_add_u32 v{OV}, s34, v{OV}")
    a(f"v_lshlrev_b32 v{OV}, 2, v{OV}")
    a(f"s_lshl_b32 s34, s{S_C}, 7")
    a(f"s_lshl_b32 s35, s{S_WM}, 6")
    a(f"s_add_u32 s34, s34, s35")
    a(f"s_mul_i32 s{S_T2}, s34, 2560")
    for m in range(2):
        for q in range(4):
            a(f"v_xor_b32 v{T+4}, {4*m+q}, v{T+1}")
            a(f"v_lshl_add_u32 v{240+4*m+q}, v{T+4}, 4, v{T+2}")
    a(f"s_barrier")
    stamp(a, 13)
    AV = 96
    for m in range(2):
        for q in range(4):
            r = AV + 2*(4*m+q)
            a(f"ds_read_b64 v[{r}:{r+1}], v{240+4*m+q}")
    a(f"s_waitcnt lgkmcnt(0)")
    W = 180
    ldsout = opts.get("ldsout", True)
    if ldsout:
        a(f"s_lshl_b32 s34, s{S_WAVE}, 13")
        a(f"s_add_u32 s34, s34, 65536")
        a(f"s_mov_b32 m0, s34")
        a(f"v_lshlrev_b32 v190, 4, v{V_LANE}")
        a(f"v_add_u32 v190, s34, v190")
        a(f"v_lshrrev_b32 v192, 4, v{V_LANE}")
        a(f"v_bfe_u32 v193, v{V_LANE}, 3, 1")
        a(f"v_lshl_add_u32 v192, v193, 2, v192")
        a(f"v_mul_u32_u24 v192, 2560, v192")
        a(f"v_and_b32 v193, 7, v{V_LANE}")
        a(f"v_lshl_add_u32 v192, v193, 4, v192")
        a(f"s_lshl_b32 s34, s{S_S}, 8")
        a(f"s_lshl_b32 s35, s{S_WN}, 7")
        a(f"s_add_u32 s34, s34, s35")
        a(f"v_add_u32 v191, s34, v192")
    for m in range(2):
        for q in range(4):
            qi = 4*m+q
            gb = GV + 8*qi
            for h in range(2):
                av = AV + 2*qi + h
                a0 = G2_ACC + 16*m + 4*q + 2*h
                w = W + 2*h
                a(f"v_lshlrev_b32 v{w}, 16, v{av}")
                a(f"v_and_b32 v{w+1}, 0xffff0000, v{av}")
                a(f"v_mul_f32 v{w}, v{w}, v{gb+4*h}")
                a(f"v_mul_f32 v{w+1}, v{w+1}, v{gb+4*h+2}")
                a(f"v_cvt_pk_bf16_f32 v{w}, v{w}, v{w+1}")
                a(f"v_and_b32 v{w+1}, 0xffff0000, v{w}")
                a(f"v_lshlrev_b32 v{w}, 16, v{w}")
                a(f"v_fma_f32 v{a0}, v{gb+4*h+1}, v{a0}, v{w}")
                a(f"v_fma_f32 v{a0+1}, v{gb+4*h+3}, v{a0+1}, v{w+1}")
                for e in range(2):
                    row = 32*m + 8*q + 2*h + e
                    if ldsout:
                        a(f"ds_write_addtid_b32 v{a0+e} offset:{(4*qi + 2*h + e)*256}")
                    else:
                        a(f"s_add_u32 s35, s{S_T2}, {row*2560}")
                        a(f"buffer_store_dword v{a0+e}, v{OV}, s[{SRD_C}:{SRD_C+3}], s35 offen {opts.get('ost', '')}")
            if ldsout and qi >= 1:
                j = qi - 1
                a(f"ds_read_b128 v[{112+4*j}:{115+4*j}], v190 offset:{j*1024}")
            if ldsout and qi >= 2:
                j = qi - 2
                a(f"s_waitcnt lgkmcnt(5)")
                a(f"s_add_u32 s35, s{S_T2}, {(32*(j >> 2) + 8*(j & 3))*2560}")
                a(f"buffer_store_dwordx4 v[{112+4*j}:{115+4*j}], v191, s[{SRD_C}:{SRD_C+3}], s35 offen {opts.get('ost', '')}")
    if ldsout:
        a(f"ds_read_b128 v[{112+28}:{115+28}], v190 offset:{7*1024}")
        for j in (6, 7):
            a(f"s_waitcnt lgkmcnt({7-j})")
            a(f"s_add_u32 s35, s{S_T2}, {(32*(j >> 2) + 8*(j & 3))*2560}")
            a(f"buffer_store_dwordx4 v[{112+4*j}:{115+4*j}], v191, s[{SRD_C}:{SRD_C+3}], s35 offen {opts.get('ost', '')}")
    stamp(a, 15)
    if PROF["on"]:
        a("s_waitcnt vmcnt(0)")
        stamp(a, 16)
    prof_end(a, opts.get("profwave", 0))

def gen_gemm(a, END, opts):
    a.c("================= GEMM role v2 =================")
    if opts.get("map45", True):
        a(f"s_mul_i32 s34, s31, 52")
        a(f"s_lshr_b32 s34, s34, 8")
        a(f"s_mul_i32 s35, s34, 5")
        a(f"s_sub_u32 s35, s31, s35")
        a(f"s_lshr_b32 s93, s30, 1")
        a(f"s_and_b32 s94, s30, 1")
        a(f"s_lshl_b32 s{S_C}, s93, 2")
        a(f"s_add_u32 s{S_C}, s{S_C}, s34")
        a(f"s_mul_i32 s{S_S}, s94, 5")
        a(f"s_add_u32 s{S_S}, s{S_S}, s35")
        a(f"s_lshl_b32 s35, s35, 1")
        a(f"s_add_u32 s35, s35, s94")
        a(f"s_add_u32 s35, s35, s93")
        a(f"s_mul_i32 s34, s34, 5")
        a(f"s_lshr_b32 s34, s34, 1")
        a(f"s_add_u32 s93, s35, s34")
        a(f"s_cmp_ge_u32 s93, 10")
        a(f"s_cselect_b32 s34, 10, 0")
        a(f"s_sub_u32 s93, s93, s34")
    else:
        a(f"s_mov_b32 s93, s30")
        a(f"s_cmp_ge_u32 s31, 10")
        a(f"s_cselect_b32 s34, 1, 0")
        a(f"s_cselect_b32 s35, 10, 0")
        a(f"s_lshl_b32 s30, s30, 1")
        a(f"s_add_u32 s{S_C}, s30, s34")
        a(f"s_sub_u32 s{S_S}, s31, s35")
        a(f"s_mul_i32 s34, s34, 5")
        a(f"s_add_u32 s93, s93, s34")
        a(f"s_add_u32 s93, s93, s{S_S}")
        for _ in range(2):
            a(f"s_cmp_ge_u32 s93, 10")
            a(f"s_cselect_b32 s34, 10, 0")
            a(f"s_sub_u32 s93, s93, s34")
    a(f"s_cmp_lt_u32 s{S_WAVE}, 4")
    a(f"s_cbranch_scc1 L_COMPUTE")
    gen_loader(a, END, opts)
    a("L_COMPUTE:")
    if EARLY["on"]: common_init(a, True)
    gen_compute(a, END, opts)
```

```python
from common import *
from g1 import V_LANE, S_CNT, S_EXEC, S_MISM, interleave
from gate import get_nonce
from g2 import poll_flags

RSZ = 20480
U_OFF = 80
T_OFF = 5200
CS = 2368
R_OFF = T_OFF
W_OFF = T_OFF + 32
G_OFF = W_OFF + 4*CS
GD = G_OFF - R_OFF
CNT_OFF = 20416
S_IDX, S_D, S_RB = 30, 31, 32
S_T3 = 87

def slot_alpha(i):
    q, g, e = i >> 3, (i >> 2) & 1, i & 3
    if q == 0: return 4*g + e
    if q == 1:
        if e < 2: return 1024 + 256*(2*g + e)
        if e == 2 and g == 0: return 2048
        return None
    if q == 2: return None if e == 3 else 512 + 256*g + 4*e
    if q == 3: return None if e == 3 else 256 + 4*g + 2*e
XROW = {}
for i in range(32):
    al = slot_alpha(i)
    if al is None or i == 28: continue
    XROW[al] = i
HOLES = [11, 14, 15, 19, 23, 27, 28, 31]
assert all(h not in XROW.values() for h in HOLES) and len(XROW) == 24
def yrow(b): return 32 + b if b < 24 else HOLES[b - 24]

def pcmul(a, d, x, y):
    a(f"v_pk_mul_f32 v[{d}:{d+1}], v[{x}:{x+1}], v[{y}:{y+1}] op_sel:[0,0] op_sel_hi:[0,1]")
    a(f"v_pk_fma_f32 v[{d}:{d+1}], v[{x}:{x+1}], v[{y}:{y+1}], v[{d}:{d+1}] op_sel:[1,1,0] op_sel_hi:[1,0,1] neg_lo:[1,0,0]")

V_U = 16
V_PRM = 32
V_AW = 40
V_AA_ = 56
V_ACC_ = 64
V_AB_ = 96
V_E = 104
V_E256 = 120
V_B0, V_B1 = 122, 124
V_Y0, V_Y1 = 126, 128
V_X = 130
V_CP = 132
V_T_ = 134
V_E16 = 150
V_BB = 152
V_YY = 168
V_X2, V_X3 = 176, 178
V_PK = 186
V_FRK = 104
V_DT = 184
V_DSK = 185
def Ek(k): return V_E + 2*(k-1)

def cis_exp(a, d, zr2, zi, p, t):
    if p == 1:
        a(f"v_exp_f32 v{t}, v{zr2}")
        a(f"v_fract_f32 v{t+1}, v{zi}")
    else:
        a(f"v_mul_f32 v{t}, {fhex(float(p))}, v{zr2}")
        a(f"v_mul_f32 v{t+1}, {fhex(float(p))}, v{zi}")
        a(f"v_exp_f32 v{t}, v{t}")
        a(f"v_fract_f32 v{t+1}, v{t+1}")
    a(f"v_cos_f32 v{t+2}, v{t+1}")
    a(f"v_sin_f32 v{t+3}, v{t+1}")
    a(f"s_nop 0")
    a(f"v_mul_f32 v{d}, v{t}, v{t+2}")
    a(f"v_mul_f32 v{d+1}, v{t}, v{t+3}")

class TabWriter:
    NPK = 8
    def __init__(self, a): self.a = a; self.k = 0; self.q = []
    def put(self, row, pair, neg):
        t = V_PK + (self.k % self.NPK); self.k += 1
        self.a(f"v_cvt_pk_bf16_f32 v{t}, v{pair}, {'-' if neg else ''}v{pair+1}")
        self.q.append(f"ds_write_addtid_b32 v{t} offset:{row*272}")
        while len(self.q) > 2: self.a(self.q.pop(0))
    def flush(self):
        while self.q: self.a(self.q.pop(0))

def kgen_pass(a, hh, extras=None, pk=True, every=4):
    T = V_T_
    a.c(f"K-gen pass {hh}")
    fresh = (hh == 0) or isinstance(hh, str)
    if hh == "one":
        for k in range(4): a(f"v_and_b32 v{T+k}, 0xffff0000, v{V_PRM+k}")
    elif isinstance(hh, str):
        l0 = a.label("KH0"); l1 = a.label("KH1")
        a(f"s_cmp_lg_u32 {hh}, 0")
        a(f"s_cbranch_scc1 {l0}")
        for k in range(4): a(f"v_lshlrev_b32 v{T+k}, 16, v{V_PRM+k}")
        a(f"s_branch {l1}")
        a(f"{l0}:")
        for k in range(4): a(f"v_and_b32 v{T+k}, 0xffff0000, v{V_PRM+k}")
        a(f"{l1}:")
    else:
        for k in range(4):
            if hh == 0: a(f"v_lshlrev_b32 v{T+k}, 16, v{V_PRM+k}")
            else:       a(f"v_and_b32 v{T+k}, 0xffff0000, v{V_PRM+k}")
    exp_accurate(a, T, T, T+4, T+5, T+6)
    round_bf16(a, T, T)
    a(f"v_mul_f32 v{T}, -v{T}, v{V_DT}")
    a(f"v_mul_f32 v{T+1}, v{T+1}, v{V_DT}")
    a(f"v_mul_f32 v{T}, {fhex(LOG2E)}, v{T}")
    a(f"v_mul_f32 v{T+1}, {fhex(INV2PI)}, v{T+1}")
    a(f"v_mul_f32 v{T+2}, v{T+2}, v{V_DT}")
    a(f"v_mul_f32 v{T+3}, v{T+3}, v{V_DT}")
    a(f"v_add_f32 v{V_B0}, v{T+2}, v{T+2}")
    a(f"v_add_f32 v{V_B0+1}, v{T+3}, v{T+3}")
    t, u = T+4, T+8
    a(f"v_exp_f32 v{t}, v{T}")
    a(f"v_mul_f32 v{u}, {fhex(256.0)}, v{T}")
    a(f"v_fract_f32 v{t+1}, v{T+1}")
    a(f"v_mul_f32 v{u+1}, {fhex(256.0)}, v{T+1}")
    a(f"v_exp_f32 v{u}, v{u}")
    a(f"v_cos_f32 v{t+2}, v{t+1}")
    a(f"v_fract_f32 v{u+1}, v{u+1}")
    a(f"v_sin_f32 v{t+3}, v{t+1}")
    a(f"v_cos_f32 v{u+2}, v{u+1}")
    a(f"v_mul_f32 v{Ek(1)}, v{t}, v{t+2}")
    a(f"v_sin_f32 v{u+3}, v{u+1}")
    a(f"v_mul_f32 v{Ek(1)+1}, v{t}, v{t+3}")
    a(f"v_mul_f32 v{V_E256}, v{u}, v{u+2}")
    a(f"v_mul_f32 v{V_E256+1}, v{u}, v{u+3}")
    ops = []
    val = {"E1": Ek(1), "E256": V_E256, "B0": V_B0}
    def op(name, dst, x, y, row=None, neg=False):
        ops.append(dict(name=name, dst=dst, x=x, y=y, row=row, neg=neg))
    op("E2", Ek(2), "E1", "E1")
    op("E4", Ek(4), "E2", "E2")
    op("E3", Ek(3), "E2", "E1")
    op("E8", Ek(8), "E4", "E4", yrow(1))
    op("E5", Ek(5), "E4", "E1")
    op("E6", Ek(6), "E4", "E2")
    op("E7", Ek(7), "E4", "E3")
    op("E16", V_E16, "E8", "E8", yrow(2))
    for kb in range(1, 9):
        op(f"B{kb}", V_BB + 2*(kb-1), f"B{kb-1}", "E256", XROW[256*kb], True)
    def yn(b): return "E8" if b == 1 else ("E16" if b == 2 else f"Y{b}")
    for b in range(3, 32):
        op(f"Y{b}", V_YY + 2*(b % 4), yn(b-2), "E16", yrow(b), False)
    xr = [V_X, V_CP, V_X2, V_X3]
    n = 0
    xl = [(0, k) for k in range(1, 8)] + [(1, k) for k in (2, 4, 6, 8)] + [(2, 4), (2, 8), (3, 4), (3, 8)]
    for kb, k in xl:
        op(f"X{kb}_{k}", xr[n % 4], f"B{kb}", f"E{k}", XROW[256*kb + k], True); n += 1
    order = []
    done = {"E1": -9, "E256": -9, "B0": -9}
    pend = list(ops)
    slot = 0
    def ready(o):
        if not (o["x"] in done and o["y"] in done): return False
        if slot - done[o["x"]] < 2 or slot - done[o["y"]] < 2: return False
        cls = o["name"][0]
        if cls in "YX":
            for p in pend:
                if p is o: break
                if p["name"][0] == cls: return False
        return True
    rr = 0
    while pend:
        cand = [o for o in pend if ready(o)]
        if not cand:
            slot += 1; order.append(None); continue
        pri = {"E": 0, "B": 1, "Y": 2 + (rr & 1), "X": 3 - (rr & 1)}
        cand.sort(key=lambda o: pri[o["name"][0]])
        o = cand[0]
        pend.remove(o); done[o["name"]] = slot; val[o["name"]] = o["dst"]
        order.append(o); slot += 1; rr += 1
    tw = TabWriter(a)
    tw.put(XROW[0], V_B0, True)
    a(f"v_mov_b32 v180, 0x00003f80")
    a(f"ds_write_addtid_b32 v180 offset:{yrow(0)*272}")
    real = [o for o in order if o is not None]
    def mul(o):
        d, x, y = o["dst"], val[o["x"]], val[o["y"]]
        if not pk:
            a(f"v_mul_f32 v{d}, v{x}, v{y}")
            a(f"v_mul_f32 v{d+1}, v{x}, v{y+1}")
            return
        a(f"v_pk_mul_f32 v[{d}:{d+1}], v[{x}:{x+1}], v[{y}:{y+1}] op_sel:[0,0] op_sel_hi:[0,1]")
    def fma(o):
        d, x, y = o["dst"], val[o["x"]], val[o["y"]]
        if not pk:
            a(f"v_fma_f32 v{d}, -v{x+1}, v{y+1}, v{d}")
            a(f"v_fma_f32 v{d+1}, v{x+1}, v{y}, v{d+1}")
            return
        a(f"v_pk_fma_f32 v[{d}:{d+1}], v[{x}:{x+1}], v[{y}:{y+1}], v[{d}:{d+1}] op_sel:[1,1,0] op_sel_hi:[1,0,1] neg_lo:[1,0,0]")
    i = 0
    grp = 0
    lastput = None
    while i < len(real):
        o = real[i]
        o2 = real[i+1] if i + 1 < len(real) else None
        grp += 1
        if extras and grp % every == 1 and grp > 0:
            for ins in extras.pop(0): a(ins)
        if o2 is not None and o["name"] not in (o2["x"], o2["y"]) and o2["dst"] != o["dst"] and o2["dst"] not in (val[o["x"]], val[o["y"]]):
            mul(o); mul(o2)
            if lastput:
                for p in lastput: tw.put(p["row"], p["dst"], p["neg"])
            fma(o); fma(o2)
            lastput = [p for p in (o, o2) if p["row"] is not None]
            i += 2
        else:
            mul(o)
            if lastput:
                for p in lastput: tw.put(p["row"], p["dst"], p["neg"])
            fma(o)
            lastput = [o] if o["row"] is not None else []
            i += 1
    for p in lastput: tw.put(p["row"], p["dst"], p["neg"])
    tw.flush()
    assert not extras, "extras not all placed"
    a(f"s_waitcnt lgkmcnt(0)")
    def rd(ks):
        st = V_FRK + 8*ks
        return [f"ds_read_b128 v[{st}:{st+3}], v{V_AA_} offset:{32*ks}", f"ds_read_b128 v[{st+4}:{st+7}], v{V_AB_} offset:{32*ks}"]
    for ks in range(7):
        for ins in rd(ks): a(ins)
    for ks in range(8):
        if ks == 0:
            a(f"s_waitcnt lgkmcnt(12)")
        elif ks == 1:
            for ins in rd(7): a(ins)
            a(f"s_waitcnt lgkmcnt(12)")
        else:
            a(f"s_waitcnt lgkmcnt({2*(7-ks)})")
        st = V_FRK + 8*ks
        c = "0" if (fresh and ks == 0) else f"v[{V_ACC_}:{V_ACC_+15}]"
        a(f"v_mfma_f32_32x32x16_bf16 v[{V_ACC_}:{V_ACC_+15}], v[{st}:{st+3}], v[{st+4}:{st+7}], {c}")

def kgen_addr_setup(a, sbase):
    K5, K6, K7, K8, K9, K10 = 80, 81, 82, 83, 84, 85
    a(f"s_mov_b32 m0, {sbase}")
    a(f"v_and_b32 v{K5}, 31, v{V_LANE}")
    a(f"v_lshrrev_b32 v{K6}, 5, v{V_LANE}")
    a(f"v_lshlrev_b32 v{K6}, 4, v{K6}")
    a(f"v_add_u32 v{K6}, {sbase}, v{K6}")
    a(f"v_mov_b32 v{K7}, 26")
    a(f"v_cmp_eq_u32 vcc, 28, v{K5}")
    lo = HOLES[0] | HOLES[1] << 8 | HOLES[2] << 16 | HOLES[3] << 24
    hi = HOLES[4] | HOLES[5] << 8 | HOLES[6] << 16 | HOLES[7] << 24
    a(f"v_mov_b32 v{K9}, {hex(lo)}")
    a("s_nop 0")
    a(f"v_cndmask_b32 v{K7}, v{K5}, v{K7}, vcc")
    a(f"v_mov_b32 v{K10}, {hex(hi)}")
    a(f"v_mul_u32_u24 v{K7}, 272, v{K7}")
    a(f"v_add_u32 v{V_AA_}, v{K7}, v{K6}")
    a(f"v_and_b32 v{K8}, 7, v{K5}")
    a(f"v_or_b32 v{K8}, 0x0c0c0c00, v{K8}")
    a(f"v_perm_b32 v{K8}, v{K10}, v{K9}, v{K8}")
    a(f"v_add_u32 v{K7}, 32, v{K5}")
    a(f"v_cmp_lt_u32 vcc, 23, v{K5}")
    a("s_nop 1")
    a(f"v_cndmask_b32 v{K7}, v{K7}, v{K8}, vcc")
    a(f"v_mul_u32_u24 v{K7}, 272, v{K7}")
    a(f"v_add_u32 v{V_AB_}, v{K7}, v{K6}")

def build_W(a, vsrc, vdst):
    S = 104
    regs = [(104, 112), (124, 132)]
    def rd(it):
        S, Wk = regs[it & 1]
        a(f"ds_read_b128 v[{S}:{S+3}], v{vsrc} offset:{32 + it*1024}")
        a(f"ds_read_b128 v[{S+4}:{S+7}], v{vsrc} offset:{32 + it*1024 + 16}")
    rd(0); rd(1)
    for it in range(3):
        S, Wk = regs[it & 1]
        if it == 2:
            a(f"s_mov_b64 s[{S_EXEC}:{S_EXEC+1}], exec")
            a(f"s_mov_b64 exec, 0x3ff")
            rd(2)
            a(f"s_waitcnt lgkmcnt(0)")
        else:
            a(f"s_waitcnt lgkmcnt({2 if it == 0 else 3})")
        for k in range(4): a(f"v_alignbyte_b32 v{Wk+k}, v{S+k+1}, v{S+k}, 2")
        for k in range(4): a(f"v_mov_b32 v{Wk+4+k}, v{S+k+1}")
        a(f"ds_write_b128 v{vdst}, v[{Wk}:{Wk+3}] offset:{CS + it*1024}")
        for k in range(4): a(f"v_alignbyte_b32 v{Wk+8+k}, v{S+k+2}, v{S+k+1}, 2")
        a(f"ds_write_b128 v{vdst}, v[{Wk+4}:{Wk+7}] offset:{2*CS + it*1024}")
        a(f"ds_write_b128 v{vdst}, v[{Wk+8}:{Wk+11}] offset:{3*CS + it*1024}")
        if it == 2:
            a(f"s_mov_b64 exec, s[{S_EXEC}:{S_EXEC+1}]")

V_CA = 40
V_CP33 = 41
V_CQ = 42
V_CZ = 43
V_CQC = 44
V_CF = 104

def conv_dense(a, extra=None):
    NSET = 4
    D = NSET - 1
    subs = [(d, h, True) for d in range(32) for h in range(2)] + [(32, 0, False), (32, 1, False), (33, 1, False)]
    def qreg(d): return V_CQC + (d % 4)
    def addr_ops(d):
        if d >= 32: return []
        if d == 0: return [f"v_max_i32 v{qreg(0)}, v{V_CQ}, v{V_CZ}"]
        return [f"v_subrev_u32 v{V_CQ}, 80, v{V_CQ}", f"v_max_i32 v{qreg(d)}, v{V_CQ}, v{V_CZ}"]
    def reads(s):
        d, h, both = subs[s]
        st = V_CF + 12*(s % NSET)
        o = 64*(33-d) + 32*h
        L = [f"ds_read_b64 v[{st}:{st+1}], v{V_CA} offset:{o}",
             f"ds_read_b64 v[{st+2}:{st+3}], v{V_CA} offset:{o+8}",
             f"ds_read_b128 v[{st+8}:{st+11}], v{V_CP33} offset:{80*(33-d) + 32*h}"]
        if both: L.append(f"ds_read_b128 v[{st+4}:{st+7}], v{qreg(d)} offset:{32*h}")
        return L
    def mf(s):
        d, h, both = subs[s]
        st = V_CF + 12*(s % NSET)
        a0, a1 = V_ACC_, V_ACC_+16
        c0 = "0" if s == 0 else f"v[{a0}:{a0+15}]"
        c1 = "0" if s == 0 else f"v[{a1}:{a1+15}]"
        L = [f"v_mfma_f32_32x32x16_bf16 v[{a1}:{a1+15}], v[{st}:{st+3}], v[{st+8}:{st+11}], {c1}"]
        if both: L.append(f"v_mfma_f32_32x32x16_bf16 v[{a0}:{a0+15}], v[{st}:{st+3}], v[{st+4}:{st+7}], {c0}")
        return L
    N = len(subs)
    done_addr = set()
    def need_addr(s):
        d = subs[s][0]
        if d not in done_addr:
            done_addr.add(d)
            return addr_ops(d)
        return []
    for s in range(D):
        for ins in need_addr(s): a(ins)
        for ins in reads(s): a(ins)
    for s in range(N):
        rem = sum(len(reads(t)) for t in range(s+1, min(s+D, N)))
        a(f"s_waitcnt lgkmcnt({rem})")
        fill = []
        if s + D < N:
            fill += need_addr(s+D)
            fill += reads(s+D)
        if extra and s in extra: fill += extra[s]
        interleave(a, mf(s), fill)

V_BD = 216
V_UA = 240

def far_setup(a):
    T = 186
    a(f"v_and_b32 v{T}, 31, v{V_LANE}")
    a(f"v_lshrrev_b32 v{T+1}, 5, v{V_LANE}")
    a(f"v_lshlrev_b32 v{T+2}, 3, v{T+1}")
    a(f"v_sub_u32 v{T+2}, v{T+2}, v{T}")
    a(f"v_subrev_u32 v{T+2}, 8, v{T+2}")
    a(f"v_lshlrev_b32 v{T+3}, 4, v{T}")
    a(f"v_lshl_add_u32 v{T+3}, v{T+1}, 3, v{T+3}")
    a(f"s_add_u32 s95, s{S_RB}, {80 - 160 + 1280}")
    a(f"v_mov_b32 v{T+6}, s{S_RB}")
    for par in range(2):
        for ks in range(3):
            c0 = (-40 if par == 0 else -32) + 16*ks
            r = V_UA + 3*par + ks
            a(f"v_add_u32 v{T+4}, {c0 + 64}, v{T+3}")
            a(f"v_lshrrev_b32 v{T+5}, 5, v{T+4}")
            a(f"v_mul_u32_u24 v{T+5}, 80, v{T+5}")
            a(f"v_and_b32 v{T+4}, 31, v{T+4}")
            a(f"v_lshl_add_u32 v{T+5}, v{T+4}, 1, v{T+5}")
            a(f"v_add_u32 v{r+6}, s95, v{T+5}")
            a(f"v_subrev_u32 v{T+5}, 1280, v{r+6}")
            a(f"v_max_i32 v{r}, v{T+5}, v{T+6}")
    a(f"v_lshlrev_b32 v{T+9}, 3, v{T+1}")
    for par in range(2):
        w = 4 - par
        M = T + 10
        a(f"v_mov_b32 v{M}, {(1 << (2*w+1)) - 1}")
        a(f"v_mov_b32 v{M+1}, 0")
        a(f"v_add_u32 v{T+4}, {8 - w}, v{T}")
        a(f"v_lshlrev_b64 v[{M}:{M+1}], v{T+4}, v[{M}:{M+1}]")
        a(f"v_lshrrev_b64 v[{M}:{M+1}], v{T+9}, v[{M}:{M+1}]")
        for ks in range(3):
            word = M if ks < 2 else M + 1
            for dw in range(4):
                r = V_BD + 12*par + 4*ks + dw
                a(f"v_bfe_u32 v{r}, v{word}, {(16*ks) % 32 + 2*dw}, 2")
                a(f"v_lshl_or_b32 v{r}, v{r}, 15, v{r}")
                a(f"v_and_b32 v{r}, 0x00010001, v{r}")
                a(f"v_mul_u32_u24 v{r}, 0x3f80, v{r}")

def conv_far(a):
    a.c("far part")
    ZA = 144
    FR = 104
    seq = [(t, par, ks) for t in range(2) for par in range(2) for ks in range(3)]
    def rd(j):
        t, par, ks = seq[j]
        r = FR + 4*(j % 8)
        return f"ds_read_b128 v[{r}:{r+3}], v{V_UA + 6*t + 3*par + ks}"
    for j in range(8): a(rd(j))
    for j in range(12):
        t, par, ks = seq[j]
        issued = min(12, 8 + j)
        a(f"s_waitcnt lgkmcnt({issued - j - 1})")
        r = FR + 4*(j % 8)
        d = ZA + 16*(2*t + par)
        c = "0" if ks == 0 else f"v[{d}:{d+15}]"
        b = V_BD + 12*par + 4*ks
        a(f"v_mfma_f32_32x32x16_bf16 v[{d}:{d+15}], v[{r}:{r+3}], v[{b}:{b+3}], {c}")
        if j + 8 < 12: a(rd(j+8))
    ZF = 104
    GF = 144
    for q in range(4):
        for e in range(4):
            a(f"v_cvt_pk_bf16_f32 v{ZF + 4*q + e}, v{ZA + 4*q + e}, v{ZA + 16 + 4*q + e}")
    def grd(ks):
        r = GF + 4*ks
        return [f"ds_read_b64 v[{r}:{r+1}], v{V_GA} offset:{32*ks}", f"ds_read_b64 v[{r+2}:{r+3}], v{V_GA} offset:{32*ks+8}"]
    for ks in range(6):
        for ins in grd(ks): a(ins)
    for q in range(4):
        for e in range(4):
            a(f"v_cvt_pk_bf16_f32 v{ZF + 16 + 4*q + e}, v{ZA + 32 + 4*q + e}, v{ZA + 48 + 4*q + e}")
    a1 = V_ACC_ + 16
    for ks in range(8):
        if ks == 0:
            a(f"s_waitcnt lgkmcnt(10)")
        elif ks == 1:
            for k2 in (6, 7):
                for ins in grd(k2): a(ins)
            a(f"s_waitcnt lgkmcnt(12)")
        else:
            a(f"s_waitcnt lgkmcnt({2*(7-ks)})")
        r = GF + 4*ks
        a(f"v_mfma_f32_32x32x16_bf16 v[{a1}:{a1+15}], v[{ZF+4*ks}:{ZF+4*ks+3}], v[{r}:{r+3}], v[{a1}:{a1+15}]")

V_CZ2 = 48
V_GA = 51

def u_stage(a, UREG):
    a(f"s_waitcnt vmcnt(0)")
    stamp(a, 5)
    a(f"s_and_b32 s35, s{S_WAVE}, 3")
    a(f"v_lshrrev_b32 v5, 5, v{V_LANE}")
    a(f"s_lshl_b32 s33, s35, 4")
    a(f"v_add_u32 v5, s33, v5")
    a(f"v_mul_u32_u24 v5, 80, v5")
    a(f"v_and_b32 v3, 31, v{V_LANE}")
    a(f"v_lshl_add_u32 v5, v3, 1, v5")
    a(f"v_add_u32 v5, {U_OFF}, v5")
    for i in range(8):
        a(f"s_lshl_b32 s34, s{S_IDX}, 1")
        a(f"s_add_u32 s34, s34, {i}")
        a(f"s_and_b32 s34, s34, 7")
        a(f"s_mul_i32 s34, s34, 160")
        a(f"v_add_u32 v6, s34, v5")
        a(f"v_add_u32 v7, {3*RSZ}, v6")
        a(f"v_add_u32 v8, {6*RSZ}, v6")
        for ch in range(8):
            base = [6, 7, 8][ch // 3]
            off = (ch % 3)*RSZ
            op = "ds_write_b16" if ch % 2 == 0 else "ds_write_b16_d16_hi"
            a(f"{op} v{base}, v{UREG[i] + ch//2} offset:{off}")
    a(f"v_mov_b32 v8, 0\nv_mov_b32 v9, 0\nv_mov_b32 v10, 0\nv_mov_b32 v11, 0")
    a(f"s_mul_i32 s34, s35, {RSZ}")
    a(f"v_lshlrev_b32 v5, 4, v{V_LANE}")
    a(f"v_add_u32 v5, s34, v5")
    a(f"v_add_u32 v6, {4*RSZ}, v5")
    a(f"s_mov_b64 s[{S_EXEC}:{S_EXEC+1}], exec")
    a(f"s_mov_b64 exec, 31")
    a(f"ds_write_b128 v5, v[8:11]")
    a(f"ds_write_b128 v6, v[8:11]")
    a("s_waitcnt lgkmcnt(0)")
    a(f"s_mov_b64 exec, 1")
    a(f"v_mov_b32 v12, {CNT_OFF}")
    a(f"v_mov_b32 v13, 1")
    a(f"ds_add_u32 v12, v13")
    a(f"s_mov_b64 exec, s[{S_EXEC}:{S_EXEC+1}]")

SRD_T0, SRD_T1 = 12, 16
S_TOUCH = 94
MAP45 = {"v": True}
def touch_setup(a, map45):
    make_srd(a, SRD_T0, P_C2RE, 819200)
    make_srd(a, SRD_T1, P_C2IM, 819200)
    a(f"s_cmp_lt_u32 s{S_WAVE}, 4")
    a(f"s_cselect_b32 s{SRD_T0+2}, 819200, 0")
    a(f"s_cselect_b32 s{SRD_T1+2}, 819200, 0")
    a(f"v_lshrrev_b32 v14, 3, v{V_LANE}")
    a(f"v_mul_u32_u24 v14, 1280, v14")
    a(f"v_and_b32 v15, 7, v{V_LANE}")
    a(f"v_lshl_add_u32 v39, v15, 6, v14")
    a(f"s_mul_hi_u32 s35, s{S_IDX}, {(2**32 + 9)//10}")
    a(f"s_mul_i32 s34, s35, 10")
    a(f"s_sub_u32 s34, s{S_IDX}, s34")
    if MAP45["v"]:
        a(f"s_and_b32 s35, s35, 1")
        a(f"s_mul_i32 s35, s35, 40")
        a(f"s_lshl_b32 s34, s34, 2")
        a(f"s_add_u32 s35, s35, s34")
        a(f"s_and_b32 s34, s{S_WAVE}, 3")
        a(f"s_add_u32 s35, s35, s34")
        a(f"s_mul_i32 s{S_TOUCH}, s35, {8*1280}")
    else:
        a(f"s_lshl_b32 s34, s34, 2")
        a(f"s_and_b32 s35, s{S_WAVE}, 3")
        a(f"s_add_u32 s35, s35, s34")
        a(f"s_mul_i32 s{S_TOUCH}, s35, {16*1280}")
        a(f"s_add_u32 s98, s{S_TOUCH}, {8*1280}")
def touch(k):
    srd = SRD_T0 if (k & 1) == 0 else SRD_T1
    off = 512*(k >> 1)
    L = [f"buffer_load_dword v38, v39, s[{srd}:{srd+3}], s{S_TOUCH} offen offset:{off}"]
    if not MAP45["v"]:
        L.append(f"buffer_load_dword v38, v39, s[{srd}:{srd+3}], s98 offen offset:{off}")
    return L

def gen_conv(a, END, opts):
    MAP45["v"] = opts.get("map45", True)
    a.c("================= CONV role v2 =================")
    a("s_mul_i32 s30, s30, 10")
    a("s_add_u32 s30, s30, s31")
    a(f"s_sub_u32 s{S_IDX}, s30, 20")
    a(f"s_lshl_b32 s{S_D}, s{S_IDX}, 3")
    a(f"s_add_u32 s{S_D}, s{S_D}, s{S_WAVE}")
    a(f"s_mul_i32 s{S_RB}, s{S_WAVE}, {RSZ}")
    T = V_T_
    a(f"v_lshlrev_b32 v5, 2, v{V_LANE}")
    a(f"s_add_u32 s33, s{S_RB}, {CNT_OFF}")
    a(f"v_add_u32 v5, s33, v5")
    a(f"v_mov_b32 v3, 0")
    a(f"s_mov_b64 exec, 15")
    a(f"ds_write_b32 v5, v3")
    a(f"s_mov_b64 exec, -1")
    a(f"s_waitcnt lgkmcnt(0)")
    a("s_barrier")
    coop = opts.get("coop")
    V_PRMB = 40
    a(f"v_lshlrev_b32 v2, 2, v{V_LANE}")
    if coop:
        a(f"s_and_b32 s35, s{S_D}, 0xfffffffb")
    else:
        a(f"s_mov_b32 s35, s{S_D}")
    a(f"s_lshl_b32 s33, s35, 8")
    for k, P in enumerate([P_LOGA, P_AIM, P_CRE, P_CIM]):
        make_srd(a, SRD_A, P, 163840)
        a(f"buffer_load_dword v{V_PRM+k}, v2, s[{SRD_A}:{SRD_A+3}], s33 offen")
    a(f"s_lshl_b32 s33, s35, 1")
    a(f"v_mov_b32 v3, 0")
    make_srd(a, SRD_A, P_LOGDT, 1280)
    a(f"buffer_load_ushort v{V_PRM+4}, v3, s[{SRD_A}:{SRD_A+3}], s33 offen")
    a(f"s_lshl_b32 s33, s{S_D}, 1")
    make_srd(a, SRD_B, P_DSKA, 1280)
    a(f"buffer_load_ushort v{V_PRM+5}, v3, s[{SRD_B}:{SRD_B+3}], s33 offen")
    if coop:
        labb = a.label("PB")
        a(f"s_cmp_lt_u32 s{S_WAVE}, 4")
        a(f"s_cbranch_scc1 {labb}")
        a(f"buffer_load_ushort v{V_PRMB+4}, v3, s[{SRD_A}:{SRD_A+3}], s33 offen")
        a(f"s_lshl_b32 s33, s{S_D}, 8")
        for k, P in enumerate([P_LOGA, P_AIM, P_CRE, P_CIM]):
            make_srd(a, SRD_A, P, 163840)
            a(f"buffer_load_dword v{V_PRMB+k}, v2, s[{SRD_A}:{SRD_A+3}], s33 offen")
        a(f"{labb}:")
    UREG = [16, 20, 24, 28, 194, 198, 202, 206]
    a(f"v_mul_u32_u24 v15, 1280, v{V_LANE}")
    a(f"s_and_b32 s35, s{S_WAVE}, 3")
    a(f"s_mul_i32 s33, s35, {512*1280}")
    a(f"s_lshl_b32 s34, s{S_IDX}, 4")
    a(f"s_add_u32 s33, s33, s34")
    uloads = []
    for i in range(8):
        a(f"s_lshl_b32 s34, s{S_IDX}, 1")
        a(f"s_add_u32 s34, s34, {i}")
        a(f"s_and_b32 s34, s34, 7")
        a(f"s_mul_i32 s34, s34, {64*1280}")
        a(f"s_add_u32 s{76+i}, s34, s33")
        uloads.append([f"buffer_load_dwordx4 v[{UREG[i]}:{UREG[i]+3}], v15, s[{SRD_X}:{SRD_X+3}], s{76+i} offen"])
    if opts.get("uold") or opts.get("uimm") or opts.get("uimm2") or opts.get("uimm3") or opts.get("uimm4") or opts.get("kofl") or coop:
        lab = a.label("UIMM")
        a(f"s_cmp_lt_u32 s{S_WAVE}, 4")
        a(f"s_cbranch_scc{0 if opts.get('uold') else 1} {lab}")
        for l in uloads:
            for ins in l: a(ins)
        a(f"{lab}:")
    if opts.get("prio", False):
        lab = a.label("PRIO")
        a(f"s_cmp_ge_u32 s{S_WAVE}, 4")
        a(f"s_cbranch_scc1 {lab}")
        a("s_setprio 2")
        a(f"{lab}:")
    a(f"v_lshlrev_b32 v2, 2, v{V_LANE}")
    a(f"s_add_u32 s33, s{S_RB}, {T_OFF}")
    a(f"s_mov_b32 m0, s33")
    a(f"v_and_b32 v5, 31, v{V_LANE}")
    a(f"v_lshrrev_b32 v6, 5, v{V_LANE}")
    a(f"v_lshlrev_b32 v6, 4, v6")
    a(f"v_add_u32 v6, s33, v6")
    a(f"v_mov_b32 v7, 26")
    a(f"v_cmp_eq_u32 vcc, 28, v5")
    lo = HOLES[0] | HOLES[1] << 8 | HOLES[2] << 16 | HOLES[3] << 24
    hi = HOLES[4] | HOLES[5] << 8 | HOLES[6] << 16 | HOLES[7] << 24
    a(f"v_mov_b32 v9, {hex(lo)}")
    a("s_nop 0")
    a(f"v_cndmask_b32 v7, v5, v7, vcc")
    a(f"v_mov_b32 v10, {hex(hi)}")
    a(f"v_mul_u32_u24 v7, 272, v7")
    a(f"v_add_u32 v{V_AA_}, v7, v6")
    a(f"v_and_b32 v8, 7, v5")
    a(f"v_or_b32 v8, 0x0c0c0c00, v8")
    a(f"v_perm_b32 v8, v10, v9, v8")
    a(f"v_add_u32 v7, 32, v5")
    a(f"v_cmp_lt_u32 vcc, 23, v5")
    a("s_nop 1")
    a(f"v_cndmask_b32 v7, v7, v8, vcc")
    a(f"v_mul_u32_u24 v7, 272, v7")
    a(f"v_add_u32 v{V_AB_}, v7, v6")
    stamp(a, 1)
    if opts.get("uold") or opts.get("uimm") or opts.get("uimm2") or opts.get("uimm3") or opts.get("uimm4") or opts.get("kofl") or coop:
        labw = a.label("PW"); labw2 = a.label("PW2")
        a(f"s_cmp_lt_u32 s{S_WAVE}, 4")
        a(f"s_cbranch_scc{0 if opts.get('uold') else 1} {labw}")
        a(f"s_waitcnt vmcnt({13 if coop else 8})")
        a(f"s_branch {labw2}")
        a(f"{labw}:")
        a("s_waitcnt vmcnt(0)")
        a(f"{labw2}:")
    else:
        a("s_waitcnt vmcnt(0)")
    stamp(a, 2)
    if opts.get("tlbw"):
        a(f"v_lshlrev_b32 v4, 20, v{V_LANE}")
        a(f"s_mov_b64 exec, 0x3ff")
        a(f"buffer_load_dword v38, v4, s[{SRD_WS}:{SRD_WS+3}], 0 offen")
        a(f"s_mov_b64 exec, -1")
    a(f"v_lshlrev_b32 v{V_DT}, 16, v{V_PRM+4}")
    exp_accurate(a, V_DT, V_DT, T, T+1, T+2)
    round_bf16(a, V_DT, V_DT)
    a(f"v_lshlrev_b32 v{V_DSK}, 16, v{V_PRM+5}")
    ct = opts.get("ctouch", False)
    if ct: touch_setup(a)
    if opts.get("nou"): uloads = [[], [], [], []]
    if opts.get("uearly"):
        for l in uloads:
            for ins in l: a(ins)
        uloads = [[], [], [], []]
    lab_yk = a.label("YK"); lab_kd = a.label("KD")
    a(f"s_cmp_ge_u32 s{S_WAVE}, 4")
    a(f"s_cbranch_scc1 {lab_yk}")
    et = opts.get("etouch", False)
    if et: touch_setup(a, True)
    kgen_pass(a, 0)
    stamp(a, 3)
    if coop:
        if et:
            for ins in touch(0) + touch(1): a(ins)
        a(f"s_add_u32 s33, s{S_RB}, {4*RSZ}")
        a(f"s_add_u32 s34, s33, {CNT_OFF}")
        a(f"v_mov_b32 v12, s34")
        lp = a.label("PSP"); ok = a.label("PSOK")
        a(f"s_mov_b32 s{S_CNT}, 2000000")
        a(f"{lp}:")
        a(f"ds_read_b32 v13, v12")
        a(f"s_waitcnt lgkmcnt(0)")
        a(f"v_readfirstlane_b32 s{S_T3}, v13")
        a(f"s_nop 0")
        a(f"s_cmp_ge_u32 s{S_T3}, 1")
        a(f"s_cbranch_scc1 {ok}")
        a(f"s_sleep 1")
        a(f"s_sub_u32 s{S_CNT}, s{S_CNT}, 1")
        a(f"s_cbranch_scc0 {lp}")
        a(f"{ok}:")
        a(f"v_lshlrev_b32 v5, 2, v{V_LANE}")
        a(f"s_add_u32 s33, s33, {T_OFF}")
        a(f"v_add_u32 v5, s33, v5")
        for r in range(15):
            a(f"ds_read_b32 v{104+r}, v5 offset:{r*272}")
        a(f"s_waitcnt lgkmcnt(0)")
        a(f"v_mov_b32 v13, 1")
        a(f"s_mov_b64 exec, 1")
        a(f"ds_add_u32 v12, v13 offset:4")
        a(f"s_mov_b64 exec, -1")
        for r in range(15):
            a(f"v_add_f32 v{V_ACC_+r}, v{V_ACC_+r}, v{104+r}")
    else:
        if opts.get("uold") == 2:
            u_stage(a, UREG)
        kgen_pass(a, 1, [touch(0), touch(1)] if et else None, every=opts.get("etev", 14))
        if opts.get("uold") == 1:
            u_stage(a, UREG)
    a(f"s_branch {lab_kd}")
    a(f"{lab_yk}:")
    if et: touch_setup(a, True)
    if opts.get("uold"):
        kgen_pass(a, 0)
        stamp(a, 3)
        kgen_pass(a, 1, None, pk=opts.get("ypk", True))
    elif coop:
        kgen_pass(a, "one")
        stamp(a, 13)
        a("s_nop 7\ns_nop 7")
        for r in range(15):
            a(f"ds_write_addtid_b32 v{V_ACC_+r} offset:{r*272}")
        a(f"s_add_u32 s34, s{S_RB}, {CNT_OFF}")
        a(f"v_mov_b32 v12, s34")
        a(f"v_mov_b32 v13, 1")
        a(f"s_waitcnt lgkmcnt(0)")
        a(f"s_mov_b64 exec, 1")
        a(f"ds_add_u32 v12, v13")
        a(f"s_mov_b64 exec, -1")
        a("s_setprio 3")
        u_stage(a, UREG)
        a(f"s_setprio {opts.get('yprio0', 0)}")
        stamp(a, 14)
        a(f"s_add_u32 s34, s{S_RB}, {CNT_OFF + 4}")
        a(f"v_mov_b32 v12, s34")
        lp = a.label("ASP"); ok = a.label("ASOK")
        a(f"s_mov_b32 s{S_CNT}, 2000000")
        a(f"{lp}:")
        a(f"ds_read_b32 v13, v12")
        a(f"s_waitcnt lgkmcnt(0)")
        a(f"v_readfirstlane_b32 s{S_T3}, v13")
        a(f"s_nop 0")
        a(f"s_cmp_ge_u32 s{S_T3}, 1")
        a(f"s_cbranch_scc1 {ok}")
        a(f"s_sleep 1")
        a(f"s_sub_u32 s{S_CNT}, s{S_CNT}, 1")
        a(f"s_cbranch_scc0 {lp}")
        a(f"{ok}:")
        for k in range(4): a(f"v_mov_b32 v{V_PRM+k}, v{V_PRMB+k}")
        a(f"v_lshlrev_b32 v{V_DT}, 16, v{V_PRMB+4}")
        exp_accurate(a, V_DT, V_DT, T, T+1, T+2)
        round_bf16(a, V_DT, V_DT)
        kgen_pass(a, 0, None, pk=False)
        stamp(a, 3)
    elif opts.get("kofl"):
        a("s_setprio 3")
        u_stage(a, UREG)
        a("s_setprio 0")
        stamp(a, 3)
        a("v_mov_b32 v5, 0")
        get_nonce(a, END, 5, 2)
        a(f"s_lshl_b32 s33, s{S_IDX}, 2")
        a(f"s_and_b32 s34, s{S_WAVE}, 3")
        a(f"s_add_u32 s33, s33, s34")
        a(f"s_lshl_b32 s34, s33, 4")
        a(f"s_add_u32 s34, s34, {WS_KFLG}")
        poll_flags(a, END, 34, 2, 6, 8)
        a(f"s_lshl_b32 s33, s33, 13")
        a(f"s_add_u32 s33, s33, {WS_KP}")
        a(f"v_lshlrev_b32 v6, 4, v{V_LANE}")
        for p in range(2):
            for j in range(4):
                r = (V_ACC_ if p == 0 else 104) + 4*j
                a(f"s_add_u32 s34, s33, {p*4096}") if j == 0 else None
                a(f"buffer_load_dwordx4 v[{r}:{r+3}], v6, s[{SRD_WS}:{SRD_WS+3}], s34 offen offset:{j*1024} sc1")
        a("s_waitcnt vmcnt(0)")
        for k in range(16):
            a(f"v_add_f32 v{V_ACC_+k}, v{V_ACC_+k}, v{104+k}")
    elif opts.get("uimm4"):
        kgen_pass(a, 0)
        stamp(a, 3)
        if opts.get("u4mid"):
            a("s_setprio 3")
            u_stage(a, UREG)
            a("s_setprio 0")
            kgen_pass(a, 1)
        else:
            kgen_pass(a, 1)
            a("s_setprio 3")
            u_stage(a, UREG)
            a("s_setprio 0")
    elif opts.get("uimm3"):
        tmp = Asm(); tmp("s_setprio 3"); u_stage(tmp, UREG); tmp(f"s_setprio {opts.get('yprio0', 0)}")
        kgen_pass(a, 0, [[l.strip() for l in tmp.lines]], every=opts.get("u3at", 8))
        stamp(a, 3)
    elif opts.get("uimm2"):
        kgen_pass(a, 0)
        stamp(a, 3)
        a("s_setprio 3")
        u_stage(a, UREG)
    elif opts.get("uimm"):
        a("s_setprio 3")
        u_stage(a, UREG)
        a(f"s_setprio {opts.get('yprio0', 0)}")
        kgen_pass(a, 0, None, pk=False)
        stamp(a, 3)
    else:
        kgen_pass(a, 0, list(uloads), every=opts.get("uevy", 3))
        stamp(a, 3)
        a("s_setprio 3")
        u_stage(a, UREG)
    if not opts.get("kofl") and not opts.get("uimm4") and not opts.get("uold"):
        a(f"s_setprio {opts.get('yprio', 1)}")
        kgen_pass(a, 1, None, pk=False)
    a(f"{lab_kd}:")
    a("v_mov_b32 v5, 0")
    a(f"buffer_load_dwordx2 v[52:53], v5, s[{SRD_DBG}:{SRD_DBG+3}], 0 offen sc1")
    stamp(a, 4)
    if ct:
        for ins in touch(6) + touch(7): a(ins)
    a(f"v_mov_b32 v8, 0\nv_mov_b32 v9, 0\nv_mov_b32 v10, 0\nv_mov_b32 v11, 0")
    a(f"s_mov_b64 s[{S_EXEC}:{S_EXEC+1}], exec")
    if et:
        for ins in touch(2): a(ins)
    a.c("expand K -> R, G")
    a("s_nop 7")
    A = V_ACC_
    a(f"v_and_b32 v5, 31, v{V_LANE}")
    a(f"v_lshrrev_b32 v6, 5, v{V_LANE}")
    a(f"s_add_u32 s33, s{S_RB}, {R_OFF}")
    a(f"v_lshlrev_b32 v7, 4, v{V_LANE}")
    a(f"v_add_u32 v7, s33, v7")
    a(f"s_mov_b64 exec, 0x7f")
    a(f"ds_write_b128 v7, v[8:11]")
    a(f"s_mov_b64 exec, 15")
    a(f"ds_write_b128 v7, v[8:11] offset:2176")
    a(f"s_mov_b64 exec, 0xffff")
    a(f"ds_write_b128 v7, v[8:11] offset:{GD + 256}")
    a(f"s_mov_b64 exec, -1")
    a(f"v_lshlrev_b32 v12, 4, v5")
    a(f"v_lshl_add_u32 v12, v6, 3, v12")
    a(f"v_sub_u32 v12, 1656, v12")
    a(f"v_add_u32 v12, s33, v12")
    a(f"v_cvt_pk_bf16_f32 v200, v{A+3}, v{A+2}")
    a(f"v_cvt_pk_bf16_f32 v201, v{A+1}, v{A+0}")
    a(f"ds_write_b64 v12, v[200:201] offset:512")
    a(f"v_cvt_pk_bf16_f32 v202, v{A+14}, v{A+13}")
    a(f"v_cvt_pk_bf16_f32 v203, v{A+12}, v{A+12}")
    a(f"ds_write_b64 v12, v[202:203]")
    a(f"v_lshlrev_b32 v12, 4, v5")
    a(f"v_lshl_add_u32 v12, v6, 9, v12")
    a(f"v_sub_u32 v12, 1136, v12")
    a(f"v_add_u32 v12, s33, v12")
    a(f"v_cvt_pk_bf16_f32 v206, v{A+10}, v{A+10}")
    a(f"v_cvt_pk_bf16_f32 v207, v{A+9}, v{A+9}")
    a(f"v_cvt_pk_bf16_f32 v208, v{A+9}, v{A+8}")
    a(f"v_cvt_pk_bf16_f32 v209, v{A+8}, v{A+8}")
    a(f"ds_write_b128 v12, v[206:209]")
    a(f"v_cvt_pk_bf16_f32 v213, v{A+4}, v{A+4}")
    a(f"v_mov_b32 v210, 0")
    a(f"v_and_b32 v211, 0xffff0000, v213")
    a(f"v_mov_b32 v212, v213")
    a(f"v_mov_b32 v13, s33")
    a(f"s_mov_b64 exec, 1")
    a(f"ds_write_b128 v13, v[210:213] offset:112")
    a(f"s_mov_b64 exec, -1")
    a(f"v_lshlrev_b32 v12, 1, v5")
    a(f"v_lshl_add_u32 v12, v6, 7, v12")
    a(f"v_sub_u32 v12, {256 - 64}, v12")
    a(f"v_add_u32 v12, s33, v12")
    a(f"v_cvt_pk_bf16_f32 v200, v{A+4}, v{A+5}")
    a(f"ds_write_b16 v12, v200 offset:{GD + 64}")
    a(f"ds_write_b16_d16_hi v12, v200 offset:{GD}")
    a(f"v_cvt_pk_bf16_f32 v201, v{A+6}, v{A+6}")
    a(f"v_mov_b32 v202, 0")
    a(f"s_mov_b64 exec, 1")
    a(f"ds_write_b16 v13, v202 offset:{GD + 256}")
    a(f"ds_write_b16 v13, v201 offset:{GD}")
    a(f"s_mov_b64 exec, -1")
    a("s_waitcnt lgkmcnt(0)")
    a(f"v_lshlrev_b32 v6, 4, v{V_LANE}")
    a(f"s_add_u32 s34, s{S_RB}, {W_OFF}")
    a(f"v_add_u32 v6, s34, v6")
    stamp(a, 6)
    if et:
        for ins in touch(3): a(ins)
    build_W(a, 7, 6)
    if et:
        for ins in touch(4): a(ins)
    a(f"s_add_u32 s34, s{S_RB}, {W_OFF}")
    a(f"v_and_b32 v9, 31, v{V_LANE}")
    a(f"v_lshrrev_b32 v8, 5, v{V_LANE}")
    a(f"v_sub_u32 v10, 3, v9")
    a(f"v_and_b32 v10, 3, v10")
    a(f"v_lshlrev_b32 v11, 3, v8")
    a(f"v_sub_u32 v11, v11, v9")
    a(f"v_sub_u32 v11, v11, v10")
    a(f"v_lshlrev_b32 v11, 1, v11")
    a(f"v_add_u32 v11, {2*1071 - 64*33}, v11")
    a(f"v_mul_u32_u24 v10, {CS}, v10")
    a(f"v_add_u32 v11, v11, v10")
    a(f"v_add_u32 v{V_CA}, s34, v11")
    a(f"v_lshlrev_b32 v11, 4, v8")
    a(f"v_add_u32 v{V_CZ}, s{S_RB}, v11")
    a(f"v_mul_u32_u24 v10, 80, v9")
    a(f"v_add_u32 v{V_CP33}, v10, v{V_CZ}")
    a(f"v_add_u32 v{V_CQ}, 80, v{V_CP33}")
    a(f"v_mov_b32 v{V_CZ2}, s{S_RB}")
    a(f"v_mov_b32 v54, v{V_DSK}")
    a(f"v_lshlrev_b32 v10, 3, v9")
    a(f"v_lshlrev_b32 v11, 4, v8")
    a(f"v_sub_u32 v11, v11, v10")
    a(f"v_add_u32 v11, {248 + G_OFF}, v11")
    a(f"v_add_u32 v{V_GA}, s{S_RB}, v11")
    if opts.get("wtouch"):
        touch_setup(a, True)
        for kk in range(6):
            for ins in touch(kk): a(ins)
    a(f"v_mov_b32 v12, {CNT_OFF}")
    lp = a.label("USP"); ok = a.label("USOK")
    a(f"s_mov_b32 s{S_CNT}, 2000000")
    a(f"{lp}:")
    a(f"ds_read_b32 v13, v12")
    a(f"s_waitcnt lgkmcnt(0)")
    a(f"v_readfirstlane_b32 s{S_T3}, v13")
    a(f"s_nop 0")
    a(f"s_cmp_ge_u32 s{S_T3}, 4")
    a(f"s_cbranch_scc1 {ok}")
    a(f"s_sleep 2")
    a(f"s_sub_u32 s{S_CNT}, s{S_CNT}, 1")
    a(f"s_cbranch_scc0 {lp}")
    a(f"{ok}:")
    stamp(a, 7)
    a("s_setprio 0")
    if opts.get("ydprio") or opts.get("odprio"):
        labd = a.label("YDP"); labe = a.label("YDE")
        a(f"s_cmp_lt_u32 s{S_WAVE}, 4")
        a(f"s_cbranch_scc1 {labd}")
        a(f"s_setprio {opts.get('ydprio', 0)}")
        a(f"s_branch {labe}")
        a(f"{labd}:")
        a(f"s_setprio {opts.get('odprio', 0)}")
        a(f"{labe}:")
    tmp = Asm(); far_setup(tmp)
    fl = [l.strip() for l in tmp.lines]
    extra = {}
    per = (len(fl) + 59) // 60
    k = 0
    for sidx in range(2, 64):
        extra[sidx] = fl[k:k+per]; k += per
    assert k >= len(fl)
    if et:
        extra[1] = touch(5) + extra.get(1, [])
    if opts.get("dtouch", False) and not et:
        touch_setup(a, True)
        for kk in range(6):
            sidx = 1 + opts.get("dtstep", 6)*kk
            extra.setdefault(sidx, [])
            extra[sidx] = touch(kk) + extra[sidx]
    cstamp(a, 20)
    conv_dense(a, extra)
    if opts.get("odprio"):
        labf = a.label("AFD")
        a(f"s_cmp_ge_u32 s{S_WAVE}, 4")
        a(f"s_cbranch_scc1 {labf}")
        a("s_setprio 0")
        a(f"{labf}:")
    cstamp(a, 21)
    stamp(a, 8)
    conv_far(a)
    stamp(a, 10)
    a.c("conv epilogue")
    a(f"v_and_b32 v7, 31, v{V_LANE}")
    a(f"v_lshrrev_b32 v8, 5, v{V_LANE}")
    a(f"v_mul_u32_u24 v9, 80, v7")
    a(f"v_lshl_add_u32 v9, v8, 3, v9")
    a(f"v_add_u32 v9, s{S_RB}, v9")
    UV = 104
    for t in range(2):
        for q in range(4):
            r = UV + 2*(4*t+q)
            a(f"ds_read_b64 v[{r}:{r+1}], v9 offset:{80 + 2560*t + 16*q}")
    a(f"s_add_u32 s34, s{S_RB}, {W_OFF}")
    a(f"v_lshlrev_b32 v10, 6, v7")
    a(f"v_lshl_add_u32 v10, v8, 3, v10")
    a(f"v_add_u32 v10, s34, v10")
    a(f"v_lshlrev_b32 v6, 4, v{V_LANE}")
    a(f"v_add_u32 v6, s34, v6")
    a("s_waitcnt lgkmcnt(0)")
    a("s_nop 7")
    Wk = 124
    for t in range(2):
        for q in range(4):
            for h in range(2):
                uv = UV + 2*(4*t+q) + h
                y0 = V_ACC_ + 16*t + 4*q + 2*h
                o = Wk + 12 + 2*((4*t+q) & 1) + h
                w = Wk + 6*h
                a(f"v_lshlrev_b32 v{w+1}, 16, v{uv}")
                a(f"v_and_b32 v{w+2}, 0xffff0000, v{uv}")
                a(f"v_cvt_pk_bf16_f32 v{w}, v{y0}, v{y0+1}")
                a(f"v_mul_f32 v{w+1}, v{w+1}, v54")
                a(f"v_mul_f32 v{w+2}, v{w+2}, v54")
                a(f"v_lshlrev_b32 v{w+3}, 16, v{w}")
                a(f"v_cvt_pk_bf16_f32 v{w+1}, v{w+1}, v{w+2}")
                a(f"v_and_b32 v{w}, 0xffff0000, v{w}")
                a(f"v_lshlrev_b32 v{w+4}, 16, v{w+1}")
                a(f"v_and_b32 v{w+1}, 0xffff0000, v{w+1}")
                a(f"v_add_f32 v{w+3}, v{w+3}, v{w+4}")
                a(f"v_add_f32 v{w}, v{w}, v{w+1}")
                a(f"v_cvt_pk_bf16_f32 v{o}, v{w+3}, v{w}")
            o = Wk + 12 + 2*((4*t+q) & 1)
            a(f"ds_write_b64 v10, v[{o}:{o+1}] offset:{2048*t + 16*q}")
    a("s_waitcnt lgkmcnt(0)")
    for j in range(4):
        a(f"ds_read_b128 v[{104+4*j}:{107+4*j}], v6 offset:{1024*j}")
    a(f"v_lshlrev_b32 v7, 4, v{V_LANE}")
    a(f"s_lshl_b32 s33, s{S_D}, 12")
    a(f"s_add_u32 s33, s33, {WS_A}")
    for j in range(4):
        a(f"s_waitcnt lgkmcnt({3-j})")
        a(f"buffer_store_dwordx4 v[{104+4*j}:{107+4*j}], v7, s[{SRD_WS}:{SRD_WS+3}], s33 offen offset:{1024*j} sc1")
    stamp(a, 11)
    a("v_mov_b32 v5, 0")
    a("s_waitcnt vmcnt(0)")
    labn = a.label("CNOK")
    a(f"v_readfirstlane_b32 s{S_NONCE}, v52")
    a(f"v_readfirstlane_b32 s{S_NONCE+1}, v53")
    a(f"s_nop 0")
    a(f"s_cmp_lg_u32 s{S_NONCE}, 0")
    a(f"s_cbranch_scc1 {labn}")
    get_nonce(a, END, 5, 2)
    a(f"{labn}:")
    a("s_setprio 0")
    a("s_barrier")
    lab = a.label("CNF")
    a(f"s_cmp_lg_u32 s{S_WAVE}, 0")
    a(f"s_cbranch_scc1 {lab}")
    a(f"s_lshr_b32 s33, s{S_IDX}, 3")
    a(f"s_lshl_b32 s33, s33, 7")
    a(f"s_and_b32 s34, s{S_IDX}, 7")
    a(f"s_lshl_b32 s34, s34, 3")
    a(f"s_add_u32 s33, s33, s34")
    a(f"s_add_u32 s33, s33, {WS_AFLG}")
    a(f"v_mov_b32 v6, s{S_NONCE}")
    a(f"v_mov_b32 v7, s{S_NONCE+1}")
    a("s_mov_b64 exec, 1")
    a(f"buffer_store_dwordx2 v[6:7], v5, s[{SRD_WS}:{SRD_WS+3}], s33 offen sc1")
    a("s_mov_b64 exec, -1")
    a(f"{lab}:")
    stamp(a, 12)
    prof_end(a, opts.get("cprofwave", 0))
```

```python
from common import *
from g1 import (S_C, S_S, S_WM, S_WN, S_SX, S_SB, S_KC, S_T0, S_T1, S_M0X, S_CNT, S_MISM, S_T2, S_T3, S_EXEC,
                V_LANE, V_VOFF, V_AA, V_BA, V_FR, V_ACC, V_ACC2, V_LR, V_LI, V_C2, V_L32, V_L128, V_ER, V_EI, V_HR, V_HI,
                V_NON, V_T, V_ZERO, V_L16, V_EOFF, acc, acc2, cmul, cfma, g1_reads, g1_mfmas, interleave)
from g2 import poll_flags, poll_pipe
import g1 as G1MOD
PKS = {'on': False}
V_VOX = 6
V_L16P = 236
V_EA = 238

HSLOT = 17408
NHS = 6
CBASE = NHS * HSLOT
NCS = 5
NREG = 9
L_EX = CBASE + NCS*8192
L_G = L_EX + 2048
L_CNT = L_G + 1024
CNT_EX, CNT_H, CNT_X, CNT_F, CNT_E, CNT_C, CNT_R, CNT_HX0, CNT_HX1, CNT_P = [L_CNT + 4*i for i in range(10)]
L_HX = L_CNT + 64
L_CST = 0
L_XT = NREG * 8192
L_AT = 2 * HSLOT
V_CREG = 96
S_LW = 83
S_DONE = 90
S_KY, S_KB = 98, 99
S_FAST = 100
V_XC = 222

def lds_spin(a, vaddr, vtmp, target, END, sleep=False):
    lp = a.label("SPIN"); ok = a.label("SPOK")
    a(f"s_mov_b32 s{S_CNT}, 2000000")
    a(f"{lp}:")
    a(f"ds_read_b32 v{vtmp}, v{vaddr}")
    a(f"s_waitcnt lgkmcnt(0)")
    a(f"v_readfirstlane_b32 s{S_T3}, v{vtmp}")
    a(f"s_nop 0")
    a(f"s_cmp_ge_u32 s{S_T3}, {target}")
    a(f"s_cbranch_scc1 {ok}")
    a(f"s_sleep 1")
    a(f"s_sub_u32 s{S_CNT}, s{S_CNT}, 1")
    a(f"s_cbranch_scc0 {lp}")
    a(f"{ok}:")

def lds_inc(a, vaddr, vone):
    a(f"s_mov_b64 s[{S_EXEC}:{S_EXEC+1}], exec")
    a(f"s_mov_b64 exec, 1")
    a(f"ds_add_u32 v{vaddr}, v{vone}")
    a(f"s_mov_b64 exec, s[{S_EXEC}:{S_EXEC+1}]")

def ld_g1_dma(a, it):
    slot = it % 4
    a(f"s_lshl_b32 s{S_T0}, s{S_KC}, 7")
    a(f"s_add_u32 s{S_T1}, s{S_T0}, s{S_SB}")
    a(f"s_add_u32 s{S_T0}, s{S_T0}, s{S_SX}")
    for jj in range(4):
        a(f"s_add_u32 m0, s{S_M0X}, {slot*16384 + jj*1024}")
        a(f"s_nop 0")
        a(f"buffer_load_dwordx4 v{(V_VOX if PKS['on'] else V_VOFF)+jj}, s[{SRD_X}:{SRD_X+3}], s{S_T0} offen lds")
        a(f"s_add_u32 m0, s{S_M0X}, {65536 + slot*16384 + jj*1024}")
        a(f"s_nop 0")
        a(f"buffer_load_dwordx4 v{V_VOFF+jj}, s[{SRD_A}:{SRD_A+3}], s{S_T1} offen lds")
    a(f"s_add_u32 s{S_KC}, s{S_KC}, 1")
    a(f"s_cmp_eq_u32 s{S_KC}, 10")
    a(f"s_cselect_b32 s{S_KC}, 0, s{S_KC}")

S_HB, S_CB, S_SP, S_SPC = 76, 77, 78, 91
S_M0H, S_M0C = 81, 92

def ld_c_chunk(a, ch):
    plane = ch & 1
    dst = L_CST + ch*8192 if ch < NREG else CBASE + ((ch - NREG) % NCS)*8192
    srd = SRD_C if plane else SRD_B
    a(f"s_lshl_b32 s{S_T1}, s{S_SPC}, 7")
    a(f"s_add_u32 s{S_T1}, s{S_T1}, s{S_CB}")
    for jj in range(2):
        a(f"s_add_u32 m0, s{S_M0C}, {dst + jj*1024}")
        a(f"s_nop 0")
        a(f"buffer_load_dwordx4 v{V_VOFF+jj}, s[{srd}:{srd+3}], s{S_T1} offen lds")
    if plane:
        a(f"s_add_u32 s{S_SPC}, s{S_SPC}, 1")
        a(f"s_cmp_eq_u32 s{S_SPC}, 10")
        a(f"s_cselect_b32 s{S_SPC}, 0, s{S_SPC}")

HSC = {"v": "sc1"}
def ld_h_stage(a, it):
    slot = it % NHS
    plane = it & 1
    a(f"s_lshl_b32 s{S_T0}, s{S_SP}, 14")
    a(f"s_add_u32 s{S_T0}, s{S_T0}, s{S_HB}")
    if plane: a(f"s_add_u32 s{S_T0}, s{S_T0}, {10*16384}")
    for jj in range(4):
        a(f"s_add_u32 m0, s{S_M0H}, {slot*HSLOT + jj*64}")
        a(f"s_nop 0")
        a(f"buffer_load_dwordx4 v{V_L16}, s[{SRD_WS}:{SRD_WS+3}], s{S_T0} offen offset:{jj*1024} {HSC['v']} lds")
    if plane:
        a(f"s_add_u32 s{S_SP}, s{S_SP}, 1")
        a(f"s_cmp_eq_u32 s{S_SP}, 10")
        a(f"s_cselect_b32 s{S_SP}, 0, s{S_SP}")

S_AT0, S_AT1 = 95, 101
def a_tile_addr(a, T):
    a(f"v_lshrrev_b32 v{T}, 4, v{V_LANE}")
    a(f"v_and_b32 v{T+1}, 15, v{V_LANE}")
    a(f"s_lshl_b32 s34, s{S_S}, 6")
    a(f"s_lshl_b32 s35, s{S_LW}, 4")
    a(f"s_add_u32 s34, s34, s35")
    a(f"s_lshl_b32 s34, s34, 12")
    a(f"s_lshl_b32 s35, s{S_C}, 8")
    a(f"s_add_u32 s34, s34, s35")
    a(f"s_add_u32 s{S_AT0}, s34, {WS_A}")
    a(f"s_lshl_b32 s{S_AT1}, s{S_LW}, 12")
    a(f"s_add_u32 s{S_AT1}, s{S_AT1}, {L_AT}")
    for jj in range(4):
        a(f"v_add_u32 v{T+2}, {4*jj}, v{T}")
        a(f"v_xor_b32 v{T+2}, v{T+2}, v{T+1}")
        a(f"v_lshlrev_b32 v{T+2}, 4, v{T+2}")
        a(f"v_lshl_add_u32 v{236+jj}, v{T}, 12, v{T+2}")

def ld_a_tile(a, T):
    for jj in range(4):
        a(f"s_add_u32 m0, s{S_AT1}, {jj*1024}")
        a(f"s_add_u32 s35, s{S_AT0}, {jj*4*4096}")
        a(f"buffer_load_dwordx4 v{236+jj}, s[{SRD_WS}:{SRD_WS+3}], s35 offen sc1 lds")

def ld_g_tile(a):
    a(f"s_lshl_b32 s34, s{S_C}, 10")
    a(f"s_add_u32 s34, s34, {WS_G}")
    a(f"s_mov_b32 m0, {L_G}")
    a(f"s_nop 0")
    a(f"buffer_load_dwordx4 v{V_L16}, s[{SRD_WS}:{SRD_WS+3}], s34 offen sc1 lds")

def gen_loader(a, END, opts):
    HSC["v"] = opts.get("hsc", "sc1")
    a.c("---------- loader waves ----------")
    T = V_T
    a(f"s_sub_u32 s{S_LW}, s{S_WAVE}, 4")
    a(f"v_lshrrev_b32 v{T+5}, 3, v{V_LANE}")
    a(f"v_mul_u32_u24 v{T+5}, 1280, v{T+5}")
    a(f"v_and_b32 v{T+6}, 7, v{V_LANE}")
    a(f"v_lshrrev_b32 v{T+7}, 4, v{V_LANE}")
    a(f"v_xor_b32 v{T+6}, v{T+6}, v{T+7}")
    a(f"v_lshl_add_u32 v{V_VOFF}, v{T+6}, 4, v{T+5}")
    a(f"v_xor_b32 v{V_VOFF+1}, 64, v{V_VOFF}")
    a(f"v_add_u32 v{V_VOFF+1}, 10240, v{V_VOFF+1}")
    a(f"v_add_u32 v{V_VOFF+2}, 20480, v{V_VOFF}")
    a(f"v_add_u32 v{V_VOFF+3}, 20480, v{V_VOFF+1}")
    if PKS["on"]:
        a(f"v_mov_b32 v{V_VOX}, v{V_VOFF}")
        a(f"v_add_u32 v{V_VOX+1}, 10240, v{V_VOFF}")
        a(f"v_xor_b32 v{V_VOX+2}, 64, v{V_VOFF}")
        a(f"v_add_u32 v{V_VOX+3}, 30720, v{V_VOX+2}")
        a(f"v_add_u32 v{V_VOX+2}, 20480, v{V_VOX+2}")
    a(f"s_lshl_b32 s34, s{S_C}, 7")
    a(f"s_lshl_b32 s35, s{S_LW}, 5")
    a(f"s_add_u32 s34, s34, s35")
    a(f"s_mul_i32 s{S_SX}, s34, 1280")
    a(f"s_lshl_b32 s34, s{S_S}, 6")
    a(f"s_and_b32 s35, s{S_LW}, 1")
    a(f"s_lshl_b32 s35, s35, 5")
    a(f"s_add_u32 s34, s34, s35")
    a(f"s_mul_i32 s{S_SB}, s34, 1280")
    a(f"s_lshl_b32 s{S_M0X}, s{S_LW}, 12")
    a(f"s_mov_b32 s{S_KC}, s93")
    if EARLY["on"]: common_init(a)
    a(f"s_cmp_ge_u32 s{S_LW}, 2")
    a(f"s_cselect_b32 s{SRD_A}, s{P_BIM}, s{P_BRE}")
    a(f"s_cselect_b32 s{SRD_A+1}, s{P_BIM+1}, s{P_BRE+1}")
    a(f"s_and_b32 s{SRD_A+1}, s{SRD_A+1}, 0xffff")
    a(f"s_mov_b32 s{SRD_A+2}, 819200")
    a(f"s_mov_b32 s{SRD_A+3}, 0x00020000")
    for it in range(2): ld_g1_dma(a, it)
    stamp(a, 1)
    a(f"v_mov_b32 v{V_ZERO}, 0")
    a(f"v_lshlrev_b32 v{V_L16}, 4, v{V_LANE}")
    a(f"s_waitcnt vmcnt(8)")
    a(f"s_barrier")
    ld_g1_dma(a, 2)
    for nit in range(1, 10):
        a(f"s_waitcnt vmcnt({0 if nit == 9 else 8})")
        if opts.get("profl"): stamp(a, 9 + nit)
        a(f"s_barrier")
        if nit + 2 < 10: ld_g1_dma(a, nit + 2)
    a(f"s_barrier")
    stamp(a, 2)
    make_srd(a, SRD_B, P_C2RE, 819200)
    make_srd(a, SRD_C, P_C2IM, 819200)
    a(f"buffer_load_dwordx2 v[{V_NON}:{V_NON+1}], v{V_ZERO}, s[{SRD_DBG}:{SRD_DBG+3}], 0 offen sc1")
    if opts.get("pwait", True):
        a(f"v_mov_b32 v{T+4}, {CNT_EX if opts.get('pwex') else CNT_P}")
        lds_spin(a, T+4, T+6, 4, END)
    a(f"v_lshrrev_b32 v{T}, 3, v{V_LANE}")
    a(f"v_mul_u32_u24 v{T}, 1280, v{T}")
    a(f"v_and_b32 v{T+1}, 7, v{V_LANE}")
    a(f"v_lshl_add_u32 v{T}, v{T+1}, 4, v{T}")
    a(f"s_lshl_b32 s35, s{S_S}, 7")
    a(f"s_add_u32 s34, s{S_SX}, s35")
    a(f"s_add_u32 s{S_T2}, s{S_M0X}, {L_XT}")
    for jj in range(4):
        a(f"s_add_u32 m0, s{S_T2}, {jj*1024}")
        a(f"s_add_u32 s35, s34, {jj*10240}")
        a(f"buffer_load_dwordx4 v{T}, s[{SRD_X}:{SRD_X+3}], s35 offen lds")
    if opts.get("cwait", False):
        a(f"v_mov_b32 v{T+4}, {CNT_E}")
        lds_spin(a, T+4, T+6, 4, END, sleep=True)
    a(f"s_lshl_b32 s34, s{S_S}, 6")
    a(f"s_lshl_b32 s35, s{S_LW}, 4")
    a(f"s_add_u32 s34, s34, s35")
    a(f"s_mul_i32 s{S_CB}, s34, 1280")
    a(f"s_mov_b32 s{S_SPC}, {'s%d' % S_S if opts.get('ownfirst') else 's93'}")
    a(f"s_mov_b32 s94, s{S_SPC}")
    a(f"s_lshl_b32 s{S_M0C}, s{S_LW}, 11")
    thr = opts.get("cthr", 2)
    for ch in range(NREG + NCS):
        ld_c_chunk(a, ch)
        if thr: a(f"s_waitcnt vmcnt({thr})")
        if ch == 3:
            if not thr or thr > 8: a(f"s_waitcnt vmcnt(8)")
            a(f"v_mov_b32 v{T+4}, {CNT_X}")
            a(f"v_mov_b32 v{T+5}, 1")
            lds_inc(a, T+4, T+5)
        if opts.get("profc"): stamp(a, 10 + ch)
    a(f"s_waitcnt vmcnt(0)")
    a(f"v_mov_b32 v{T+4}, {CNT_C}")
    a(f"v_mov_b32 v{T+5}, 1")
    lds_inc(a, T+4, T+5)
    if opts.get("touchc", True):
        a(f"v_lshrrev_b32 v{T+6}, 2, v{V_LANE}")
        a(f"v_mul_u32_u24 v{T+6}, 1280, v{T+6}")
        a(f"v_and_b32 v{T+7}, 3, v{V_LANE}")
        a(f"v_lshl_add_u32 v{T+6}, v{T+7}, 6, v{T+6}")
        a(f"s_mov_b32 s{S_T2}, s{S_SPC}")
        for k in range(2):
            for srd in (SRD_B, SRD_C):
                a(f"s_lshl_b32 s{S_T1}, s{S_T2}, 7")
                a(f"s_add_u32 s{S_T1}, s{S_T1}, s{S_CB}")
                a(f"buffer_load_dword v{T+8}, v{T+6}, s[{srd}:{srd+3}], s{S_T1} offen")
                if thr: a(f"s_waitcnt vmcnt(1)")
            a(f"s_add_u32 s{S_T2}, s{S_T2}, 2")
            a(f"s_cmp_ge_u32 s{S_T2}, 10")
            a(f"s_cselect_b32 s34, 10, 0")
            a(f"s_sub_u32 s{S_T2}, s{S_T2}, s34")
    stamp(a, 3)
    lp = a.label("LNP"); ok = a.label("LNOK")
    a(f"s_mov_b32 s{S_CNT}, 100000")
    a(f"s_waitcnt vmcnt(0)")
    a(f"{lp}:")
    a(f"v_readfirstlane_b32 s{S_NONCE}, v{V_NON}")
    a(f"v_readfirstlane_b32 s{S_NONCE+1}, v{V_NON+1}")
    a(f"s_nop 0")
    a(f"s_cmp_lg_u32 s{S_NONCE}, 0")
    a(f"s_cbranch_scc1 {ok}")
    poll_timeout(a, S_CNT, END)
    a(f"buffer_load_dwordx2 v[{V_NON}:{V_NON+1}], v{V_ZERO}, s[{SRD_DBG}:{SRD_DBG+3}], 0 offen sc1")
    a(f"s_waitcnt vmcnt(0)")
    a(f"s_branch {lp}")
    a(f"{ok}:")
    stamp(a, 4)
    a(f"s_mul_i32 s34, s{S_C}, {20*16384}")
    a(f"s_lshl_b32 s35, s{S_LW}, 12")
    a(f"s_add_u32 s34, s34, s35")
    a(f"s_add_u32 s{S_HB}, s34, {WS_H}")
    a(f"s_mov_b32 s{S_SP}, s94")
    a(f"s_mul_i32 s{S_M0H}, s{S_LW}, 4352")
    def poll_h():
        labp = a.label("HP1"); labq = a.label("HP2")
        a(f"v_mov_b32 v{T+4}, {CNT_F}")
        a(f"s_cmp_lg_u32 s{S_LW}, 0")
        a(f"s_cbranch_scc1 {labp}")
        a(f"s_lshl_b32 s34, s{S_C}, 7")
        a(f"s_add_u32 s34, s34, {WS_FLAG}")
        if opts.get("ppipe"):
            a(f"v_lshlrev_b32 v{T}, 3, v{V_LANE}")
            poll_pipe(a, T, "s34", "0x3ff", 230)
        else:
            poll_flags(a, END, 34, 10, T, T+2)
        a(f"v_mov_b32 v{T+5}, 1")
        lds_inc(a, T+4, T+5)
        a(f"s_branch {labq}")
        a(f"{labp}:")
        labg = a.label("GT")
        a(f"s_cmp_lg_u32 s{S_LW}, 1")
        a(f"s_cbranch_scc1 {labg}")
        a(f"s_lshl_b32 s34, s{S_C}, 7")
        a(f"s_add_u32 s34, s34, {WS_FLAG + 80}")
        poll_flags(a, END, 34, 1, T, T+2)
        ld_g_tile(a)
        a(f"{labg}:")
        a(f"v_mov_b32 v{T+4}, {CNT_F}")
        lds_spin(a, T+4, T+6, 1, END)
        a(f"{labq}:")
    PF = NHS - 2
    FL = T + 10
    own = opts.get("ownfirst")
    if own:
        a(f"v_mov_b32 v{T+4}, {CNT_R}")
        lds_spin(a, T+4, T+6, 4, END)
        stamp(a, 8)
        ld_h_stage(a, 0); ld_h_stage(a, 1)
        a(f"s_waitcnt vmcnt(4)")
        a(f"s_barrier")
        stamp(a, 6)
        a(f"s_waitcnt vmcnt(0)")
        a(f"s_barrier")
        poll_h()
        stamp(a, 5)
        for it in range(2, 6): ld_h_stage(a, it)
        a(f"s_mov_b32 s{S_DONE}, 0")
        q = [("h", k, 4) for k in range(2, 6)]
        first = 2
    else:
        poll_h()
        stamp(a, 5)
        a(f"v_mov_b32 v{T+4}, {CNT_R}")
        lds_spin(a, T+4, T+6, 4, END)
        stamp(a, 8)
        for it in range(PF): ld_h_stage(a, it)
        stamp(a, 9)
        a(f"s_waitcnt vmcnt({4*(PF-1)})")
        a(f"s_barrier")
        stamp(a, 6)
        a(f"s_mov_b32 s{S_DONE}, 0")
        q = [("h", k, 4) for k in range(1, PF)]
        ld_h_stage(a, PF); q.append(("h", PF, 4))
        first = 1
    for nit in range(first, 20):
        idx = max(i for i, e in enumerate(q) if (e[0] == "h" and e[1] == nit) or (e[0] == "c" and e[1] == nit))
        rem = sum(e[2] for e in q[idx+1:])
        if opts.get("amulti") and nit == 19:
            l1 = a.label("W19"); l2 = a.label("W19")
            a(f"s_cmp_eq_u32 s{S_DONE}, 1")
            a(f"s_cbranch_scc1 {l1}")
            a(f"s_waitcnt vmcnt({rem})")
            a(f"s_branch {l2}")
            a(f"{l1}:")
            a(f"s_waitcnt vmcnt({rem + 4})")
            a(f"{l2}:")
        else:
            a(f"s_waitcnt vmcnt({min(rem, 63)})")
        if opts.get("profl") and nit <= 12: stamp(a, 19 + nit)
        if opts.get("profl2") and nit >= 8: stamp(a, 2 + nit)
        q = q[idx+1:]
        a(f"s_barrier")
        ch = nit - 2 + NCS
        if ch >= NREG + NCS and ch < 20:
            ld_c_chunk(a, ch); q.append(("c", ch, 2))
        if nit + PF < 20:
            ld_h_stage(a, nit + PF); q.append(("h", nit + PF, 4))
        if nit == 12:
            a(f"v_lshlrev_b32 v{T}, 3, v{V_LANE}")
            a(f"s_lshl_b32 s34, s{S_S}, 7")
            a(f"s_add_u32 s34, s34, {WS_AFLG}")
            a(f"v_add_u32 v{T+14}, s34, v{T}")
            a_tile_addr(a, T)
        if opts.get("amulti"):
            if nit in (13, 14, 15, 16):
                r = 226 + 2*(nit - 13)
                a(f"s_mov_b64 s[{S_EXEC}:{S_EXEC+1}], exec")
                a(f"s_mov_b64 exec, 0xff")
                a(f"buffer_load_dwordx2 v[{r}:{r+1}], v{T+14}, s[{SRD_WS}:{SRD_WS+3}], 0 offen sc1")
                a(f"s_mov_b64 exec, s[{S_EXEC}:{S_EXEC+1}]")
                q.append(("f", nit, 1))
            if nit in (16, 17, 18, 19):
                k = nit - 3
                r = 226 + 2*(k - 13)
                lab = a.label("AMC")
                a(f"s_cmp_eq_u32 s{S_DONE}, 1")
                a(f"s_cbranch_scc1 {lab}")
                idf = [i for i, e in enumerate(q) if e[0] == "f" and e[1] == k]
                if idf:
                    a(f"s_waitcnt vmcnt({sum(e[2] for e in q[idf[0]+1:])})")
                a(f"s_mov_b64 s[{S_EXEC}:{S_EXEC+1}], exec")
                a(f"s_mov_b64 exec, 0xff")
                a(f"v_cmp_ne_u64 vcc, s[{S_NONCE}:{S_NONCE+1}], v[{r}:{r+1}]")
                a(f"s_mov_b64 exec, s[{S_EXEC}:{S_EXEC+1}]")
                a(f"s_cmp_lg_u64 vcc, 0")
                a(f"s_cbranch_scc1 {lab}")
                ld_a_tile(a, T)
                a(f"s_mov_b32 s{S_DONE}, 1")
                a(f"{lab}:")
        else:
            if nit == opts.get("achk", 15):
                a(f"s_mov_b64 s[{S_EXEC}:{S_EXEC+1}], exec")
                a(f"s_mov_b64 exec, 0xff")
                a(f"buffer_load_dwordx2 v[{FL}:{FL+1}], v{T+14}, s[{SRD_WS}:{SRD_WS+3}], 0 offen sc1")
                a(f"s_mov_b64 exec, s[{S_EXEC}:{S_EXEC+1}]")
                q.append(("f", 0, 1))
            if nit == 18:
                if any(e[0] == "f" for e in q):
                    idf = max(i for i, e in enumerate(q) if e[0] == "f")
                    a(f"s_waitcnt vmcnt({sum(e[2] for e in q[idf+1:])})")
                    q = q[idf+1:]
                lab = a.label("ANR")
                a(f"s_mov_b64 s[{S_EXEC}:{S_EXEC+1}], exec")
                a(f"s_mov_b64 exec, 0xff")
                a(f"v_cmp_ne_u64 vcc, s[{S_NONCE}:{S_NONCE+1}], v[{FL}:{FL+1}]")
                a(f"s_mov_b64 exec, s[{S_EXEC}:{S_EXEC+1}]")
                a(f"s_cmp_lg_u64 vcc, 0")
                a(f"s_cbranch_scc1 {lab}")
                ld_a_tile(a, T)
                a(f"s_mov_b32 s{S_DONE}, 1")
                lab2 = a.label("ANR2")
                a(f"s_branch {lab2}")
                a(f"{lab}:")
                for _ in range(4):
                    a(f"buffer_load_dword v{T+8}, v{V_ZERO}, s[{SRD_X}:{SRD_X+3}], 0 offen")
                a(f"{lab2}:")
                q.append(("a", 0, 4))
    lab = a.label("ADONE")
    a(f"s_cmp_eq_u32 s{S_DONE}, 1")
    a(f"s_cbranch_scc1 {lab}")
    if opts.get("ppipe"):
        poll_pipe(a, T+14, "0", "0xff", 230)
    else:
        lp = a.label("AGP"); ld = a.label("AGD")
        a(f"s_mov_b32 s{S_CNT}, 100000")
        a(f"s_mov_b64 s[{S_EXEC}:{S_EXEC+1}], exec")
        a(f"s_mov_b64 exec, 0xff")
        a(f"{lp}:")
        a(f"buffer_load_dwordx2 v[{FL}:{FL+1}], v{T+14}, s[{SRD_WS}:{SRD_WS+3}], 0 offen sc1")
        a(f"s_waitcnt vmcnt(0)")
        a(f"v_cmp_ne_u64 vcc, s[{S_NONCE}:{S_NONCE+1}], v[{FL}:{FL+1}]")
        a(f"s_cmp_eq_u64 vcc, 0")
        a(f"s_cbranch_scc1 {ld}")
        a(f"s_sleep 1")
        a(f"s_sub_u32 s{S_CNT}, s{S_CNT}, 1")
        a(f"s_cbranch_scc0 {lp}")
        a(f"{ld}:")
        a(f"s_mov_b64 exec, s[{S_EXEC}:{S_EXEC+1}]")
    ld_a_tile(a, T)
    a(f"{lab}:")
    a(f"s_waitcnt vmcnt(0)")
    stamp(a, 7)
    a(f"s_barrier")
    prof_end(a, 4, 32768)
    a(f"s_branch {END}")

G2_FR = 16
G2_ACC = 64
V_HA = 6
V_CB = 10
V_HA2 = 7

G2_NS = 4
def g2_reads(it, ks):
    slot = it % NHS
    st = G2_FR + 12 * ((4*it + ks) % G2_NS)
    base = slot*HSLOT + (ks >> 1)*4352 + (ks & 1)*256
    out = []
    for m in range(2):
        for half in range(2):
            off = base + m*512 + half*64
            reg = V_HA if off < 65536 else V_HA2
            if off >= 65536: off -= 3*HSLOT
            out.append(f"ds_read_b64_tr_b16 v[{st+4*m+2*half}:{st+4*m+2*half+1}], v{reg} offset:{off}")
    if it >= NREG:
        cs = (it - NREG) % NCS
        out.append(f"ds_read_b128 v[{st+8}:{st+11}], v{V_CB+ks} offset:{cs*8192}")
    return out

def g2_mfmas(it, ks):
    st = G2_FR + 12 * ((4*it + ks) % G2_NS)
    out = []
    b = (V_CREG + 16*it + 4*ks) if it < NREG else st + 8
    for m in range(2):
        d = G2_ACC + 16*m
        out.append(f"v_mfma_f32_32x32x16_bf16 v[{d}:{d+15}], v[{st+4*m}:{st+4*m+3}], v[{b}:{b+3}], v[{d}:{d+15}]")
    return out

def gen_compute(a, END, opts):
    a.c("---------- compute waves ----------")
    T = V_T
    a(f"s_lshr_b32 s{S_WM}, s{S_WAVE}, 1")
    a(f"s_and_b32 s{S_WN}, s{S_WAVE}, 1")
    lab = a.label("NOINIT")
    a(f"s_cmp_lg_u32 s{S_WAVE}, 0")
    a(f"s_cbranch_scc1 {lab}")
    a(f"v_lshlrev_b32 v{T}, 2, v{V_LANE}")
    a(f"v_add_u32 v{T}, {L_CNT}, v{T}")
    a(f"v_mov_b32 v{T+1}, 0")
    a(f"s_mov_b64 exec, 0xffff")
    a(f"ds_write_b32 v{T}, v{T+1}")
    a(f"s_mov_b64 exec, -1")
    a(f"{lab}:")
    loc = opts.get("local")
    kofl = opts.get("kofl")
    if kofl:
        import conv2
        a(f"s_mul_i32 s34, s{S_C}, 10")
        a(f"s_add_u32 s34, s34, s{S_S}")
        a(f"s_lshl_b32 s34, s34, 1")
        a(f"s_add_u32 s{S_KY}, s34, s{S_WN}")
        a(f"s_lshr_b32 s34, s{S_KY}, 2")
        a(f"s_lshl_b32 s34, s34, 3")
        a(f"s_and_b32 s35, s{S_KY}, 3")
        a(f"s_add_u32 s34, s34, s35")
        a(f"s_add_u32 s34, s34, 4")
        a(f"v_lshlrev_b32 v2, 2, v{V_LANE}")
        a(f"s_lshl_b32 s35, s34, 8")
        for k, P in enumerate([P_LOGA, P_AIM, P_CRE, P_CIM]):
            make_srd(a, SRD_A, P, 163840)
            a(f"buffer_load_dword v{conv2.V_PRM+k}, v2, s[{SRD_A}:{SRD_A+3}], s35 offen")
        a(f"s_lshl_b32 s35, s34, 1")
        a(f"v_mov_b32 v3, 0")
        make_srd(a, SRD_A, P_LOGDT, 1280)
        a(f"buffer_load_ushort v{conv2.V_PRM+4}, v3, s[{SRD_A}:{SRD_A+3}], s35 offen")
        a(f"buffer_load_dwordx2 v[{V_NON}:{V_NON+1}], v3, s[{SRD_DBG}:{SRD_DBG+3}], 0 offen sc1")
    a(f"v_and_b32 v{T}, 31, v{V_LANE}")
    a(f"s_lshl_b32 s34, s{S_S}, 6")
    a(f"s_lshl_b32 s35, s{S_WN}, 5")
    a(f"s_add_u32 s34, s34, s35")
    a(f"v_add_u32 v{T+1}, s34, v{T}")
    a(f"v_lshlrev_b32 v{V_EOFF}, 4, v{T+1}")
    a(f"v_lshlrev_b32 v{T+1}, 1, v{T+1}")
    make_srd(a, SRD_B, P_LRE, 1280)
    a(f"buffer_load_ushort v{T+2}, v{T+1}, s[{SRD_B}:{SRD_B+3}], 0 offen")
    make_srd(a, SRD_A, P_LIM, 1280)
    a(f"buffer_load_ushort v{T+3}, v{T+1}, s[{SRD_A}:{SRD_A+3}], 0 offen")
    make_srd(a, 92, P_LOGDTB, 1280)
    a(f"buffer_load_ushort v{T+4}, v{T+1}, s[92:95], 0 offen")
    V_DSB = 227
    make_srd(a, SRD_B, P_DSKB, 1280)
    a(f"buffer_load_ushort v{V_DSB}, v{T+1}, s[{SRD_B}:{SRD_B+3}], 0 offen")
    make_srd(a, SRD_C, P_OUT, 5242880)
    a(f"v_and_b32 v{T+5}, 31, v{V_LANE}")
    a(f"v_lshrrev_b32 v{T+6}, 5, v{V_LANE}")
    if PKS["on"]:
        a(f"v_bfe_u32 v{T+7}, v{T+5}, 2, 1")
        a(f"v_lshlrev_b32 v{T+7}, 5, v{T+7}")
        a(f"v_and_b32 v{T+8}, 1, v{T+5}")
        a(f"v_lshl_add_u32 v{T+7}, v{T+8}, 4, v{T+7}")
        a(f"v_lshrrev_b32 v{T+8}, 3, v{T+5}")
        a(f"v_lshl_add_u32 v{T+7}, v{T+8}, 1, v{T+7}")
        a(f"v_bfe_u32 v{T+8}, v{T+5}, 1, 1")
        a(f"v_add_u32 v{T+7}, v{T+7}, v{T+8}")
        a(f"s_lshl_b32 s34, s{S_WM}, 6")
        a(f"v_add_u32 v{T+7}, s34, v{T+7}")
        a(f"v_bfe_u32 v{T+8}, v{T+7}, 1, 2")
        a(f"v_bfe_u32 v{T+9}, v{T+7}, 4, 1")
        a(f"v_lshl_or_b32 v{T+8}, v{T+9}, 2, v{T+8}")
        a(f"v_xor_b32 v{T+8}, v{T+8}, v{T+6}")
        a(f"v_lshlrev_b32 v{T+8}, 4, v{T+8}")
        a(f"v_lshl_add_u32 v{V_AA}, v{T+7}, 7, v{T+8}")
    else:
        a(f"v_bfe_u32 v{T+7}, v{T+5}, 2, 1")
        a(f"v_lshlrev_b32 v{T+7}, 5, v{T+7}")
        a(f"v_lshrrev_b32 v{T+8}, 3, v{T+5}")
        a(f"v_lshl_add_u32 v{T+7}, v{T+8}, 2, v{T+7}")
        a(f"v_and_b32 v{T+8}, 3, v{T+5}")
        a(f"v_add_u32 v{T+7}, v{T+7}, v{T+8}")
        a(f"s_lshl_b32 s34, s{S_WM}, 6")
        a(f"v_add_u32 v{T+7}, s34, v{T+7}")
        a(f"v_bfe_u32 v{T+8}, v{T+7}, 1, 3")
        a(f"v_xor_b32 v{T+8}, v{T+8}, v{T+6}")
        a(f"v_lshlrev_b32 v{T+8}, 4, v{T+8}")
        a(f"v_lshl_add_u32 v{V_AA}, v{T+7}, 7, v{T+8}")
    for ks in range(1, 4): a(f"v_xor_b32 v{V_AA+ks}, {32*ks}, v{V_AA}")
    a(f"s_lshl_b32 s34, s{S_WN}, 5")
    a(f"v_add_u32 v{T+7}, s34, v{T+5}")
    a(f"v_bfe_u32 v{T+8}, v{T+7}, 1, 3")
    a(f"v_xor_b32 v{T+8}, v{T+8}, v{T+6}")
    a(f"v_lshlrev_b32 v{T+8}, 4, v{T+8}")
    a(f"v_lshl_add_u32 v{V_BA}, v{T+7}, 7, v{T+8}")
    a(f"v_mov_b32 v{221}, v{V_BA}")
    a(f"v_add_u32 v{V_BA}, 0x10000, v{V_BA}")
    for ks in range(1, 4): a(f"v_xor_b32 v{V_BA+ks}, {32*ks}, v{V_BA}")
    a(f"v_mov_b32 v{V_ZERO}, 0")
    a(f"v_lshlrev_b32 v{V_L16}, 4, v{V_LANE}")
    stamp(a, 1)
    if kofl:
        a(f"s_and_b32 s34, s{S_WAVE}, 1")
        a(f"s_mul_i32 s34, s34, 15232")
        a(f"s_lshr_b32 s35, s{S_WAVE}, 1")
        a(f"s_lshl_b32 s35, s35, 16")
        a(f"s_add_u32 s34, s34, s35")
        a(f"s_add_u32 s{S_KB}, s34, 32768")
        conv2.kgen_addr_setup(a, f"s{S_KB}")
        a(f"s_waitcnt vmcnt(5)")
        TK = conv2.V_T_
        a(f"v_lshlrev_b32 v{conv2.V_DT}, 16, v{conv2.V_PRM+4}")
        exp_accurate(a, conv2.V_DT, conv2.V_DT, TK, TK+1, TK+2)
        round_bf16(a, conv2.V_DT, conv2.V_DT)
        conv2.kgen_pass(a, f"s{S_WM}")
        a("s_nop 7\ns_nop 7\ns_nop 1")
        a(f"s_lshl_b32 s34, s{S_KY}, 1")
        a(f"s_add_u32 s34, s34, s{S_WM}")
        a(f"s_lshl_b32 s34, s34, 12")
        a(f"s_add_u32 s34, s34, {WS_KP}")
        for j in range(4):
            a(f"buffer_store_dwordx4 v[{64+4*j}:{67+4*j}], v{V_L16}, s[{SRD_WS}:{SRD_WS+3}], s34 offen offset:{j*1024} sc1")
        stamp(a, 14)
        a(f"s_waitcnt vmcnt(4)")
    else:
        a(f"s_waitcnt vmcnt(0)")
    a(f"v_lshlrev_b32 v{V_DSB}, 16, v{V_DSB}")
    a(f"v_lshlrev_b32 v{T+2}, 16, v{T+2}")
    a(f"v_lshlrev_b32 v{T+3}, 16, v{T+3}")
    a(f"v_lshlrev_b32 v{T+4}, 16, v{T+4}")
    exp_accurate(a, T+4, T+4, T+5, T+6, T+7)
    round_bf16(a, T+4, T+4)
    a(f"v_mul_f32 v{T+5}, v{T+4}, v{T+2}")
    a(f"v_mul_f32 v{T+6}, v{T+4}, v{T+3}")
    exp_accurate(a, T+5, T+5, T+7, T+8, T+9)
    a(f"v_mul_f32 v{T+6}, {fhex(INV2PI)}, v{T+6}")
    a(f"v_fract_f32 v{T+6}, v{T+6}")
    a(f"v_cos_f32 v{T+7}, v{T+6}")
    a(f"v_sin_f32 v{T+8}, v{T+6}")
    a(f"s_nop 0")
    a(f"v_mul_f32 v{V_LR}, v{T+5}, v{T+7}")
    a(f"v_mul_f32 v{V_LI}, v{T+5}, v{T+8}")
    a(f"v_add_f32 v{T+5}, -1.0, v{V_LR}")
    a(f"v_mul_f32 v{T+6}, v{T+2}, v{T+2}")
    a(f"v_fma_f32 v{T+6}, v{T+3}, v{T+3}, v{T+6}")
    a(f"v_rcp_f32 v{T+7}, v{T+6}")
    a(f"v_mul_f32 v{T+8}, v{T+5}, v{T+2}")
    a(f"v_fma_f32 v{T+9}, -v{T+6}, v{T+7}, 2.0")
    a(f"v_mul_f32 v{T+7}, v{T+7}, v{T+9}")
    a(f"v_fma_f32 v{T+8}, v{V_LI}, v{T+3}, v{T+8}")
    a(f"v_mul_f32 v{T+9}, v{V_LI}, v{T+2}")
    a(f"v_fma_f32 v{T+9}, -v{T+5}, v{T+3}, v{T+9}")
    a(f"v_add_f32 v{T+7}, v{T+7}, v{T+7}")
    a(f"v_mul_f32 v{V_C2}, v{T+8}, v{T+7}")
    a(f"v_mul_f32 v{V_C2+1}, v{T+9}, v{T+7}")
    a(f"v_mov_b32 v{V_L32}, v{V_LR}")
    a(f"v_mov_b32 v{V_L32+1}, v{V_LI}")
    for i in range(5):
        cmul(a, V_L32, V_L32+1, V_L32, V_L32+1, V_L32, V_L32+1, T+5)
        if i == 3 and PKS["on"]:
            a(f"v_mov_b32 v{V_L16P}, v{V_L32}")
            a(f"v_mov_b32 v{V_L16P+1}, v{V_L32+1}")
    cmul(a, V_L128, V_L128+1, V_L32, V_L32+1, V_L32, V_L32+1, T+5)
    cmul(a, V_L128, V_L128+1, V_L128, V_L128+1, V_L128, V_L128+1, T+5)
    if loc:
        a(f"s_getreg_b32 s{S_FAST}, hwreg(HW_REG_XCC_ID)")
        a(f"s_and_b32 s{S_FAST}, s{S_FAST}, 0x7f")
        a(f"s_add_u32 s{S_FAST}, s{S_FAST}, 1")
        labx = a.label("XPUB")
        a(f"s_cmp_lg_u32 s{S_WAVE}, 0")
        a(f"s_cbranch_scc1 {labx}")
        a(f"s_mul_i32 s34, s{S_C}, 10")
        a(f"s_add_u32 s34, s34, s{S_S}")
        a(f"s_add_u32 s34, s34, 16")
        a(f"v_mov_b32 v{T}, s{S_FAST}")
        a(f"v_mov_b32 v{T+1}, 0")
        a(f"s_mov_b64 exec, 1")
        a(f"buffer_store_byte v{T}, v{T+1}, s[{SRD_DBG}:{SRD_DBG+3}], s34 offen sc1")
        a(f"s_mov_b64 exec, -1")
        a(f"{labx}:")
    if opts.get("tlbw"):
        a(f"v_lshlrev_b32 v{T}, 20, v{V_LANE}")
        a(f"s_mov_b64 exec, 0xfff")
        a(f"buffer_load_dword v{T+1}, v{T}, s[{SRD_WS}:{SRD_WS+3}], 0 offen")
        a(f"s_mov_b64 exec, 7")
        a(f"v_lshlrev_b32 v{T}, 21, v{V_LANE}")
        a(f"buffer_load_dword v{T+2}, v{T}, s[{SRD_C}:{SRD_C+3}], 0 offen")
        a(f"s_mov_b64 exec, -1")
    if opts.get("tlbw2"):
        a(f"v_lshlrev_b32 v{T}, 16, v{V_LANE}")
        a(f"s_mul_i32 s34, s{S_C}, 327680")
        a(f"s_add_u32 s35, s34, {WS_H}")
        a(f"s_mov_b64 exec, 0x3f")
        a(f"buffer_load_dword v{T+1}, v{T}, s[{SRD_WS}:{SRD_WS+3}], 0 offen")
        a(f"buffer_load_dword v{T+2}, v{T}, s[{SRD_WS}:{SRD_WS+3}], s35 offen")
        a(f"buffer_load_dword v{T+3}, v{T}, s[{SRD_C}:{SRD_C+3}], s34 offen")
        a(f"s_lshl_b32 s35, s{S_S}, 18")
        a(f"s_add_u32 s35, s35, {WS_A}")
        a(f"buffer_load_dword v{T+4}, v{T}, s[{SRD_WS}:{SRD_WS+3}], s35 offen")
        make_srd(a, 92, P_C2RE, 819200)
        a(f"s_mul_i32 s35, s{S_S}, 81920")
        a(f"s_mov_b64 exec, 3")
        a(f"buffer_load_dword v{T+5}, v{T}, s[92:95], s35 offen")
        make_srd(a, 92, P_C2IM, 819200)
        a(f"buffer_load_dword v{T+6}, v{T}, s[92:95], s35 offen")
        a(f"s_mov_b64 exec, -1")
    a(f"s_waitcnt lgkmcnt(0)")
    stamp(a, 2)
    a(f"s_barrier")
    stamp(a, 3)
    cstamp(a, 20)
    for ins in g1_reads(0, 0): a(ins)
    for ins in g1_reads(0, 1): a(ins)
    NST = 10
    for it in range(NST):
        for ks in range(4):
            gidx = 4*it + ks
            last = (gidx == 4*NST - 1)
            if kofl and it == opts.get("kflst", 1) and ks == 0:
                lk = a.label("KN"); lk2 = a.label("KN2")
                a(f"s_mov_b32 s{S_CNT}, 100000")
                a(f"s_waitcnt vmcnt(0)")
                a(f"{lk}:")
                a(f"v_readfirstlane_b32 s{S_NONCE}, v{V_NON}")
                a(f"v_readfirstlane_b32 s{S_NONCE+1}, v{V_NON+1}")
                a(f"s_nop 0")
                a(f"s_cmp_lg_u32 s{S_NONCE}, 0")
                a(f"s_cbranch_scc1 {lk2}")
                poll_timeout(a, S_CNT, END)
                a(f"buffer_load_dwordx2 v[{V_NON}:{V_NON+1}], v{V_ZERO}, s[{SRD_DBG}:{SRD_DBG+3}], 0 offen sc1")
                a(f"s_waitcnt vmcnt(0)")
                a(f"s_branch {lk}")
                a(f"{lk2}:")
                a(f"s_lshl_b32 s34, s{S_KY}, 1")
                a(f"s_add_u32 s34, s34, s{S_WM}")
                a(f"s_lshl_b32 s34, s34, 3")
                a(f"s_add_u32 s34, s34, {WS_KFLG}")
                a(f"v_mov_b32 v248, s{S_NONCE}")
                a(f"v_mov_b32 v249, s{S_NONCE+1}")
                a(f"s_mov_b64 s[{S_EXEC}:{S_EXEC+1}], exec")
                a(f"s_mov_b64 exec, 1")
                a(f"buffer_store_dwordx2 v[248:249], v{V_ZERO}, s[{SRD_WS}:{SRD_WS+3}], s34 offen sc1")
                a(f"s_mov_b64 exec, s[{S_EXEC}:{S_EXEC+1}]")
            a(f"s_waitcnt lgkmcnt({0 if last else 4})")
            fill = []
            nx = gidx + 2
            if nx < 4*NST:
                nit, nks = nx // 4, nx % 4
                if nks == 0:
                    a(f"s_barrier")
                    if opts.get("profst"): stamp(a, 16 + nit)
                fill += g1_reads(nit, nks)
                if nks == 0 and nit == 5 and not kofl:
                    fill.append(f"buffer_load_dwordx2 v[{V_NON}:{V_NON+1}], v{V_ZERO}, s[{SRD_DBG}:{SRD_DBG+3}], 0 offen sc1")
                if nks == 0 and nit == 6 and loc:
                    fill.append(f"s_mul_i32 s35, s{S_C}, 10")
                    fill.append(f"s_add_u32 s35, s35, 16")
                    fill.append(f"buffer_load_ubyte v{V_XC}, v{V_LANE}, s[{SRD_DBG}:{SRD_DBG+3}], s35 offen sc1")
            if last:
                a(f"s_barrier")
            interleave(a, g1_mfmas(it, ks), fill)
    cstamp(a, 21)
    stamp(a, 4)
    a.c("pass 1")
    a(f"s_nop 7\ns_nop 7")
    if PKS["on"]:
        LAM = f"v[{V_LR}:{V_LR+1}]"
        P0, P1 = (T, T+2), (T+4, T+6)
        cur = None
        for m in range(2):
            for r in range(0, 16, 2):
                br, bi = acc(m, 0) + r, acc(m, 1) + r
                if cur is None:
                    cur = (br, bi)
                    nxt = P0
                    continue
                er, ei = cur; nr, ni = nxt
                a(f"v_pk_fma_f32 v[{nr}:{nr+1}], v[{er}:{er+1}], {LAM}, v[{br}:{br+1}] op_sel:[0,0,0] op_sel_hi:[1,0,1]")
                a(f"v_pk_fma_f32 v[{ni}:{ni+1}], v[{ei}:{ei+1}], {LAM}, v[{bi}:{bi+1}] op_sel:[0,0,0] op_sel_hi:[1,0,1]")
                a(f"v_pk_fma_f32 v[{nr}:{nr+1}], v[{ei}:{ei+1}], {LAM}, v[{nr}:{nr+1}] op_sel:[0,1,0] op_sel_hi:[1,1,1] neg_lo:[1,0,0] neg_hi:[1,0,0]")
                a(f"v_pk_fma_f32 v[{ni}:{ni+1}], v[{er}:{er+1}], {LAM}, v[{ni}:{ni+1}] op_sel:[0,1,0] op_sel_hi:[1,1,1]")
                cur = nxt; nxt = P1 if cur == P0 else P0
        er, ei = cur
        a(f"v_mov_b32 v{V_EA}, v{er}")
        a(f"v_mov_b32 v{V_EA+1}, v{ei}")
        a(f"v_fma_f32 v{V_ER}, v{er}, v{V_L16P}, v{er+1}")
        a(f"v_fma_f32 v{V_EI}, v{ei}, v{V_L16P}, v{ei+1}")
        a(f"v_fma_f32 v{V_ER}, -v{ei}, v{V_L16P+1}, v{V_ER}")
        a(f"v_fma_f32 v{V_EI}, v{er}, v{V_L16P+1}, v{V_EI}")
    else:
        first = True
        for m in range(2):
            for r in range(16):
                br, bi = acc(m, 0) + r, acc(m, 1) + r
                if first:
                    a(f"v_mov_b32 v{V_ER}, v{br}")
                    a(f"v_mov_b32 v{V_EI}, v{bi}")
                    first = False
                else:
                    src = (V_ER, V_EI) if cur == 0 else (T, T+1)
                    dst = (T, T+1) if cur == 0 else (V_ER, V_EI)
                    a(f"v_fma_f32 v{dst[0]}, v{V_LR}, v{src[0]}, v{br}")
                    a(f"v_fma_f32 v{dst[1]}, v{V_LR}, v{src[1]}, v{bi}")
                    a(f"v_fma_f32 v{dst[0]}, -v{V_LI}, v{src[1]}, v{dst[0]}")
                    a(f"v_fma_f32 v{dst[1]}, v{V_LI}, v{src[0]}, v{dst[1]}")
                    cur ^= 1
                    continue
                cur = 0
        if cur == 1:
            a(f"v_mov_b32 v{V_ER}, v{T}")
            a(f"v_mov_b32 v{V_EI}, v{T+1}")
    EX = 240; G = 248; SA = 252
    a(f"v_lshrrev_b32 v{T+2}, 5, v{V_LANE}")
    a(f"s_lshl_b32 s34, s{S_WM}, 1")
    a(f"v_add_u32 v{T+2}, s34, v{T+2}")
    a(f"v_and_b32 v{T+3}, 31, v{V_LANE}")
    a(f"s_lshl_b32 s34, s{S_WN}, 5")
    a(f"v_add_u32 v{T+3}, s34, v{T+3}")
    a(f"v_lshlrev_b32 v{T+3}, 3, v{T+3}")
    a(f"v_add_u32 v{T+3}, {L_EX}, v{T+3}")
    a(f"v_lshl_add_u32 v{T+2}, v{T+2}, 9, v{T+3}")
    a(f"ds_write_b64 v{T+2}, v[{V_ER}:{V_ER+1}]")
    a(f"v_mov_b32 v{T+4}, {CNT_EX}")
    a(f"v_mov_b32 v{T+5}, 1")
    a(f"s_waitcnt lgkmcnt(0)")
    lds_inc(a, T+4, T+5)
    lab_ok = a.label("NOK"); lab_p = a.label("NPOLL")
    a(f"s_mov_b32 s{S_CNT}, 100000")
    a(f"s_waitcnt vmcnt(0)")
    a(f"{lab_p}:")
    a(f"v_readfirstlane_b32 s{S_NONCE}, v{V_NON}")
    a(f"v_readfirstlane_b32 s{S_NONCE+1}, v{V_NON+1}")
    a(f"s_nop 0")
    a(f"s_cmp_lg_u32 s{S_NONCE}, 0")
    a(f"s_cbranch_scc1 {lab_ok}")
    poll_timeout(a, S_CNT, END)
    a(f"buffer_load_dwordx2 v[{V_NON}:{V_NON+1}], v{V_ZERO}, s[{SRD_DBG}:{SRD_DBG+3}], 0 offen sc1")
    a(f"s_waitcnt vmcnt(0)")
    a(f"s_branch {lab_p}")
    a(f"{lab_ok}:")
    if loc:
        a(f"v_cmp_ne_u32 vcc, s{S_FAST}, v{V_XC}")
        a(f"s_and_b64 vcc, vcc, 0x3ff")
        a(f"s_cmp_eq_u64 vcc, 0")
        a(f"s_cselect_b32 s{S_FAST}, 1, 0")
    lds_spin(a, T+4, T+6, 4, END)
    for sg in range(4):
        a(f"ds_read_b64 v[{EX+2*sg}:{EX+2*sg+1}], v{T+3} offset:{sg*512}")
    a(f"s_waitcnt lgkmcnt(0)")
    a(f"v_mov_b32 v{V_HR}, v{EX}")
    a(f"v_mov_b32 v{V_HI}, v{EX+1}")
    for sg in range(1, 4): cfma(a, V_HR, V_HI, V_L32, V_L32+1, EX+2*sg, EX+2*sg+1, T)
    lab_np = a.label("NOPUB")
    a(f"s_cmp_lg_u32 s{S_WM}, 0")
    a(f"s_cbranch_scc1 {lab_np}")
    a(f"v_mov_b32 v{G}, v{V_HR}")
    a(f"v_mov_b32 v{G+1}, v{V_HI}")
    a(f"v_mov_b32 v{G+2}, s{S_NONCE}")
    a(f"v_mov_b32 v{G+3}, s{S_NONCE+1}")
    a(f"s_mul_i32 s34, s{S_C}, 10240")
    a(f"s_add_u32 s34, s34, {WS_E}")
    a(f"s_mov_b64 s[{S_EXEC}:{S_EXEC+1}], exec")
    a(f"s_mov_b32 exec_lo, -1")
    a(f"s_mov_b32 exec_hi, 0")
    a(f"buffer_store_dwordx4 v[{G}:{G+3}], v{V_EOFF}, s[{SRD_WS}:{SRD_WS+3}], s34 offen sc1")
    a(f"s_mov_b64 exec, s[{S_EXEC}:{S_EXEC+1}]")
    a(f"{lab_np}:")
    a(f"v_mov_b32 v{T+4}, {CNT_P}")
    a(f"v_mov_b32 v{T+5}, 1")
    lds_inc(a, T+4, T+5)
    stamp(a, 5)
    def greg(cp): return (V_FR + 4*cp) if cp < 12 else (228 + 4*(cp-12))
    def issue_polls(lab_iss):
        for cp in range(15):
            a(f"s_cmp_le_u32 s{S_C}, {cp}")
            a(f"s_cbranch_scc1 {lab_iss}")
            a(f"s_mov_b32 s34, {WS_E + cp*10240}")
            a(f"buffer_load_dwordx4 v[{greg(cp)}:{greg(cp)+3}], v{V_EOFF}, s[{SRD_WS}:{SRD_WS+3}], s34 offen sc1")
        a(f"{lab_iss}:")
    a.c("scale")
    for m in range(2):
        for r in range(0, 16, 2):
            pr, pi = acc(m,0)+r, acc(m,1)+r
            qr, qi = acc2(m,0)+r, acc2(m,1)+r
            a(f"v_pk_mul_f32 v[{qr}:{qr+1}], v[{pr}:{pr+1}], v[{V_C2}:{V_C2+1}] op_sel:[0,0] op_sel_hi:[1,0]")
            a(f"v_pk_mul_f32 v[{qi}:{qi+1}], v[{pi}:{pi+1}], v[{V_C2}:{V_C2+1}] op_sel:[0,0] op_sel_hi:[1,0] neg_lo:[1,0] neg_hi:[1,0]")
            a(f"v_pk_fma_f32 v[{qr}:{qr+1}], v[{pi}:{pi+1}], v[{V_C2}:{V_C2+1}], v[{qr}:{qr+1}] op_sel:[0,1,0] op_sel_hi:[1,1,1] neg_lo:[1,0,0] neg_hi:[1,0,0]")
            a(f"v_pk_fma_f32 v[{qi}:{qi+1}], v[{pr}:{pr+1}], v[{V_C2}:{V_C2+1}], v[{qi}:{qi+1}] op_sel:[0,1,0] op_sel_hi:[1,1,1] neg_lo:[1,0,0] neg_hi:[1,0,0]")
    stamp(a, 6)
    lab_w0 = a.label("EW0"); lab_wj = a.label("EWJ")
    eall = opts.get("eall", False)
    if not eall:
        a(f"s_cmp_eq_u32 s{S_WM}, 0")
        a(f"s_cbranch_scc1 {lab_w0}")
    a.c("E combine: lane (p, hf) handles d = 2j+1+hf")
    SE = 92
    a(f"s_add_u32 s{SE}, s{P_WS}, {WS_E}")
    a(f"s_addc_u32 s{SE+1}, s{P_WS+1}, 0")
    a(f"s_and_b32 s{SE+1}, s{SE+1}, 0xffff")
    a(f"s_mov_b32 s{SE+2}, {16*10240}")
    a(f"s_mov_b32 s{SE+3}, 0x00020000")
    L256 = T+8
    cmul(a, L256, L256+1, V_L128, V_L128+1, V_L128, V_L128+1, T)
    VO = 228
    a(f"v_lshrrev_b32 v{T+2}, 5, v{V_LANE}")
    a(f"s_sub_u32 s34, s{S_C}, 1")
    a(f"v_sub_u32 v{T+2}, s34, v{T+2}")
    a(f"v_mul_i32_i24 v{T+2}, 10240, v{T+2}")
    a(f"v_add_u32 v{VO}, v{T+2}, v{V_EOFF}")
    for j in range(1, 8):
        a(f"v_subrev_u32 v{VO+j}, {20480*j}, v{VO}")
    GR = V_FR
    lab_poll = a.label("EPOLL"); lab_ok = a.label("EOK")
    a(f"s_mov_b32 s{S_CNT}, 100000")
    a(f"{lab_poll}:")
    for j in range(8):
        a(f"buffer_load_dwordx4 v[{GR+4*j}:{GR+4*j+3}], v{VO+j}, s[{SE}:{SE+3}], 0 offen sc1")
    a(f"s_mov_b64 s[{S_MISM}:{S_MISM+1}], 0")
    for j in range(8):
        a(f"s_waitcnt vmcnt({7-j})")
        a(f"v_cmp_ne_u64 vcc, s[{S_NONCE}:{S_NONCE+1}], v[{GR+4*j+2}:{GR+4*j+3}]")
        a(f"v_cmp_le_i32 s[{S_T2}:{S_T2+1}], 0, v{VO+j}")
        a(f"s_and_b64 vcc, vcc, s[{S_T2}:{S_T2+1}]")
        a(f"s_or_b64 s[{S_MISM}:{S_MISM+1}], s[{S_MISM}:{S_MISM+1}], vcc")
    a(f"s_cmp_eq_u64 s[{S_MISM}:{S_MISM+1}], 0")
    a(f"s_cbranch_scc1 {lab_ok}")
    if opts.get("efull", True):
        a(f"s_sleep {opts.get('esleep', 2)}")
        a(f"s_sub_u32 s{S_CNT}, s{S_CNT}, 1")
        a(f"s_cbranch_scc0 {lab_poll}")
        a(f"s_branch {END}")
    CP = T+12
    a(f"v_readfirstlane_b32 s35, v{V_EOFF}")
    a(f"s_sub_u32 s34, s{S_C}, 1")
    a(f"v_sub_u32 v{CP}, s34, v{V_LANE}")
    a(f"v_mul_i32_i24 v{CP}, 10240, v{CP}")
    a(f"v_add_u32 v{CP}, s35, v{CP}")
    a(f"v_cmp_le_i32 s[{S_T2}:{S_T2+1}], 0, v{CP}")
    a(f"s_and_b64 s[{S_T2}:{S_T2+1}], s[{S_T2}:{S_T2+1}], 0xffff")
    lab_cp = a.label("ECH")
    a(f"{lab_cp}:")
    a(f"s_sleep {opts.get('esleep', 2)}")
    a(f"buffer_load_dwordx4 v[{GR}:{GR+3}], v{CP}, s[{SE}:{SE+3}], 0 offen sc1")
    a(f"s_waitcnt vmcnt(0)")
    a(f"v_cmp_ne_u64 vcc, s[{S_NONCE}:{S_NONCE+1}], v[{GR+2}:{GR+3}]")
    a(f"s_and_b64 vcc, vcc, s[{S_T2}:{S_T2+1}]")
    a(f"s_cmp_eq_u64 vcc, 0")
    a(f"s_cbranch_scc1 {lab_poll}")
    a(f"s_sub_u32 s{S_CNT}, s{S_CNT}, 1")
    a(f"s_cbranch_scc0 {lab_cp}")
    a(f"s_branch {END}")
    a(f"{lab_ok}:")
    a(f"v_mov_b32 v{V_HR}, v{GR+28}")
    a(f"v_mov_b32 v{V_HI}, v{GR+29}")
    cur = (V_HR, V_HI); oth = (T, T+1)
    for j in range(6, -1, -1):
        er, ei = GR+4*j, GR+4*j+1
        a(f"v_fma_f32 v{oth[0]}, v{cur[0]}, v{L256}, v{er}")
        a(f"v_fma_f32 v{oth[1]}, v{cur[1]}, v{L256}, v{ei}")
        a(f"v_fma_f32 v{oth[0]}, -v{cur[1]}, v{L256+1}, v{oth[0]}")
        a(f"v_fma_f32 v{oth[1]}, v{cur[0]}, v{L256+1}, v{oth[1]}")
        cur, oth = oth, cur
    hr, hi = cur
    a(f"v_mov_b32 v{T+2}, v{hr}")
    a(f"v_mov_b32 v{T+3}, v{hi}")
    a(f"s_nop 1")
    a(f"v_permlane32_swap_b32 v{hr}, v{T+2}")
    a(f"v_permlane32_swap_b32 v{hi}, v{T+3}")
    a(f"s_nop 1")
    a(f"v_fma_f32 v{V_HR}, v{T+2}, v{V_L128}, v{hr}")
    a(f"v_fma_f32 v{V_HI}, v{T+3}, v{V_L128}, v{hi}")
    a(f"v_fma_f32 v{V_HR}, -v{T+3}, v{V_L128+1}, v{V_HR}")
    a(f"v_fma_f32 v{V_HI}, v{T+2}, v{V_L128+1}, v{V_HI}")
    if not eall:
        a(f"v_and_b32 v{T+2}, 31, v{V_LANE}")
        a(f"v_lshlrev_b32 v{T+2}, 3, v{T+2}")
        a(f"s_lshl_b32 s34, s{S_WN}, 8")
        a(f"s_add_u32 s34, s34, {L_HX}")
        a(f"v_add_u32 v{T+2}, s34, v{T+2}")
        a(f"ds_write_b64 v{T+2}, v[{V_HR}:{V_HR+1}]")
        a(f"s_lshl_b32 s34, s{S_WN}, 2")
        a(f"s_add_u32 s34, s34, {CNT_HX0}")
        a(f"v_mov_b32 v{T+4}, s34")
        a(f"v_mov_b32 v{T+5}, 1")
        a(f"s_waitcnt lgkmcnt(0)")
        lds_inc(a, T+4, T+5)
        a(f"s_branch {lab_wj}")
        a(f"{lab_w0}:")
        a(f"s_lshl_b32 s34, s{S_WN}, 2")
        a(f"s_add_u32 s34, s34, {CNT_HX0}")
        a(f"v_mov_b32 v{T+4}, s34")
        lds_spin(a, T+4, T+6, 1, END)
        a(f"v_and_b32 v{T+2}, 31, v{V_LANE}")
        a(f"v_lshlrev_b32 v{T+2}, 3, v{T+2}")
        a(f"s_lshl_b32 s34, s{S_WN}, 8")
        a(f"s_add_u32 s34, s34, {L_HX}")
        a(f"v_add_u32 v{T+2}, s34, v{T+2}")
        a(f"ds_read_b64 v[{V_HR}:{V_HR+1}], v{T+2}")
        a(f"s_waitcnt lgkmcnt(0)")
        a(f"{lab_wj}:")
    a(f"v_mov_b32 v{T+4}, {CNT_E}")
    a(f"v_mov_b32 v{T+5}, 1")
    lds_inc(a, T+4, T+5)
    lab_w1 = a.label("WM1"); lab_w2 = a.label("WMD")
    a(f"s_cmp_lg_u32 s{S_WM}, 0")
    a(f"s_cbranch_scc1 {lab_w1}")
    a(f"v_mov_b32 v{SA}, v{V_HR}")
    a(f"v_mov_b32 v{SA+1}, v{V_HI}")
    cfma(a, V_HR, V_HI, V_L32, V_L32+1, EX, EX+1, T)
    a(f"s_branch {lab_w2}")
    a(f"{lab_w1}:")
    cfma(a, V_HR, V_HI, V_L32, V_L32+1, EX, EX+1, T)
    cfma(a, V_HR, V_HI, V_L32, V_L32+1, EX+2, EX+3, T)
    a(f"v_mov_b32 v{SA}, v{V_HR}")
    a(f"v_mov_b32 v{SA+1}, v{V_HI}")
    cfma(a, V_HR, V_HI, V_L32, V_L32+1, EX+4, EX+5, T)
    a(f"{lab_w2}:")
    a(f"v_cmp_gt_u32 vcc, 32, v{V_LANE}")
    a(f"s_nop 1")
    a(f"v_cndmask_b32 v{V_HR}, v{V_HR}, v{SA}, vcc")
    a(f"v_cndmask_b32 v{V_HI}, v{V_HI}, v{SA+1}, vcc")
    a(f"v_mul_f32 v{T}, v{V_HR}, v{V_C2}")
    a(f"v_mul_f32 v{T+1}, -v{V_HI}, v{V_C2}")
    a(f"v_fma_f32 v{T}, -v{V_HI}, v{V_C2+1}, v{T}")
    a(f"v_fma_f32 v{V_HI}, -v{V_HR}, v{V_C2+1}, v{T+1}")
    a(f"v_mov_b32 v{V_HR}, v{T}")
    stamp(a, 7)
    a.c("pass 2 + stores")
    a(f"s_mul_i32 s34, s{S_C}, 20")
    a(f"s_add_u32 s34, s34, s{S_S}")
    a(f"s_lshl_b32 s34, s34, 14")
    a(f"s_lshl_b32 s35, s{S_WAVE}, 12")
    a(f"s_add_u32 s34, s34, s35")
    a(f"s_add_u32 s{S_T0}, s34, {WS_H}")
    a(f"s_add_u32 s{S_T1}, s{S_T0}, {10*16384}")
    if PKS["on"]:
        PK = 16
        LAM = f"v[{V_LR}:{V_LR+1}]"
        GR_, GI_ = T, T+2
        a(f"v_mul_f32 v{T+4}, v{V_EA}, v{V_C2}")
        a(f"v_mul_f32 v{T+5}, -v{V_EA+1}, v{V_C2}")
        a(f"v_fma_f32 v{T+4}, -v{V_EA+1}, v{V_C2+1}, v{T+4}")
        a(f"v_fma_f32 v{T+5}, -v{V_EA}, v{V_C2+1}, v{T+5}")
        a(f"v_mov_b32 v{GR_}, v{V_HR}")
        a(f"v_mov_b32 v{GI_}, v{V_HI}")
        a(f"v_fma_f32 v{GR_+1}, v{V_HR}, v{V_L16P}, v{T+4}")
        a(f"v_fma_f32 v{GI_+1}, v{V_HI}, v{V_L16P}, v{T+5}")
        a(f"v_fma_f32 v{GR_+1}, v{V_HI}, v{V_L16P+1}, v{GR_+1}")
        a(f"v_fma_f32 v{GI_+1}, -v{V_HR}, v{V_L16P+1}, v{GI_+1}")
        pr, pi = GR_, GI_
        def st(js, flag):
            for j in js:
                a(f"buffer_store_dwordx4 v[{PK+4*j}:{PK+4*j+3}], v{V_L16}, s[{SRD_WS}:{SRD_WS+3}], s{S_T0} offen offset:{j*1024} {flag}")
                a(f"buffer_store_dwordx4 v[{PK+16+4*j}:{PK+16+4*j+3}], v{V_L16}, s[{SRD_WS}:{SRD_WS+3}], s{S_T1} offen offset:{j*1024} {flag}")
        for m in range(2):
            for r in range(0, 16, 2):
                cr, ci = acc2(m,0)+r, acc2(m,1)+r
                a(f"v_pk_fma_f32 v[{cr}:{cr+1}], v[{pr}:{pr+1}], {LAM}, v[{cr}:{cr+1}] op_sel:[0,0,0] op_sel_hi:[1,0,1]")
                a(f"v_pk_fma_f32 v[{ci}:{ci+1}], v[{pi}:{pi+1}], {LAM}, v[{ci}:{ci+1}] op_sel:[0,0,0] op_sel_hi:[1,0,1]")
                a(f"v_pk_fma_f32 v[{cr}:{cr+1}], v[{pi}:{pi+1}], {LAM}, v[{cr}:{cr+1}] op_sel:[0,1,0] op_sel_hi:[1,1,1]")
                a(f"v_pk_fma_f32 v[{ci}:{ci+1}], v[{pr}:{pr+1}], {LAM}, v[{ci}:{ci+1}] op_sel:[0,1,0] op_sel_hi:[1,1,1] neg_lo:[1,0,0] neg_hi:[1,0,0]")
                pr, pi = cr, ci
                if (r // 2) % 2 == 1:
                    d = (r // 2) // 2
                    for seg in range(2):
                        j = 2*seg + m
                        a(f"v_cvt_pk_bf16_f32 v{PK + 4*j + d}, v{cr-2+seg}, v{cr+seg}")
                        a(f"v_cvt_pk_bf16_f32 v{PK + 16 + 4*j + d}, v{ci-2+seg}, v{ci+seg}")
            st([m, 2 + m], opts.get('hst', 'sc1'))
    else:
        pr, pi = V_HR, V_HI
        PK = 16
        for m in range(2):
            for r in range(16):
                cr, ci = acc2(m,0)+r, acc2(m,1)+r
                a(f"v_fma_f32 v{cr}, v{V_LR}, v{pr}, v{cr}")
                a(f"v_fma_f32 v{ci}, v{V_LR}, v{pi}, v{ci}")
                a(f"v_fma_f32 v{cr}, v{V_LI}, v{pi}, v{cr}")
                a(f"v_fma_f32 v{ci}, -v{V_LI}, v{pr}, v{ci}")
                pr, pi = cr, ci
                if r % 2 == 1:
                    t = 16*m + r
                    j, d = t // 8, (t % 8) // 2
                    a(f"v_cvt_pk_bf16_f32 v{PK + 4*j + d}, v{cr-1}, v{cr}")
                    a(f"v_cvt_pk_bf16_f32 v{PK + 16 + 4*j + d}, v{ci-1}, v{ci}")
                    if d == 3:
                        def st(flag):
                            a(f"buffer_store_dwordx4 v[{PK+4*j}:{PK+4*j+3}], v{V_L16}, s[{SRD_WS}:{SRD_WS+3}], s{S_T0} offen offset:{j*1024} {flag}")
                            a(f"buffer_store_dwordx4 v[{PK+16+4*j}:{PK+16+4*j+3}], v{V_L16}, s[{SRD_WS}:{SRD_WS+3}], s{S_T1} offen offset:{j*1024} {flag}")
                        if loc:
                            l1 = a.label("HS"); l2 = a.label("HS")
                            a(f"s_cmp_eq_u32 s{S_FAST}, 1")
                            a(f"s_cbranch_scc1 {l1}")
                            st("sc1")
                            a(f"s_branch {l2}")
                            a(f"{l1}:")
                            st("")
                            a(f"{l2}:")
                        else:
                            st(opts.get('hst', 'sc1'))
    stamp(a, 8)
    a.c("acc init from x tile")
    a(f"v_mov_b32 v{T+4}, {CNT_X}")
    lds_spin(a, T+4, T+6, 4, END)
    XA = T+7
    a(f"v_lshrrev_b32 v{T+8}, 5, v{V_LANE}")
    a(f"v_bfe_u32 v{T+9}, v{V_LANE}, 2, 2")
    a(f"v_lshl_add_u32 v{T+8}, v{T+8}, 2, v{T+9}")
    a(f"s_lshl_b32 s34, s{S_WM}, 6")
    a(f"v_add_u32 v{T+8}, s34, v{T+8}")
    a(f"v_lshlrev_b32 v{XA}, 7, v{T+8}")
    a(f"v_bfe_u32 v{T+8}, v{V_LANE}, 4, 1")
    a(f"v_lshlrev_b32 v{T+8}, 5, v{T+8}")
    a(f"v_and_b32 v{T+9}, 3, v{V_LANE}")
    a(f"v_lshl_add_u32 v{T+8}, v{T+9}, 3, v{T+8}")
    a(f"s_lshl_b32 s34, s{S_WN}, 6")
    a(f"s_add_u32 s34, s34, {L_XT}")
    a(f"v_add_u32 v{T+8}, s34, v{T+8}")
    a(f"v_add_u32 v{XA}, v{XA}, v{T+8}")
    XV = 96
    for m in range(2):
        for q in range(4):
            r = XV + 2*(4*m+q)
            a(f"ds_read_b64_tr_b16 v[{r}:{r+1}], v{XA} offset:{(32*m+8*q)*128}")
    a(f"s_waitcnt lgkmcnt(0)")
    for qi in range(8):
        for h in range(2):
            xv = XV + 2*qi + h
            a0 = G2_ACC + 4*qi + 2*h
            a(f"v_lshlrev_b32 v{a0}, 16, v{xv}")
            a(f"v_and_b32 v{a0+1}, 0xffff0000, v{xv}")
            a(f"v_mul_f32 v{a0}, v{a0}, v{V_DSB}")
            a(f"v_mul_f32 v{a0+1}, v{a0+1}, v{V_DSB}")
            a(f"v_cvt_pk_bf16_f32 v{a0}, v{a0}, v{a0+1}")
            a(f"v_and_b32 v{a0+1}, 0xffff0000, v{a0}")
            a(f"v_lshlrev_b32 v{a0}, 16, v{a0}")
    a(f"v_lshrrev_b32 v{T}, 4, v{V_LANE}")
    a(f"v_bfe_u32 v{T+1}, v{V_LANE}, 2, 2")
    a(f"v_and_b32 v{T+2}, 3, v{V_LANE}")
    a(f"v_and_b32 v{T+3}, 1, v{T}")
    a(f"v_lshlrev_b32 v{T+3}, 1, v{T+3}")
    a(f"v_lshrrev_b32 v{T+4}, 1, v{T+2}")
    a(f"v_add_u32 v{T+3}, v{T+3}, v{T+4}")
    a(f"v_mul_u32_u24 v{T+3}, 1088, v{T+3}")
    a(f"v_lshrrev_b32 v{T+4}, 1, v{T}")
    a(f"v_lshl_add_u32 v{T+4}, v{T+4}, 3, v{T+1}")
    a(f"v_lshl_add_u32 v{T+3}, v{T+4}, 4, v{T+3}")
    a(f"v_and_b32 v{T+4}, 1, v{T+2}")
    a(f"v_lshl_add_u32 v{T+3}, v{T+4}, 3, v{T+3}")
    a(f"s_mul_i32 s34, s{S_WM}, 8704")
    a(f"v_add_u32 v{V_HA}, s34, v{T+3}")
    a(f"v_add_u32 v{V_HA2}, {3*HSLOT}, v{V_HA}")
    for ks in range(4):
        a(f"v_xor_b32 v{2+ks}, {32*ks}, v221")
        a(f"v_add_u32 v{V_CB+ks}, {CBASE}, v{2+ks}")
    a(f"s_waitcnt vmcnt(0)")
    a(f"v_mov_b32 v{T+4}, {CNT_H}")
    a(f"v_mov_b32 v{T+5}, 1")
    a(f"s_mov_b64 s[{S_EXEC}:{S_EXEC+1}], exec")
    a(f"s_mov_b64 exec, 1")
    a(f"ds_add_rtn_u32 v{T+6}, v{T+4}, v{T+5}")
    a(f"s_waitcnt lgkmcnt(0)")
    a(f"v_readfirstlane_b32 s{S_T3}, v{T+6}")
    lab_nf = a.label("NOHF")
    a(f"s_nop 0")
    a(f"s_cmp_lg_u32 s{S_T3}, 3")
    a(f"s_cbranch_scc1 {lab_nf}")
    a(f"s_lshl_b32 s34, s{S_C}, 7")
    a(f"s_lshl_b32 s35, s{S_S}, 3")
    a(f"s_add_u32 s34, s34, s35")
    a(f"s_add_u32 s34, s34, {WS_FLAG}")
    a(f"v_mov_b32 v{G}, s{S_NONCE}")
    a(f"v_mov_b32 v{G+1}, s{S_NONCE+1}")
    if loc:
        l1 = a.label("HF"); l2 = a.label("HF")
        a(f"s_cmp_eq_u32 s{S_FAST}, 1")
        a(f"s_cbranch_scc1 {l1}")
        a(f"buffer_store_dwordx2 v[{G}:{G+1}], v{V_ZERO}, s[{SRD_WS}:{SRD_WS+3}], s34 offen sc1")
        a(f"s_branch {l2}")
        a(f"{l1}:")
        a(f"buffer_store_dwordx2 v[{G}:{G+1}], v{V_ZERO}, s[{SRD_WS}:{SRD_WS+3}], s34 offen")
        a(f"{l2}:")
    else:
        a(f"buffer_store_dwordx2 v[{G}:{G+1}], v{V_ZERO}, s[{SRD_WS}:{SRD_WS+3}], s34 offen {opts.get('hst', 'sc1')}")
    a(f"{lab_nf}:")
    a(f"s_mov_b64 exec, s[{S_EXEC}:{S_EXEC+1}]")
    stamp(a, 9)
    a(f"v_mov_b32 v{T+4-T+240}, {CNT_C}")
    lds_spin(a, 244, 245, 4, END)
    n = 0
    for ch in range(NREG):
        for ks in range(4):
            r = V_CREG + 16*ch + 4*ks
            off = L_CST + ch*8192
            reg = 2 + ks
            if off >= 65536:
                a(f"v_add_u32 v246, {off}, v{reg}")
                a(f"ds_read_b128 v[{r}:{r+3}], v246")
            else:
                a(f"ds_read_b128 v[{r}:{r+3}], v{reg} offset:{off}")
            n += 1
            if n % 12 == 0: a(f"s_waitcnt lgkmcnt(4)")
    a(f"s_waitcnt lgkmcnt(0)")
    a(f"v_mov_b32 v244, {CNT_R}")
    a(f"v_mov_b32 v245, 1")
    lds_inc(a, 244, 245)
    stamp(a, 10)
    a(f"s_barrier")
    stamp(a, 11)
    cstamp(a, 22)
    D2 = G2_NS - 1
    for k0 in range(D2):
        for ins in g2_reads(0, k0): a(ins)
    NST = 20
    for it in range(NST):
        for ks in range(4):
            gidx = 4*it + ks
            rem = 0
            for g2 in range(gidx + 1, min(gidx + D2, 4*NST)):
                rem += len(g2_reads(g2 // 4, g2 % 4))
            a(f"s_waitcnt lgkmcnt({rem})")
            fill = []
            nx = gidx + D2
            if nx < 4*NST:
                nit, nks = nx // 4, nx % 4
                if nks == 0: a(f"s_barrier")
                fill += g2_reads(nit, nks)
            interleave(a, g2_mfmas(it, ks), fill)
    cstamp(a, 23)
    stamp(a, 12)
    a(f"v_and_b32 v{T}, 31, v{V_LANE}")
    a(f"s_lshl_b32 s34, s{S_WN}, 5")
    a(f"v_add_u32 v{T}, s34, v{T}")
    a(f"v_lshrrev_b32 v{T+3}, 5, v{V_LANE}")
    a(f"v_and_b32 v{T+1}, 15, v{T}")
    a(f"s_lshl_b32 s34, s{S_WM}, 3")
    a(f"v_xor_b32 v{T+1}, s34, v{T+1}")
    a(f"v_lshlrev_b32 v{T+2}, 8, v{T}")
    a(f"v_lshl_add_u32 v{T+2}, v{T+3}, 3, v{T+2}")
    a(f"v_add_u32 v{T+2}, {L_AT}, v{T+2}")
    GA = T+5
    a(f"s_lshl_b32 s34, s{S_WM}, 9")
    a(f"s_add_u32 s34, s34, {L_G}")
    a(f"v_lshlrev_b32 v{GA}, 5, v{T+3}")
    a(f"v_add_u32 v{GA}, s34, v{GA}")
    GV = 112
    for m in range(2):
        for q in range(4):
            gb = GV + 8*(4*m+q)
            a(f"ds_read_b128 v[{gb}:{gb+3}], v{GA} offset:{(32*m+8*q)*8}")
            a(f"ds_read_b128 v[{gb+4}:{gb+7}], v{GA} offset:{(32*m+8*q)*8+16}")
            if (4*m+q) == 2: a("s_waitcnt lgkmcnt(6)")
            if (4*m+q) == 5: a("s_waitcnt lgkmcnt(6)")
    OV = T+6
    a(f"v_mul_u32_u24 v{OV}, 2560, v{T+3}")
    a(f"s_lshl_b32 s34, s{S_S}, 6")
    a(f"v_add_u32 v{OV}, v{OV}, v{T}")
    a(f"v_add_u32 v{OV}, s34, v{OV}")
    a(f"v_lshlrev_b32 v{OV}, 2, v{OV}")
    a(f"s_lshl_b32 s34, s{S_C}, 7")
    a(f"s_lshl_b32 s35, s{S_WM}, 6")
    a(f"s_add_u32 s34, s34, s35")
    a(f"s_mul_i32 s{S_T2}, s34, 2560")
    for m in range(2):
        for q in range(4):
            a(f"v_xor_b32 v{T+4}, {4*m+q}, v{T+1}")
            a(f"v_lshl_add_u32 v{240+4*m+q}, v{T+4}, 4, v{T+2}")
    a(f"s_barrier")
    stamp(a, 13)
    AV = 96
    for m in range(2):
        for q in range(4):
            r = AV + 2*(4*m+q)
            a(f"ds_read_b64 v[{r}:{r+1}], v{240+4*m+q}")
    a(f"s_waitcnt lgkmcnt(0)")
    W = 180
    ldsout = opts.get("ldsout", True)
    if ldsout:
        a(f"s_lshl_b32 s34, s{S_WAVE}, 13")
        a(f"s_add_u32 s34, s34, 65536")
        a(f"s_mov_b32 m0, s34")
        a(f"v_lshlrev_b32 v190, 4, v{V_LANE}")
        a(f"v_add_u32 v190, s34, v190")
        a(f"v_lshrrev_b32 v192, 4, v{V_LANE}")
        a(f"v_bfe_u32 v193, v{V_LANE}, 3, 1")
        a(f"v_lshl_add_u32 v192, v193, 2, v192")
        a(f"v_mul_u32_u24 v192, 2560, v192")
        a(f"v_and_b32 v193, 7, v{V_LANE}")
        a(f"v_lshl_add_u32 v192, v193, 4, v192")
        a(f"s_lshl_b32 s34, s{S_S}, 8")
        a(f"s_lshl_b32 s35, s{S_WN}, 7")
        a(f"s_add_u32 s34, s34, s35")
        a(f"v_add_u32 v191, s34, v192")
    for m in range(2):
        for q in range(4):
            qi = 4*m+q
            gb = GV + 8*qi
            for h in range(2):
                av = AV + 2*qi + h
                a0 = G2_ACC + 16*m + 4*q + 2*h
                w = W + 2*h
                a(f"v_lshlrev_b32 v{w}, 16, v{av}")
                a(f"v_and_b32 v{w+1}, 0xffff0000, v{av}")
                a(f"v_mul_f32 v{w}, v{w}, v{gb+4*h}")
                a(f"v_mul_f32 v{w+1}, v{w+1}, v{gb+4*h+2}")
                a(f"v_cvt_pk_bf16_f32 v{w}, v{w}, v{w+1}")
                a(f"v_and_b32 v{w+1}, 0xffff0000, v{w}")
                a(f"v_lshlrev_b32 v{w}, 16, v{w}")
                a(f"v_fma_f32 v{a0}, v{gb+4*h+1}, v{a0}, v{w}")
                a(f"v_fma_f32 v{a0+1}, v{gb+4*h+3}, v{a0+1}, v{w+1}")
                for e in range(2):
                    row = 32*m + 8*q + 2*h + e
                    if ldsout:
                        a(f"ds_write_addtid_b32 v{a0+e} offset:{(4*qi + 2*h + e)*256}")
                    else:
                        a(f"s_add_u32 s35, s{S_T2}, {row*2560}")
                        a(f"buffer_store_dword v{a0+e}, v{OV}, s[{SRD_C}:{SRD_C+3}], s35 offen {opts.get('ost', '')}")
            if ldsout and qi >= 1:
                j = qi - 1
                a(f"ds_read_b128 v[{112+4*j}:{115+4*j}], v190 offset:{j*1024}")
            if ldsout and qi >= 2:
                j = qi - 2
                a(f"s_waitcnt lgkmcnt(5)")
                a(f"s_add_u32 s35, s{S_T2}, {(32*(j >> 2) + 8*(j & 3))*2560}")
                a(f"buffer_store_dwordx4 v[{112+4*j}:{115+4*j}], v191, s[{SRD_C}:{SRD_C+3}], s35 offen {opts.get('ost', '')}")
    if ldsout:
        a(f"ds_read_b128 v[{112+28}:{115+28}], v190 offset:{7*1024}")
        for j in (6, 7):
            a(f"s_waitcnt lgkmcnt({7-j})")
            a(f"s_add_u32 s35, s{S_T2}, {(32*(j >> 2) + 8*(j & 3))*2560}")
            a(f"buffer_store_dwordx4 v[{112+4*j}:{115+4*j}], v191, s[{SRD_C}:{SRD_C+3}], s35 offen {opts.get('ost', '')}")
    stamp(a, 15)
    if PROF["on"]:
        a("s_waitcnt vmcnt(0)")
        stamp(a, 16)
    prof_end(a, opts.get("profwave", 0))

def gen_gemm(a, END, opts):
    PKS["on"] = bool(opts.get("pkscan"))
    G1MOD.A1OFF["v"] = 1024 if PKS["on"] else 2048
    a.c("================= GEMM role v2 =================")
    if opts.get("map45", True):
        a(f"s_mul_i32 s34, s31, 52")
        a(f"s_lshr_b32 s34, s34, 8")
        a(f"s_mul_i32 s35, s34, 5")
        a(f"s_sub_u32 s35, s31, s35")
        a(f"s_lshr_b32 s93, s30, 1")
        a(f"s_and_b32 s94, s30, 1")
        a(f"s_lshl_b32 s{S_C}, s93, 2")
        a(f"s_add_u32 s{S_C}, s{S_C}, s34")
        a(f"s_mul_i32 s{S_S}, s94, 5")
        a(f"s_add_u32 s{S_S}, s{S_S}, s35")
        a(f"s_lshl_b32 s35, s35, 1")
        a(f"s_add_u32 s35, s35, s94")
        a(f"s_add_u32 s35, s35, s93")
        a(f"s_mul_i32 s34, s34, 5")
        a(f"s_lshr_b32 s34, s34, 1")
        a(f"s_add_u32 s93, s35, s34")
        a(f"s_cmp_ge_u32 s93, 10")
        a(f"s_cselect_b32 s34, 10, 0")
        a(f"s_sub_u32 s93, s93, s34")
    else:
        a(f"s_mov_b32 s93, s30")
        a(f"s_cmp_ge_u32 s31, 10")
        a(f"s_cselect_b32 s34, 1, 0")
        a(f"s_cselect_b32 s35, 10, 0")
        a(f"s_lshl_b32 s30, s30, 1")
        a(f"s_add_u32 s{S_C}, s30, s34")
        a(f"s_sub_u32 s{S_S}, s31, s35")
        a(f"s_mul_i32 s34, s34, 5")
        a(f"s_add_u32 s93, s93, s34")
        a(f"s_add_u32 s93, s93, s{S_S}")
        for _ in range(2):
            a(f"s_cmp_ge_u32 s93, 10")
            a(f"s_cselect_b32 s34, 10, 0")
            a(f"s_sub_u32 s93, s93, s34")
    a(f"s_cmp_lt_u32 s{S_WAVE}, 4")
    a(f"s_cbranch_scc1 L_COMPUTE")
    gen_loader(a, END, opts)
    a("L_COMPUTE:")
    if EARLY["on"]: common_init(a, True)
    gen_compute(a, END, opts)
```

```python
import sys
from common import *
import g1
def build(opts):
    a = Asm()
    PROF["on"] = bool(opts.get("prof"))
    END = "L_END"
    a("s_load_dwordx16 s[36:51], s[0:1], 0")
    a("s_load_dwordx16 s[52:67], s[0:1], 64")
    a("s_load_dwordx8 s[68:75], s[0:1], 128")
    a(f"s_cmp_ge_u32 s2, 256")
    a(f"s_cbranch_scc1 {END}")
    a("v_lshrrev_b32 v1, 6, v0")
    a("s_nop 0")
    a(f"v_readfirstlane_b32 s{S_WAVE}, v1")
    a("v_and_b32 v1, 63, v0")
    a("s_and_b32 s30, s2, 7")
    a("s_lshr_b32 s31, s2, 3")
    if opts.get("cwarm2"):
        a(f"s_cmp_lg_u32 s{S_WAVE}, 7")
        a("s_cbranch_scc1 L_NOCW")
        a("s_getpc_b64 s[12:13]")
        a("L_PCREF2:")
        a(f"s_sub_u32 s12, s12, L_PCREF2-{NAME}_kernel")
        a("s_subb_u32 s13, s13, 0")
        a("s_and_b32 s13, s13, 0xffff")
        a(f"s_mov_b32 s14, L_CODE_END-{NAME}_kernel")
        a("s_mov_b32 s15, 0x00020000")
        a("v_lshlrev_b32 v2, 4, v1")
        a("s_lshl_b32 s32, s31, 11")
        a("buffer_load_dwordx4 v[248:251], v2, s[12:15], s32 offen")
        a("buffer_load_dwordx4 v[248:251], v2, s[12:15], s32 offen offset:1024")
        a("L_NOCW:")
    early = opts.get("early", True)
    EARLY["on"] = early
    if not early:
        common_init(a, True)
    a("s_cmp_lt_u32 s31, 20")
    a("s_cbranch_scc1 L_GEMM")
    a("s_cmp_lt_u32 s31, 30")
    a("s_cbranch_scc1 L_CONV")
    a("s_branch L_GATE")
    a("L_GEMM:")
    if opts.get("v1"):
        g1.gen_g1(a, END, opts)
        if opts.get("g2"):
            import g2
            g2.gen_g2(a, END, opts)
        else:
            prof_end(a)
    else:
        import gemm2
        gemm2.gen_gemm(a, END, opts)
    a("L_WIN_END:")
    a(f"s_branch {END}")
    a("L_CONV:")
    if early and not opts.get("cfast"): common_init(a)
    if opts.get("conv"):
        if opts.get("conv1"):
            import conv
            conv.gen_conv(a, END, opts)
        else:
            import conv2
            conv2.gen_conv(a, END, opts)
    a(f"s_branch {END}")
    a("L_GATE:")
    if early: common_init(a)
    if opts.get("gate"):
        import gate
        gate.gen_gate(a, END, opts)
    a(f"{END}:")
    a("s_endpgm")
    a("L_CODE_END:")
    return wrap(a.text())
if __name__ == "__main__":
    out = sys.argv[1]
    opts = {k.split("=")[0]: (True if "=" not in k else eval(k.split("=")[1])) for k in sys.argv[2:]}
    open(out, "w").write(build(opts))
    print("wrote", out)
```

```python
NAME = "gated_mix__ssm_conv_s4d__ssm_conv_s5__prompt"

class Asm:
    def __init__(self):
        self.lines = []
        self.lab = 0
    def __call__(self, s=""):
        for ln in s.split("\n"):
            ln = ln.strip()
            if ln: self.lines.append(ln if ln.endswith(":") else "    " + ln)
    def c(self, s):
        self.lines.append("    ; " + s)
    def label(self, base="L"):
        self.lab += 1
        return f"{base}_{self.lab}"
    def text(self):
        return "\n".join(self.lines) + "\n"

def vr(a, n=1):
    return f"v{a}" if n == 1 else f"v[{a}:{a+n-1}]"
def sr(a, n=1):
    return f"s{a}" if n == 1 else f"s[{a}:{a+n-1}]"

WS_E    = 0x0
WS_FLAG = 0x40000
WS_AFLG = 0x41000
WS_KFLG = 0x44000
WS_KP   = 0x900000
WS_G    = 0x50000
WS_H    = 0x100000
WS_A    = 0x600000
WS_SIZE = 0xC00000

P_X, P_LOGA, P_AIM, P_CRE, P_CIM, P_LOGDT, P_DSKA, P_BX = 36, 38, 40, 42, 44, 46, 48, 50
P_LRE, P_LIM, P_BRE, P_BIM, P_C2RE, P_C2IM, P_LOGDTB, P_DSKB = 52, 54, 56, 58, 60, 62, 64, 66
P_GW, P_OUT, P_DBG, P_WS = 68, 70, 72, 74

S_WG, S_WAVE = 2, 3
SRD_X, SRD_WS, SRD_A, SRD_B, SRD_C, SRD_DBG = 4, 8, 12, 16, 20, 24
S_NONCE = 28

LOG2E = 1.4426950408889634
import struct
def f2u(f):
    return struct.unpack("<I", struct.pack("<f", f))[0]
def fhex(f):
    return "0x%08x" % f2u(f)
LOG2E_HI = struct.unpack("<f", struct.pack("<f", LOG2E))[0]
LOG2E_LO = LOG2E - LOG2E_HI
LN2 = 0.6931471805599453
INV2PI = 0.15915494309189535

def make_srd(a, dst, ptr, nbytes):
    a(f"s_mov_b32 s{dst}, s{ptr}")
    a(f"s_mov_b32 s{dst+1}, s{ptr+1}")
    a(f"s_mov_b32 s{dst+2}, {nbytes}")
    a(f"s_mov_b32 s{dst+3}, 0x00020000")

def exp_accurate(a, dst, x, t0, t1, t2):
    a(f"v_mul_f32 v{t0}, {fhex(LOG2E_HI)}, v{x}")
    a(f"s_mov_b32 s34, {fhex(LOG2E_HI)}")
    a(f"v_fma_f32 v{t1}, v{x}, s34, -v{t0}")
    a(f"v_fmac_f32 v{t1}, {fhex(LOG2E_LO)}, v{x}")
    a(f"v_exp_f32 v{t2}, v{t0}")
    a(f"v_mul_f32 v{t1}, {fhex(LN2)}, v{t1}")
    a(f"s_nop 0")
    a(f"v_fma_f32 v{dst}, v{t2}, v{t1}, v{t2}")

def round_bf16(a, dst, x):
    a(f"v_cvt_pk_bf16_f32 v{dst}, v{x}, v{x}")
    a(f"v_and_b32 v{dst}, 0xffff0000, v{dst}")

def poll_timeout(a, scnt, fail_label):
    a(f"s_sub_u32 s{scnt}, s{scnt}, 1")
    a(f"s_cbranch_scc1 {fail_label}")

def wrap(body, grid=256, block=512, lds=163840, vgpr=256, sgpr=102):
    accum = min(256, (vgpr + 3) // 4 * 4)
    hdr = open("cdna_kernels/" + NAME + ".s.ref").read().split("; Override launch")[0]
    return f"""{hdr}; @launch grid=({grid},1,1) block=({block},1,1) lds={lds}
.amdgcn_target "amdgcn-amd-amdhsa--gfx950"
.text
.globl {NAME}_kernel
.p2align 8
.type {NAME}_kernel,@function
{NAME}_kernel:
{body}
.section .rodata,"a"
.p2align 6
.amdhsa_kernel {NAME}_kernel
  .amdhsa_next_free_vgpr {vgpr}
  .amdhsa_next_free_sgpr {sgpr}
  .amdhsa_accum_offset {accum}
  .amdhsa_group_segment_fixed_size 0
  .amdhsa_kernarg_size 160
  .amdhsa_user_sgpr_count 2
  .amdhsa_user_sgpr_kernarg_segment_ptr 1
  .amdhsa_system_sgpr_workgroup_id_x 1
.end_amdhsa_kernel
"""

PROF = {"on": False}
WS_PROF = 0x8C0000
V_PROF = 255
def stamp(a, k):
    if not PROF["on"]: return
    a("s_memrealtime s[96:97]")
    a("s_waitcnt lgkmcnt(0)")
    a(f"v_writelane_b32 v{V_PROF}, s96, {k}")
def prof_end(a, wave_cond=0, extra=0):
    if not PROF["on"]: return
    lab = a.label("PEND")
    a(f"s_cmp_lg_u32 s{S_WAVE}, {wave_cond}")
    a(f"s_cbranch_scc1 {lab}")
    a("v_and_b32 v254, 63, v0")
    a("v_lshlrev_b32 v254, 2, v254")
    a("s_lshl_b32 s96, s2, 7")
    a(f"s_add_u32 s96, s96, {WS_PROF + extra}")
    a("s_mov_b32 exec_lo, -1")
    a("s_mov_b32 exec_hi, 0")
    a(f"buffer_store_dword v{V_PROF}, v254, s[{SRD_WS}:{SRD_WS+3}], s96 offen")
    a("s_mov_b64 exec, -1")
    a(f"{lab}:")

def cstamp(a, k):
    if not PROF["on"]: return
    a("s_memtime s[96:97]")
    a("s_waitcnt lgkmcnt(0)")
    a(f"v_writelane_b32 v{V_PROF}, s96, {k}")

def common_init(a, nonce=False):
    a("s_waitcnt lgkmcnt(0)")
    make_srd(a, SRD_X, P_X, 2621440)
    make_srd(a, SRD_WS, P_WS, WS_SIZE)
    make_srd(a, SRD_DBG, P_DBG, 256)
    if nonce:
        lab = a.label("NONONCE")
        a(f"s_or_b32 s34, s2, s{S_WAVE}")
        a("s_cmp_lg_u32 s34, 0")
        a(f"s_cbranch_scc1 {lab}")
        a(f"s_memrealtime s[{S_NONCE}:{S_NONCE+1}]")
        a("s_waitcnt lgkmcnt(0)")
        a(f"s_or_b32 s{S_NONCE}, s{S_NONCE}, 1")
        a(f"v_mov_b32 v2, s{S_NONCE}")
        a(f"v_mov_b32 v3, s{S_NONCE+1}")
        a("v_mov_b32 v4, 0")
        a("s_mov_b64 s[34:35], exec")
        a("s_mov_b64 exec, 1")
        a(f"buffer_store_dwordx2 v[2:3], v4, s[{SRD_DBG}:{SRD_DBG+3}], 0 offen sc1")
        a("s_mov_b64 exec, s[34:35]")
        a(f"{lab}:")
    if PROF["on"]: a(f"v_mov_b32 v{V_PROF}, 0")
    stamp(a, 0)

EARLY = {"on": True}

def srd_base(a, dst, ptr):
    a(f"s_mov_b32 s{dst}, s{ptr}")
    a(f"s_mov_b32 s{dst+1}, s{ptr+1}")
```

```python
from common import *
from g1 import V_LANE, S_CNT, S_EXEC, S_MISM, interleave
from gate import get_nonce
from g2 import poll_flags

RSZ = 20480
U_OFF = 80
T_OFF = 5200
CS = 2368
R_OFF = T_OFF
W_OFF = T_OFF + 32
G_OFF = W_OFF + 4*CS
GD = G_OFF - R_OFF
CNT_OFF = 20416
S_IDX, S_D, S_RB = 30, 31, 32
S_T3 = 87

def slot_alpha(i):
    q, g, e = i >> 3, (i >> 2) & 1, i & 3
    if q == 0: return 4*g + e
    if q == 1:
        if e < 2: return 1024 + 256*(2*g + e)
        if e == 2 and g == 0: return 2048
        return None
    if q == 2: return None if e == 3 else 512 + 256*g + 4*e
    if q == 3: return None if e == 3 else 256 + 4*g + 2*e
XROW = {}
for i in range(32):
    al = slot_alpha(i)
    if al is None or i == 28: continue
    XROW[al] = i
HOLES = [11, 14, 15, 19, 23, 27, 28, 31]
assert all(h not in XROW.values() for h in HOLES) and len(XROW) == 24
def yrow(b): return 32 + b if b < 24 else HOLES[b - 24]

def pcmul(a, d, x, y):
    a(f"v_pk_mul_f32 v[{d}:{d+1}], v[{x}:{x+1}], v[{y}:{y+1}] op_sel:[0,0] op_sel_hi:[0,1]")
    a(f"v_pk_fma_f32 v[{d}:{d+1}], v[{x}:{x+1}], v[{y}:{y+1}], v[{d}:{d+1}] op_sel:[1,1,0] op_sel_hi:[1,0,1] neg_lo:[1,0,0]")

V_U = 16
V_PRM = 32
V_AW = 40
V_AA_ = 56
V_ACC_ = 64
V_AB_ = 96
V_E = 104
V_E256 = 120
V_B0, V_B1 = 122, 124
V_Y0, V_Y1 = 126, 128
V_X = 130
V_CP = 132
V_T_ = 134
V_E16 = 150
V_BB = 152
V_YY = 168
V_X2, V_X3 = 176, 178
V_PK = 186
V_FRK = 104
V_DT = 184
V_DSK = 185
def Ek(k): return V_E + 2*(k-1)

def cis_exp(a, d, zr2, zi, p, t):
    if p == 1:
        a(f"v_exp_f32 v{t}, v{zr2}")
        a(f"v_fract_f32 v{t+1}, v{zi}")
    else:
        a(f"v_mul_f32 v{t}, {fhex(float(p))}, v{zr2}")
        a(f"v_mul_f32 v{t+1}, {fhex(float(p))}, v{zi}")
        a(f"v_exp_f32 v{t}, v{t}")
        a(f"v_fract_f32 v{t+1}, v{t+1}")
    a(f"v_cos_f32 v{t+2}, v{t+1}")
    a(f"v_sin_f32 v{t+3}, v{t+1}")
    a(f"s_nop 0")
    a(f"v_mul_f32 v{d}, v{t}, v{t+2}")
    a(f"v_mul_f32 v{d+1}, v{t}, v{t+3}")

class TabWriter:
    NPK = 8
    def __init__(self, a): self.a = a; self.k = 0; self.q = []
    def put(self, row, pair, neg):
        t = V_PK + (self.k % self.NPK); self.k += 1
        self.a(f"v_cvt_pk_bf16_f32 v{t}, v{pair}, {'-' if neg else ''}v{pair+1}")
        self.q.append(f"ds_write_addtid_b32 v{t} offset:{row*272}")
        while len(self.q) > 2: self.a(self.q.pop(0))
    def flush(self):
        while self.q: self.a(self.q.pop(0))

def kgen_pass(a, hh, extras=None, pk=True, every=4, accum=False):
    T = V_T_
    a.c(f"K-gen pass {hh}")
    fresh = ((hh == 0) or isinstance(hh, str)) and not accum
    if hh == "one":
        for k in range(4): a(f"v_and_b32 v{T+k}, 0xffff0000, v{V_PRM+k}")
    elif isinstance(hh, str):
        l0 = a.label("KH0"); l1 = a.label("KH1")
        a(f"s_cmp_lg_u32 {hh}, 0")
        a(f"s_cbranch_scc1 {l0}")
        for k in range(4): a(f"v_lshlrev_b32 v{T+k}, 16, v{V_PRM+k}")
        a(f"s_branch {l1}")
        a(f"{l0}:")
        for k in range(4): a(f"v_and_b32 v{T+k}, 0xffff0000, v{V_PRM+k}")
        a(f"{l1}:")
    else:
        for k in range(4):
            if hh == 0: a(f"v_lshlrev_b32 v{T+k}, 16, v{V_PRM+k}")
            else:       a(f"v_and_b32 v{T+k}, 0xffff0000, v{V_PRM+k}")
    exp_accurate(a, T, T, T+4, T+5, T+6)
    round_bf16(a, T, T)
    a(f"v_mul_f32 v{T}, -v{T}, v{V_DT}")
    a(f"v_mul_f32 v{T+1}, v{T+1}, v{V_DT}")
    a(f"v_mul_f32 v{T}, {fhex(LOG2E)}, v{T}")
    a(f"v_mul_f32 v{T+1}, {fhex(INV2PI)}, v{T+1}")
    a(f"v_mul_f32 v{T+2}, v{T+2}, v{V_DT}")
    a(f"v_mul_f32 v{T+3}, v{T+3}, v{V_DT}")
    a(f"v_add_f32 v{V_B0}, v{T+2}, v{T+2}")
    a(f"v_add_f32 v{V_B0+1}, v{T+3}, v{T+3}")
    t, u = T+4, T+8
    a(f"v_exp_f32 v{t}, v{T}")
    a(f"v_mul_f32 v{u}, {fhex(256.0)}, v{T}")
    a(f"v_fract_f32 v{t+1}, v{T+1}")
    a(f"v_mul_f32 v{u+1}, {fhex(256.0)}, v{T+1}")
    a(f"v_exp_f32 v{u}, v{u}")
    a(f"v_cos_f32 v{t+2}, v{t+1}")
    a(f"v_fract_f32 v{u+1}, v{u+1}")
    a(f"v_sin_f32 v{t+3}, v{t+1}")
    a(f"v_cos_f32 v{u+2}, v{u+1}")
    a(f"v_mul_f32 v{Ek(1)}, v{t}, v{t+2}")
    a(f"v_sin_f32 v{u+3}, v{u+1}")
    a(f"v_mul_f32 v{Ek(1)+1}, v{t}, v{t+3}")
    a(f"v_mul_f32 v{V_E256}, v{u}, v{u+2}")
    a(f"v_mul_f32 v{V_E256+1}, v{u}, v{u+3}")
    ops = []
    val = {"E1": Ek(1), "E256": V_E256, "B0": V_B0}
    def op(name, dst, x, y, row=None, neg=False):
        ops.append(dict(name=name, dst=dst, x=x, y=y, row=row, neg=neg))
    op("E2", Ek(2), "E1", "E1")
    op("E4", Ek(4), "E2", "E2")
    op("E3", Ek(3), "E2", "E1")
    op("E8", Ek(8), "E4", "E4", yrow(1))
    op("E5", Ek(5), "E4", "E1")
    op("E6", Ek(6), "E4", "E2")
    op("E7", Ek(7), "E4", "E3")
    op("E16", V_E16, "E8", "E8", yrow(2))
    for kb in range(1, 9):
        op(f"B{kb}", V_BB + 2*(kb-1), f"B{kb-1}", "E256", XROW[256*kb], True)
    def yn(b): return "E8" if b == 1 else ("E16" if b == 2 else f"Y{b}")
    for b in range(3, 32):
        op(f"Y{b}", V_YY + 2*(b % 4), yn(b-2), "E16", yrow(b), False)
    xr = [V_X, V_CP, V_X2, V_X3]
    n = 0
    xl = [(0, k) for k in range(1, 8)] + [(1, k) for k in (2, 4, 6, 8)] + [(2, 4), (2, 8), (3, 4), (3, 8)]
    for kb, k in xl:
        op(f"X{kb}_{k}", xr[n % 4], f"B{kb}", f"E{k}", XROW[256*kb + k], True); n += 1
    order = []
    done = {"E1": -9, "E256": -9, "B0": -9}
    pend = list(ops)
    slot = 0
    def ready(o):
        if not (o["x"] in done and o["y"] in done): return False
        if slot - done[o["x"]] < 2 or slot - done[o["y"]] < 2: return False
        cls = o["name"][0]
        if cls in "YX":
            for p in pend:
                if p is o: break
                if p["name"][0] == cls: return False
        return True
    rr = 0
    while pend:
        cand = [o for o in pend if ready(o)]
        if not cand:
            slot += 1; order.append(None); continue
        pri = {"E": 0, "B": 1, "Y": 2 + (rr & 1), "X": 3 - (rr & 1)}
        cand.sort(key=lambda o: pri[o["name"][0]])
        o = cand[0]
        pend.remove(o); done[o["name"]] = slot; val[o["name"]] = o["dst"]
        order.append(o); slot += 1; rr += 1
    tw = TabWriter(a)
    tw.put(XROW[0], V_B0, True)
    a(f"v_mov_b32 v180, 0x00003f80")
    a(f"ds_write_addtid_b32 v180 offset:{yrow(0)*272}")
    real = [o for o in order if o is not None]
    def mul(o):
        d, x, y = o["dst"], val[o["x"]], val[o["y"]]
        if not pk:
            a(f"v_mul_f32 v{d}, v{x}, v{y}")
            a(f"v_mul_f32 v{d+1}, v{x}, v{y+1}")
            return
        a(f"v_pk_mul_f32 v[{d}:{d+1}], v[{x}:{x+1}], v[{y}:{y+1}] op_sel:[0,0] op_sel_hi:[0,1]")
    def fma(o):
        d, x, y = o["dst"], val[o["x"]], val[o["y"]]
        if not pk:
            a(f"v_fma_f32 v{d}, -v{x+1}, v{y+1}, v{d}")
            a(f"v_fma_f32 v{d+1}, v{x+1}, v{y}, v{d+1}")
            return
        a(f"v_pk_fma_f32 v[{d}:{d+1}], v[{x}:{x+1}], v[{y}:{y+1}], v[{d}:{d+1}] op_sel:[1,1,0] op_sel_hi:[1,0,1] neg_lo:[1,0,0]")
    i = 0
    grp = 0
    lastput = None
    while i < len(real):
        o = real[i]
        o2 = real[i+1] if i + 1 < len(real) else None
        grp += 1
        if extras and grp % every == 1 and grp > 0:
            for ins in extras.pop(0): a(ins)
        if o2 is not None and o["name"] not in (o2["x"], o2["y"]) and o2["dst"] != o["dst"] and o2["dst"] not in (val[o["x"]], val[o["y"]]):
            mul(o); mul(o2)
            if lastput:
                for p in lastput: tw.put(p["row"], p["dst"], p["neg"])
            fma(o); fma(o2)
            lastput = [p for p in (o, o2) if p["row"] is not None]
            i += 2
        else:
            mul(o)
            if lastput:
                for p in lastput: tw.put(p["row"], p["dst"], p["neg"])
            fma(o)
            lastput = [o] if o["row"] is not None else []
            i += 1
    for p in lastput: tw.put(p["row"], p["dst"], p["neg"])
    tw.flush()
    assert not extras, "extras not all placed"
    a(f"s_waitcnt lgkmcnt(0)")
    def rd(ks):
        st = V_FRK + 8*ks
        return [f"ds_read_b128 v[{st}:{st+3}], v{V_AA_} offset:{32*ks}", f"ds_read_b128 v[{st+4}:{st+7}], v{V_AB_} offset:{32*ks}"]
    for ks in range(7):
        for ins in rd(ks): a(ins)
    for ks in range(8):
        if ks == 0:
            a(f"s_waitcnt lgkmcnt(12)")
        elif ks == 1:
            for ins in rd(7): a(ins)
            a(f"s_waitcnt lgkmcnt(12)")
        else:
            a(f"s_waitcnt lgkmcnt({2*(7-ks)})")
        st = V_FRK + 8*ks
        c = "0" if (fresh and ks == 0) else f"v[{V_ACC_}:{V_ACC_+15}]"
        a(f"v_mfma_f32_32x32x16_bf16 v[{V_ACC_}:{V_ACC_+15}], v[{st}:{st+3}], v[{st+4}:{st+7}], {c}")

def kgen_addr_setup(a, sbase):
    K5, K6, K7, K8, K9, K10 = 80, 81, 82, 83, 84, 85
    a(f"s_mov_b32 m0, {sbase}")
    a(f"v_and_b32 v{K5}, 31, v{V_LANE}")
    a(f"v_lshrrev_b32 v{K6}, 5, v{V_LANE}")
    a(f"v_lshlrev_b32 v{K6}, 4, v{K6}")
    a(f"v_add_u32 v{K6}, {sbase}, v{K6}")
    a(f"v_mov_b32 v{K7}, 26")
    a(f"v_cmp_eq_u32 vcc, 28, v{K5}")
    lo = HOLES[0] | HOLES[1] << 8 | HOLES[2] << 16 | HOLES[3] << 24
    hi = HOLES[4] | HOLES[5] << 8 | HOLES[6] << 16 | HOLES[7] << 24
    a(f"v_mov_b32 v{K9}, {hex(lo)}")
    a("s_nop 0")
    a(f"v_cndmask_b32 v{K7}, v{K5}, v{K7}, vcc")
    a(f"v_mov_b32 v{K10}, {hex(hi)}")
    a(f"v_mul_u32_u24 v{K7}, 272, v{K7}")
    a(f"v_add_u32 v{V_AA_}, v{K7}, v{K6}")
    a(f"v_and_b32 v{K8}, 7, v{K5}")
    a(f"v_or_b32 v{K8}, 0x0c0c0c00, v{K8}")
    a(f"v_perm_b32 v{K8}, v{K10}, v{K9}, v{K8}")
    a(f"v_add_u32 v{K7}, 32, v{K5}")
    a(f"v_cmp_lt_u32 vcc, 23, v{K5}")
    a("s_nop 1")
    a(f"v_cndmask_b32 v{K7}, v{K7}, v{K8}, vcc")
    a(f"v_mul_u32_u24 v{K7}, 272, v{K7}")
    a(f"v_add_u32 v{V_AB_}, v{K7}, v{K6}")

def build_W(a, vsrc, vdst):
    S = 104
    regs = [(104, 112), (124, 132)]
    def rd(it):
        S, Wk = regs[it & 1]
        a(f"ds_read_b128 v[{S}:{S+3}], v{vsrc} offset:{32 + it*1024}")
        a(f"ds_read_b128 v[{S+4}:{S+7}], v{vsrc} offset:{32 + it*1024 + 16}")
    rd(0); rd(1)
    for it in range(3):
        S, Wk = regs[it & 1]
        if it == 2:
            a(f"s_mov_b64 s[{S_EXEC}:{S_EXEC+1}], exec")
            a(f"s_mov_b64 exec, 0x3ff")
            rd(2)
            a(f"s_waitcnt lgkmcnt(0)")
        else:
            a(f"s_waitcnt lgkmcnt({2 if it == 0 else 3})")
        for k in range(4): a(f"v_alignbyte_b32 v{Wk+k}, v{S+k+1}, v{S+k}, 2")
        for k in range(4): a(f"v_mov_b32 v{Wk+4+k}, v{S+k+1}")
        a(f"ds_write_b128 v{vdst}, v[{Wk}:{Wk+3}] offset:{CS + it*1024}")
        for k in range(4): a(f"v_alignbyte_b32 v{Wk+8+k}, v{S+k+2}, v{S+k+1}, 2")
        a(f"ds_write_b128 v{vdst}, v[{Wk+4}:{Wk+7}] offset:{2*CS + it*1024}")
        a(f"ds_write_b128 v{vdst}, v[{Wk+8}:{Wk+11}] offset:{3*CS + it*1024}")
        if it == 2:
            a(f"s_mov_b64 exec, s[{S_EXEC}:{S_EXEC+1}]")

V_CA = 40
V_CP33 = 41
V_CQ = 42
V_CZ = 43
V_CQC = 44
V_CF = 104

def conv_dense(a, extra=None):
    NSET = 4
    D = NSET - 1
    subs = [(d, h, True) for d in range(32) for h in range(2)] + [(32, 0, False), (32, 1, False), (33, 1, False)]
    def qreg(d): return V_CQC + (d % 4)
    def addr_ops(d):
        if d >= 32: return []
        if d == 0: return [f"v_max_i32 v{qreg(0)}, v{V_CQ}, v{V_CZ}"]
        return [f"v_subrev_u32 v{V_CQ}, 80, v{V_CQ}", f"v_max_i32 v{qreg(d)}, v{V_CQ}, v{V_CZ}"]
    def reads(s):
        d, h, both = subs[s]
        st = V_CF + 12*(s % NSET)
        o = 64*(33-d) + 32*h
        L = [f"ds_read_b64 v[{st}:{st+1}], v{V_CA} offset:{o}",
             f"ds_read_b64 v[{st+2}:{st+3}], v{V_CA} offset:{o+8}",
             f"ds_read_b128 v[{st+8}:{st+11}], v{V_CP33} offset:{80*(33-d) + 32*h}"]
        if both: L.append(f"ds_read_b128 v[{st+4}:{st+7}], v{qreg(d)} offset:{32*h}")
        return L
    def mf(s):
        d, h, both = subs[s]
        st = V_CF + 12*(s % NSET)
        a0, a1 = V_ACC_, V_ACC_+16
        c0 = "0" if s == 0 else f"v[{a0}:{a0+15}]"
        c1 = "0" if s == 0 else f"v[{a1}:{a1+15}]"
        L = [f"v_mfma_f32_32x32x16_bf16 v[{a1}:{a1+15}], v[{st}:{st+3}], v[{st+8}:{st+11}], {c1}"]
        if both: L.append(f"v_mfma_f32_32x32x16_bf16 v[{a0}:{a0+15}], v[{st}:{st+3}], v[{st+4}:{st+7}], {c0}")
        return L
    N = len(subs)
    done_addr = set()
    def need_addr(s):
        d = subs[s][0]
        if d not in done_addr:
            done_addr.add(d)
            return addr_ops(d)
        return []
    for s in range(D):
        for ins in need_addr(s): a(ins)
        for ins in reads(s): a(ins)
    for s in range(N):
        rem = sum(len(reads(t)) for t in range(s+1, min(s+D, N)))
        a(f"s_waitcnt lgkmcnt({rem})")
        fill = []
        if s + D < N:
            fill += need_addr(s+D)
            fill += reads(s+D)
        if extra and s in extra: fill += extra[s]
        interleave(a, mf(s), fill)

V_BD = 216
V_UA = 240

def far_setup(a):
    T = 186
    a(f"v_and_b32 v{T}, 31, v{V_LANE}")
    a(f"v_lshrrev_b32 v{T+1}, 5, v{V_LANE}")
    a(f"v_lshlrev_b32 v{T+2}, 3, v{T+1}")
    a(f"v_sub_u32 v{T+2}, v{T+2}, v{T}")
    a(f"v_subrev_u32 v{T+2}, 8, v{T+2}")
    a(f"v_lshlrev_b32 v{T+3}, 4, v{T}")
    a(f"v_lshl_add_u32 v{T+3}, v{T+1}, 3, v{T+3}")
    a(f"s_add_u32 s95, s{S_RB}, {80 - 160 + 1280}")
    a(f"v_mov_b32 v{T+6}, s{S_RB}")
    for par in range(2):
        for ks in range(3):
            c0 = (-40 if par == 0 else -32) + 16*ks
            r = V_UA + 3*par + ks
            a(f"v_add_u32 v{T+4}, {c0 + 64}, v{T+3}")
            a(f"v_lshrrev_b32 v{T+5}, 5, v{T+4}")
            a(f"v_mul_u32_u24 v{T+5}, 80, v{T+5}")
            a(f"v_and_b32 v{T+4}, 31, v{T+4}")
            a(f"v_lshl_add_u32 v{T+5}, v{T+4}, 1, v{T+5}")
            a(f"v_add_u32 v{r+6}, s95, v{T+5}")
            a(f"v_subrev_u32 v{T+5}, 1280, v{r+6}")
            a(f"v_max_i32 v{r}, v{T+5}, v{T+6}")
    a(f"v_lshlrev_b32 v{T+9}, 3, v{T+1}")
    for par in range(2):
        w = 4 - par
        M = T + 10
        a(f"v_mov_b32 v{M}, {(1 << (2*w+1)) - 1}")
        a(f"v_mov_b32 v{M+1}, 0")
        a(f"v_add_u32 v{T+4}, {8 - w}, v{T}")
        a(f"v_lshlrev_b64 v[{M}:{M+1}], v{T+4}, v[{M}:{M+1}]")
        a(f"v_lshrrev_b64 v[{M}:{M+1}], v{T+9}, v[{M}:{M+1}]")
        for ks in range(3):
            word = M if ks < 2 else M + 1
            for dw in range(4):
                r = V_BD + 12*par + 4*ks + dw
                a(f"v_bfe_u32 v{r}, v{word}, {(16*ks) % 32 + 2*dw}, 2")
                a(f"v_lshl_or_b32 v{r}, v{r}, 15, v{r}")
                a(f"v_and_b32 v{r}, 0x00010001, v{r}")
                a(f"v_mul_u32_u24 v{r}, 0x3f80, v{r}")

def conv_far(a):
    a.c("far part")
    ZA = 144
    FR = 104
    seq = [(t, par, ks) for t in range(2) for par in range(2) for ks in range(3)]
    def rd(j):
        t, par, ks = seq[j]
        r = FR + 4*(j % 8)
        return f"ds_read_b128 v[{r}:{r+3}], v{V_UA + 6*t + 3*par + ks}"
    for j in range(8): a(rd(j))
    for j in range(12):
        t, par, ks = seq[j]
        issued = min(12, 8 + j)
        a(f"s_waitcnt lgkmcnt({issued - j - 1})")
        r = FR + 4*(j % 8)
        d = ZA + 16*(2*t + par)
        c = "0" if ks == 0 else f"v[{d}:{d+15}]"
        b = V_BD + 12*par + 4*ks
        a(f"v_mfma_f32_32x32x16_bf16 v[{d}:{d+15}], v[{r}:{r+3}], v[{b}:{b+3}], {c}")
        if j + 8 < 12: a(rd(j+8))
    ZF = 104
    GF = 144
    for q in range(4):
        for e in range(4):
            a(f"v_cvt_pk_bf16_f32 v{ZF + 4*q + e}, v{ZA + 4*q + e}, v{ZA + 16 + 4*q + e}")
    def grd(ks):
        r = GF + 4*ks
        return [f"ds_read_b64 v[{r}:{r+1}], v{V_GA} offset:{32*ks}", f"ds_read_b64 v[{r+2}:{r+3}], v{V_GA} offset:{32*ks+8}"]
    for ks in range(6):
        for ins in grd(ks): a(ins)
    for q in range(4):
        for e in range(4):
            a(f"v_cvt_pk_bf16_f32 v{ZF + 16 + 4*q + e}, v{ZA + 32 + 4*q + e}, v{ZA + 48 + 4*q + e}")
    a1 = V_ACC_ + 16
    for ks in range(8):
        if ks == 0:
            a(f"s_waitcnt lgkmcnt(10)")
        elif ks == 1:
            for k2 in (6, 7):
                for ins in grd(k2): a(ins)
            a(f"s_waitcnt lgkmcnt(12)")
        else:
            a(f"s_waitcnt lgkmcnt({2*(7-ks)})")
        r = GF + 4*ks
        a(f"v_mfma_f32_32x32x16_bf16 v[{a1}:{a1+15}], v[{ZF+4*ks}:{ZF+4*ks+3}], v[{r}:{r+3}], v[{a1}:{a1+15}]")

V_CZ2 = 48
V_GA = 51

def u_stage(a, UREG):
    a(f"s_waitcnt vmcnt(0)")
    stamp(a, 5)
    a(f"s_and_b32 s35, s{S_WAVE}, 3")
    a(f"v_lshrrev_b32 v5, 5, v{V_LANE}")
    a(f"s_lshl_b32 s33, s35, 4")
    a(f"v_add_u32 v5, s33, v5")
    a(f"v_mul_u32_u24 v5, 80, v5")
    a(f"v_and_b32 v3, 31, v{V_LANE}")
    a(f"v_lshl_add_u32 v5, v3, 1, v5")
    a(f"v_add_u32 v5, {U_OFF}, v5")
    for i in range(8):
        a(f"s_lshl_b32 s34, s{S_IDX}, 1")
        a(f"s_add_u32 s34, s34, {i}")
        a(f"s_and_b32 s34, s34, 7")
        a(f"s_mul_i32 s34, s34, 160")
        a(f"v_add_u32 v6, s34, v5")
        a(f"v_add_u32 v7, {3*RSZ}, v6")
        a(f"v_add_u32 v8, {6*RSZ}, v6")
        for ch in range(8):
            base = [6, 7, 8][ch // 3]
            off = (ch % 3)*RSZ
            op = "ds_write_b16" if ch % 2 == 0 else "ds_write_b16_d16_hi"
            a(f"{op} v{base}, v{UREG[i] + ch//2} offset:{off}")
    a(f"v_mov_b32 v8, 0\nv_mov_b32 v9, 0\nv_mov_b32 v10, 0\nv_mov_b32 v11, 0")
    a(f"s_mul_i32 s34, s35, {RSZ}")
    a(f"v_lshlrev_b32 v5, 4, v{V_LANE}")
    a(f"v_add_u32 v5, s34, v5")
    a(f"v_add_u32 v6, {4*RSZ}, v5")
    a(f"s_mov_b64 s[{S_EXEC}:{S_EXEC+1}], exec")
    a(f"s_mov_b64 exec, 31")
    a(f"ds_write_b128 v5, v[8:11]")
    a(f"ds_write_b128 v6, v[8:11]")
    a("s_waitcnt lgkmcnt(0)")
    a(f"s_mov_b64 exec, 1")
    a(f"v_mov_b32 v12, {CNT_OFF}")
    a(f"v_mov_b32 v13, 1")
    a(f"ds_add_u32 v12, v13")
    a(f"s_mov_b64 exec, s[{S_EXEC}:{S_EXEC+1}]")

SRD_T0, SRD_T1 = 12, 16
S_TOUCH = 94
MAP45 = {"v": True}
def touch_setup(a, map45):
    make_srd(a, SRD_T0, P_C2RE, 819200)
    make_srd(a, SRD_T1, P_C2IM, 819200)
    a(f"s_cmp_lt_u32 s{S_WAVE}, 4")
    a(f"s_cselect_b32 s{SRD_T0+2}, 819200, 0")
    a(f"s_cselect_b32 s{SRD_T1+2}, 819200, 0")
    a(f"v_lshrrev_b32 v14, 3, v{V_LANE}")
    a(f"v_mul_u32_u24 v14, 1280, v14")
    a(f"v_and_b32 v15, 7, v{V_LANE}")
    a(f"v_lshl_add_u32 v39, v15, 6, v14")
    a(f"s_mul_hi_u32 s35, s{S_IDX}, {(2**32 + 9)//10}")
    a(f"s_mul_i32 s34, s35, 10")
    a(f"s_sub_u32 s34, s{S_IDX}, s34")
    if MAP45["v"]:
        a(f"s_and_b32 s35, s35, 1")
        a(f"s_mul_i32 s35, s35, 40")
        a(f"s_lshl_b32 s34, s34, 2")
        a(f"s_add_u32 s35, s35, s34")
        a(f"s_and_b32 s34, s{S_WAVE}, 3")
        a(f"s_add_u32 s35, s35, s34")
        a(f"s_mul_i32 s{S_TOUCH}, s35, {8*1280}")
    else:
        a(f"s_lshl_b32 s34, s34, 2")
        a(f"s_and_b32 s35, s{S_WAVE}, 3")
        a(f"s_add_u32 s35, s35, s34")
        a(f"s_mul_i32 s{S_TOUCH}, s35, {16*1280}")
        a(f"s_add_u32 s98, s{S_TOUCH}, {8*1280}")
def touch(k):
    srd = SRD_T0 if (k & 1) == 0 else SRD_T1
    off = 512*(k >> 1)
    L = [f"buffer_load_dword v38, v39, s[{srd}:{srd+3}], s{S_TOUCH} offen offset:{off}"]
    if not MAP45["v"]:
        L.append(f"buffer_load_dword v38, v39, s[{srd}:{srd+3}], s98 offen offset:{off}")
    return L

def gen_conv(a, END, opts):
    MAP45["v"] = opts.get("map45", True)
    a.c("================= CONV role v2 =================")
    a("s_mul_i32 s30, s30, 10")
    a("s_add_u32 s30, s30, s31")
    a(f"s_sub_u32 s{S_IDX}, s30, 20")
    a(f"s_lshl_b32 s{S_D}, s{S_IDX}, 3")
    a(f"s_add_u32 s{S_D}, s{S_D}, s{S_WAVE}")
    a(f"s_mul_i32 s{S_RB}, s{S_WAVE}, {RSZ}")
    T = V_T_
    cfast = opts.get("cfast")
    if cfast:
        a("s_waitcnt lgkmcnt(0)")
    else:
        a(f"v_lshlrev_b32 v5, 2, v{V_LANE}")
        a(f"s_add_u32 s33, s{S_RB}, {CNT_OFF}")
        a(f"v_add_u32 v5, s33, v5")
        a(f"v_mov_b32 v3, 0")
        a(f"s_mov_b64 exec, 15")
        a(f"ds_write_b32 v5, v3")
        a(f"s_mov_b64 exec, -1")
        a(f"s_waitcnt lgkmcnt(0)")
        a("s_barrier")
    coop = opts.get("coop")
    V_PRMB = 40
    a(f"v_lshlrev_b32 v2, 2, v{V_LANE}")
    if coop:
        a(f"s_and_b32 s35, s{S_D}, 0xfffffffb")
    else:
        a(f"s_mov_b32 s35, s{S_D}")
    a(f"s_lshl_b32 s33, s35, 8")
    for k, P in enumerate([P_LOGA, P_AIM, P_CRE, P_CIM]):
        if k == 0: make_srd(a, SRD_A, P, 163840)
        else: srd_base(a, SRD_A, P)
        a(f"buffer_load_dword v{V_PRM+k}, v2, s[{SRD_A}:{SRD_A+3}], s33 offen")
    a(f"s_lshl_b32 s33, s35, 1")
    a(f"v_mov_b32 v3, 0")
    make_srd(a, SRD_A, P_LOGDT, 1280)
    a(f"buffer_load_ushort v{V_PRM+4}, v3, s[{SRD_A}:{SRD_A+3}], s33 offen")
    a(f"s_lshl_b32 s33, s{S_D}, 1")
    make_srd(a, SRD_B, P_DSKA, 1280)
    a(f"buffer_load_ushort v{V_PRM+5}, v3, s[{SRD_B}:{SRD_B+3}], s33 offen")
    if coop:
        labb = a.label("PB")
        a(f"s_cmp_lt_u32 s{S_WAVE}, 4")
        a(f"s_cbranch_scc1 {labb}")
        a(f"buffer_load_ushort v{V_PRMB+4}, v3, s[{SRD_A}:{SRD_A+3}], s33 offen")
        a(f"s_lshl_b32 s33, s{S_D}, 8")
        for k, P in enumerate([P_LOGA, P_AIM, P_CRE, P_CIM]):
            make_srd(a, SRD_A, P, 163840)
            a(f"buffer_load_dword v{V_PRMB+k}, v2, s[{SRD_A}:{SRD_A+3}], s33 offen")
        a(f"{labb}:")
    if cfast:
        common_init(a)
        a(f"v_lshlrev_b32 v5, 2, v{V_LANE}")
        a(f"s_add_u32 s33, s{S_RB}, {CNT_OFF}")
        a(f"v_add_u32 v5, s33, v5")
        a(f"v_mov_b32 v3, 0")
        a(f"s_mov_b64 exec, 15")
        a(f"ds_write_b32 v5, v3")
        a(f"s_mov_b64 exec, -1")
        a(f"s_waitcnt lgkmcnt(0)")
        a("s_barrier")
    UREG = [16, 20, 24, 28, 194, 198, 202, 206]
    a(f"v_mul_u32_u24 v15, 1280, v{V_LANE}")
    a(f"s_and_b32 s35, s{S_WAVE}, 3")
    a(f"s_mul_i32 s33, s35, {512*1280}")
    a(f"s_lshl_b32 s34, s{S_IDX}, 4")
    a(f"s_add_u32 s33, s33, s34")
    uloads = []
    for i in range(8):
        a(f"s_lshl_b32 s34, s{S_IDX}, 1")
        a(f"s_add_u32 s34, s34, {i}")
        a(f"s_and_b32 s34, s34, 7")
        a(f"s_mul_i32 s34, s34, {64*1280}")
        a(f"s_add_u32 s{76+i}, s34, s33")
        uloads.append([f"buffer_load_dwordx4 v[{UREG[i]}:{UREG[i]+3}], v15, s[{SRD_X}:{SRD_X+3}], s{76+i} offen"])
    if opts.get("uold") or opts.get("uimm") or opts.get("uimm2") or opts.get("uimm3") or opts.get("uimm4") or opts.get("kofl") or coop:
        lab = a.label("UIMM")
        a(f"s_cmp_lt_u32 s{S_WAVE}, 4")
        a(f"s_cbranch_scc{0 if opts.get('uold') else 1} {lab}")
        for l in uloads:
            for ins in l: a(ins)
        a(f"{lab}:")
    if opts.get("prio", False):
        lab = a.label("PRIO")
        a(f"s_cmp_ge_u32 s{S_WAVE}, 4")
        a(f"s_cbranch_scc1 {lab}")
        a("s_setprio 2")
        a(f"{lab}:")
    a(f"v_lshlrev_b32 v2, 2, v{V_LANE}")
    a(f"s_add_u32 s33, s{S_RB}, {T_OFF}")
    a(f"s_mov_b32 m0, s33")
    a(f"v_and_b32 v5, 31, v{V_LANE}")
    a(f"v_lshrrev_b32 v6, 5, v{V_LANE}")
    a(f"v_lshlrev_b32 v6, 4, v6")
    a(f"v_add_u32 v6, s33, v6")
    a(f"v_mov_b32 v7, 26")
    a(f"v_cmp_eq_u32 vcc, 28, v5")
    lo = HOLES[0] | HOLES[1] << 8 | HOLES[2] << 16 | HOLES[3] << 24
    hi = HOLES[4] | HOLES[5] << 8 | HOLES[6] << 16 | HOLES[7] << 24
    a(f"v_mov_b32 v9, {hex(lo)}")
    a("s_nop 0")
    a(f"v_cndmask_b32 v7, v5, v7, vcc")
    a(f"v_mov_b32 v10, {hex(hi)}")
    a(f"v_mul_u32_u24 v7, 272, v7")
    a(f"v_add_u32 v{V_AA_}, v7, v6")
    a(f"v_and_b32 v8, 7, v5")
    a(f"v_or_b32 v8, 0x0c0c0c00, v8")
    a(f"v_perm_b32 v8, v10, v9, v8")
    a(f"v_add_u32 v7, 32, v5")
    a(f"v_cmp_lt_u32 vcc, 23, v5")
    a("s_nop 1")
    a(f"v_cndmask_b32 v7, v7, v8, vcc")
    a(f"v_mul_u32_u24 v7, 272, v7")
    a(f"v_add_u32 v{V_AB_}, v7, v6")
    stamp(a, 1)
    if opts.get("uold") or opts.get("uimm") or opts.get("uimm2") or opts.get("uimm3") or opts.get("uimm4") or opts.get("kofl") or coop:
        labw = a.label("PW"); labw2 = a.label("PW2")
        a(f"s_cmp_lt_u32 s{S_WAVE}, 4")
        a(f"s_cbranch_scc{0 if opts.get('uold') else 1} {labw}")
        a(f"s_waitcnt vmcnt({13 if coop else 8})")
        a(f"s_branch {labw2}")
        a(f"{labw}:")
        a("s_waitcnt vmcnt(0)")
        a(f"{labw2}:")
    else:
        a("s_waitcnt vmcnt(0)")
    stamp(a, 2)
    if opts.get("tlbw"):
        a(f"v_lshlrev_b32 v4, 20, v{V_LANE}")
        a(f"s_mov_b64 exec, 0x3ff")
        a(f"buffer_load_dword v38, v4, s[{SRD_WS}:{SRD_WS+3}], 0 offen")
        a(f"s_mov_b64 exec, -1")
    a(f"v_lshlrev_b32 v{V_DT}, 16, v{V_PRM+4}")
    exp_accurate(a, V_DT, V_DT, T, T+1, T+2)
    round_bf16(a, V_DT, V_DT)
    a(f"v_lshlrev_b32 v{V_DSK}, 16, v{V_PRM+5}")
    ct = opts.get("ctouch", False)
    if ct: touch_setup(a)
    if opts.get("nou"): uloads = [[], [], [], []]
    if opts.get("uearly"):
        for l in uloads:
            for ins in l: a(ins)
        uloads = [[], [], [], []]
    lab_yk = a.label("YK"); lab_kd = a.label("KD")
    if opts.get("kshare"):
        assert opts.get("uimm2") and not opts.get("etouch")
        S_HH = 84
        a(f"s_mov_b32 s{S_HH}, 0")
        for r in range(16): a(f"v_mov_b32 v{V_ACC_+r}, 0")
        a("L_KSH:")
        kgen_pass(a, f"s{S_HH}", accum=True)
        a(f"s_cmp_ge_u32 s{S_WAVE}, 4")
        a(f"s_cbranch_scc1 L_KSHY")
        a(f"s_cmp_eq_u32 s{S_HH}, 1")
        a(f"s_cbranch_scc1 {lab_kd}")
        a(f"s_mov_b32 s{S_HH}, 1")
        a(f"s_branch L_KSH")
        a("L_KSHY:")
        a("s_setprio 3")
        u_stage(a, UREG)
        a(f"s_setprio {opts.get('yprio', 1)}")
        kgen_pass(a, 1, None, pk=False)
        a(f"s_branch {lab_kd}")
    et = opts.get("etouch", False)
    if not opts.get("kshare"):
        a(f"s_cmp_ge_u32 s{S_WAVE}, 4")
        a(f"s_cbranch_scc1 {lab_yk}")
        et = opts.get("etouch", False)
        if et: touch_setup(a, True)
        kgen_pass(a, 0)
        stamp(a, 3)
        if coop:
            if et:
                for ins in touch(0) + touch(1): a(ins)
            a(f"s_add_u32 s33, s{S_RB}, {4*RSZ}")
            a(f"s_add_u32 s34, s33, {CNT_OFF}")
            a(f"v_mov_b32 v12, s34")
            lp = a.label("PSP"); ok = a.label("PSOK")
            a(f"s_mov_b32 s{S_CNT}, 2000000")
            a(f"{lp}:")
            a(f"ds_read_b32 v13, v12")
            a(f"s_waitcnt lgkmcnt(0)")
            a(f"v_readfirstlane_b32 s{S_T3}, v13")
            a(f"s_nop 0")
            a(f"s_cmp_ge_u32 s{S_T3}, 1")
            a(f"s_cbranch_scc1 {ok}")
            a(f"s_sleep 1")
            a(f"s_sub_u32 s{S_CNT}, s{S_CNT}, 1")
            a(f"s_cbranch_scc0 {lp}")
            a(f"{ok}:")
            a(f"v_lshlrev_b32 v5, 2, v{V_LANE}")
            a(f"s_add_u32 s33, s33, {T_OFF}")
            a(f"v_add_u32 v5, s33, v5")
            for r in range(15):
                a(f"ds_read_b32 v{104+r}, v5 offset:{r*272}")
            a(f"s_waitcnt lgkmcnt(0)")
            a(f"v_mov_b32 v13, 1")
            a(f"s_mov_b64 exec, 1")
            a(f"ds_add_u32 v12, v13 offset:4")
            a(f"s_mov_b64 exec, -1")
            for r in range(15):
                a(f"v_add_f32 v{V_ACC_+r}, v{V_ACC_+r}, v{104+r}")
        else:
            if opts.get("uold") == 2:
                u_stage(a, UREG)
            kgen_pass(a, 1, [touch(0), touch(1)] if et else None, every=opts.get("etev", 14))
            if opts.get("uold") == 1:
                u_stage(a, UREG)
        a(f"s_branch {lab_kd}")
        a(f"{lab_yk}:")
        if et: touch_setup(a, True)
        if opts.get("uold"):
            kgen_pass(a, 0)
            stamp(a, 3)
            kgen_pass(a, 1, None, pk=opts.get("ypk", True))
        elif coop:
            kgen_pass(a, "one")
            stamp(a, 13)
            a("s_nop 7\ns_nop 7")
            for r in range(15):
                a(f"ds_write_addtid_b32 v{V_ACC_+r} offset:{r*272}")
            a(f"s_add_u32 s34, s{S_RB}, {CNT_OFF}")
            a(f"v_mov_b32 v12, s34")
            a(f"v_mov_b32 v13, 1")
            a(f"s_waitcnt lgkmcnt(0)")
            a(f"s_mov_b64 exec, 1")
            a(f"ds_add_u32 v12, v13")
            a(f"s_mov_b64 exec, -1")
            a("s_setprio 3")
            u_stage(a, UREG)
            a(f"s_setprio {opts.get('yprio0', 0)}")
            stamp(a, 14)
            a(f"s_add_u32 s34, s{S_RB}, {CNT_OFF + 4}")
            a(f"v_mov_b32 v12, s34")
            lp = a.label("ASP"); ok = a.label("ASOK")
            a(f"s_mov_b32 s{S_CNT}, 2000000")
            a(f"{lp}:")
            a(f"ds_read_b32 v13, v12")
            a(f"s_waitcnt lgkmcnt(0)")
            a(f"v_readfirstlane_b32 s{S_T3}, v13")
            a(f"s_nop 0")
            a(f"s_cmp_ge_u32 s{S_T3}, 1")
            a(f"s_cbranch_scc1 {ok}")
            a(f"s_sleep 1")
            a(f"s_sub_u32 s{S_CNT}, s{S_CNT}, 1")
            a(f"s_cbranch_scc0 {lp}")
            a(f"{ok}:")
            for k in range(4): a(f"v_mov_b32 v{V_PRM+k}, v{V_PRMB+k}")
            a(f"v_lshlrev_b32 v{V_DT}, 16, v{V_PRMB+4}")
            exp_accurate(a, V_DT, V_DT, T, T+1, T+2)
            round_bf16(a, V_DT, V_DT)
            kgen_pass(a, 0, None, pk=False)
            stamp(a, 3)
        elif opts.get("kofl"):
            a("s_setprio 3")
            u_stage(a, UREG)
            a("s_setprio 0")
            stamp(a, 3)
            a("v_mov_b32 v5, 0")
            get_nonce(a, END, 5, 2)
            a(f"s_lshl_b32 s33, s{S_IDX}, 2")
            a(f"s_and_b32 s34, s{S_WAVE}, 3")
            a(f"s_add_u32 s33, s33, s34")
            a(f"s_lshl_b32 s34, s33, 4")
            a(f"s_add_u32 s34, s34, {WS_KFLG}")
            poll_flags(a, END, 34, 2, 6, 8)
            a(f"s_lshl_b32 s33, s33, 13")
            a(f"s_add_u32 s33, s33, {WS_KP}")
            a(f"v_lshlrev_b32 v6, 4, v{V_LANE}")
            for p in range(2):
                for j in range(4):
                    r = (V_ACC_ if p == 0 else 104) + 4*j
                    a(f"s_add_u32 s34, s33, {p*4096}") if j == 0 else None
                    a(f"buffer_load_dwordx4 v[{r}:{r+3}], v6, s[{SRD_WS}:{SRD_WS+3}], s34 offen offset:{j*1024} sc1")
            a("s_waitcnt vmcnt(0)")
            for k in range(16):
                a(f"v_add_f32 v{V_ACC_+k}, v{V_ACC_+k}, v{104+k}")
        elif opts.get("uimm4"):
            kgen_pass(a, 0)
            stamp(a, 3)
            if opts.get("u4mid"):
                a("s_setprio 3")
                u_stage(a, UREG)
                a("s_setprio 0")
                kgen_pass(a, 1)
            else:
                kgen_pass(a, 1)
                a("s_setprio 3")
                u_stage(a, UREG)
                a("s_setprio 0")
        elif opts.get("uimm3"):
            tmp = Asm(); tmp("s_setprio 3"); u_stage(tmp, UREG); tmp(f"s_setprio {opts.get('yprio0', 0)}")
            kgen_pass(a, 0, [[l.strip() for l in tmp.lines]], every=opts.get("u3at", 8))
            stamp(a, 3)
        elif opts.get("uimm2"):
            kgen_pass(a, 0)
            stamp(a, 3)
            a("s_setprio 3")
            u_stage(a, UREG)
        elif opts.get("uimm"):
            a("s_setprio 3")
            u_stage(a, UREG)
            a(f"s_setprio {opts.get('yprio0', 0)}")
            kgen_pass(a, 0, None, pk=False)
            stamp(a, 3)
        else:
            kgen_pass(a, 0, list(uloads), every=opts.get("uevy", 3))
            stamp(a, 3)
            a("s_setprio 3")
            u_stage(a, UREG)
        if not opts.get("kofl") and not opts.get("uimm4") and not opts.get("uold"):
            a(f"s_setprio {opts.get('yprio', 1)}")
            kgen_pass(a, 1, None, pk=False)
    a(f"{lab_kd}:")
    a("v_mov_b32 v5, 0")
    a(f"buffer_load_dwordx2 v[52:53], v5, s[{SRD_DBG}:{SRD_DBG+3}], 0 offen sc1")
    stamp(a, 4)
    if ct:
        for ins in touch(6) + touch(7): a(ins)
    a(f"v_mov_b32 v8, 0\nv_mov_b32 v9, 0\nv_mov_b32 v10, 0\nv_mov_b32 v11, 0")
    a(f"s_mov_b64 s[{S_EXEC}:{S_EXEC+1}], exec")
    if et:
        for ins in touch(2): a(ins)
    a.c("expand K -> R, G")
    a("s_nop 7")
    A = V_ACC_
    a(f"v_and_b32 v5, 31, v{V_LANE}")
    a(f"v_lshrrev_b32 v6, 5, v{V_LANE}")
    a(f"s_add_u32 s33, s{S_RB}, {R_OFF}")
    a(f"v_lshlrev_b32 v7, 4, v{V_LANE}")
    a(f"v_add_u32 v7, s33, v7")
    a(f"s_mov_b64 exec, 0x7f")
    a(f"ds_write_b128 v7, v[8:11]")
    a(f"s_mov_b64 exec, 15")
    a(f"ds_write_b128 v7, v[8:11] offset:2176")
    a(f"s_mov_b64 exec, 0xffff")
    a(f"ds_write_b128 v7, v[8:11] offset:{GD + 256}")
    a(f"s_mov_b64 exec, -1")
    a(f"v_lshlrev_b32 v12, 4, v5")
    a(f"v_lshl_add_u32 v12, v6, 3, v12")
    a(f"v_sub_u32 v12, 1656, v12")
    a(f"v_add_u32 v12, s33, v12")
    a(f"v_cvt_pk_bf16_f32 v200, v{A+3}, v{A+2}")
    a(f"v_cvt_pk_bf16_f32 v201, v{A+1}, v{A+0}")
    a(f"ds_write_b64 v12, v[200:201] offset:512")
    a(f"v_cvt_pk_bf16_f32 v202, v{A+14}, v{A+13}")
    a(f"v_cvt_pk_bf16_f32 v203, v{A+12}, v{A+12}")
    a(f"ds_write_b64 v12, v[202:203]")
    a(f"v_lshlrev_b32 v12, 4, v5")
    a(f"v_lshl_add_u32 v12, v6, 9, v12")
    a(f"v_sub_u32 v12, 1136, v12")
    a(f"v_add_u32 v12, s33, v12")
    a(f"v_cvt_pk_bf16_f32 v206, v{A+10}, v{A+10}")
    a(f"v_cvt_pk_bf16_f32 v207, v{A+9}, v{A+9}")
    a(f"v_cvt_pk_bf16_f32 v208, v{A+9}, v{A+8}")
    a(f"v_cvt_pk_bf16_f32 v209, v{A+8}, v{A+8}")
    a(f"ds_write_b128 v12, v[206:209]")
    a(f"v_cvt_pk_bf16_f32 v213, v{A+4}, v{A+4}")
    a(f"v_mov_b32 v210, 0")
    a(f"v_and_b32 v211, 0xffff0000, v213")
    a(f"v_mov_b32 v212, v213")
    a(f"v_mov_b32 v13, s33")
    a(f"s_mov_b64 exec, 1")
    a(f"ds_write_b128 v13, v[210:213] offset:112")
    a(f"s_mov_b64 exec, -1")
    a(f"v_lshlrev_b32 v12, 1, v5")
    a(f"v_lshl_add_u32 v12, v6, 7, v12")
    a(f"v_sub_u32 v12, {256 - 64}, v12")
    a(f"v_add_u32 v12, s33, v12")
    a(f"v_cvt_pk_bf16_f32 v200, v{A+4}, v{A+5}")
    a(f"ds_write_b16 v12, v200 offset:{GD + 64}")
    a(f"ds_write_b16_d16_hi v12, v200 offset:{GD}")
    a(f"v_cvt_pk_bf16_f32 v201, v{A+6}, v{A+6}")
    a(f"v_mov_b32 v202, 0")
    a(f"s_mov_b64 exec, 1")
    a(f"ds_write_b16 v13, v202 offset:{GD + 256}")
    a(f"ds_write_b16 v13, v201 offset:{GD}")
    a(f"s_mov_b64 exec, -1")
    a("s_waitcnt lgkmcnt(0)")
    a(f"v_lshlrev_b32 v6, 4, v{V_LANE}")
    a(f"s_add_u32 s34, s{S_RB}, {W_OFF}")
    a(f"v_add_u32 v6, s34, v6")
    stamp(a, 6)
    if et:
        for ins in touch(3): a(ins)
    build_W(a, 7, 6)
    if et:
        for ins in touch(4): a(ins)
    a(f"s_add_u32 s34, s{S_RB}, {W_OFF}")
    a(f"v_and_b32 v9, 31, v{V_LANE}")
    a(f"v_lshrrev_b32 v8, 5, v{V_LANE}")
    a(f"v_sub_u32 v10, 3, v9")
    a(f"v_and_b32 v10, 3, v10")
    a(f"v_lshlrev_b32 v11, 3, v8")
    a(f"v_sub_u32 v11, v11, v9")
    a(f"v_sub_u32 v11, v11, v10")
    a(f"v_lshlrev_b32 v11, 1, v11")
    a(f"v_add_u32 v11, {2*1071 - 64*33}, v11")
    a(f"v_mul_u32_u24 v10, {CS}, v10")
    a(f"v_add_u32 v11, v11, v10")
    a(f"v_add_u32 v{V_CA}, s34, v11")
    a(f"v_lshlrev_b32 v11, 4, v8")
    a(f"v_add_u32 v{V_CZ}, s{S_RB}, v11")
    a(f"v_mul_u32_u24 v10, 80, v9")
    a(f"v_add_u32 v{V_CP33}, v10, v{V_CZ}")
    a(f"v_add_u32 v{V_CQ}, 80, v{V_CP33}")
    a(f"v_mov_b32 v{V_CZ2}, s{S_RB}")
    a(f"v_mov_b32 v54, v{V_DSK}")
    a(f"v_lshlrev_b32 v10, 3, v9")
    a(f"v_lshlrev_b32 v11, 4, v8")
    a(f"v_sub_u32 v11, v11, v10")
    a(f"v_add_u32 v11, {248 + G_OFF}, v11")
    a(f"v_add_u32 v{V_GA}, s{S_RB}, v11")
    if opts.get("wtouch"):
        touch_setup(a, True)
        for kk in range(6):
            for ins in touch(kk): a(ins)
    a(f"v_mov_b32 v12, {CNT_OFF}")
    lp = a.label("USP"); ok = a.label("USOK")
    a(f"s_mov_b32 s{S_CNT}, 2000000")
    a(f"{lp}:")
    a(f"ds_read_b32 v13, v12")
    a(f"s_waitcnt lgkmcnt(0)")
    a(f"v_readfirstlane_b32 s{S_T3}, v13")
    a(f"s_nop 0")
    a(f"s_cmp_ge_u32 s{S_T3}, 4")
    a(f"s_cbranch_scc1 {ok}")
    a(f"s_sleep 2")
    a(f"s_sub_u32 s{S_CNT}, s{S_CNT}, 1")
    a(f"s_cbranch_scc0 {lp}")
    a(f"{ok}:")
    stamp(a, 7)
    a("s_setprio 0")
    if opts.get("ydprio") or opts.get("odprio"):
        labd = a.label("YDP"); labe = a.label("YDE")
        a(f"s_cmp_lt_u32 s{S_WAVE}, 4")
        a(f"s_cbranch_scc1 {labd}")
        a(f"s_setprio {opts.get('ydprio', 0)}")
        a(f"s_branch {labe}")
        a(f"{labd}:")
        a(f"s_setprio {opts.get('odprio', 0)}")
        a(f"{labe}:")
    tmp = Asm(); far_setup(tmp)
    fl = [l.strip() for l in tmp.lines]
    extra = {}
    per = (len(fl) + 59) // 60
    k = 0
    for sidx in range(2, 64):
        extra[sidx] = fl[k:k+per]; k += per
    assert k >= len(fl)
    if et:
        extra[1] = touch(5) + extra.get(1, [])
    if opts.get("dtouch", False) and not et:
        touch_setup(a, True)
        for kk in range(6):
            sidx = 1 + opts.get("dtstep", 6)*kk
            extra.setdefault(sidx, [])
            extra[sidx] = touch(kk) + extra[sidx]
    cstamp(a, 20)
    conv_dense(a, extra)
    if opts.get("odprio"):
        labf = a.label("AFD")
        a(f"s_cmp_ge_u32 s{S_WAVE}, 4")
        a(f"s_cbranch_scc1 {labf}")
        a("s_setprio 0")
        a(f"{labf}:")
    cstamp(a, 21)
    stamp(a, 8)
    conv_far(a)
    stamp(a, 10)
    a.c("conv epilogue")
    a(f"v_and_b32 v7, 31, v{V_LANE}")
    a(f"v_lshrrev_b32 v8, 5, v{V_LANE}")
    a(f"v_mul_u32_u24 v9, 80, v7")
    a(f"v_lshl_add_u32 v9, v8, 3, v9")
    a(f"v_add_u32 v9, s{S_RB}, v9")
    UV = 104
    for t in range(2):
        for q in range(4):
            r = UV + 2*(4*t+q)
            a(f"ds_read_b64 v[{r}:{r+1}], v9 offset:{80 + 2560*t + 16*q}")
    a(f"s_add_u32 s34, s{S_RB}, {W_OFF}")
    a(f"v_lshlrev_b32 v10, 6, v7")
    a(f"v_lshl_add_u32 v10, v8, 3, v10")
    a(f"v_add_u32 v10, s34, v10")
    a(f"v_lshlrev_b32 v6, 4, v{V_LANE}")
    a(f"v_add_u32 v6, s34, v6")
    a("s_waitcnt lgkmcnt(0)")
    a("s_nop 7")
    Wk = 124
    for t in range(2):
        for q in range(4):
            for h in range(2):
                uv = UV + 2*(4*t+q) + h
                y0 = V_ACC_ + 16*t + 4*q + 2*h
                o = Wk + 12 + 2*((4*t+q) & 1) + h
                w = Wk + 6*h
                a(f"v_lshlrev_b32 v{w+1}, 16, v{uv}")
                a(f"v_and_b32 v{w+2}, 0xffff0000, v{uv}")
                a(f"v_cvt_pk_bf16_f32 v{w}, v{y0}, v{y0+1}")
                a(f"v_mul_f32 v{w+1}, v{w+1}, v54")
                a(f"v_mul_f32 v{w+2}, v{w+2}, v54")
                a(f"v_lshlrev_b32 v{w+3}, 16, v{w}")
                a(f"v_cvt_pk_bf16_f32 v{w+1}, v{w+1}, v{w+2}")
                a(f"v_and_b32 v{w}, 0xffff0000, v{w}")
                a(f"v_lshlrev_b32 v{w+4}, 16, v{w+1}")
                a(f"v_and_b32 v{w+1}, 0xffff0000, v{w+1}")
                a(f"v_add_f32 v{w+3}, v{w+3}, v{w+4}")
                a(f"v_add_f32 v{w}, v{w}, v{w+1}")
                a(f"v_cvt_pk_bf16_f32 v{o}, v{w+3}, v{w}")
            o = Wk + 12 + 2*((4*t+q) & 1)
            a(f"ds_write_b64 v10, v[{o}:{o+1}] offset:{2048*t + 16*q}")
    a("s_waitcnt lgkmcnt(0)")
    for j in range(4):
        a(f"ds_read_b128 v[{104+4*j}:{107+4*j}], v6 offset:{1024*j}")
    a(f"v_lshlrev_b32 v7, 4, v{V_LANE}")
    a(f"s_lshl_b32 s33, s{S_D}, 12")
    a(f"s_add_u32 s33, s33, {WS_A}")
    for j in range(4):
        a(f"s_waitcnt lgkmcnt({3-j})")
        a(f"buffer_store_dwordx4 v[{104+4*j}:{107+4*j}], v7, s[{SRD_WS}:{SRD_WS+3}], s33 offen offset:{1024*j} sc1")
    stamp(a, 11)
    a("v_mov_b32 v5, 0")
    a("s_waitcnt vmcnt(0)")
    labn = a.label("CNOK")
    a(f"v_readfirstlane_b32 s{S_NONCE}, v52")
    a(f"v_readfirstlane_b32 s{S_NONCE+1}, v53")
    a(f"s_nop 0")
    a(f"s_cmp_lg_u32 s{S_NONCE}, 0")
    a(f"s_cbranch_scc1 {labn}")
    get_nonce(a, END, 5, 2)
    a(f"{labn}:")
    a("s_setprio 0")
    a("s_barrier")
    lab = a.label("CNF")
    a(f"s_cmp_lg_u32 s{S_WAVE}, 0")
    a(f"s_cbranch_scc1 {lab}")
    a(f"s_lshr_b32 s33, s{S_IDX}, 3")
    a(f"s_lshl_b32 s33, s33, 7")
    a(f"s_and_b32 s34, s{S_IDX}, 7")
    a(f"s_lshl_b32 s34, s34, 3")
    a(f"s_add_u32 s33, s33, s34")
    a(f"s_add_u32 s33, s33, {WS_AFLG}")
    a(f"v_mov_b32 v6, s{S_NONCE}")
    a(f"v_mov_b32 v7, s{S_NONCE+1}")
    a("s_mov_b64 exec, 1")
    a(f"buffer_store_dwordx2 v[6:7], v5, s[{SRD_WS}:{SRD_WS+3}], s33 offen sc1")
    a("s_mov_b64 exec, -1")
    a(f"{lab}:")
    stamp(a, 12)
    prof_end(a, opts.get("cprofwave", 0))
```

```python
from common import *
from g1 import (S_C, S_S, S_WM, S_WN, S_SX, S_SB, S_KC, S_T0, S_T1, S_M0X, S_CNT, S_MISM, S_T2, S_T3, S_EXEC,
                V_LANE, V_VOFF, V_AA, V_BA, V_FR, V_ACC, V_ACC2, V_LR, V_LI, V_C2, V_L32, V_L128, V_ER, V_EI, V_HR, V_HI,
                V_NON, V_T, V_ZERO, V_L16, V_EOFF, acc, acc2, cmul, cfma, g1_reads, g1_mfmas, interleave)
from g2 import poll_flags, poll_pipe
import g1 as G1MOD
PKS = {'on': False}
V_VOX = 6
V_L16P = 236
V_EA = 238

HSLOT = 17408
NHS = 6
CBASE = NHS * HSLOT
NCS = 5
NREG = 9
L_EX = CBASE + NCS*8192
L_G = L_EX + 2048
L_CNT = L_G + 1024
CNT_EX, CNT_H, CNT_X, CNT_F, CNT_E, CNT_C, CNT_R, CNT_HX0, CNT_HX1, CNT_P = [L_CNT + 4*i for i in range(10)]
L_HX = L_CNT + 64
L_CST = 0
L_XT = NREG * 8192
L_AT = 2 * HSLOT
V_CREG = 96
S_LW = 83
S_DONE = 90
S_KY, S_KB = 98, 99
S_FAST = 100
V_XC = 222

def lds_spin(a, vaddr, vtmp, target, END, sleep=False):
    lp = a.label("SPIN"); ok = a.label("SPOK")
    a(f"s_mov_b32 s{S_CNT}, 2000000")
    a(f"{lp}:")
    a(f"ds_read_b32 v{vtmp}, v{vaddr}")
    a(f"s_waitcnt lgkmcnt(0)")
    a(f"v_readfirstlane_b32 s{S_T3}, v{vtmp}")
    a(f"s_nop 0")
    a(f"s_cmp_ge_u32 s{S_T3}, {target}")
    a(f"s_cbranch_scc1 {ok}")
    a(f"s_sleep 1")
    a(f"s_sub_u32 s{S_CNT}, s{S_CNT}, 1")
    a(f"s_cbranch_scc0 {lp}")
    a(f"{ok}:")

def lds_inc(a, vaddr, vone):
    a(f"s_mov_b64 s[{S_EXEC}:{S_EXEC+1}], exec")
    a(f"s_mov_b64 exec, 1")
    a(f"ds_add_u32 v{vaddr}, v{vone}")
    a(f"s_mov_b64 exec, s[{S_EXEC}:{S_EXEC+1}]")

def ld_g1_dma(a, it):
    slot = it % 4
    a(f"s_lshl_b32 s{S_T0}, s{S_KC}, 7")
    a(f"s_add_u32 s{S_T1}, s{S_T0}, s{S_SB}")
    a(f"s_add_u32 s{S_T0}, s{S_T0}, s{S_SX}")
    for jj in range(4):
        a(f"s_add_u32 m0, s{S_M0X}, {slot*16384 + jj*1024}")
        a(f"s_nop 0")
        a(f"buffer_load_dwordx4 v{(V_VOX if PKS['on'] else V_VOFF)+jj}, s[{SRD_X}:{SRD_X+3}], s{S_T0} offen lds")
        a(f"s_add_u32 m0, s{S_M0X}, {65536 + slot*16384 + jj*1024}")
        a(f"s_nop 0")
        a(f"buffer_load_dwordx4 v{V_VOFF+jj}, s[{SRD_A}:{SRD_A+3}], s{S_T1} offen lds")
    a(f"s_add_u32 s{S_KC}, s{S_KC}, 1")
    a(f"s_cmp_eq_u32 s{S_KC}, 10")
    a(f"s_cselect_b32 s{S_KC}, 0, s{S_KC}")

S_HB, S_CB, S_SP, S_SPC = 76, 77, 78, 91
S_M0H, S_M0C = 81, 92

def ld_c_chunk(a, ch):
    plane = ch & 1
    dst = L_CST + ch*8192 if ch < NREG else CBASE + ((ch - NREG) % NCS)*8192
    srd = SRD_C if plane else SRD_B
    a(f"s_lshl_b32 s{S_T1}, s{S_SPC}, 7")
    a(f"s_add_u32 s{S_T1}, s{S_T1}, s{S_CB}")
    for jj in range(2):
        a(f"s_add_u32 m0, s{S_M0C}, {dst + jj*1024}")
        a(f"s_nop 0")
        a(f"buffer_load_dwordx4 v{V_VOFF+jj}, s[{srd}:{srd+3}], s{S_T1} offen lds")
    if plane:
        a(f"s_add_u32 s{S_SPC}, s{S_SPC}, 1")
        a(f"s_cmp_eq_u32 s{S_SPC}, 10")
        a(f"s_cselect_b32 s{S_SPC}, 0, s{S_SPC}")

HSC = {"v": "sc1"}
def ld_h_stage(a, it):
    slot = it % NHS
    plane = it & 1
    a(f"s_lshl_b32 s{S_T0}, s{S_SP}, 14")
    a(f"s_add_u32 s{S_T0}, s{S_T0}, s{S_HB}")
    if plane: a(f"s_add_u32 s{S_T0}, s{S_T0}, {10*16384}")
    for jj in range(4):
        a(f"s_add_u32 m0, s{S_M0H}, {slot*HSLOT + jj*64}")
        a(f"s_nop 0")
        a(f"buffer_load_dwordx4 v{V_L16}, s[{SRD_WS}:{SRD_WS+3}], s{S_T0} offen offset:{jj*1024} {HSC['v']} lds")
    if plane:
        a(f"s_add_u32 s{S_SP}, s{S_SP}, 1")
        a(f"s_cmp_eq_u32 s{S_SP}, 10")
        a(f"s_cselect_b32 s{S_SP}, 0, s{S_SP}")

S_AT0, S_AT1 = 95, 101
def a_tile_addr(a, T):
    a(f"v_lshrrev_b32 v{T}, 4, v{V_LANE}")
    a(f"v_and_b32 v{T+1}, 15, v{V_LANE}")
    a(f"s_lshl_b32 s34, s{S_S}, 6")
    a(f"s_lshl_b32 s35, s{S_LW}, 4")
    a(f"s_add_u32 s34, s34, s35")
    a(f"s_lshl_b32 s34, s34, 12")
    a(f"s_lshl_b32 s35, s{S_C}, 8")
    a(f"s_add_u32 s34, s34, s35")
    a(f"s_add_u32 s{S_AT0}, s34, {WS_A}")
    a(f"s_lshl_b32 s{S_AT1}, s{S_LW}, 12")
    a(f"s_add_u32 s{S_AT1}, s{S_AT1}, {L_AT}")
    for jj in range(4):
        a(f"v_add_u32 v{T+2}, {4*jj}, v{T}")
        a(f"v_xor_b32 v{T+2}, v{T+2}, v{T+1}")
        a(f"v_lshlrev_b32 v{T+2}, 4, v{T+2}")
        a(f"v_lshl_add_u32 v{236+jj}, v{T}, 12, v{T+2}")

def ld_a_tile(a, T):
    for jj in range(4):
        a(f"s_add_u32 m0, s{S_AT1}, {jj*1024}")
        a(f"s_add_u32 s35, s{S_AT0}, {jj*4*4096}")
        a(f"buffer_load_dwordx4 v{236+jj}, s[{SRD_WS}:{SRD_WS+3}], s35 offen sc1 lds")

def ld_g_tile(a):
    a(f"s_lshl_b32 s34, s{S_C}, 10")
    a(f"s_add_u32 s34, s34, {WS_G}")
    a(f"s_mov_b32 m0, {L_G}")
    a(f"s_nop 0")
    a(f"buffer_load_dwordx4 v{V_L16}, s[{SRD_WS}:{SRD_WS+3}], s34 offen sc1 lds")

def gen_loader(a, END, opts):
    HSC["v"] = opts.get("hsc", "sc1")
    a.c("---------- loader waves ----------")
    T = V_T
    a(f"s_sub_u32 s{S_LW}, s{S_WAVE}, 4")
    a(f"v_lshrrev_b32 v{T+5}, 3, v{V_LANE}")
    a(f"v_mul_u32_u24 v{T+5}, 1280, v{T+5}")
    a(f"v_and_b32 v{T+6}, 7, v{V_LANE}")
    a(f"v_lshrrev_b32 v{T+7}, 4, v{V_LANE}")
    a(f"v_xor_b32 v{T+6}, v{T+6}, v{T+7}")
    a(f"v_lshl_add_u32 v{V_VOFF}, v{T+6}, 4, v{T+5}")
    a(f"v_xor_b32 v{V_VOFF+1}, 64, v{V_VOFF}")
    a(f"v_add_u32 v{V_VOFF+1}, 10240, v{V_VOFF+1}")
    a(f"v_add_u32 v{V_VOFF+2}, 20480, v{V_VOFF}")
    a(f"v_add_u32 v{V_VOFF+3}, 20480, v{V_VOFF+1}")
    if PKS["on"]:
        a(f"v_mov_b32 v{V_VOX}, v{V_VOFF}")
        a(f"v_add_u32 v{V_VOX+1}, 10240, v{V_VOFF}")
        a(f"v_xor_b32 v{V_VOX+2}, 64, v{V_VOFF}")
        a(f"v_add_u32 v{V_VOX+3}, 30720, v{V_VOX+2}")
        a(f"v_add_u32 v{V_VOX+2}, 20480, v{V_VOX+2}")
    a(f"s_lshl_b32 s34, s{S_C}, 7")
    a(f"s_lshl_b32 s35, s{S_LW}, 5")
    a(f"s_add_u32 s34, s34, s35")
    a(f"s_mul_i32 s{S_SX}, s34, 1280")
    a(f"s_lshl_b32 s34, s{S_S}, 6")
    a(f"s_and_b32 s35, s{S_LW}, 1")
    a(f"s_lshl_b32 s35, s35, 5")
    a(f"s_add_u32 s34, s34, s35")
    a(f"s_mul_i32 s{S_SB}, s34, 1280")
    a(f"s_lshl_b32 s{S_M0X}, s{S_LW}, 12")
    a(f"s_mov_b32 s{S_KC}, s93")
    if EARLY["on"]: common_init(a)
    a(f"s_cmp_ge_u32 s{S_LW}, 2")
    a(f"s_cselect_b32 s{SRD_A}, s{P_BIM}, s{P_BRE}")
    a(f"s_cselect_b32 s{SRD_A+1}, s{P_BIM+1}, s{P_BRE+1}")
    a(f"s_and_b32 s{SRD_A+1}, s{SRD_A+1}, 0xffff")
    a(f"s_mov_b32 s{SRD_A+2}, 819200")
    a(f"s_mov_b32 s{SRD_A+3}, 0x00020000")
    for it in range(2): ld_g1_dma(a, it)
    stamp(a, 1)
    a(f"v_mov_b32 v{V_ZERO}, 0")
    a(f"v_lshlrev_b32 v{V_L16}, 4, v{V_LANE}")
    a(f"s_waitcnt vmcnt(8)")
    a(f"s_barrier")
    ld_g1_dma(a, 2)
    cw3 = opts.get("cwarm3")
    CWN = 4
    for nit in range(1, 10):
        vm = 0 if nit == 9 else 8
        if cw3 and nit in (cw3 + 1, cw3 + 2) and nit != 9: vm += CWN
        a(f"s_waitcnt vmcnt({vm})")
        if opts.get("profl"): stamp(a, 9 + nit)
        a(f"s_barrier")
        if nit + 2 < 10: ld_g1_dma(a, nit + 2)
        if cw3 and nit == cw3:
            a("s_getpc_b64 s[96:97]")
            a("L_PCREF3:")
            a("s_add_u32 s96, s96, L_WIN_START-L_PCREF3")
            a("s_addc_u32 s97, s97, 0")
            a("s_mov_b32 s98, L_WIN_END-L_WIN_START")
            a("s_mov_b32 s99, 0x00020000")
            a(f"v_lshlrev_b32 v{T+8}, 4, v{V_LANE}")
            a(f"s_mul_i32 s34, s{S_LW}, {CWN*1024}")
            for j in range(CWN):
                a(f"buffer_load_dwordx4 v[248:251], v{T+8}, s[96:99], s34 offen offset:{j*1024}")
    a(f"s_barrier")
    stamp(a, 2)
    make_srd(a, SRD_B, P_C2RE, 819200)
    make_srd(a, SRD_C, P_C2IM, 819200)
    a(f"buffer_load_dwordx2 v[{V_NON}:{V_NON+1}], v{V_ZERO}, s[{SRD_DBG}:{SRD_DBG+3}], 0 offen sc1")
    if opts.get("pwait", True):
        a(f"v_mov_b32 v{T+4}, {CNT_EX if opts.get('pwex') else CNT_P}")
        lds_spin(a, T+4, T+6, 4, END)
    a(f"v_lshrrev_b32 v{T}, 3, v{V_LANE}")
    a(f"v_mul_u32_u24 v{T}, 1280, v{T}")
    a(f"v_and_b32 v{T+1}, 7, v{V_LANE}")
    a(f"v_lshl_add_u32 v{T}, v{T+1}, 4, v{T}")
    a(f"s_lshl_b32 s35, s{S_S}, 7")
    a(f"s_add_u32 s34, s{S_SX}, s35")
    a(f"s_add_u32 s{S_T2}, s{S_M0X}, {L_XT}")
    for jj in range(4):
        a(f"s_add_u32 m0, s{S_T2}, {jj*1024}")
        a(f"s_add_u32 s35, s34, {jj*10240}")
        a(f"buffer_load_dwordx4 v{T}, s[{SRD_X}:{SRD_X+3}], s35 offen lds")
    if opts.get("cwait", False):
        a(f"v_mov_b32 v{T+4}, {CNT_E}")
        lds_spin(a, T+4, T+6, 4, END, sleep=True)
    a(f"s_lshl_b32 s34, s{S_S}, 6")
    a(f"s_lshl_b32 s35, s{S_LW}, 4")
    a(f"s_add_u32 s34, s34, s35")
    a(f"s_mul_i32 s{S_CB}, s34, 1280")
    a(f"s_mov_b32 s{S_SPC}, {'s%d' % S_S if opts.get('ownfirst') else 's93'}")
    a(f"s_mov_b32 s94, s{S_SPC}")
    a(f"s_lshl_b32 s{S_M0C}, s{S_LW}, 11")
    thr = opts.get("cthr", 2)
    for ch in range(NREG + NCS):
        ld_c_chunk(a, ch)
        if thr: a(f"s_waitcnt vmcnt({thr})")
        if ch == 3:
            if not thr or thr > 8: a(f"s_waitcnt vmcnt(8)")
            a(f"v_mov_b32 v{T+4}, {CNT_X}")
            a(f"v_mov_b32 v{T+5}, 1")
            lds_inc(a, T+4, T+5)
        if opts.get("profc"): stamp(a, 10 + ch)
    a(f"s_waitcnt vmcnt(0)")
    a(f"v_mov_b32 v{T+4}, {CNT_C}")
    a(f"v_mov_b32 v{T+5}, 1")
    lds_inc(a, T+4, T+5)
    if opts.get("touchc", True):
        a(f"v_lshrrev_b32 v{T+6}, 2, v{V_LANE}")
        a(f"v_mul_u32_u24 v{T+6}, 1280, v{T+6}")
        a(f"v_and_b32 v{T+7}, 3, v{V_LANE}")
        a(f"v_lshl_add_u32 v{T+6}, v{T+7}, 6, v{T+6}")
        a(f"s_mov_b32 s{S_T2}, s{S_SPC}")
        for k in range(2):
            for srd in (SRD_B, SRD_C):
                a(f"s_lshl_b32 s{S_T1}, s{S_T2}, 7")
                a(f"s_add_u32 s{S_T1}, s{S_T1}, s{S_CB}")
                a(f"buffer_load_dword v{T+8}, v{T+6}, s[{srd}:{srd+3}], s{S_T1} offen")
                if thr: a(f"s_waitcnt vmcnt(1)")
            a(f"s_add_u32 s{S_T2}, s{S_T2}, 2")
            a(f"s_cmp_ge_u32 s{S_T2}, 10")
            a(f"s_cselect_b32 s34, 10, 0")
            a(f"s_sub_u32 s{S_T2}, s{S_T2}, s34")
    stamp(a, 3)
    lp = a.label("LNP"); ok = a.label("LNOK")
    a(f"s_mov_b32 s{S_CNT}, 100000")
    a(f"s_waitcnt vmcnt(0)")
    a(f"{lp}:")
    a(f"v_readfirstlane_b32 s{S_NONCE}, v{V_NON}")
    a(f"v_readfirstlane_b32 s{S_NONCE+1}, v{V_NON+1}")
    a(f"s_nop 0")
    a(f"s_cmp_lg_u32 s{S_NONCE}, 0")
    a(f"s_cbranch_scc1 {ok}")
    poll_timeout(a, S_CNT, END)
    a(f"buffer_load_dwordx2 v[{V_NON}:{V_NON+1}], v{V_ZERO}, s[{SRD_DBG}:{SRD_DBG+3}], 0 offen sc1")
    a(f"s_waitcnt vmcnt(0)")
    a(f"s_branch {lp}")
    a(f"{ok}:")
    stamp(a, 4)
    a(f"s_mul_i32 s34, s{S_C}, {20*16384}")
    a(f"s_lshl_b32 s35, s{S_LW}, 12")
    a(f"s_add_u32 s34, s34, s35")
    a(f"s_add_u32 s{S_HB}, s34, {WS_H}")
    a(f"s_mov_b32 s{S_SP}, s94")
    a(f"s_mul_i32 s{S_M0H}, s{S_LW}, 4352")
    def poll_h():
        labp = a.label("HP1"); labq = a.label("HP2")
        a(f"v_mov_b32 v{T+4}, {CNT_F}")
        a(f"s_cmp_lg_u32 s{S_LW}, 0")
        a(f"s_cbranch_scc1 {labp}")
        a(f"s_lshl_b32 s34, s{S_C}, 7")
        a(f"s_add_u32 s34, s34, {WS_FLAG}")
        if opts.get("ppipe"):
            a(f"v_lshlrev_b32 v{T}, 3, v{V_LANE}")
            poll_pipe(a, T, "s34", "0x3ff", 230)
        else:
            poll_flags(a, END, 34, 10, T, T+2)
        a(f"v_mov_b32 v{T+5}, 1")
        lds_inc(a, T+4, T+5)
        a(f"s_branch {labq}")
        a(f"{labp}:")
        labg = a.label("GT")
        a(f"s_cmp_lg_u32 s{S_LW}, 1")
        a(f"s_cbranch_scc1 {labg}")
        a(f"s_lshl_b32 s34, s{S_C}, 7")
        a(f"s_add_u32 s34, s34, {WS_FLAG + 80}")
        poll_flags(a, END, 34, 1, T, T+2)
        ld_g_tile(a)
        a(f"{labg}:")
        a(f"v_mov_b32 v{T+4}, {CNT_F}")
        lds_spin(a, T+4, T+6, 1, END)
        a(f"{labq}:")
    PF = NHS - 2
    FL = T + 10
    own = opts.get("ownfirst")
    if own:
        a(f"v_mov_b32 v{T+4}, {CNT_R}")
        lds_spin(a, T+4, T+6, 4, END)
        stamp(a, 8)
        ld_h_stage(a, 0); ld_h_stage(a, 1)
        a(f"s_waitcnt vmcnt(4)")
        a(f"s_barrier")
        stamp(a, 6)
        a(f"s_waitcnt vmcnt(0)")
        a(f"s_barrier")
        poll_h()
        stamp(a, 5)
        for it in range(2, 6): ld_h_stage(a, it)
        a(f"s_mov_b32 s{S_DONE}, 0")
        q = [("h", k, 4) for k in range(2, 6)]
        first = 2
    else:
        poll_h()
        stamp(a, 5)
        a(f"v_mov_b32 v{T+4}, {CNT_R}")
        lds_spin(a, T+4, T+6, 4, END)
        stamp(a, 8)
        for it in range(PF): ld_h_stage(a, it)
        stamp(a, 9)
        a(f"s_waitcnt vmcnt({4*(PF-1)})")
        a(f"s_barrier")
        stamp(a, 6)
        a(f"s_mov_b32 s{S_DONE}, 0")
        q = [("h", k, 4) for k in range(1, PF)]
        ld_h_stage(a, PF); q.append(("h", PF, 4))
        first = 1
    for nit in range(first, 20):
        idx = max(i for i, e in enumerate(q) if (e[0] == "h" and e[1] == nit) or (e[0] == "c" and e[1] == nit))
        rem = sum(e[2] for e in q[idx+1:])
        if opts.get("amulti") and nit == 19:
            l1 = a.label("W19"); l2 = a.label("W19")
            a(f"s_cmp_eq_u32 s{S_DONE}, 1")
            a(f"s_cbranch_scc1 {l1}")
            a(f"s_waitcnt vmcnt({rem})")
            a(f"s_branch {l2}")
            a(f"{l1}:")
            a(f"s_waitcnt vmcnt({rem + 4})")
            a(f"{l2}:")
        else:
            a(f"s_waitcnt vmcnt({min(rem, 63)})")
        if opts.get("profl") and nit <= 12: stamp(a, 19 + nit)
        if opts.get("profl2") and nit >= 8: stamp(a, 2 + nit)
        q = q[idx+1:]
        a(f"s_barrier")
        ch = nit - 2 + NCS
        if ch >= NREG + NCS and ch < 20:
            ld_c_chunk(a, ch); q.append(("c", ch, 2))
        if nit + PF < 20:
            ld_h_stage(a, nit + PF); q.append(("h", nit + PF, 4))
        if nit == 12:
            a(f"v_lshlrev_b32 v{T}, 3, v{V_LANE}")
            a(f"s_lshl_b32 s34, s{S_S}, 7")
            a(f"s_add_u32 s34, s34, {WS_AFLG}")
            a(f"v_add_u32 v{T+14}, s34, v{T}")
            a_tile_addr(a, T)
        if opts.get("amulti"):
            if nit in (13, 14, 15, 16):
                r = 226 + 2*(nit - 13)
                a(f"s_mov_b64 s[{S_EXEC}:{S_EXEC+1}], exec")
                a(f"s_mov_b64 exec, 0xff")
                a(f"buffer_load_dwordx2 v[{r}:{r+1}], v{T+14}, s[{SRD_WS}:{SRD_WS+3}], 0 offen sc1")
                a(f"s_mov_b64 exec, s[{S_EXEC}:{S_EXEC+1}]")
                q.append(("f", nit, 1))
            if nit in (16, 17, 18, 19):
                k = nit - 3
                r = 226 + 2*(k - 13)
                lab = a.label("AMC")
                a(f"s_cmp_eq_u32 s{S_DONE}, 1")
                a(f"s_cbranch_scc1 {lab}")
                idf = [i for i, e in enumerate(q) if e[0] == "f" and e[1] == k]
                if idf:
                    a(f"s_waitcnt vmcnt({sum(e[2] for e in q[idf[0]+1:])})")
                a(f"s_mov_b64 s[{S_EXEC}:{S_EXEC+1}], exec")
                a(f"s_mov_b64 exec, 0xff")
                a(f"v_cmp_ne_u64 vcc, s[{S_NONCE}:{S_NONCE+1}], v[{r}:{r+1}]")
                a(f"s_mov_b64 exec, s[{S_EXEC}:{S_EXEC+1}]")
                a(f"s_cmp_lg_u64 vcc, 0")
                a(f"s_cbranch_scc1 {lab}")
                ld_a_tile(a, T)
                a(f"s_mov_b32 s{S_DONE}, 1")
                a(f"{lab}:")
        else:
            if nit == opts.get("achk", 15):
                a(f"s_mov_b64 s[{S_EXEC}:{S_EXEC+1}], exec")
                a(f"s_mov_b64 exec, 0xff")
                a(f"buffer_load_dwordx2 v[{FL}:{FL+1}], v{T+14}, s[{SRD_WS}:{SRD_WS+3}], 0 offen sc1")
                a(f"s_mov_b64 exec, s[{S_EXEC}:{S_EXEC+1}]")
                q.append(("f", 0, 1))
            if nit == 18:
                if any(e[0] == "f" for e in q):
                    idf = max(i for i, e in enumerate(q) if e[0] == "f")
                    a(f"s_waitcnt vmcnt({sum(e[2] for e in q[idf+1:])})")
                    q = q[idf+1:]
                lab = a.label("ANR")
                a(f"s_mov_b64 s[{S_EXEC}:{S_EXEC+1}], exec")
                a(f"s_mov_b64 exec, 0xff")
                a(f"v_cmp_ne_u64 vcc, s[{S_NONCE}:{S_NONCE+1}], v[{FL}:{FL+1}]")
                a(f"s_mov_b64 exec, s[{S_EXEC}:{S_EXEC+1}]")
                a(f"s_cmp_lg_u64 vcc, 0")
                a(f"s_cbranch_scc1 {lab}")
                ld_a_tile(a, T)
                a(f"s_mov_b32 s{S_DONE}, 1")
                lab2 = a.label("ANR2")
                a(f"s_branch {lab2}")
                a(f"{lab}:")
                for _ in range(4):
                    a(f"buffer_load_dword v{T+8}, v{V_ZERO}, s[{SRD_X}:{SRD_X+3}], 0 offen")
                a(f"{lab2}:")
                q.append(("a", 0, 4))
    lab = a.label("ADONE")
    a(f"s_cmp_eq_u32 s{S_DONE}, 1")
    a(f"s_cbranch_scc1 {lab}")
    if opts.get("ppipe"):
        poll_pipe(a, T+14, "0", "0xff", 230)
    else:
        lp = a.label("AGP"); ld = a.label("AGD")
        a(f"s_mov_b32 s{S_CNT}, 100000")
        a(f"s_mov_b64 s[{S_EXEC}:{S_EXEC+1}], exec")
        a(f"s_mov_b64 exec, 0xff")
        a(f"{lp}:")
        a(f"buffer_load_dwordx2 v[{FL}:{FL+1}], v{T+14}, s[{SRD_WS}:{SRD_WS+3}], 0 offen sc1")
        a(f"s_waitcnt vmcnt(0)")
        a(f"v_cmp_ne_u64 vcc, s[{S_NONCE}:{S_NONCE+1}], v[{FL}:{FL+1}]")
        a(f"s_cmp_eq_u64 vcc, 0")
        a(f"s_cbranch_scc1 {ld}")
        a(f"s_sleep 1")
        a(f"s_sub_u32 s{S_CNT}, s{S_CNT}, 1")
        a(f"s_cbranch_scc0 {lp}")
        a(f"{ld}:")
        a(f"s_mov_b64 exec, s[{S_EXEC}:{S_EXEC+1}]")
    ld_a_tile(a, T)
    a(f"{lab}:")
    a(f"s_waitcnt vmcnt(0)")
    stamp(a, 7)
    a(f"s_barrier")
    prof_end(a, 4, 32768)
    a(f"s_branch {END}")

G2_FR = 16
G2_ACC = 64
V_HA = 6
V_CB = 10
V_HA2 = 7

G2_NS = 4
def g2_reads(it, ks):
    slot = it % NHS
    st = G2_FR + 12 * ((4*it + ks) % G2_NS)
    base = slot*HSLOT + (ks >> 1)*4352 + (ks & 1)*256
    out = []
    for m in range(2):
        for half in range(2):
            off = base + m*512 + half*64
            reg = V_HA if off < 65536 else V_HA2
            if off >= 65536: off -= 3*HSLOT
            out.append(f"ds_read_b64_tr_b16 v[{st+4*m+2*half}:{st+4*m+2*half+1}], v{reg} offset:{off}")
    if it >= NREG:
        cs = (it - NREG) % NCS
        out.append(f"ds_read_b128 v[{st+8}:{st+11}], v{V_CB+ks} offset:{cs*8192}")
    return out

def g2_mfmas(it, ks):
    st = G2_FR + 12 * ((4*it + ks) % G2_NS)
    out = []
    b = (V_CREG + 16*it + 4*ks) if it < NREG else st + 8
    for m in range(2):
        d = G2_ACC + 16*m
        out.append(f"v_mfma_f32_32x32x16_bf16 v[{d}:{d+15}], v[{st+4*m}:{st+4*m+3}], v[{b}:{b+3}], v[{d}:{d+15}]")
    return out

def gen_compute(a, END, opts):
    a.c("---------- compute waves ----------")
    T = V_T
    a(f"s_lshr_b32 s{S_WM}, s{S_WAVE}, 1")
    a(f"s_and_b32 s{S_WN}, s{S_WAVE}, 1")
    lab = a.label("NOINIT")
    a(f"s_cmp_lg_u32 s{S_WAVE}, 0")
    a(f"s_cbranch_scc1 {lab}")
    a(f"v_lshlrev_b32 v{T}, 2, v{V_LANE}")
    a(f"v_add_u32 v{T}, {L_CNT}, v{T}")
    a(f"v_mov_b32 v{T+1}, 0")
    a(f"s_mov_b64 exec, 0xffff")
    a(f"ds_write_b32 v{T}, v{T+1}")
    a(f"s_mov_b64 exec, -1")
    a(f"{lab}:")
    loc = opts.get("local")
    kofl = opts.get("kofl")
    if kofl:
        import conv2
        a(f"s_mul_i32 s34, s{S_C}, 10")
        a(f"s_add_u32 s34, s34, s{S_S}")
        a(f"s_lshl_b32 s34, s34, 1")
        a(f"s_add_u32 s{S_KY}, s34, s{S_WN}")
        a(f"s_lshr_b32 s34, s{S_KY}, 2")
        a(f"s_lshl_b32 s34, s34, 3")
        a(f"s_and_b32 s35, s{S_KY}, 3")
        a(f"s_add_u32 s34, s34, s35")
        a(f"s_add_u32 s34, s34, 4")
        a(f"v_lshlrev_b32 v2, 2, v{V_LANE}")
        a(f"s_lshl_b32 s35, s34, 8")
        for k, P in enumerate([P_LOGA, P_AIM, P_CRE, P_CIM]):
            make_srd(a, SRD_A, P, 163840)
            a(f"buffer_load_dword v{conv2.V_PRM+k}, v2, s[{SRD_A}:{SRD_A+3}], s35 offen")
        a(f"s_lshl_b32 s35, s34, 1")
        a(f"v_mov_b32 v3, 0")
        make_srd(a, SRD_A, P_LOGDT, 1280)
        a(f"buffer_load_ushort v{conv2.V_PRM+4}, v3, s[{SRD_A}:{SRD_A+3}], s35 offen")
        a(f"buffer_load_dwordx2 v[{V_NON}:{V_NON+1}], v3, s[{SRD_DBG}:{SRD_DBG+3}], 0 offen sc1")
    a(f"v_and_b32 v{T}, 31, v{V_LANE}")
    a(f"s_lshl_b32 s34, s{S_S}, 6")
    a(f"s_lshl_b32 s35, s{S_WN}, 5")
    a(f"s_add_u32 s34, s34, s35")
    a(f"v_add_u32 v{T+1}, s34, v{T}")
    a(f"v_lshlrev_b32 v{V_EOFF}, 4, v{T+1}")
    a(f"v_lshlrev_b32 v{T+1}, 1, v{T+1}")
    make_srd(a, SRD_B, P_LRE, 1280)
    a(f"buffer_load_ushort v{T+2}, v{T+1}, s[{SRD_B}:{SRD_B+3}], 0 offen")
    make_srd(a, SRD_A, P_LIM, 1280)
    a(f"buffer_load_ushort v{T+3}, v{T+1}, s[{SRD_A}:{SRD_A+3}], 0 offen")
    make_srd(a, 92, P_LOGDTB, 1280)
    a(f"buffer_load_ushort v{T+4}, v{T+1}, s[92:95], 0 offen")
    V_DSB = 227
    make_srd(a, SRD_B, P_DSKB, 1280)
    a(f"buffer_load_ushort v{V_DSB}, v{T+1}, s[{SRD_B}:{SRD_B+3}], 0 offen")
    make_srd(a, SRD_C, P_OUT, 5242880)
    a(f"v_and_b32 v{T+5}, 31, v{V_LANE}")
    a(f"v_lshrrev_b32 v{T+6}, 5, v{V_LANE}")
    if PKS["on"]:
        a(f"v_bfe_u32 v{T+7}, v{T+5}, 2, 1")
        a(f"v_lshlrev_b32 v{T+7}, 5, v{T+7}")
        a(f"v_and_b32 v{T+8}, 1, v{T+5}")
        a(f"v_lshl_add_u32 v{T+7}, v{T+8}, 4, v{T+7}")
        a(f"v_lshrrev_b32 v{T+8}, 3, v{T+5}")
        a(f"v_lshl_add_u32 v{T+7}, v{T+8}, 1, v{T+7}")
        a(f"v_bfe_u32 v{T+8}, v{T+5}, 1, 1")
        a(f"v_add_u32 v{T+7}, v{T+7}, v{T+8}")
        a(f"s_lshl_b32 s34, s{S_WM}, 6")
        a(f"v_add_u32 v{T+7}, s34, v{T+7}")
        a(f"v_bfe_u32 v{T+8}, v{T+7}, 1, 2")
        a(f"v_bfe_u32 v{T+9}, v{T+7}, 4, 1")
        a(f"v_lshl_or_b32 v{T+8}, v{T+9}, 2, v{T+8}")
        a(f"v_xor_b32 v{T+8}, v{T+8}, v{T+6}")
        a(f"v_lshlrev_b32 v{T+8}, 4, v{T+8}")
        a(f"v_lshl_add_u32 v{V_AA}, v{T+7}, 7, v{T+8}")
    else:
        a(f"v_bfe_u32 v{T+7}, v{T+5}, 2, 1")
        a(f"v_lshlrev_b32 v{T+7}, 5, v{T+7}")
        a(f"v_lshrrev_b32 v{T+8}, 3, v{T+5}")
        a(f"v_lshl_add_u32 v{T+7}, v{T+8}, 2, v{T+7}")
        a(f"v_and_b32 v{T+8}, 3, v{T+5}")
        a(f"v_add_u32 v{T+7}, v{T+7}, v{T+8}")
        a(f"s_lshl_b32 s34, s{S_WM}, 6")
        a(f"v_add_u32 v{T+7}, s34, v{T+7}")
        a(f"v_bfe_u32 v{T+8}, v{T+7}, 1, 3")
        a(f"v_xor_b32 v{T+8}, v{T+8}, v{T+6}")
        a(f"v_lshlrev_b32 v{T+8}, 4, v{T+8}")
        a(f"v_lshl_add_u32 v{V_AA}, v{T+7}, 7, v{T+8}")
    for ks in range(1, 4): a(f"v_xor_b32 v{V_AA+ks}, {32*ks}, v{V_AA}")
    a(f"s_lshl_b32 s34, s{S_WN}, 5")
    a(f"v_add_u32 v{T+7}, s34, v{T+5}")
    a(f"v_bfe_u32 v{T+8}, v{T+7}, 1, 3")
    a(f"v_xor_b32 v{T+8}, v{T+8}, v{T+6}")
    a(f"v_lshlrev_b32 v{T+8}, 4, v{T+8}")
    a(f"v_lshl_add_u32 v{V_BA}, v{T+7}, 7, v{T+8}")
    a(f"v_mov_b32 v{221}, v{V_BA}")
    a(f"v_add_u32 v{V_BA}, 0x10000, v{V_BA}")
    for ks in range(1, 4): a(f"v_xor_b32 v{V_BA+ks}, {32*ks}, v{V_BA}")
    a(f"v_mov_b32 v{V_ZERO}, 0")
    a(f"v_lshlrev_b32 v{V_L16}, 4, v{V_LANE}")
    stamp(a, 1)
    if kofl:
        a(f"s_and_b32 s34, s{S_WAVE}, 1")
        a(f"s_mul_i32 s34, s34, 15232")
        a(f"s_lshr_b32 s35, s{S_WAVE}, 1")
        a(f"s_lshl_b32 s35, s35, 16")
        a(f"s_add_u32 s34, s34, s35")
        a(f"s_add_u32 s{S_KB}, s34, 32768")
        conv2.kgen_addr_setup(a, f"s{S_KB}")
        a(f"s_waitcnt vmcnt(5)")
        TK = conv2.V_T_
        a(f"v_lshlrev_b32 v{conv2.V_DT}, 16, v{conv2.V_PRM+4}")
        exp_accurate(a, conv2.V_DT, conv2.V_DT, TK, TK+1, TK+2)
        round_bf16(a, conv2.V_DT, conv2.V_DT)
        conv2.kgen_pass(a, f"s{S_WM}")
        a("s_nop 7\ns_nop 7\ns_nop 1")
        a(f"s_lshl_b32 s34, s{S_KY}, 1")
        a(f"s_add_u32 s34, s34, s{S_WM}")
        a(f"s_lshl_b32 s34, s34, 12")
        a(f"s_add_u32 s34, s34, {WS_KP}")
        for j in range(4):
            a(f"buffer_store_dwordx4 v[{64+4*j}:{67+4*j}], v{V_L16}, s[{SRD_WS}:{SRD_WS+3}], s34 offen offset:{j*1024} sc1")
        stamp(a, 14)
        a(f"s_waitcnt vmcnt(4)")
    else:
        a(f"s_waitcnt vmcnt(0)")
    a(f"v_lshlrev_b32 v{V_DSB}, 16, v{V_DSB}")
    a(f"v_lshlrev_b32 v{T+2}, 16, v{T+2}")
    a(f"v_lshlrev_b32 v{T+3}, 16, v{T+3}")
    a(f"v_lshlrev_b32 v{T+4}, 16, v{T+4}")
    exp_accurate(a, T+4, T+4, T+5, T+6, T+7)
    round_bf16(a, T+4, T+4)
    a(f"v_mul_f32 v{T+5}, v{T+4}, v{T+2}")
    a(f"v_mul_f32 v{T+6}, v{T+4}, v{T+3}")
    exp_accurate(a, T+5, T+5, T+7, T+8, T+9)
    a(f"v_mul_f32 v{T+6}, {fhex(INV2PI)}, v{T+6}")
    a(f"v_fract_f32 v{T+6}, v{T+6}")
    a(f"v_cos_f32 v{T+7}, v{T+6}")
    a(f"v_sin_f32 v{T+8}, v{T+6}")
    a(f"s_nop 0")
    a(f"v_mul_f32 v{V_LR}, v{T+5}, v{T+7}")
    a(f"v_mul_f32 v{V_LI}, v{T+5}, v{T+8}")
    a(f"v_add_f32 v{T+5}, -1.0, v{V_LR}")
    a(f"v_mul_f32 v{T+6}, v{T+2}, v{T+2}")
    a(f"v_fma_f32 v{T+6}, v{T+3}, v{T+3}, v{T+6}")
    a(f"v_rcp_f32 v{T+7}, v{T+6}")
    a(f"v_mul_f32 v{T+8}, v{T+5}, v{T+2}")
    a(f"v_fma_f32 v{T+9}, -v{T+6}, v{T+7}, 2.0")
    a(f"v_mul_f32 v{T+7}, v{T+7}, v{T+9}")
    a(f"v_fma_f32 v{T+8}, v{V_LI}, v{T+3}, v{T+8}")
    a(f"v_mul_f32 v{T+9}, v{V_LI}, v{T+2}")
    a(f"v_fma_f32 v{T+9}, -v{T+5}, v{T+3}, v{T+9}")
    a(f"v_add_f32 v{T+7}, v{T+7}, v{T+7}")
    a(f"v_mul_f32 v{V_C2}, v{T+8}, v{T+7}")
    a(f"v_mul_f32 v{V_C2+1}, v{T+9}, v{T+7}")
    a(f"v_mov_b32 v{V_L32}, v{V_LR}")
    a(f"v_mov_b32 v{V_L32+1}, v{V_LI}")
    for i in range(5):
        cmul(a, V_L32, V_L32+1, V_L32, V_L32+1, V_L32, V_L32+1, T+5)
        if i == 3 and PKS["on"]:
            a(f"v_mov_b32 v{V_L16P}, v{V_L32}")
            a(f"v_mov_b32 v{V_L16P+1}, v{V_L32+1}")
    cmul(a, V_L128, V_L128+1, V_L32, V_L32+1, V_L32, V_L32+1, T+5)
    cmul(a, V_L128, V_L128+1, V_L128, V_L128+1, V_L128, V_L128+1, T+5)
    if loc:
        a(f"s_getreg_b32 s{S_FAST}, hwreg(HW_REG_XCC_ID)")
        a(f"s_and_b32 s{S_FAST}, s{S_FAST}, 0x7f")
        a(f"s_add_u32 s{S_FAST}, s{S_FAST}, 1")
        labx = a.label("XPUB")
        a(f"s_cmp_lg_u32 s{S_WAVE}, 0")
        a(f"s_cbranch_scc1 {labx}")
        a(f"s_mul_i32 s34, s{S_C}, 10")
        a(f"s_add_u32 s34, s34, s{S_S}")
        a(f"s_add_u32 s34, s34, 16")
        a(f"v_mov_b32 v{T}, s{S_FAST}")
        a(f"v_mov_b32 v{T+1}, 0")
        a(f"s_mov_b64 exec, 1")
        a(f"buffer_store_byte v{T}, v{T+1}, s[{SRD_DBG}:{SRD_DBG+3}], s34 offen sc1")
        a(f"s_mov_b64 exec, -1")
        a(f"{labx}:")
    if opts.get("tlbw"):
        a(f"v_lshlrev_b32 v{T}, 20, v{V_LANE}")
        a(f"s_mov_b64 exec, 0xfff")
        a(f"buffer_load_dword v{T+1}, v{T}, s[{SRD_WS}:{SRD_WS+3}], 0 offen")
        a(f"s_mov_b64 exec, 7")
        a(f"v_lshlrev_b32 v{T}, 21, v{V_LANE}")
        a(f"buffer_load_dword v{T+2}, v{T}, s[{SRD_C}:{SRD_C+3}], 0 offen")
        a(f"s_mov_b64 exec, -1")
    if opts.get("tlbw2"):
        a(f"v_lshlrev_b32 v{T}, 16, v{V_LANE}")
        a(f"s_mul_i32 s34, s{S_C}, 327680")
        a(f"s_add_u32 s35, s34, {WS_H}")
        a(f"s_mov_b64 exec, 0x3f")
        a(f"buffer_load_dword v{T+1}, v{T}, s[{SRD_WS}:{SRD_WS+3}], 0 offen")
        a(f"buffer_load_dword v{T+2}, v{T}, s[{SRD_WS}:{SRD_WS+3}], s35 offen")
        a(f"buffer_load_dword v{T+3}, v{T}, s[{SRD_C}:{SRD_C+3}], s34 offen")
        a(f"s_lshl_b32 s35, s{S_S}, 18")
        a(f"s_add_u32 s35, s35, {WS_A}")
        a(f"buffer_load_dword v{T+4}, v{T}, s[{SRD_WS}:{SRD_WS+3}], s35 offen")
        make_srd(a, 92, P_C2RE, 819200)
        a(f"s_mul_i32 s35, s{S_S}, 81920")
        a(f"s_mov_b64 exec, 3")
        a(f"buffer_load_dword v{T+5}, v{T}, s[92:95], s35 offen")
        make_srd(a, 92, P_C2IM, 819200)
        a(f"buffer_load_dword v{T+6}, v{T}, s[92:95], s35 offen")
        a(f"s_mov_b64 exec, -1")
    a(f"s_waitcnt lgkmcnt(0)")
    stamp(a, 2)
    a(f"s_barrier")
    stamp(a, 3)
    cstamp(a, 20)
    for ins in g1_reads(0, 0): a(ins)
    for ins in g1_reads(0, 1): a(ins)
    NST = 10
    for it in range(NST):
        for ks in range(4):
            gidx = 4*it + ks
            last = (gidx == 4*NST - 1)
            if kofl and it == opts.get("kflst", 1) and ks == 0:
                lk = a.label("KN"); lk2 = a.label("KN2")
                a(f"s_mov_b32 s{S_CNT}, 100000")
                a(f"s_waitcnt vmcnt(0)")
                a(f"{lk}:")
                a(f"v_readfirstlane_b32 s{S_NONCE}, v{V_NON}")
                a(f"v_readfirstlane_b32 s{S_NONCE+1}, v{V_NON+1}")
                a(f"s_nop 0")
                a(f"s_cmp_lg_u32 s{S_NONCE}, 0")
                a(f"s_cbranch_scc1 {lk2}")
                poll_timeout(a, S_CNT, END)
                a(f"buffer_load_dwordx2 v[{V_NON}:{V_NON+1}], v{V_ZERO}, s[{SRD_DBG}:{SRD_DBG+3}], 0 offen sc1")
                a(f"s_waitcnt vmcnt(0)")
                a(f"s_branch {lk}")
                a(f"{lk2}:")
                a(f"s_lshl_b32 s34, s{S_KY}, 1")
                a(f"s_add_u32 s34, s34, s{S_WM}")
                a(f"s_lshl_b32 s34, s34, 3")
                a(f"s_add_u32 s34, s34, {WS_KFLG}")
                a(f"v_mov_b32 v248, s{S_NONCE}")
                a(f"v_mov_b32 v249, s{S_NONCE+1}")
                a(f"s_mov_b64 s[{S_EXEC}:{S_EXEC+1}], exec")
                a(f"s_mov_b64 exec, 1")
                a(f"buffer_store_dwordx2 v[248:249], v{V_ZERO}, s[{SRD_WS}:{SRD_WS+3}], s34 offen sc1")
                a(f"s_mov_b64 exec, s[{S_EXEC}:{S_EXEC+1}]")
            a(f"s_waitcnt lgkmcnt({0 if last else 4})")
            fill = []
            nx = gidx + 2
            if nx < 4*NST:
                nit, nks = nx // 4, nx % 4
                if nks == 0:
                    a(f"s_barrier")
                    if opts.get("profst"): stamp(a, 16 + nit)
                fill += g1_reads(nit, nks)
                if nks == 0 and nit == 5 and not kofl:
                    fill.append(f"buffer_load_dwordx2 v[{V_NON}:{V_NON+1}], v{V_ZERO}, s[{SRD_DBG}:{SRD_DBG+3}], 0 offen sc1")
                if nks == 0 and nit == 6 and loc:
                    fill.append(f"s_mul_i32 s35, s{S_C}, 10")
                    fill.append(f"s_add_u32 s35, s35, 16")
                    fill.append(f"buffer_load_ubyte v{V_XC}, v{V_LANE}, s[{SRD_DBG}:{SRD_DBG+3}], s35 offen sc1")
            if last:
                a(f"s_barrier")
            interleave(a, g1_mfmas(it, ks), fill)
    cstamp(a, 21)
    stamp(a, 4)
    a("L_WIN_START:")
    a.c("pass 1")
    a(f"s_nop 7\ns_nop 7")
    if PKS["on"]:
        LAM = f"v[{V_LR}:{V_LR+1}]"
        P0, P1 = (T, T+2), (T+4, T+6)
        cur = None
        for m in range(2):
            for r in range(0, 16, 2):
                br, bi = acc(m, 0) + r, acc(m, 1) + r
                if cur is None:
                    cur = (br, bi)
                    nxt = P0
                    continue
                er, ei = cur; nr, ni = nxt
                a(f"v_pk_fma_f32 v[{nr}:{nr+1}], v[{er}:{er+1}], {LAM}, v[{br}:{br+1}] op_sel:[0,0,0] op_sel_hi:[1,0,1]")
                a(f"v_pk_fma_f32 v[{ni}:{ni+1}], v[{ei}:{ei+1}], {LAM}, v[{bi}:{bi+1}] op_sel:[0,0,0] op_sel_hi:[1,0,1]")
                a(f"v_pk_fma_f32 v[{nr}:{nr+1}], v[{ei}:{ei+1}], {LAM}, v[{nr}:{nr+1}] op_sel:[0,1,0] op_sel_hi:[1,1,1] neg_lo:[1,0,0] neg_hi:[1,0,0]")
                a(f"v_pk_fma_f32 v[{ni}:{ni+1}], v[{er}:{er+1}], {LAM}, v[{ni}:{ni+1}] op_sel:[0,1,0] op_sel_hi:[1,1,1]")
                cur = nxt; nxt = P1 if cur == P0 else P0
        er, ei = cur
        a(f"v_mov_b32 v{V_EA}, v{er}")
        a(f"v_mov_b32 v{V_EA+1}, v{ei}")
        a(f"v_fma_f32 v{V_ER}, v{er}, v{V_L16P}, v{er+1}")
        a(f"v_fma_f32 v{V_EI}, v{ei}, v{V_L16P}, v{ei+1}")
        a(f"v_fma_f32 v{V_ER}, -v{ei}, v{V_L16P+1}, v{V_ER}")
        a(f"v_fma_f32 v{V_EI}, v{er}, v{V_L16P+1}, v{V_EI}")
    else:
        first = True
        for m in range(2):
            for r in range(16):
                br, bi = acc(m, 0) + r, acc(m, 1) + r
                if first:
                    a(f"v_mov_b32 v{V_ER}, v{br}")
                    a(f"v_mov_b32 v{V_EI}, v{bi}")
                    first = False
                else:
                    src = (V_ER, V_EI) if cur == 0 else (T, T+1)
                    dst = (T, T+1) if cur == 0 else (V_ER, V_EI)
                    a(f"v_fma_f32 v{dst[0]}, v{V_LR}, v{src[0]}, v{br}")
                    a(f"v_fma_f32 v{dst[1]}, v{V_LR}, v{src[1]}, v{bi}")
                    a(f"v_fma_f32 v{dst[0]}, -v{V_LI}, v{src[1]}, v{dst[0]}")
                    a(f"v_fma_f32 v{dst[1]}, v{V_LI}, v{src[0]}, v{dst[1]}")
                    cur ^= 1
                    continue
                cur = 0
        if cur == 1:
            a(f"v_mov_b32 v{V_ER}, v{T}")
            a(f"v_mov_b32 v{V_EI}, v{T+1}")
    EX = 240; G = 248; SA = 252
    a(f"v_lshrrev_b32 v{T+2}, 5, v{V_LANE}")
    a(f"s_lshl_b32 s34, s{S_WM}, 1")
    a(f"v_add_u32 v{T+2}, s34, v{T+2}")
    a(f"v_and_b32 v{T+3}, 31, v{V_LANE}")
    a(f"s_lshl_b32 s34, s{S_WN}, 5")
    a(f"v_add_u32 v{T+3}, s34, v{T+3}")
    a(f"v_lshlrev_b32 v{T+3}, 3, v{T+3}")
    a(f"v_add_u32 v{T+3}, {L_EX}, v{T+3}")
    a(f"v_lshl_add_u32 v{T+2}, v{T+2}, 9, v{T+3}")
    a(f"ds_write_b64 v{T+2}, v[{V_ER}:{V_ER+1}]")
    a(f"v_mov_b32 v{T+4}, {CNT_EX}")
    a(f"v_mov_b32 v{T+5}, 1")
    a(f"s_waitcnt lgkmcnt(0)")
    lds_inc(a, T+4, T+5)
    lab_ok = a.label("NOK"); lab_p = a.label("NPOLL")
    a(f"s_mov_b32 s{S_CNT}, 100000")
    a(f"s_waitcnt vmcnt(0)")
    a(f"{lab_p}:")
    a(f"v_readfirstlane_b32 s{S_NONCE}, v{V_NON}")
    a(f"v_readfirstlane_b32 s{S_NONCE+1}, v{V_NON+1}")
    a(f"s_nop 0")
    a(f"s_cmp_lg_u32 s{S_NONCE}, 0")
    a(f"s_cbranch_scc1 {lab_ok}")
    poll_timeout(a, S_CNT, END)
    a(f"buffer_load_dwordx2 v[{V_NON}:{V_NON+1}], v{V_ZERO}, s[{SRD_DBG}:{SRD_DBG+3}], 0 offen sc1")
    a(f"s_waitcnt vmcnt(0)")
    a(f"s_branch {lab_p}")
    a(f"{lab_ok}:")
    if loc:
        a(f"v_cmp_ne_u32 vcc, s{S_FAST}, v{V_XC}")
        a(f"s_and_b64 vcc, vcc, 0x3ff")
        a(f"s_cmp_eq_u64 vcc, 0")
        a(f"s_cselect_b32 s{S_FAST}, 1, 0")
    lds_spin(a, T+4, T+6, 4, END)
    for sg in range(4):
        a(f"ds_read_b64 v[{EX+2*sg}:{EX+2*sg+1}], v{T+3} offset:{sg*512}")
    a(f"s_waitcnt lgkmcnt(0)")
    a(f"v_mov_b32 v{V_HR}, v{EX}")
    a(f"v_mov_b32 v{V_HI}, v{EX+1}")
    for sg in range(1, 4): cfma(a, V_HR, V_HI, V_L32, V_L32+1, EX+2*sg, EX+2*sg+1, T)
    lab_np = a.label("NOPUB")
    a(f"s_cmp_lg_u32 s{S_WM}, 0")
    a(f"s_cbranch_scc1 {lab_np}")
    a(f"v_mov_b32 v{G}, v{V_HR}")
    a(f"v_mov_b32 v{G+1}, v{V_HI}")
    a(f"v_mov_b32 v{G+2}, s{S_NONCE}")
    a(f"v_mov_b32 v{G+3}, s{S_NONCE+1}")
    a(f"s_mul_i32 s34, s{S_C}, 10240")
    a(f"s_add_u32 s34, s34, {WS_E}")
    a(f"s_mov_b64 s[{S_EXEC}:{S_EXEC+1}], exec")
    a(f"s_mov_b32 exec_lo, -1")
    a(f"s_mov_b32 exec_hi, 0")
    a(f"buffer_store_dwordx4 v[{G}:{G+3}], v{V_EOFF}, s[{SRD_WS}:{SRD_WS+3}], s34 offen sc1")
    a(f"s_mov_b64 exec, s[{S_EXEC}:{S_EXEC+1}]")
    a(f"{lab_np}:")
    a(f"v_mov_b32 v{T+4}, {CNT_P}")
    a(f"v_mov_b32 v{T+5}, 1")
    lds_inc(a, T+4, T+5)
    stamp(a, 5)
    def greg(cp): return (V_FR + 4*cp) if cp < 12 else (228 + 4*(cp-12))
    def issue_polls(lab_iss):
        for cp in range(15):
            a(f"s_cmp_le_u32 s{S_C}, {cp}")
            a(f"s_cbranch_scc1 {lab_iss}")
            a(f"s_mov_b32 s34, {WS_E + cp*10240}")
            a(f"buffer_load_dwordx4 v[{greg(cp)}:{greg(cp)+3}], v{V_EOFF}, s[{SRD_WS}:{SRD_WS+3}], s34 offen sc1")
        a(f"{lab_iss}:")
    a.c("scale")
    for m in range(2):
        for r in range(0, 16, 2):
            pr, pi = acc(m,0)+r, acc(m,1)+r
            qr, qi = acc2(m,0)+r, acc2(m,1)+r
            a(f"v_pk_mul_f32 v[{qr}:{qr+1}], v[{pr}:{pr+1}], v[{V_C2}:{V_C2+1}] op_sel:[0,0] op_sel_hi:[1,0]")
            a(f"v_pk_mul_f32 v[{qi}:{qi+1}], v[{pi}:{pi+1}], v[{V_C2}:{V_C2+1}] op_sel:[0,0] op_sel_hi:[1,0] neg_lo:[1,0] neg_hi:[1,0]")
            a(f"v_pk_fma_f32 v[{qr}:{qr+1}], v[{pi}:{pi+1}], v[{V_C2}:{V_C2+1}], v[{qr}:{qr+1}] op_sel:[0,1,0] op_sel_hi:[1,1,1] neg_lo:[1,0,0] neg_hi:[1,0,0]")
            a(f"v_pk_fma_f32 v[{qi}:{qi+1}], v[{pr}:{pr+1}], v[{V_C2}:{V_C2+1}], v[{qi}:{qi+1}] op_sel:[0,1,0] op_sel_hi:[1,1,1] neg_lo:[1,0,0] neg_hi:[1,0,0]")
    stamp(a, 6)
    lab_w0 = a.label("EW0"); lab_wj = a.label("EWJ")
    eall = opts.get("eall", False)
    if not eall:
        a(f"s_cmp_eq_u32 s{S_WM}, 0")
        a(f"s_cbranch_scc1 {lab_w0}")
    a.c("E combine: lane (p, hf) handles d = 2j+1+hf")
    SE = 92
    a(f"s_add_u32 s{SE}, s{P_WS}, {WS_E}")
    a(f"s_addc_u32 s{SE+1}, s{P_WS+1}, 0")
    a(f"s_and_b32 s{SE+1}, s{SE+1}, 0xffff")
    a(f"s_mov_b32 s{SE+2}, {16*10240}")
    a(f"s_mov_b32 s{SE+3}, 0x00020000")
    L256 = T+8
    cmul(a, L256, L256+1, V_L128, V_L128+1, V_L128, V_L128+1, T)
    VO = 228
    a(f"v_lshrrev_b32 v{T+2}, 5, v{V_LANE}")
    a(f"s_sub_u32 s34, s{S_C}, 1")
    a(f"v_sub_u32 v{T+2}, s34, v{T+2}")
    a(f"v_mul_i32_i24 v{T+2}, 10240, v{T+2}")
    a(f"v_add_u32 v{VO}, v{T+2}, v{V_EOFF}")
    for j in range(1, 8):
        a(f"v_subrev_u32 v{VO+j}, {20480*j}, v{VO}")
    GR = V_FR
    lab_poll = a.label("EPOLL"); lab_ok = a.label("EOK")
    a(f"s_mov_b32 s{S_CNT}, 100000")
    a(f"{lab_poll}:")
    for j in range(8):
        a(f"buffer_load_dwordx4 v[{GR+4*j}:{GR+4*j+3}], v{VO+j}, s[{SE}:{SE+3}], 0 offen sc1")
    a(f"s_mov_b64 s[{S_MISM}:{S_MISM+1}], 0")
    for j in range(8):
        a(f"s_waitcnt vmcnt({7-j})")
        a(f"v_cmp_ne_u64 vcc, s[{S_NONCE}:{S_NONCE+1}], v[{GR+4*j+2}:{GR+4*j+3}]")
        a(f"v_cmp_le_i32 s[{S_T2}:{S_T2+1}], 0, v{VO+j}")
        a(f"s_and_b64 vcc, vcc, s[{S_T2}:{S_T2+1}]")
        a(f"s_or_b64 s[{S_MISM}:{S_MISM+1}], s[{S_MISM}:{S_MISM+1}], vcc")
    a(f"s_cmp_eq_u64 s[{S_MISM}:{S_MISM+1}], 0")
    a(f"s_cbranch_scc1 {lab_ok}")
    if opts.get("efull", True):
        a(f"s_sleep {opts.get('esleep', 2)}")
        a(f"s_sub_u32 s{S_CNT}, s{S_CNT}, 1")
        a(f"s_cbranch_scc0 {lab_poll}")
        a(f"s_branch {END}")
    CP = T+12
    a(f"v_readfirstlane_b32 s35, v{V_EOFF}")
    a(f"s_sub_u32 s34, s{S_C}, 1")
    a(f"v_sub_u32 v{CP}, s34, v{V_LANE}")
    a(f"v_mul_i32_i24 v{CP}, 10240, v{CP}")
    a(f"v_add_u32 v{CP}, s35, v{CP}")
    a(f"v_cmp_le_i32 s[{S_T2}:{S_T2+1}], 0, v{CP}")
    a(f"s_and_b64 s[{S_T2}:{S_T2+1}], s[{S_T2}:{S_T2+1}], 0xffff")
    lab_cp = a.label("ECH")
    a(f"{lab_cp}:")
    a(f"s_sleep {opts.get('esleep', 2)}")
    a(f"buffer_load_dwordx4 v[{GR}:{GR+3}], v{CP}, s[{SE}:{SE+3}], 0 offen sc1")
    a(f"s_waitcnt vmcnt(0)")
    a(f"v_cmp_ne_u64 vcc, s[{S_NONCE}:{S_NONCE+1}], v[{GR+2}:{GR+3}]")
    a(f"s_and_b64 vcc, vcc, s[{S_T2}:{S_T2+1}]")
    a(f"s_cmp_eq_u64 vcc, 0")
    a(f"s_cbranch_scc1 {lab_poll}")
    a(f"s_sub_u32 s{S_CNT}, s{S_CNT}, 1")
    a(f"s_cbranch_scc0 {lab_cp}")
    a(f"s_branch {END}")
    a(f"{lab_ok}:")
    a(f"v_mov_b32 v{V_HR}, v{GR+28}")
    a(f"v_mov_b32 v{V_HI}, v{GR+29}")
    cur = (V_HR, V_HI); oth = (T, T+1)
    for j in range(6, -1, -1):
        er, ei = GR+4*j, GR+4*j+1
        a(f"v_fma_f32 v{oth[0]}, v{cur[0]}, v{L256}, v{er}")
        a(f"v_fma_f32 v{oth[1]}, v{cur[1]}, v{L256}, v{ei}")
        a(f"v_fma_f32 v{oth[0]}, -v{cur[1]}, v{L256+1}, v{oth[0]}")
        a(f"v_fma_f32 v{oth[1]}, v{cur[0]}, v{L256+1}, v{oth[1]}")
        cur, oth = oth, cur
    hr, hi = cur
    a(f"v_mov_b32 v{T+2}, v{hr}")
    a(f"v_mov_b32 v{T+3}, v{hi}")
    a(f"s_nop 1")
    a(f"v_permlane32_swap_b32 v{hr}, v{T+2}")
    a(f"v_permlane32_swap_b32 v{hi}, v{T+3}")
    a(f"s_nop 1")
    a(f"v_fma_f32 v{V_HR}, v{T+2}, v{V_L128}, v{hr}")
    a(f"v_fma_f32 v{V_HI}, v{T+3}, v{V_L128}, v{hi}")
    a(f"v_fma_f32 v{V_HR}, -v{T+3}, v{V_L128+1}, v{V_HR}")
    a(f"v_fma_f32 v{V_HI}, v{T+2}, v{V_L128+1}, v{V_HI}")
    if not eall:
        a(f"v_and_b32 v{T+2}, 31, v{V_LANE}")
        a(f"v_lshlrev_b32 v{T+2}, 3, v{T+2}")
        a(f"s_lshl_b32 s34, s{S_WN}, 8")
        a(f"s_add_u32 s34, s34, {L_HX}")
        a(f"v_add_u32 v{T+2}, s34, v{T+2}")
        a(f"ds_write_b64 v{T+2}, v[{V_HR}:{V_HR+1}]")
        a(f"s_lshl_b32 s34, s{S_WN}, 2")
        a(f"s_add_u32 s34, s34, {CNT_HX0}")
        a(f"v_mov_b32 v{T+4}, s34")
        a(f"v_mov_b32 v{T+5}, 1")
        a(f"s_waitcnt lgkmcnt(0)")
        lds_inc(a, T+4, T+5)
        a(f"s_branch {lab_wj}")
        a(f"{lab_w0}:")
        a(f"s_lshl_b32 s34, s{S_WN}, 2")
        a(f"s_add_u32 s34, s34, {CNT_HX0}")
        a(f"v_mov_b32 v{T+4}, s34")
        lds_spin(a, T+4, T+6, 1, END)
        a(f"v_and_b32 v{T+2}, 31, v{V_LANE}")
        a(f"v_lshlrev_b32 v{T+2}, 3, v{T+2}")
        a(f"s_lshl_b32 s34, s{S_WN}, 8")
        a(f"s_add_u32 s34, s34, {L_HX}")
        a(f"v_add_u32 v{T+2}, s34, v{T+2}")
        a(f"ds_read_b64 v[{V_HR}:{V_HR+1}], v{T+2}")
        a(f"s_waitcnt lgkmcnt(0)")
        a(f"{lab_wj}:")
    a(f"v_mov_b32 v{T+4}, {CNT_E}")
    a(f"v_mov_b32 v{T+5}, 1")
    lds_inc(a, T+4, T+5)
    lab_w1 = a.label("WM1"); lab_w2 = a.label("WMD")
    a(f"s_cmp_lg_u32 s{S_WM}, 0")
    a(f"s_cbranch_scc1 {lab_w1}")
    a(f"v_mov_b32 v{SA}, v{V_HR}")
    a(f"v_mov_b32 v{SA+1}, v{V_HI}")
    cfma(a, V_HR, V_HI, V_L32, V_L32+1, EX, EX+1, T)
    a(f"s_branch {lab_w2}")
    a(f"{lab_w1}:")
    cfma(a, V_HR, V_HI, V_L32, V_L32+1, EX, EX+1, T)
    cfma(a, V_HR, V_HI, V_L32, V_L32+1, EX+2, EX+3, T)
    a(f"v_mov_b32 v{SA}, v{V_HR}")
    a(f"v_mov_b32 v{SA+1}, v{V_HI}")
    cfma(a, V_HR, V_HI, V_L32, V_L32+1, EX+4, EX+5, T)
    a(f"{lab_w2}:")
    a(f"v_cmp_gt_u32 vcc, 32, v{V_LANE}")
    a(f"s_nop 1")
    a(f"v_cndmask_b32 v{V_HR}, v{V_HR}, v{SA}, vcc")
    a(f"v_cndmask_b32 v{V_HI}, v{V_HI}, v{SA+1}, vcc")
    a(f"v_mul_f32 v{T}, v{V_HR}, v{V_C2}")
    a(f"v_mul_f32 v{T+1}, -v{V_HI}, v{V_C2}")
    a(f"v_fma_f32 v{T}, -v{V_HI}, v{V_C2+1}, v{T}")
    a(f"v_fma_f32 v{V_HI}, -v{V_HR}, v{V_C2+1}, v{T+1}")
    a(f"v_mov_b32 v{V_HR}, v{T}")
    stamp(a, 7)
    a.c("pass 2 + stores")
    a(f"s_mul_i32 s34, s{S_C}, 20")
    a(f"s_add_u32 s34, s34, s{S_S}")
    a(f"s_lshl_b32 s34, s34, 14")
    a(f"s_lshl_b32 s35, s{S_WAVE}, 12")
    a(f"s_add_u32 s34, s34, s35")
    a(f"s_add_u32 s{S_T0}, s34, {WS_H}")
    a(f"s_add_u32 s{S_T1}, s{S_T0}, {10*16384}")
    if PKS["on"]:
        PK = 16
        LAM = f"v[{V_LR}:{V_LR+1}]"
        GR_, GI_ = T, T+2
        a(f"v_mul_f32 v{T+4}, v{V_EA}, v{V_C2}")
        a(f"v_mul_f32 v{T+5}, -v{V_EA+1}, v{V_C2}")
        a(f"v_fma_f32 v{T+4}, -v{V_EA+1}, v{V_C2+1}, v{T+4}")
        a(f"v_fma_f32 v{T+5}, -v{V_EA}, v{V_C2+1}, v{T+5}")
        a(f"v_mov_b32 v{GR_}, v{V_HR}")
        a(f"v_mov_b32 v{GI_}, v{V_HI}")
        a(f"v_fma_f32 v{GR_+1}, v{V_HR}, v{V_L16P}, v{T+4}")
        a(f"v_fma_f32 v{GI_+1}, v{V_HI}, v{V_L16P}, v{T+5}")
        a(f"v_fma_f32 v{GR_+1}, v{V_HI}, v{V_L16P+1}, v{GR_+1}")
        a(f"v_fma_f32 v{GI_+1}, -v{V_HR}, v{V_L16P+1}, v{GI_+1}")
        pr, pi = GR_, GI_
        def st(js, flag):
            for j in js:
                a(f"buffer_store_dwordx4 v[{PK+4*j}:{PK+4*j+3}], v{V_L16}, s[{SRD_WS}:{SRD_WS+3}], s{S_T0} offen offset:{j*1024} {flag}")
                a(f"buffer_store_dwordx4 v[{PK+16+4*j}:{PK+16+4*j+3}], v{V_L16}, s[{SRD_WS}:{SRD_WS+3}], s{S_T1} offen offset:{j*1024} {flag}")
        for m in range(2):
            for r in range(0, 16, 2):
                cr, ci = acc2(m,0)+r, acc2(m,1)+r
                a(f"v_pk_fma_f32 v[{cr}:{cr+1}], v[{pr}:{pr+1}], {LAM}, v[{cr}:{cr+1}] op_sel:[0,0,0] op_sel_hi:[1,0,1]")
                a(f"v_pk_fma_f32 v[{ci}:{ci+1}], v[{pi}:{pi+1}], {LAM}, v[{ci}:{ci+1}] op_sel:[0,0,0] op_sel_hi:[1,0,1]")
                a(f"v_pk_fma_f32 v[{cr}:{cr+1}], v[{pi}:{pi+1}], {LAM}, v[{cr}:{cr+1}] op_sel:[0,1,0] op_sel_hi:[1,1,1]")
                a(f"v_pk_fma_f32 v[{ci}:{ci+1}], v[{pr}:{pr+1}], {LAM}, v[{ci}:{ci+1}] op_sel:[0,1,0] op_sel_hi:[1,1,1] neg_lo:[1,0,0] neg_hi:[1,0,0]")
                pr, pi = cr, ci
                if (r // 2) % 2 == 1:
                    d = (r // 2) // 2
                    for seg in range(2):
                        j = 2*seg + m
                        a(f"v_cvt_pk_bf16_f32 v{PK + 4*j + d}, v{cr-2+seg}, v{cr+seg}")
                        a(f"v_cvt_pk_bf16_f32 v{PK + 16 + 4*j + d}, v{ci-2+seg}, v{ci+seg}")
            st([m, 2 + m], opts.get('hst', 'sc1'))
    else:
        pr, pi = V_HR, V_HI
        PK = 16
        for m in range(2):
            for r in range(16):
                cr, ci = acc2(m,0)+r, acc2(m,1)+r
                a(f"v_fma_f32 v{cr}, v{V_LR}, v{pr}, v{cr}")
                a(f"v_fma_f32 v{ci}, v{V_LR}, v{pi}, v{ci}")
                a(f"v_fma_f32 v{cr}, v{V_LI}, v{pi}, v{cr}")
                a(f"v_fma_f32 v{ci}, -v{V_LI}, v{pr}, v{ci}")
                pr, pi = cr, ci
                if r % 2 == 1:
                    t = 16*m + r
                    j, d = t // 8, (t % 8) // 2
                    a(f"v_cvt_pk_bf16_f32 v{PK + 4*j + d}, v{cr-1}, v{cr}")
                    a(f"v_cvt_pk_bf16_f32 v{PK + 16 + 4*j + d}, v{ci-1}, v{ci}")
                    if d == 3:
                        def st(flag):
                            a(f"buffer_store_dwordx4 v[{PK+4*j}:{PK+4*j+3}], v{V_L16}, s[{SRD_WS}:{SRD_WS+3}], s{S_T0} offen offset:{j*1024} {flag}")
                            a(f"buffer_store_dwordx4 v[{PK+16+4*j}:{PK+16+4*j+3}], v{V_L16}, s[{SRD_WS}:{SRD_WS+3}], s{S_T1} offen offset:{j*1024} {flag}")
                        if loc:
                            l1 = a.label("HS"); l2 = a.label("HS")
                            a(f"s_cmp_eq_u32 s{S_FAST}, 1")
                            a(f"s_cbranch_scc1 {l1}")
                            st("sc1")
                            a(f"s_branch {l2}")
                            a(f"{l1}:")
                            st("")
                            a(f"{l2}:")
                        else:
                            st(opts.get('hst', 'sc1'))
    stamp(a, 8)
    a.c("acc init from x tile")
    a(f"v_mov_b32 v{T+4}, {CNT_X}")
    lds_spin(a, T+4, T+6, 4, END)
    XA = T+7
    a(f"v_lshrrev_b32 v{T+8}, 5, v{V_LANE}")
    a(f"v_bfe_u32 v{T+9}, v{V_LANE}, 2, 2")
    a(f"v_lshl_add_u32 v{T+8}, v{T+8}, 2, v{T+9}")
    a(f"s_lshl_b32 s34, s{S_WM}, 6")
    a(f"v_add_u32 v{T+8}, s34, v{T+8}")
    a(f"v_lshlrev_b32 v{XA}, 7, v{T+8}")
    a(f"v_bfe_u32 v{T+8}, v{V_LANE}, 4, 1")
    a(f"v_lshlrev_b32 v{T+8}, 5, v{T+8}")
    a(f"v_and_b32 v{T+9}, 3, v{V_LANE}")
    a(f"v_lshl_add_u32 v{T+8}, v{T+9}, 3, v{T+8}")
    a(f"s_lshl_b32 s34, s{S_WN}, 6")
    a(f"s_add_u32 s34, s34, {L_XT}")
    a(f"v_add_u32 v{T+8}, s34, v{T+8}")
    a(f"v_add_u32 v{XA}, v{XA}, v{T+8}")
    XV = 96
    for m in range(2):
        for q in range(4):
            r = XV + 2*(4*m+q)
            a(f"ds_read_b64_tr_b16 v[{r}:{r+1}], v{XA} offset:{(32*m+8*q)*128}")
    a(f"s_waitcnt lgkmcnt(0)")
    for qi in range(8):
        for h in range(2):
            xv = XV + 2*qi + h
            a0 = G2_ACC + 4*qi + 2*h
            a(f"v_lshlrev_b32 v{a0}, 16, v{xv}")
            a(f"v_and_b32 v{a0+1}, 0xffff0000, v{xv}")
            a(f"v_mul_f32 v{a0}, v{a0}, v{V_DSB}")
            a(f"v_mul_f32 v{a0+1}, v{a0+1}, v{V_DSB}")
            a(f"v_cvt_pk_bf16_f32 v{a0}, v{a0}, v{a0+1}")
            a(f"v_and_b32 v{a0+1}, 0xffff0000, v{a0}")
            a(f"v_lshlrev_b32 v{a0}, 16, v{a0}")
    a(f"v_lshrrev_b32 v{T}, 4, v{V_LANE}")
    a(f"v_bfe_u32 v{T+1}, v{V_LANE}, 2, 2")
    a(f"v_and_b32 v{T+2}, 3, v{V_LANE}")
    a(f"v_and_b32 v{T+3}, 1, v{T}")
    a(f"v_lshlrev_b32 v{T+3}, 1, v{T+3}")
    a(f"v_lshrrev_b32 v{T+4}, 1, v{T+2}")
    a(f"v_add_u32 v{T+3}, v{T+3}, v{T+4}")
    a(f"v_mul_u32_u24 v{T+3}, 1088, v{T+3}")
    a(f"v_lshrrev_b32 v{T+4}, 1, v{T}")
    a(f"v_lshl_add_u32 v{T+4}, v{T+4}, 3, v{T+1}")
    a(f"v_lshl_add_u32 v{T+3}, v{T+4}, 4, v{T+3}")
    a(f"v_and_b32 v{T+4}, 1, v{T+2}")
    a(f"v_lshl_add_u32 v{T+3}, v{T+4}, 3, v{T+3}")
    a(f"s_mul_i32 s34, s{S_WM}, 8704")
    a(f"v_add_u32 v{V_HA}, s34, v{T+3}")
    a(f"v_add_u32 v{V_HA2}, {3*HSLOT}, v{V_HA}")
    for ks in range(4):
        a(f"v_xor_b32 v{2+ks}, {32*ks}, v221")
        a(f"v_add_u32 v{V_CB+ks}, {CBASE}, v{2+ks}")
    a(f"s_waitcnt vmcnt(0)")
    a(f"v_mov_b32 v{T+4}, {CNT_H}")
    a(f"v_mov_b32 v{T+5}, 1")
    a(f"s_mov_b64 s[{S_EXEC}:{S_EXEC+1}], exec")
    a(f"s_mov_b64 exec, 1")
    a(f"ds_add_rtn_u32 v{T+6}, v{T+4}, v{T+5}")
    a(f"s_waitcnt lgkmcnt(0)")
    a(f"v_readfirstlane_b32 s{S_T3}, v{T+6}")
    lab_nf = a.label("NOHF")
    a(f"s_nop 0")
    a(f"s_cmp_lg_u32 s{S_T3}, 3")
    a(f"s_cbranch_scc1 {lab_nf}")
    a(f"s_lshl_b32 s34, s{S_C}, 7")
    a(f"s_lshl_b32 s35, s{S_S}, 3")
    a(f"s_add_u32 s34, s34, s35")
    a(f"s_add_u32 s34, s34, {WS_FLAG}")
    a(f"v_mov_b32 v{G}, s{S_NONCE}")
    a(f"v_mov_b32 v{G+1}, s{S_NONCE+1}")
    if loc:
        l1 = a.label("HF"); l2 = a.label("HF")
        a(f"s_cmp_eq_u32 s{S_FAST}, 1")
        a(f"s_cbranch_scc1 {l1}")
        a(f"buffer_store_dwordx2 v[{G}:{G+1}], v{V_ZERO}, s[{SRD_WS}:{SRD_WS+3}], s34 offen sc1")
        a(f"s_branch {l2}")
        a(f"{l1}:")
        a(f"buffer_store_dwordx2 v[{G}:{G+1}], v{V_ZERO}, s[{SRD_WS}:{SRD_WS+3}], s34 offen")
        a(f"{l2}:")
    else:
        a(f"buffer_store_dwordx2 v[{G}:{G+1}], v{V_ZERO}, s[{SRD_WS}:{SRD_WS+3}], s34 offen {opts.get('hst', 'sc1')}")
    a(f"{lab_nf}:")
    a(f"s_mov_b64 exec, s[{S_EXEC}:{S_EXEC+1}]")
    stamp(a, 9)
    a(f"v_mov_b32 v{T+4-T+240}, {CNT_C}")
    lds_spin(a, 244, 245, 4, END)
    n = 0
    for ch in range(NREG):
        for ks in range(4):
            r = V_CREG + 16*ch + 4*ks
            off = L_CST + ch*8192
            reg = 2 + ks
            if off >= 65536:
                a(f"v_add_u32 v246, {off}, v{reg}")
                a(f"ds_read_b128 v[{r}:{r+3}], v246")
            else:
                a(f"ds_read_b128 v[{r}:{r+3}], v{reg} offset:{off}")
            n += 1
            if n % 12 == 0: a(f"s_waitcnt lgkmcnt(4)")
    a(f"s_waitcnt lgkmcnt(0)")
    a(f"v_mov_b32 v244, {CNT_R}")
    a(f"v_mov_b32 v245, 1")
    lds_inc(a, 244, 245)
    stamp(a, 10)
    a(f"s_barrier")
    stamp(a, 11)
    cstamp(a, 22)
    D2 = G2_NS - 1
    for k0 in range(D2):
        for ins in g2_reads(0, k0): a(ins)
    NST = 20
    for it in range(NST):
        for ks in range(4):
            gidx = 4*it + ks
            rem = 0
            for g2 in range(gidx + 1, min(gidx + D2, 4*NST)):
                rem += len(g2_reads(g2 // 4, g2 % 4))
            a(f"s_waitcnt lgkmcnt({rem})")
            fill = []
            nx = gidx + D2
            if nx < 4*NST:
                nit, nks = nx // 4, nx % 4
                if nks == 0: a(f"s_barrier")
                fill += g2_reads(nit, nks)
            interleave(a, g2_mfmas(it, ks), fill)
    cstamp(a, 23)
    stamp(a, 12)
    a(f"v_and_b32 v{T}, 31, v{V_LANE}")
    a(f"s_lshl_b32 s34, s{S_WN}, 5")
    a(f"v_add_u32 v{T}, s34, v{T}")
    a(f"v_lshrrev_b32 v{T+3}, 5, v{V_LANE}")
    a(f"v_and_b32 v{T+1}, 15, v{T}")
    a(f"s_lshl_b32 s34, s{S_WM}, 3")
    a(f"v_xor_b32 v{T+1}, s34, v{T+1}")
    a(f"v_lshlrev_b32 v{T+2}, 8, v{T}")
    a(f"v_lshl_add_u32 v{T+2}, v{T+3}, 3, v{T+2}")
    a(f"v_add_u32 v{T+2}, {L_AT}, v{T+2}")
    GA = T+5
    a(f"s_lshl_b32 s34, s{S_WM}, 9")
    a(f"s_add_u32 s34, s34, {L_G}")
    a(f"v_lshlrev_b32 v{GA}, 5, v{T+3}")
    a(f"v_add_u32 v{GA}, s34, v{GA}")
    GV = 112
    for m in range(2):
        for q in range(4):
            gb = GV + 8*(4*m+q)
            a(f"ds_read_b128 v[{gb}:{gb+3}], v{GA} offset:{(32*m+8*q)*8}")
            a(f"ds_read_b128 v[{gb+4}:{gb+7}], v{GA} offset:{(32*m+8*q)*8+16}")
            if (4*m+q) == 2: a("s_waitcnt lgkmcnt(6)")
            if (4*m+q) == 5: a("s_waitcnt lgkmcnt(6)")
    OV = T+6
    a(f"v_mul_u32_u24 v{OV}, 2560, v{T+3}")
    a(f"s_lshl_b32 s34, s{S_S}, 6")
    a(f"v_add_u32 v{OV}, v{OV}, v{T}")
    a(f"v_add_u32 v{OV}, s34, v{OV}")
    a(f"v_lshlrev_b32 v{OV}, 2, v{OV}")
    a(f"s_lshl_b32 s34, s{S_C}, 7")
    a(f"s_lshl_b32 s35, s{S_WM}, 6")
    a(f"s_add_u32 s34, s34, s35")
    a(f"s_mul_i32 s{S_T2}, s34, 2560")
    for m in range(2):
        for q in range(4):
            a(f"v_xor_b32 v{T+4}, {4*m+q}, v{T+1}")
            a(f"v_lshl_add_u32 v{240+4*m+q}, v{T+4}, 4, v{T+2}")
    a(f"s_barrier")
    stamp(a, 13)
    AV = 96
    for m in range(2):
        for q in range(4):
            r = AV + 2*(4*m+q)
            a(f"ds_read_b64 v[{r}:{r+1}], v{240+4*m+q}")
    a(f"s_waitcnt lgkmcnt(0)")
    W = 180
    ldsout = opts.get("ldsout", True)
    if ldsout:
        a(f"s_lshl_b32 s34, s{S_WAVE}, 13")
        a(f"s_add_u32 s34, s34, 65536")
        a(f"s_mov_b32 m0, s34")
        a(f"v_lshlrev_b32 v190, 4, v{V_LANE}")
        a(f"v_add_u32 v190, s34, v190")
        a(f"v_lshrrev_b32 v192, 4, v{V_LANE}")
        a(f"v_bfe_u32 v193, v{V_LANE}, 3, 1")
        a(f"v_lshl_add_u32 v192, v193, 2, v192")
        a(f"v_mul_u32_u24 v192, 2560, v192")
        a(f"v_and_b32 v193, 7, v{V_LANE}")
        a(f"v_lshl_add_u32 v192, v193, 4, v192")
        a(f"s_lshl_b32 s34, s{S_S}, 8")
        a(f"s_lshl_b32 s35, s{S_WN}, 7")
        a(f"s_add_u32 s34, s34, s35")
        a(f"v_add_u32 v191, s34, v192")
    for m in range(2):
        for q in range(4):
            qi = 4*m+q
            gb = GV + 8*qi
            for h in range(2):
                av = AV + 2*qi + h
                a0 = G2_ACC + 16*m + 4*q + 2*h
                w = W + 2*h
                a(f"v_lshlrev_b32 v{w}, 16, v{av}")
                a(f"v_and_b32 v{w+1}, 0xffff0000, v{av}")
                a(f"v_mul_f32 v{w}, v{w}, v{gb+4*h}")
                a(f"v_mul_f32 v{w+1}, v{w+1}, v{gb+4*h+2}")
                a(f"v_cvt_pk_bf16_f32 v{w}, v{w}, v{w+1}")
                a(f"v_and_b32 v{w+1}, 0xffff0000, v{w}")
                a(f"v_lshlrev_b32 v{w}, 16, v{w}")
                a(f"v_fma_f32 v{a0}, v{gb+4*h+1}, v{a0}, v{w}")
                a(f"v_fma_f32 v{a0+1}, v{gb+4*h+3}, v{a0+1}, v{w+1}")
                for e in range(2):
                    row = 32*m + 8*q + 2*h + e
                    if ldsout:
                        a(f"ds_write_addtid_b32 v{a0+e} offset:{(4*qi + 2*h + e)*256}")
                    else:
                        a(f"s_add_u32 s35, s{S_T2}, {row*2560}")
                        a(f"buffer_store_dword v{a0+e}, v{OV}, s[{SRD_C}:{SRD_C+3}], s35 offen {opts.get('ost', '')}")
            if ldsout and qi >= 1:
                j = qi - 1
                a(f"ds_read_b128 v[{112+4*j}:{115+4*j}], v190 offset:{j*1024}")
            if ldsout and qi >= 2:
                j = qi - 2
                a(f"s_waitcnt lgkmcnt(5)")
                a(f"s_add_u32 s35, s{S_T2}, {(32*(j >> 2) + 8*(j & 3))*2560}")
                a(f"buffer_store_dwordx4 v[{112+4*j}:{115+4*j}], v191, s[{SRD_C}:{SRD_C+3}], s35 offen {opts.get('ost', '')}")
    if ldsout:
        a(f"ds_read_b128 v[{112+28}:{115+28}], v190 offset:{7*1024}")
        for j in (6, 7):
            a(f"s_waitcnt lgkmcnt({7-j})")
            a(f"s_add_u32 s35, s{S_T2}, {(32*(j >> 2) + 8*(j & 3))*2560}")
            a(f"buffer_store_dwordx4 v[{112+4*j}:{115+4*j}], v191, s[{SRD_C}:{SRD_C+3}], s35 offen {opts.get('ost', '')}")
    stamp(a, 15)
    if PROF["on"]:
        a("s_waitcnt vmcnt(0)")
        stamp(a, 16)
    prof_end(a, opts.get("profwave", 0))

def gen_gemm(a, END, opts):
    PKS["on"] = bool(opts.get("pkscan"))
    G1MOD.A1OFF["v"] = 1024 if PKS["on"] else 2048
    a.c("================= GEMM role v2 =================")
    if opts.get("map45", True):
        a(f"s_mul_i32 s34, s31, 52")
        a(f"s_lshr_b32 s34, s34, 8")
        a(f"s_mul_i32 s35, s34, 5")
        a(f"s_sub_u32 s35, s31, s35")
        a(f"s_lshr_b32 s93, s30, 1")
        a(f"s_and_b32 s94, s30, 1")
        a(f"s_lshl_b32 s{S_C}, s93, 2")
        a(f"s_add_u32 s{S_C}, s{S_C}, s34")
        a(f"s_mul_i32 s{S_S}, s94, 5")
        a(f"s_add_u32 s{S_S}, s{S_S}, s35")
        a(f"s_lshl_b32 s35, s35, 1")
        a(f"s_add_u32 s35, s35, s94")
        a(f"s_add_u32 s35, s35, s93")
        a(f"s_mul_i32 s34, s34, 5")
        a(f"s_lshr_b32 s34, s34, 1")
        a(f"s_add_u32 s93, s35, s34")
        a(f"s_cmp_ge_u32 s93, 10")
        a(f"s_cselect_b32 s34, 10, 0")
        a(f"s_sub_u32 s93, s93, s34")
    else:
        a(f"s_mov_b32 s93, s30")
        a(f"s_cmp_ge_u32 s31, 10")
        a(f"s_cselect_b32 s34, 1, 0")
        a(f"s_cselect_b32 s35, 10, 0")
        a(f"s_lshl_b32 s30, s30, 1")
        a(f"s_add_u32 s{S_C}, s30, s34")
        a(f"s_sub_u32 s{S_S}, s31, s35")
        a(f"s_mul_i32 s34, s34, 5")
        a(f"s_add_u32 s93, s93, s34")
        a(f"s_add_u32 s93, s93, s{S_S}")
        for _ in range(2):
            a(f"s_cmp_ge_u32 s93, 10")
            a(f"s_cselect_b32 s34, 10, 0")
            a(f"s_sub_u32 s93, s93, s34")
    a(f"s_cmp_lt_u32 s{S_WAVE}, 4")
    a(f"s_cbranch_scc1 L_COMPUTE")
    gen_loader(a, END, opts)
    a("L_COMPUTE:")
    if EARLY["on"]: common_init(a, True)
    gen_compute(a, END, opts)
```
